```python
import torch

def _softmax(x, axis=-1):
    return torch.softmax(x, dim=axis)
def _gelu(x):
    return torch.nn.functional.gelu(x, approximate="tanh")
def _silu(x):
    return torch.nn.functional.silu(x)
def _sigmoid(x):
    return torch.sigmoid(x)
def _layernorm(x, axis=-1, eps=1e-5):
    m = x.mean(dim=axis, keepdim=True)
    v = x.var(dim=axis, keepdim=True, unbiased=False)
    return (x - m) / torch.sqrt(v + eps)
def _scatter_add(tgt, idx, src, axis=0):
    return tgt.clone().index_add_(axis, idx, src)
def _segment_sum(src, seg, n):
    out = torch.zeros((n,) + src.shape[1:], dtype=src.dtype)
    return out.index_add_(0, seg, src)
def _pad(x, pw):
    flat = tuple(v for pair in reversed(pw) for v in pair)
    return torch.nn.functional.pad(x, flat)

kernel_name = 'gated_mix__ssm_conv_s5__glu_gated_swiglu__prompt'

def setup_inputs():

    _w = (lambda a: (lambda t: t.to(torch.bfloat16) if t.is_floating_point() else t)(torch.as_tensor(a)))
    def _A_setup():
        B, S, D = 1, 2048, 512
        P = D
        Lambda_re = -0.5 * (lambda _x: torch.exp(torch.as_tensor(_x)))((lambda *s: torch.randn(*s, dtype=torch.bfloat16) * 0.2)(P))
        Lambda_im = (lambda *s: torch.randn(*s, dtype=torch.bfloat16) * 0.4)(P) * 1.0
        B_re = (lambda *s: torch.randn(*s, dtype=torch.bfloat16) * 0.2)(P, D) * (D ** -0.5)
        B_im = (lambda *s: torch.randn(*s, dtype=torch.bfloat16) * 0.2)(P, D) * (D ** -0.5)
        C_re = (lambda *s: torch.randn(*s, dtype=torch.bfloat16) * 0.2)(D, P) * (P ** -0.5)
        C_im = (lambda *s: torch.randn(*s, dtype=torch.bfloat16) * 0.2)(D, P) * (P ** -0.5)
        log_dt = (lambda *s: torch.randn(*s, dtype=torch.bfloat16) * 0.2)(P) * 0.3 - 2.0
        Dskip = (lambda *s: torch.randn(*s, dtype=torch.bfloat16) * 0.05)(D)
        return {
            "x": _w((lambda *s: torch.randn(*s, dtype=torch.bfloat16) * 0.05)(B, S, D)),
            "Lambda_re": _w(Lambda_re),
            "Lambda_im": _w(Lambda_im),
            "B_re": _w(B_re),
            "B_im": _w(B_im),
            "C_re": _w(C_re),
            "C_im": _w(C_im),
            "log_dt": _w(log_dt),
            "Dskip": _w(Dskip),
        }
    _A_in = _A_setup()

    def _B_setup():
        B, S, D, F = 1, 2048, 512, 1376
        return {
            "x": _w((lambda *s: torch.randn(*s, dtype=torch.bfloat16) * 0.05)(B, S, D)),
            "w1": _w((lambda *s: torch.randn(*s, dtype=torch.bfloat16) * 0.8)(D, F) * (2.0 / D) ** 0.5),
            "w3": _w((lambda *s: torch.randn(*s, dtype=torch.bfloat16) * 0.8)(D, F) * (2.0 / D) ** 0.5),
            "w2": _w((lambda *s: torch.randn(*s, dtype=torch.bfloat16) * 0.8)(F, D) * (2.0 / F) ** 0.5),
        }
    _B_in = _B_setup()

    return {
        "A_x": _A_in["x"],
        "A_Lambda_re": _A_in["Lambda_re"],
        "A_Lambda_im": _A_in["Lambda_im"],
        "A_B_re": _A_in["B_re"],
        "A_B_im": _A_in["B_im"],
        "A_C_re": _A_in["C_re"],
        "A_C_im": _A_in["C_im"],
        "A_log_dt": _A_in["log_dt"],
        "A_Dskip": _A_in["Dskip"],
        "B_x": _B_in["x"],
        "B_w1": _B_in["w1"],
        "B_w3": _B_in["w3"],
        "B_w2": _B_in["w2"],
        "gate_w": _w((lambda *s: torch.randn(*s, dtype=torch.bfloat16) * 0.05)(512) * 16.0),
    }

def reference(A_x, A_Lambda_re, A_Lambda_im, A_B_re, A_B_im, A_C_re, A_C_im, A_log_dt, A_Dskip, B_x, B_w1, B_w3, B_w2, gate_w):
    def _A_ref(x, Lambda_re, Lambda_im, B_re, B_im, C_re, C_im, log_dt, Dskip):
        Bsz, L, H = x.shape
        Lam = Lambda_re + 1j * Lambda_im
        Bmat = B_re + 1j * B_im
        Cmat = C_re + 1j * C_im
        dt = torch.exp(log_dt)
        Lam_bar = torch.exp(dt * Lam)
        B_bar = ((Lam_bar - 1.0) / Lam)[:, None] * Bmat
        Bu = torch.einsum("bld,pd->blp", x + 0j, B_bar)
        h = torch.zeros_like(Bu[:, 0, :])
        hs = []
        for t in range(L):
            h = Lam_bar[None, :] * h + Bu[:, t, :]
            hs.append(h)
        hseq = torch.stack(hs, 1)
        y = 2.0 * torch.einsum("blp,dp->bld", hseq, Cmat).real + x * Dskip[None, None, :]
        return y

    def _B_ref(x, w1, w3, w2):
        gate = torch.einsum("bsd,df->bsf", x, w1)
        up = torch.einsum("bsd,df->bsf", x, w3)
        h = _silu(gate) * up
        out = torch.einsum("bsf,fd->bsd", h, w2)
        return out

    x = A_x
    g = _sigmoid((x * gate_w).sum(-1, keepdims=True))
    a = _A_ref(x, A_Lambda_re, A_Lambda_im, A_B_re, A_B_im, A_C_re, A_C_im, A_log_dt, A_Dskip)
    b = _B_ref(x, B_w1, B_w3, B_w2)
    return g * a + (1 - g) * b
```

```python
import re
REG=re.compile(r'\b([vas])(?:(\d+)|\[(\d+):(\d+)\])(?![\w])')
TRANS=('v_exp_f32','v_log_f32','v_rcp_f32','v_rsq_f32','v_sqrt_f32','v_sin_f32','v_cos_f32')
def regs_of(op):
    out=set()
    for m in REG.finditer(op):
        k=m.group(1)
        if m.group(2) is not None: out.add((k,int(m.group(2))))
        else:
            for i in range(int(m.group(3)),int(m.group(4))+1): out.add((k,i))
    for nm in ('vcc','exec','m0','scc'):
        if re.search(r'\b'+nm+r'\b',op): out.add((nm,0))
    return out
class Ins:
    __slots__=('text','mn','cls','wr','rd','ops','states')
    def __init__(s,text):
        s.text=text
        t=text.split(';')[0].strip()
        s.states=1
        if t.endswith(':') or t.startswith('.') or not t:
            s.mn='';s.cls='label';s.wr=set();s.rd=set();s.ops=[];s.states=0;return
        parts=t.split(None,1)
        mn=parts[0]; s.mn=mn
        rest=parts[1] if len(parts)>1 else ''
        ops=[o.strip() for o in rest.split(',')] if rest else []
        s.ops=ops
        R=[regs_of(o) for o in ops]
        U=lambda l:set().union(*l) if l else set()
        wr=set();rd=set()
        if mn.startswith('v_mfma'):
            s.cls='mfma'; wr=R[0]; rd=U(R[1:])
        elif mn.startswith('v_'):
            s.cls='valu'
            if mn.startswith('v_cmp'):
                wr=R[0]; rd=U(R[1:])
            elif mn.startswith(('v_add_co','v_addc_co','v_sub_co','v_subb_co')):
                wr=R[0]|R[1]; rd=U(R[2:])
            elif mn.startswith('v_permlane32_swap') or mn.startswith('v_permlane16_swap'):
                wr=R[0]|R[1]; rd=R[0]|R[1]
            elif mn.startswith(('v_fmac','v_pk_fmac')):
                wr=R[0]; rd=U(R)
            elif mn=='v_nop': pass
            else:
                wr=R[0]; rd=U(R[1:])
        elif mn.startswith('ds_'):
            s.cls='ds'
            if mn.startswith('ds_read'): wr=R[0]; rd=U(R[1:])
            else: rd=U(R)
        elif mn.startswith(('buffer_','global_')):
            s.cls='vmem'
            if ' lds' in t or '_lds_' in mn:
                rd=U(R)|{('m0',0)}; s.cls='dma'
            elif 'load' in mn: wr=R[0]; rd=U(R[1:])
            else: rd=U(R)
        elif mn.startswith('s_'):
            s.cls='salu'
            if mn=='s_nop': s.states=int(ops[0],0)+1
            elif mn.startswith(('s_cmp','s_waitcnt','s_barrier','s_branch','s_cbranch','s_endpgm','s_sleep','s_setprio','s_bitcmp')):
                rd=U(R)
            else:
                wr=R[0] if R else set(); rd=U(R[1:])
        else:
            raise ValueError('unknown instr '+text)
        s.wr=wr;s.rd=rd
def need_states(p,c):
    n=0
    isv=lambda S:{r for r in S if r[0] in 'va'}
    iss=lambda S:{r for r in S if r[0] in('s','vcc')}
    if p.cls=='valu':
        pv=isv(p.wr); ps=iss(p.wr)
        if c.cls=='mfma' and pv&c.rd: n=max(n,2)
        if p.mn in TRANS and c.cls in('valu','mfma') and pv&(c.rd): n=max(n,1)
        if c.cls=='valu' and c.mn.startswith(('v_readlane','v_readfirstlane')) and pv&c.rd: n=max(n,1)
        if c.cls=='valu' and c.mn.startswith('v_permlane') and pv&c.rd: n=max(n,2)
        if c.cls=='valu' and ('dpp' in c.text or 'row_' in c.text) and pv&c.rd: n=max(n,2)
        if ps:
            if c.cls=='valu' and ps&c.rd: n=max(n,4 if c.mn.startswith(('v_readlane','v_writelane')) else 2)
            if c.cls in('vmem','dma') and ps&c.rd: n=max(n,5)
            if c.cls=='salu' and ps&c.rd: n=max(n,1)
        if ('op_sel' in p.text or 'sdwa' in p.text) and c.cls=='valu' and pv&(c.rd|c.wr): n=max(n,1)
    if p.cls=='mfma':
        D=p.wr
        if c.cls=='mfma':
            C=regs_of(c.ops[3]); AB=regs_of(c.ops[1])|regs_of(c.ops[2])
            if D&AB: n=max(n,12)
            if D&C and D!=C: n=max(n,10)
            if D&c.wr and not (D&C): n=max(n,12)
        elif c.cls in('valu','ds','vmem','dma'):
            if D&(c.rd|c.wr): n=max(n,12)
        C=regs_of(p.ops[3])
        if c.cls=='valu' and C&c.wr: n=max(n,7)
    if p.cls=='salu' and ('m0',0) in p.wr and c.cls=='dma': n=max(n,1)
    if p.cls=='vmem' and 'store' in p.mn and ('x4' in p.mn or 'x3' in p.mn):
        data=regs_of(p.ops[0] if p.mn.startswith('buffer') else p.ops[1])
        if data&c.wr: n=max(n,2 if c.cls=='valu' else 1)
    return n
class Gen:
    def __init__(s):
        s.ins=[]; s.nvm=0; s.vm_done=0; s.nlg=0; s.lg_done=0; s.smem=False
    def e(s,text):
        for t in text.split('\n'):
            t=t.strip()
            if not t: continue
            i=Ins(t)
            need=0; dist=0
            for p in reversed(s.ins[-40:]):
                if p.cls=='label' and p.text.endswith(':'): pass
                k=need_states(p,i)-dist
                if k>need: need=k
                dist+=p.states
                if dist>=20: break
            while need>0:
                k=min(need,16)
                s.ins.append(Ins(f's_nop {k-1}')); need-=k
            s.ins.append(i)
    def vm(s,text):
        s.e(text); s.nvm+=1; return s.nvm
    def lg(s,text):
        s.e(text); s.nlg+=1; return s.nlg
    def wait(s,vm=None,lg=None):
        parts=[]
        if vm is not None and vm>s.vm_done:
            n=s.nvm-vm
            if n<=63: parts.append(f'vmcnt({n})')
            else: parts.append('vmcnt(63)')
            s.vm_done=vm
        if lg is not None and lg>s.lg_done:
            n=s.nlg-lg
            if s.smem: n=0; s.smem=False; lg=s.nlg
            parts.append(f'lgkmcnt({min(n,15)})')
            s.lg_done=lg
        if parts: s.e('s_waitcnt '+' '.join(parts))
    def wait_all_lg(s):
        s.e('s_waitcnt lgkmcnt(0)'); s.lg_done=s.nlg; s.smem=False
    def text(s):
        return '\n'.join(('' if i.cls=='label' else '    ')+i.text for i in s.ins)+'\n'
```

```python
import sys
from asmlib import *
NAME='gated_mix__ssm_conv_s5__glu_gated_swiglu__prompt_kernel'
RING=16384; SLOT=24576
Z_OFF=0; FL_OFF=0x1000; HE_OFF=0x10000; A2_OFF=0x40000; WS_SIZE=A2_OFF+16*4*160*1024
OOB=0x80000000
GW_L=0; XCH_L=1024; HIN_L=2816; E_L=3072; G_L=5120; TRB_L=6144
LOG2E=0x3fb8aa3b; NLOG2E=0xbfb8aa3b; INV2PI=0x3e22f983
SPIN=200000
sW,sRT,sCG,sCT,sRH,sROT,sNON=4,5,6,7,8,9,10
SX,SW0,SW1,SW3,SCRE,SCIM,SW2,SWS,SHE,SOUT=52,56,60,64,68,72,76,80,84,88
sXB,sW0B,sM0X,sM0W,sM0F,sSO,sSO2=96,97,98,99,100,101,3
sCB,sW2B,sA2S,sA2L0,sA2L1,sCNT,sT0,sT1=34,35,36,37,38,39,40,41
srd=lambda b:f's[{b}:{b+3}]'
vr=lambda b,n:f'v[{b}:{b+n-1}]'
ar=lambda b,n:f'a[{b}:{b+n-1}]'
vL,vM,vHH16,vL16=1,2,3,4
vNat=[5,6,7,8]; vXo=[9,10,11,12]; vWF=[13,14,15]
vRA=[16,17,18,19]; vRAw=[20,21,22,23]; vTR=[24,25,26]
vLr,vLi,vL16r,vL16i,vL128r,vL128i,vL1kr,vL1ki,vC2r,vC2i,vCinv,vM8,vSr,vSi=27,28,29,30,31,32,33,34,35,36,37,38,40,41
vW2o=[42,43,44,45]; vHEo=46; vFLo=47
URE=48; UIM=64; ACC=80; ZA=160; WR=176; T=208
def gen(opt=None):
    opt=opt or {}
    g=Gen(); e=g.e
    e('s_cmp_ge_u32 s2, 256'); e('s_cbranch_scc1 L_end')
    e('s_load_dwordx16 s[16:31], s[0:1], 0')
    e('s_load_dwordx16 s[32:47], s[0:1], 64')
    e('s_load_dwordx2 s[48:49], s[0:1], 128')
    e('s_getpc_b64 s[50:51]')
    e('s_lshr_b32 s13, s2, 3')
    e('s_and_b32 s14, s13, 15'); e('s_lshl_b32 s14, s14, 12')
    e(f'v_lshl_add_u32 v{T}, v0, 4, s14')
    g.vm(f'global_load_dwordx4 {vr(T+4,4)}, v{T}, s[50:51]')
    e(f'v_lshrrev_b32 v{T+1}, 6, v0')
    e(f'v_and_b32 v{vL}, 63, v0')
    e(f'v_readfirstlane_b32 s{sW}, v{T+1}')
    e('s_and_b32 s12, s2, 7')
    e(f's_and_b32 s{sRH}, s12, 1'); e('s_lshr_b32 s14, s12, 1')
    e(f's_lshl_b32 s{sRT}, s14, 2'); e('s_lshr_b32 s15, s13, 3'); e(f's_add_u32 s{sRT}, s{sRT}, s15')
    e(f's_and_b32 s{sCT}, s13, 7')
    e(f's_lshl_b32 s{sCG}, s{sRH}, 3'); e(f's_add_u32 s{sCG}, s{sCG}, s{sCT}')
    if opt.get('rot',1):
        e(f's_lshl_b32 s{sROT}, s14, 1'); e(f's_add_u32 s{sROT}, s{sROT}, s{sCT}'); e(f's_and_b32 s{sROT}, s{sROT}, 7')
    else: e(f's_mov_b32 s{sROT}, 0')
    l3,l7,l4,hh,sw0=T+8,T+9,T+10,T+11,T+12
    e(f'v_lshrrev_b32 v{l3}, 3, v{vL}'); e(f'v_and_b32 v{l7}, 7, v{vL}'); e(f'v_lshrrev_b32 v{l4}, 4, v{vL}'); e(f'v_lshrrev_b32 v{hh}, 5, v{vL}')
    e(f'v_xor_b32 v{sw0}, v{l7}, v{l4}'); e(f'v_lshlrev_b32 v{sw0}, 4, v{sw0}')
    e(f'v_lshl_add_u32 v{vNat[0]}, v{l3}, 10, v{sw0}')
    e(f'v_xor_b32 v{vNat[1]}, 64, v{vNat[0]}'); e(f'v_add_u32 v{vNat[1]}, 7168, v{vNat[1]}')
    e(f'v_and_b32 v{T+13}, 3, v{l3}'); e(f'v_lshl_add_u32 v{T+13}, v{hh}, 4, v{T+13}')
    e(f'v_lshl_add_u32 v{vXo[0]}, v{T+13}, 10, v{sw0}')
    e(f'v_xor_b32 v{vXo[1]}, 64, v{vXo[0]}'); e(f'v_add_u32 v{vXo[1]}, 3072, v{vXo[1]}')
    e(f'v_add_u32 v{vXo[2]}, 6144, v{vXo[0]}'); e(f'v_add_u32 v{vXo[3]}, 6144, v{vXo[1]}')
    e(f'v_add_u32 v{T+14}, s{sROT}, v{l3}'); e(f'v_and_b32 v{T+14}, 7, v{T+14}'); e(f'v_lshlrev_b32 v{T+14}, 7, v{T+14}')
    e(f'v_lshl_add_u32 v{T+14}, v{l7}, 4, v{T+14}')
    e(f'v_and_b32 v{vM}, 31, v{vL}')
    e(f's_lshl_b32 s11, s{sCG}, 6')
    e(f'v_lshl_add_u32 v{T+15}, v{vM}, 1, s11')
    e(f's_lshl_b32 s{sXB}, s{sRT}, 17'); e(f's_lshl_b32 s11, s{sW}, 15'); e(f's_add_u32 s{sXB}, s{sXB}, s11')
    e(f's_lshl_b32 s{sW0B}, s{sCG}, 15'); e(f's_and_b32 s11, s{sW}, 1'); e('s_lshl_b32 s11, s11, 14'); e(f's_add_u32 s{sW0B}, s{sW0B}, s11')
    e(f's_lshl_b32 s{sM0X}, s{sW}, 12'); e(f's_add_u32 s{sM0X}, s{sM0X}, {RING}')
    e(f's_lshl_b32 s{sM0W}, s{sW}, 11'); e(f's_add_u32 s{sM0W}, s{sM0W}, {RING+16384}')
    e(f's_mul_i32 s{sM0F}, s{sW}, 3072'); e(f's_add_u32 s{sM0F}, s{sM0F}, {RING}')
    def mksrd(b,p,size,cst=True):
        e(f's_mov_b32 s{b}, s{p}'); e(f's_mov_b32 s{b+1}, s{p+1}')
    for b,size in [(SX,2048*1024),(SW0,512*1024),(SW1,512*2752),(SW3,512*2752),(SCRE,512*1024),(SCIM,512*1024),(SW2,1376*1024),(SWS,WS_SIZE),(SHE,8192),(SOUT,2048*2048)]:
        e(f's_mov_b32 s{b+2}, {size}'); e(f's_mov_b32 s{b+3}, 0x20000')
    e('s_waitcnt lgkmcnt(0)')
    mksrd(SX,16,0)
    e(f's_cmp_lt_u32 s{sW}, 2'); e(f's_cselect_b32 s{SW0}, s22, s24'); e(f's_cselect_b32 s{SW0+1}, s23, s25')
    e(f's_load_dword s{sNON}, s[48:49], {Z_OFF}'); g.smem=True
    blk_last={}
    st={'barr':-1,'free':[],'pendC':[],'pendRel':[],'Frow':{},'Flast':{},'w2done':False}
    def blockA(q):
        sl=q%6
        e(f's_add_u32 s11, s{sROT}, {q}'); e('s_and_b32 s11, s11, 7'); e('s_lshl_b32 s11, s11, 7')
        e(f's_add_u32 s{sSO}, s{sXB}, s11'); e(f's_add_u32 s{sSO2}, s{sW0B}, s11')
        e(f's_add_u32 m0, s{sM0X}, {sl*SLOT}')
        for a in range(4):
            g.vm(f'buffer_load_dwordx4 v{vXo[a]}, {srd(SX)}, s{sSO} offen offset:{1024*a} lds'); yield
        e(f's_add_u32 m0, s{sM0W}, {sl*SLOT}')
        for a in range(2):
            blk_last[q]=g.vm(f'buffer_load_dwordx4 v{vNat[a]}, {srd(SW0)}, s{sSO2} offen offset:{1024*a} lds'); yield
    def blockF(q):
        sl=q%6
        e(f's_add_u32 s11, s{sROT}, {q-8}'); e('s_and_b32 s11, s11, 7'); e(f's_mul_i32 s{sSO}, s11, {64*2752}')
        for mt,S in enumerate((SW1,SW3)):
            e(f's_add_u32 m0, s{sM0F}, {sl*SLOT+mt*12288}')
            for a in range(3):
                blk_last[q]=g.vm(f'buffer_load_dwordx4 v{vWF[a]}, {srd(S)}, s{sSO} offen offset:{1024*a} lds'); yield
    def moveC(gi,row,last):
        mt,cb,db=gi>>2,(gi>>1)&1,gi&1
        g.wait(vm=last)
        for s in range(4):
            kap=4*(2*cb+(s>>1))+2*mt+(s&1)
            dst=128+(kap*2+db)*4
            if row<4: ad=vRAw[s]; off=row*16384
            else:
                ad=T+44+s; off=0
                e(f'v_add_u32 v{ad}, {row*16384}, v{vRAw[s]}')
            i=g.lg(f'ds_read_b128 {ar(dst,4)}, v{ad} offset:{off}')
        st['pendRel'].append((row,i))
    def service(force=False):
        for it in list(st['pendRel']):
            if force: g.wait(lg=it[1])
            if g.lg_done>=it[1]: st['free'].append(it[0]); st['pendRel'].remove(it)
        if st['pendC'] and (force or g.nvm-st['pendC'][0][2]>=opt.get('cage',10)):
            moveC(*st['pendC'].pop(0))
    def granF(u,row):
        e(f's_add_u32 s{sSO}, s{sW2B}, {32*1024*u}')
        e(f's_add_u32 m0, s{sM0X}, {row*16384}')
        st['Frow'][u]=row
        for a in range(4):
            st['Flast'][u]=g.vm(f'buffer_load_dwordx4 v{vW2o[a]}, {srd(SW2)}, s{sSO} offen offset:{1024*a} lds'); yield
    def stream():
        for q in range(16):
            while q>=6 and st['barr']<q-4: yield 'blocked'
            yield from (blockA(q) if q<8 else blockF(q))
        for gi in range(8):
            while not st['free']: yield 'blocked'
            row=st['free'].pop(0)
            mt,cb,db=gi>>2,(gi>>1)&1,gi&1
            e(f's_add_u32 s{sSO}, s{sCB}, {db*32*1024+cb*128}')
            e(f's_add_u32 m0, s{sM0X}, {row*16384}')
            for a in range(4):
                last=g.vm(f'buffer_load_dwordx4 v{vNat[a]}, {srd(SCIM if mt else SCRE)}, s{sSO} offen offset:{1024*a} lds')
                if a==3: st['pendC'].append((gi,row,last))
                yield
        for u in range(9):
            while not st['free']: yield 'blocked'
            row=st['free'].pop(0)
            yield from granF(u,row)
        st['w2done']=True
        while True: yield 'done'
    S=stream()
    def pump(n=1):
        for _ in range(n):
            service()
            r=next(S)
            if r: return r
    def barrier(q):
        e('s_barrier'); st['barr']=q
        rel={12:[6],13:[7,8],14:[0],15:[1,2],17:[3,4,5]}
        st['free']+=rel.get(q,[])
    e('s_mov_b32 m0, 0')
    g.vm(f'global_load_lds_dwordx4 v{T+14}, s[42:43]')
    pump(6)
    pl=[g.vm(f'global_load_ushort v{T+16}, v{T+15}, s[18:19]'),g.vm(f'global_load_ushort v{T+17}, v{T+15}, s[20:21]'),g.vm(f'global_load_ushort v{T+18}, v{T+15}, s[30:31]')]
    pump(6)
    mksrd(SW1,36,0); mksrd(SW3,38,0); mksrd(SCRE,26,0); mksrd(SCIM,28,0); mksrd(SW2,40,0); mksrd(SWS,48,0); mksrd(SOUT,44,0)
    e(f's_lshl_b32 s11, s{sCG}, 13'); e(f's_add_u32 s11, s11, {HE_OFF}')
    e(f's_add_u32 s{SHE}, s48, s11'); e(f's_addc_u32 s{SHE+1}, s49, 0')
    e(f's_lshl_b32 s{sCB}, s{sCT}, 16'); e(f's_lshl_b32 s11, s{sW}, 8'); e(f's_add_u32 s{sCB}, s{sCB}, s11')
    e(f's_mul_i32 s{sW2B}, s{sW}, {352*1024}'); e(f's_lshl_b32 s11, s{sCT}, 7'); e(f's_add_u32 s{sW2B}, s{sW2B}, s11')
    e(f's_lshl_b32 s11, s{sRT}, 2'); e(f's_add_u32 s12, s11, s{sW}'); e(f's_mul_i32 s{sA2S}, s12, {160*1024}'); e(f's_add_u32 s{sA2S}, s{sA2S}, {A2_OFF}')
    e(f's_lshl_b32 s12, s{sRH}, 1'); e('s_add_u32 s12, s12, s11'); e(f's_mul_i32 s{sA2L0}, s12, {160*1024}'); e(f's_add_u32 s{sA2L0}, s{sA2L0}, {A2_OFF}')
    e(f'v_add_u32 v{vNat[2]}, {2*7168}, v{vNat[0]}'); e(f'v_add_u32 v{vNat[3]}, {2*7168}, v{vNat[1]}')
    e(f'v_lshlrev_b32 v{vHH16}, 4, v{hh}'); e(f'v_lshlrev_b32 v{vL16}, 4, v{vL}'); e(f'v_lshlrev_b32 v{vM8}, 3, v{vM}')
    e(f'v_bfe_u32 v{T+20}, v{vM}, 1, 3'); e(f'v_xor_b32 v{T+20}, v{T+20}, v{hh}'); e(f'v_lshlrev_b32 v{T+20}, 4, v{T+20}')
    e(f'v_lshl_add_u32 v{vRA[0]}, v{vM}, 7, v{T+20}')
    for s in range(1,4): e(f'v_xor_b32 v{vRA[s]}, {32*s}, v{vRA[0]}')
    XA2=[T+24+s for s in range(4)]; WA2=[T+28+s for s in range(4)]; WA3=[T+32+s for s in range(4)]
    for s in range(4):
        e(f'v_add_u32 v{vRAw[s]}, s{sM0X}, v{vRA[s]}')
        e(f'v_add_u32 v{XA2[s]}, {3*SLOT}, v{vRAw[s]}')
        e(f'v_add_u32 v{WA2[s]}, {2*SLOT}, v{vRA[s]}'); e(f'v_add_u32 v{WA3[s]}, {4*SLOT}, v{vRA[s]}')
    pump(6)
    e(f's_mul_i32 s11, s{sW}, {16*2752}'); e(f's_mul_i32 s12, s{sCG}, 192'); e('s_add_u32 s11, s11, s12')
    e(f's_mul_i32 s12, s{sCG}, 12'); e('s_movk_i32 s13, 2752'); e(f's_mov_b32 s14, {OOB}')
    for a in range(3):
        e(f'v_add_u32 v{T+20}, {64*a}, v{vL}')
        e(f'v_mul_u32_u24 v{T+21}, 43691, v{T+20}'); e(f'v_lshrrev_b32 v{T+21}, 19, v{T+21}')
        e(f'v_mul_u32_u24 v{T+22}, 12, v{T+21}'); e(f'v_sub_u32 v{T+22}, v{T+20}, v{T+22}')
        e(f'v_mul_u32_u24 v{T+21}, s13, v{T+21}')
        e(f'v_lshl_add_u32 v{T+21}, v{T+22}, 4, v{T+21}')
        e(f'v_add_u32 v{T+21}, s11, v{T+21}')
        if a: e(f'v_subrev_u32 v{T+21}, {1024*a}, v{T+21}')
        e(f'v_add_u32 v{T+22}, s12, v{T+22}')
        e(f'v_cmp_gt_u32 vcc, 172, v{T+22}')
        e(f'v_mov_b32 v{T+23}, s14')
        e(f'v_cndmask_b32 v{vWF[a]}, v{T+23}, v{T+21}, vcc')
    r_,c_,g1=T+20,T+21,T+22
    e(f'v_bfe_u32 v{r_}, v{vL}, 2, 2'); e(f'v_and_b32 v{c_}, 3, v{vL}'); e(f'v_and_b32 v{g1}, 1, v{l4}')
    e(f'v_lshl_add_u32 v{T+23}, v{hh}, 3, v{r_}'); e(f'v_mul_u32_u24 v{T+23}, 192, v{T+23}')
    e(f'v_lshl_add_u32 v{T+23}, v{g1}, 5, v{T+23}'); e(f'v_lshl_add_u32 v{T+23}, v{c_}, 3, v{T+23}')
    for k in range(3): e(f'v_add_u32 v{vTR[k]}, {RING+2*k*SLOT}, v{T+23}')
    e(f'v_lshlrev_b32 v{T+23}, 2, v{g1}'); e(f'v_xor_b32 v{T+23}, v{T+23}, v{l7}'); e(f'v_lshlrev_b32 v{T+23}, 4, v{T+23}')
    e(f'v_lshl_add_u32 v{vW2o[0]}, v{l3}, 10, v{T+23}')
    for a in range(1,4): e(f'v_add_u32 v{vW2o[a]}, {7168*a}, v{vW2o[0]}')
    e(f'v_mov_b32 v{T+36}, 0'); e(f'v_mov_b32 v{T+37}, 0'); e(f'v_lshlrev_b32 v{T+38}, 3, v0')
    g.lg(f'ds_write_b64 v{T+38}, {vr(T+36,2)} offset:{XCH_L}')
    pump(6)
    g.wait(vm=pl[2])
    lre,lim,dt=T+16,T+17,T+18
    for r in (lre,lim,dt): e(f'v_lshlrev_b32 v{r}, 16, v{r}')
    e(f'v_mul_f32 v{dt}, {LOG2E:#x}, v{dt}'); e(f'v_exp_f32 v{dt}, v{dt}')
    e(f'v_cvt_pk_bf16_f32 v{dt}, v{dt}, v{dt}'); e(f'v_lshlrev_b32 v{dt}, 16, v{dt}')
    a_,b_,t0,t1=T+36,T+37,T+38,T+39
    e(f'v_mul_f32 v{a_}, v{dt}, v{lre}'); e(f'v_mul_f32 v{b_}, v{dt}, v{lim}')
    e(f'v_mul_f32 v{a_}, {LOG2E:#x}, v{a_}'); e(f'v_exp_f32 v{a_}, v{a_}')
    e(f'v_mul_f32 v{b_}, {INV2PI:#x}, v{b_}'); e(f'v_rndne_f32 v{t0}, v{b_}'); e(f'v_sub_f32 v{b_}, v{b_}, v{t0}')
    e(f'v_cos_f32 v{t0}, v{b_}'); e(f'v_sin_f32 v{t1}, v{b_}')
    e(f'v_mul_f32 v{vLr}, v{a_}, v{t0}'); e(f'v_mul_f32 v{vLi}, v{a_}, v{t1}')
    e(f'v_mul_f32 v{t0}, v{lre}, v{lre}'); e(f'v_fma_f32 v{t0}, v{lim}, v{lim}, v{t0}'); e(f'v_rcp_f32 v{t0}, v{t0}')
    e(f'v_add_f32 v{a_}, -1.0, v{vLr}')
    e(f'v_add_f32 v{t0}, v{t0}, v{t0}')
    e(f'v_mul_f32 v{vC2r}, v{a_}, v{lre}'); e(f'v_fma_f32 v{vC2r}, v{vLi}, v{lim}, v{vC2r}'); e(f'v_mul_f32 v{vC2r}, v{vC2r}, v{t0}')
    e(f'v_mul_f32 v{vC2i}, v{vLi}, v{lre}'); e(f'v_fma_f32 v{vC2i}, -v{a_}, v{lim}, v{vC2i}'); e(f'v_mul_f32 v{vC2i}, v{vC2i}, v{t0}')
    def csq(dr,di,sr,si,n):
        for k in range(n):
            e(f'v_mul_f32 v{t0}, v{si}, v{si}'); e(f'v_mul_f32 v{t1}, v{sr}, v{si}')
            e(f'v_fma_f32 v{dr}, v{sr}, v{sr}, -v{t0}'); e(f'v_add_f32 v{di}, v{t1}, v{t1}')
            sr,si=dr,di
    csq(vL16r,vL16i,vLr,vLi,4); csq(vL128r,vL128i,vL16r,vL16i,3); csq(vL1kr,vL1ki,vL128r,vL128i,3)
    g.wait_all_lg()
    e(f's_mul_i32 s{sNON}, s{sNON}, 1664525'); e(f's_add_u32 s{sNON}, s{sNON}, 1013904223')
    e(f's_cmp_eq_u32 s{sNON}, 0'); e(f's_cselect_b32 s{sNON}, 1013904223, s{sNON}')
    FB=ACC
    for q in range(8):
        sl=q%6
        g.wait(vm=blk_last[q]); barrier(q)
        ids={}
        def reads(s):
            xa,xo=(vRAw[s],sl*SLOT) if sl<3 else (XA2[s],(sl-3)*SLOT)
            wa=(vRA,WA2,WA3)[sl>>1][s]; wo=RING+16384+(sl&1)*SLOT
            g.lg(f'ds_read_b128 {ar(16*q+4*s,4)}, v{xa} offset:{xo}')
            g.lg(f'ds_read_b128 {vr(FB+12*s,4)}, v{wa} offset:{wo}')
            g.lg(f'ds_read_b128 {vr(FB+12*s+4,4)}, v{wa} offset:{wo+4096}')
            ids[s]=g.lg(f'ds_read_b128 {vr(FB+12*s+8,4)}, v{vHH16} offset:{GW_L+q*128+s*32}')
        reads(0);reads(1);reads(2)
        for s in range(4):
            g.wait(lg=ids[s])
            first=(q==0 and s==0)
            x=ar(16*q+4*s,4)
            e(f'v_mfma_f32_32x32x16_bf16 {vr(URE,16)}, {x}, {vr(FB+12*s,4)}, {"0" if first else vr(URE,16)}')
            if s==0: reads(3)
            pump(1)
            e(f'v_mfma_f32_32x32x16_bf16 {vr(UIM,16)}, {x}, {vr(FB+12*s+4,4)}, {"0" if first else vr(UIM,16)}')
            if s&1: pump(1)
            e(f'v_mfma_f32_32x32x16_bf16 {vr(ZA,16)}, {vr(FB+12*s+8,4)}, {x}, {"0" if first else vr(ZA,16)}')
    def cfma(dr,di,lr,li,sr,si,ar_,ai_):
        e(f'v_fma_f32 v{dr}, v{lr}, v{sr}, v{ar_}'); e(f'v_fma_f32 v{di}, v{lr}, v{si}, v{ai_}')
        e(f'v_fma_f32 v{dr}, -v{li}, v{si}, v{dr}'); e(f'v_fma_f32 v{di}, v{li}, v{sr}, v{di}')
    P=[(T,T+1),(T+2,T+3)]
    cur=(URE,UIM)
    for t in range(1,16):
        d=P[t&1]; cfma(d[0],d[1],vLr,vLi,cur[0],cur[1],URE+t,UIM+t); cur=d
    e(f'v_lshlrev_b32 v{T+4}, 3, v0')
    g.lg(f'ds_write_b64 v{T+4}, {vr(T+2,2)} offset:{E_L}')
    z=T+6
    e(f'v_cvt_pk_bf16_f32 v{z}, v{ZA}, v{ZA}'); e(f'v_lshlrev_b32 v{z}, 16, v{z}')
    e(f'v_mul_f32 v{z}, {NLOG2E:#x}, v{z}'); e(f'v_exp_f32 v{z}, v{z}'); e(f'v_add_f32 v{z}, 1.0, v{z}'); e(f'v_rcp_f32 v{z}, v{z}')
    e(f'v_cvt_pk_bf16_f32 v{z}, v{z}, v{z}'); e(f'v_lshlrev_b32 v{z}, 16, v{z}')
    e(f'v_sub_f32 v{z+1}, 1.0, v{z}'); e(f'v_cvt_pk_bf16_f32 v{z+1}, v{z+1}, v{z+1}'); e(f'v_lshlrev_b32 v{z+1}, 16, v{z+1}')
    e(f'v_rcp_f32 v{vCinv}, v{z+1}'); e(f'v_min_f32 v{vCinv}, 0x7e967699, v{vCinv}')
    e(f's_lshl_b32 s11, s{sW}, 7'); e(f'v_lshl_add_u32 v{T+5}, v{vM}, 2, s11')
    lw=g.lg(f'ds_write_b32 v{T+5}, v{z} offset:{G_L}')
    e(f's_sub_u32 s11, 15, s{sRT}'); e('s_lshl_b32 s11, s11, 9')
    e(f'v_lshl_add_u32 v{T+8}, v{vM}, 4, s11')
    e(f'v_lshrrev_b32 v{T+9}, 3, v{vL}'); e(f'v_cmp_eq_u32 vcc, s{sW}, v{T+9}'); e(f'v_mov_b32 v{T+9}, {OOB:#x}')
    e(f'v_cndmask_b32 v{T+10}, v{T+9}, v{T+8}, vcc')
    e(f'v_lshl_add_u32 v{vHEo}, v{vHH16}, 8, v{T+8}'); e(f'v_add_u32 v{vHEo}, 512, v{vHEo}')
    g.wait(lg=lw)
    def side_hend():
        ids=[]
        for s in range(8):
            ids.append(g.lg(f'ds_read_b64 {vr(T+16+2*s,2)}, v{vM8} offset:{E_L+256*s}')); yield
        yield; yield; yield
        cur=(T+16,T+17); PP=[(T+12,T+14),(T,T+1)]
        for s in range(1,8):
            g.wait(lg=ids[s])
            d=PP[(s+1)&1]
            e(f'v_fma_f32 v{d[0]}, v{vL16r}, v{cur[0]}, v{T+16+2*s}'); e(f'v_fma_f32 v{d[1]}, v{vL16r}, v{cur[1]}, v{T+17+2*s}'); yield
            e(f'v_fma_f32 v{d[0]}, -v{vL16i}, v{cur[1]}, v{d[0]}'); e(f'v_fma_f32 v{d[1]}, v{vL16i}, v{cur[0]}, v{d[1]}'); yield
            cur=d
        e(f'v_mov_b32 v{T+13}, s{sNON}'); e(f'v_mov_b32 v{T+15}, s{sNON}'); yield
        g.vm(f'buffer_store_dwordx4 {vr(T+12,4)}, v{T+10}, {srd(SHE)}, 0 offen sc1'); yield
    side=side_hend()
    LA=6; rid={}
    def trread(n):
        q,s,f=8+n//24,(n%24)//6,n%6
        if n%24==0:
            g.wait(vm=blk_last[q]); barrier(q)
        sl=q%6; pair,mt=f>>1,f&1
        off=(sl&1)*SLOT+mt*12288+s*3072+pair*64
        b=WR+4*(n%8)
        g.lg(f'ds_read_b64_tr_b16 {vr(b,2)}, v{vTR[sl>>1]} offset:{off}')
        rid[n]=g.lg(f'ds_read_b64_tr_b16 {vr(b+2,2)}, v{vTR[sl>>1]} offset:{off+768}')
    for n in range(LA): trread(n)
    he={}
    for n in range(192):
        q,s,f=n//24,(n%24)//6,n%6
        g.wait(lg=rid[n])
        acc=vr(ACC+16*f,16)
        e(f'v_mfma_f32_32x32x16_bf16 {acc}, {vr(WR+4*(n%8),4)}, {ar(16*q+4*s,4)}, {"0" if n<6 else acc}')
        if n+LA<192: trread(n+LA)
        next(side,None)
        if n%3==2: pump(1)
        if n==opt.get('he_at',168):
            for jj in range(8):
                he[jj]=g.vm(f'buffer_load_dwordx4 {vr(T+4*jj,4)}, v{vHEo}, {srd(SHE)}, 0 offen offset:{512*jj} sc1')
    g.wait_all_lg(); barrier(17)
    pump(4)
    cnt,ex=T+32,T+33
    e(f's_mov_b32 s{sCNT}, 0')
    e(f'v_lshrrev_b32 v{ex}, 1, v{vHH16}'); e(f'v_sub_u32 v{ex}, s{sRT}, v{ex}'); e(f'v_max_i32 v{ex}, 0, v{ex}'); e(f'v_min_i32 v{ex}, 8, v{ex}'); e(f'v_lshlrev_b32 v{ex}, 1, v{ex}')
    g.wait(vm=he[7])
    e('L_he_chk:')
    e(f'v_mov_b32 v{cnt}, 0')
    for jj in range(8):
        for k in (1,3):
            e(f'v_cmp_eq_u32 vcc, s{sNON}, v{T+4*jj+k}'); e(f'v_addc_co_u32 v{cnt}, vcc, 0, v{cnt}, vcc')
    e(f'v_cmp_ne_u32 vcc, v{cnt}, v{ex}')
    e('s_nop 1')
    e('s_cbranch_vccz L_he_ok')
    e(f's_add_u32 s{sCNT}, s{sCNT}, 1'); e(f's_cmp_gt_u32 s{sCNT}, {SPIN}'); e('s_cbranch_scc1 L_he_ok')
    e('s_sleep 2')
    for jj in range(8): e(f'buffer_load_dwordx4 {vr(T+4*jj,4)}, v{vHEo}, {srd(SHE)}, 0 offen offset:{512*jj} sc1')
    e('s_waitcnt vmcnt(0)'); e('s_branch L_he_chk')
    e('L_he_ok:')
    P=[(T+34,T+35),(T+36,T+37)]
    cur=(T+28,T+30)
    for jj in range(6,-1,-1):
        d=P[jj&1]; cfma(d[0],d[1],vL128r,vL128i,cur[0],cur[1],T+4*jj,T+4*jj+2); cur=d
    pump(1)
    e(f'v_mov_b32 v{T+36}, v{T+34}'); e(f'v_mov_b32 v{T+37}, v{T+35}')
    e(f'v_permlane32_swap_b32 v{T+34}, v{T+36}'); e(f'v_permlane32_swap_b32 v{T+35}, v{T+37}')
    cfma(T+38,T+39,vL1kr,vL1ki,T+36,T+37,T+34,T+35)
    g.lg(f'ds_write_b64 v{vM8}, {vr(T+38,2)} offset:{HIN_L}')
    e(f'v_lshlrev_b32 v{T+40}, 3, v0')
    ids=[g.lg(f'ds_read_b64 {vr(T+2*k,2)}, v{T+40} offset:{XCH_L+256*k}') for k in range(8)]
    pump(1)
    cur=(T,T+1); P=[(T+34,T+35),(vSr,vSi)]
    for k in range(1,8):
        g.wait(lg=ids[k])
        d=P[k&1]; cfma(d[0],d[1],vL16r,vL16i,cur[0],cur[1],T+2*k,T+2*k+1); cur=d
    pump(1)
    P=[(T+34,T+35),(T+36,T+37)]
    for t in range(16):
        d=P[t&1]; cfma(d[0],d[1],vLr,vLi,cur[0],cur[1],URE+t,UIM+t); cur=d
        e(f'v_mul_f32 v{URE+t}, v{vC2r}, v{d[0]}'); e(f'v_mul_f32 v{UIM+t}, v{vC2r}, v{d[1]}')
        e(f'v_fma_f32 v{URE+t}, -v{vC2i}, v{d[1]}, v{URE+t}'); e(f'v_fma_f32 v{UIM+t}, -v{vC2i}, v{d[0]}, -v{UIM+t}')
        if t&1:
            e(f'v_cvt_pk_bf16_f32 v{T+(t>>1)}, v{URE+t-1}, v{URE+t}'); e(f'v_cvt_pk_bf16_f32 v{T+8+(t>>1)}, v{UIM+t-1}, v{UIM+t}')
            pump(1)
    wa,ra=T+40,T+41
    e(f's_lshl_b32 s11, s{sW}, 11'); e(f's_add_u32 s11, s11, {TRB_L}')
    e(f'v_lshlrev_b32 v{wa}, 6, v{vM}'); e(f'v_lshl_add_u32 v{wa}, v{vHH16}, 1, v{wa}'); e(f'v_add_u32 v{wa}, s11, v{wa}')
    e(f'v_bfe_u32 v{ra}, v{vL}, 2, 2'); e(f'v_lshlrev_b32 v{ra}, 6, v{ra}'); e(f'v_lshl_add_u32 v{ra}, v{vHH16}, 5, v{ra}')
    e(f'v_and_b32 v{T+42}, 1, v{vL}'); e(f'v_lshl_add_u32 v{ra}, v{T+42}, 5, v{ra}')
    e(f'v_and_b32 v{T+42}, 16, v{vL}'); e(f'v_add_u32 v{ra}, v{T+42}, v{ra}')
    e(f'v_and_b32 v{T+42}, 2, v{vL}'); e(f'v_lshl_add_u32 v{ra}, v{T+42}, 2, v{ra}'); e(f'v_add_u32 v{ra}, s11, v{ra}')
    tid={}
    for mt in range(2):
        g.lg(f'ds_write_b128 v{wa}, {vr(T+8*mt,4)}'); g.lg(f'ds_write_b128 v{wa}, {vr(T+8*mt+4,4)} offset:16')
        for ks in range(2):
            for rho in range(2):
                tid[mt,ks]=g.lg(f'ds_read_b64_tr_b16 {vr(T+16+8*mt+4*ks+2*rho,2)}, v{ra} offset:{ks*1024+rho*256}')
    e(f's_lshl_b32 s{sT0}, s{sCG}, 12'); e(f's_add_u32 s{sT0}, s{sT0}, s{sA2S}')
    def ssm_store():
        for mt in range(2):
            for ks in range(2):
                g.wait(lg=tid[mt,ks])
                g.vm(f'buffer_store_dwordx4 {vr(T+16+8*mt+4*ks,4)}, v{vL16}, {srd(SWS)}, s{sT0} offen offset:{(2*mt+ks)*1024} sc1')
    ssm_store()
    e(f's_mul_i32 s{sT0}, s{sCG}, {6*1024}'); e(f's_add_u32 s{sT0}, s{sT0}, s{sA2S}'); e(f's_add_u32 s{sT0}, s{sT0}, {64*1024}')
    e(f's_add_u32 s{sT1}, s{sT0}, 4096')
    E0=URE
    last_st=None
    for pr in range(3):
        G=ACC+32*pr; Uu=G+16
        for h in range(2):
            R=range(8*h,8*h+8)
            for i in R: e(f'v_mul_f32 v{E0+i%8}, {NLOG2E:#x}, v{G+i}')
            for i in R: e(f'v_exp_f32 v{E0+i%8}, v{E0+i%8}')
            pump(1)
            for i in R: e(f'v_mul_f32 v{G+i}, v{G+i}, v{Uu+i}')
            for i in R: e(f'v_fma_f32 v{E0+i%8}, v{E0+i%8}, v{vCinv}, v{vCinv}')
            pump(1)
            for i in R: e(f'v_rcp_f32 v{E0+i%8}, v{E0+i%8}')
            pump(1)
            for i in R: e(f'v_mul_f32 v{G+i}, v{G+i}, v{E0+i%8}')
            pk=E0+8+4*((2*pr+h)%4)
            for i in range(4): e(f'v_cvt_pk_bf16_f32 v{pk+i}, v{G+8*h+2*i}, v{G+8*h+2*i+1}')
            k=2*pr+h
            last_st=g.vm(f'buffer_store_dwordx4 {vr(pk,4)}, v{vL16}, {srd(SWS)}, s{sT0 if k<4 else sT1} offen offset:{(k%4)*1024} sc1')
    e(f's_lshl_b32 s11, s{sRT}, 1'); e(f's_lshr_b32 s12, s{sW}, 1'); e('s_add_u32 s12, s12, s11'); e('s_lshl_b32 s12, s12, 7')
    e(f's_and_b32 s13, s{sW}, 1'); e(f's_lshl_b32 s14, s{sCG}, 1'); e('s_add_u32 s13, s13, s14'); e('s_lshl_b32 s13, s13, 2'); e('s_add_u32 s12, s12, s13'); e(f's_add_u32 s12, s12, {FL_OFF}')
    e(f'v_mov_b32 v{T}, s12'); e(f'v_mov_b32 v{T+1}, {OOB:#x}'); e(f'v_cmp_eq_u32 vcc, 0, v{vL}'); e(f'v_cndmask_b32 v{T}, v{T+1}, v{T}, vcc')
    e(f'v_mov_b32 v{T+1}, s{sNON}')
    e(f's_add_u32 s11, s11, s{sRH}'); e('s_lshl_b32 s11, s11, 7'); e(f's_add_u32 s11, s11, {FL_OFF}')
    e(f'v_lshl_add_u32 v{vFLo}, v{vM}, 2, s11')
    def drain(n):
        k=0
        while k<n and not st['w2done']:
            r=pump(1)
            if r=='blocked': service(force=True)
            else: k+=1
    drain(opt.get('flag_lag',8))
    g.wait(vm=last_st)
    g.vm(f'buffer_store_dword v{T+1}, v{T}, {srd(SWS)}, 0 offen sc1')
    if opt.get('stop1'):
        e('s_waitcnt vmcnt(0)'); e('s_branch L_end')
    vT0=[T+4,T+5,T+6]; vT1=[T+7,T+8,T+9]; vG=[T+10,T+11]; pol=T+12
    x0,x1=T+14,T+15
    e(f'v_bfe_u32 v{x0}, v{vL}, 2, 2'); e(f'v_lshlrev_b32 v{x0}, 7, v{x0}'); e(f'v_lshl_add_u32 v{x0}, v{vHH16}, 5, v{x0}')
    e(f'v_and_b32 v{x1}, 8, v{vL}'); e(f'v_lshl_add_u32 v{x0}, v{x1}, 3, v{x0}')
    e(f'v_and_b32 v{x1}, 16, v{vL}'); e(f'v_lshl_add_u32 v{x0}, v{x1}, 1, v{x0}')
    e(f'v_and_b32 v{x1}, 3, v{vL}'); e(f'v_lshl_add_u32 v{x0}, v{x1}, 3, v{x0}')
    e(f'v_add_u32 v{vT0[0]}, s{sM0X}, v{x0}'); e(f'v_xor_b32 v{vT1[0]}, 64, v{vT0[0]}')
    for k in (1,2):
        e(f'v_add_u32 v{vT0[k]}, {65536*k}, v{vT0[0]}'); e(f'v_add_u32 v{vT1[k]}, {65536*k}, v{vT1[0]}')
    e(f's_lshl_b32 s11, s{sRH}, 8'); e(f'v_lshl_add_u32 v{x0}, v{vM}, 2, s11')
    g.lg(f'ds_read_b32 v{vG[0]}, v{x0} offset:{G_L}'); gid=g.lg(f'ds_read_b32 v{vG[1]}, v{x0} offset:{G_L+128}')
    e(f's_add_u32 s{sA2L1}, s{sA2L0}, {160*1024}')
    XS=T+16; DS=T+24; vXa=T+26; vOa=T+27; vGe=T+28
    e(f's_lshl_b32 s11, s{sRT}, 7'); e(f's_lshl_b32 s12, s{sRH}, 6'); e('s_add_u32 s11, s11, s12')
    e(f's_lshr_b32 s12, s{sW}, 1'); e('s_lshl_b32 s12, s12, 5'); e('s_add_u32 s11, s11, s12')
    e(f's_and_b32 s12, s{sW}, 1'); e('s_lshl_b32 s12, s12, 3'); e('s_add_u32 s11, s11, s12')
    e(f'v_lshrrev_b32 v{x0}, 4, v{vL}'); e(f'v_add_u32 v{x0}, s11, v{x0}')
    e(f'v_and_b32 v{x1}, 15, v{vL}'); e(f's_lshl_b32 s12, s{sCT}, 7'); e(f'v_lshl_add_u32 v{x1}, v{x1}, 3, s12')
    e(f'v_lshl_add_u32 v{vXa}, v{x0}, 10, v{x1}'); e(f'v_lshlrev_b32 v{vOa}, 1, v{vXa}')
    remaining=lambda: None
    drain(opt.get('poll_at',1000))
    g.vm(f'global_load_dwordx2 {vr(DS,2)}, v{x1}, s[32:33]')
    for it in range(4):
        e(f's_movk_i32 s11, {(16*(it&1)+4*(it>>1))*1024}')
        xl=g.vm(f'buffer_load_dwordx2 {vr(XS+2*it,2)}, v{vXa}, {srd(SX)}, s11 offen')
    pid=g.vm(f'buffer_load_dword v{pol}, v{vFLo}, {srd(SWS)}, 0 offen sc1')
    drain(1000)
    while st['pendC'] or st['pendRel']: service(force=True)
    e(f's_mov_b32 s{sCNT}, 0')
    g.wait(vm=pid)
    e('L_fl_chk:')
    e(f'v_cmp_ne_u32 vcc, s{sNON}, v{pol}')
    e('s_nop 1')
    e('s_cbranch_vccz L_fl_ok')
    e(f's_add_u32 s{sCNT}, s{sCNT}, 1'); e(f's_cmp_gt_u32 s{sCNT}, {SPIN}'); e('s_cbranch_scc1 L_fl_ok')
    e('s_sleep 2')
    e(f'buffer_load_dword v{pol}, v{vFLo}, {srd(SWS)}, 0 offen sc1')
    e('s_waitcnt vmcnt(0)'); e('s_branch L_fl_chk')
    e('L_fl_ok:')
    e(f's_lshl_b32 s11, s{sCG}, 2'); e(f's_add_u32 s11, s11, s{sW}'); e(f's_xor_b32 s12, s{sRT}, 15'); e('s_or_b32 s11, s11, s12')
    e(f'v_or_b32 v{x0}, s11, v{vL}'); e(f'v_cmp_eq_u32 vcc, 0, v{x0}'); e(f'v_mov_b32 v{x0}, {OOB:#x}'); e(f'v_cndmask_b32 v{x0}, v{x0}, 0, vcc')
    g.vm(f'buffer_store_dword v{T+1}, v{x0}, {srd(SWS)}, 0 offen offset:{Z_OFF} sc1')
    e(f's_lshl_b32 s11, s{sW}, 14'); e(f's_add_u32 s16, s{sA2L0}, s11'); e(f's_add_u32 s17, s{sA2L1}, s11')
    e(f's_mul_i32 s11, s{sW}, {22*1024}'); e(f's_add_u32 s11, s11, {64*1024}'); e(f's_add_u32 s18, s{sA2L0}, s11'); e(f's_add_u32 s19, s{sA2L1}, s11')
    aid={}
    def aload(k):
        base,kk=(16,k) if k<16 else (18,k-16)
        if kk%4==0:
            e(f's_add_u32 s20, s{base}, {kk*1024}'); e(f's_add_u32 s21, s{base+1}, {kk*1024}')
        for tb in range(2):
            aid[k]=g.vm(f'buffer_load_dwordx4 {ar(8*(k%16)+4*tb,4)}, v{vL16}, {srd(SWS)}, s{20+tb} offen offset:{(kk%4)*1024} sc1')
    ALA=opt.get('ala',10)
    for k in range(ALA): aload(k)
    wid={}
    def wread(k):
        kk=k-16; u,ks=kk>>1,kk&1
        g.wait(vm=st['Flast'][u])
        row=st['Frow'][u]
        for db in range(2):
            b=WR+8*(k%4)+4*db
            ad=(vT0,vT1)[db][row>>2]
            for rho in range(2):
                wid[k]=g.lg(f'ds_read_b64_tr_b16 {vr(b+2*rho,2)}, v{ad} offset:{(row&3)*16384+ks*2048+rho*1024}')
    late=None
    for k in range(38):
        if k+2>=16 and k+2<38: wread(k+2)
        g.wait(vm=aid[k])
        if k>=16: g.wait(lg=wid[k])
        if k==16:
            g.wait(lg=gid)
            for db in range(2):
                for tb in range(2):
                    for i in range(16):
                        r=ACC+16*(2*db+tb)+i
                        e(f'v_mul_f32 v{r}, v{vG[tb]}, v{r}')
        for db in range(2):
            for tb in range(2):
                acc=vr(ACC+16*(2*db+tb),16)
                Wf=ar(128+(k*2+db)*4,4) if k<16 else vr(WR+8*(k%4)+4*db,4)
                e(f'v_mfma_f32_32x32x16_bf16 {acc}, {Wf}, {ar(8*(k%16)+4*tb,4)}, {"0" if k==0 else acc}')
            if db==0 and k+ALA<38: aload(k+ALA)
        if k in (17,19):
            u=9+(k-17)//2
            for _ in granF(u,st['Frow'][u-9]): pass
    wj=[T+32+j for j in range(4)]
    e(f'v_lshrrev_b32 v{x0}, 4, v{vM}'); e(f'v_lshlrev_b32 v{x0}, 14, v{x0}')
    e(f'v_and_b32 v{x1}, 15, v{vM}'); e(f'v_lshl_add_u32 v{x0}, v{x1}, 8, v{x0}')
    e(f'v_and_b32 v{x1}, 7, v{vM}'); e(f'v_lshlrev_b32 v{x1}, 4, v{x1}'); e(f'v_xor_b32 v{x1}, v{x1}, v{vHH16}')
    e(f'v_add3_u32 v{wj[0]}, v{x0}, v{x1}, s{sM0X}')
    for j in range(1,4): e(f'v_xor_b32 v{wj[j]}, {32*j}, v{wj[0]}')
    rd=[T+36,T+37]
    e(f'v_lshrrev_b32 v{x0}, 4, v{vL}'); e(f'v_and_b32 v{x1}, 15, v{vL}'); e(f'v_xor_b32 v{x1}, v{x1}, v{x0}'); e(f'v_lshlrev_b32 v{x1}, 4, v{x1}')
    e(f'v_lshl_add_u32 v{x1}, v{x0}, 8, v{x1}'); e(f's_lshl_b32 s11, s{sW}, 14'); e(f's_add_u32 s11, s11, {RING}')
    e(f'v_add_u32 v{rd[0]}, s11, v{x1}'); e(f'v_xor_b32 v{rd[1]}, 64, v{rd[0]}')
    e(f's_lshl_b32 s11, s{sRH}, 8'); e(f's_lshl_b32 s12, s{sW}, 6'); e('s_add_u32 s11, s11, s12')
    e(f'v_lshl_add_u32 v{x0}, v{x0}, 2, s11')
    for it in range(4): g.lg(f'ds_read_b32 v{vGe+it}, v{x0} offset:{G_L+16*it}')
    for db in range(2):
        for tb in range(2):
            for j in range(4):
                g.lg(f'ds_write_b128 v{wj[j]}, {vr(ACC+16*(2*db+tb)+4*j,4)} offset:{db*128+tb*32768}')
    SK=URE
    g.wait(vm=xl)
    dsk=[T+40+i for i in range(4)]
    e(f'v_lshlrev_b32 v{dsk[0]}, 16, v{DS}'); e(f'v_and_b32 v{dsk[1]}, 0xffff0000, v{DS}')
    e(f'v_lshlrev_b32 v{dsk[2]}, 16, v{DS+1}'); e(f'v_and_b32 v{dsk[3]}, 0xffff0000, v{DS+1}')
    for it in range(4):
        for h in range(2):
            a,b=SK+4*it+2*h,SK+4*it+2*h+1
            e(f'v_lshlrev_b32 v{a}, 16, v{XS+2*it+h}'); e(f'v_and_b32 v{b}, 0xffff0000, v{XS+2*it+h}')
            e(f'v_mul_f32 v{a}, v{a}, v{dsk[2*h]}'); e(f'v_mul_f32 v{b}, v{b}, v{dsk[2*h+1]}')
            e(f'v_cvt_pk_bf16_f32 v{b}, v{a}, v{b}')
            e(f'v_lshlrev_b32 v{a}, 16, v{b}'); e(f'v_and_b32 v{b}, 0xffff0000, v{b}')
    g.wait_all_lg(); e('s_barrier')
    RB=ACC
    ids={}
    for it in range(4):
        for w2 in range(4):
            if it==3 and w2==3: g.wait(lg=ids[0,0])
            ids[it,w2]=g.lg(f'ds_read_b128 {vr(RB+16*it+4*w2,4)}, v{rd[it&1]} offset:{w2*4096+it*1024}')
    for it in range(4):
        g.wait(lg=ids[it,3])
        b=RB+16*it
        for i in range(4): e(f'v_fma_f32 v{b+i}, v{SK+4*it+i}, v{vGe+it}, v{b+i}')
        for i in range(4): e(f'v_add_f32 v{b+4+i}, v{b+4+i}, v{b+8+i}')
        for i in range(4): e(f'v_add_f32 v{b+i}, v{b+i}, v{b+12+i}')
        for i in range(4): e(f'v_add_f32 v{b+i}, v{b+i}, v{b+4+i}')
        e(f's_mov_b32 s11, {(16*(it&1)+4*(it>>1))*2048}')
        g.vm(f'buffer_store_dwordx4 {vr(b,4)}, v{vOa}, {srd(SOUT)}, s11 offen')
    e('L_end:')
    e('s_endpgm')
    hdr=open('gated_mix__ssm_conv_s5__glu_gated_swiglu__prompt.s.ref').read().split('; Override')[0]
    out=hdr+'; @launch grid=(256,1,1) block=(256,1,1) lds=163840\n'
    out+=f'.amdgcn_target "amdgcn-amd-amdhsa--gfx950"\n.text\n.globl {NAME}\n.p2align 8\n.type {NAME},@function\n{NAME}:\n'
    out+=g.text()
    out+=f'.fill (65536+256-(.-{NAME}))/4, 4, 0xbf810000\n'
    out+=f'''.section .rodata,"a"
.p2align 6
.amdhsa_kernel {NAME}
  .amdhsa_next_free_vgpr 512
  .amdhsa_next_free_sgpr 102
  .amdhsa_accum_offset 256
  .amdhsa_group_segment_fixed_size 0
  .amdhsa_kernarg_size 136
  .amdhsa_user_sgpr_count 2
  .amdhsa_user_sgpr_kernarg_segment_ptr 1
  .amdhsa_system_sgpr_workgroup_id_x 1
.end_amdhsa_kernel
'''
    return out,g
if __name__=='__main__':
    import json
    opt=json.loads(sys.argv[2]) if len(sys.argv)>2 else {}
    out,g=gen(opt)
    open(sys.argv[1],'w').write(out)
    from collections import Counter
    print(len(g.ins),Counter(i.cls for i in g.ins), 'nops',sum(1 for i in g.ins if i.mn=='s_nop'))
```

```python
import sys
from asmlib import *
NAME='gated_mix__ssm_conv_s5__glu_gated_swiglu__prompt_kernel'
ROW0=8192; RING=40960; SLOT=24576; NS=5
Z_OFF=0; FL_OFF=0x1000; HE_OFF=0x10000; A2_OFF=0x40000; WS_SIZE=A2_OFF+16*4*160*1024
OOB=0x80000000
GW_L=0; XCH_L=1024; HIN_L=2816; E_L=3072; G_L=5120; TRB_L=155648
LOG2E=0x3fb8aa3b; NLOG2E=0xbfb8aa3b; INV2PI=0x3e22f983
SPIN=200000
sW,sRT,sCG,sCT,sRH,sROT,sNON=4,5,6,7,8,9,10
SX,SW0,SW1,SW3,SCRE,SCIM,SW2,SWS,SHE,SOUT=52,56,60,64,68,72,76,80,84,88
sXB,sW0B,sM0X,sM0W,sM0F,sSO,sSO2=96,97,98,99,100,101,3
sCB,sW2B,sA2S,sA2L0,sA2L1,sCNT,sT0,sT1=34,35,36,37,38,39,40,41
sM0R,sSO3,sFST,sNL2E=50,51,22,24
srd=lambda b:f's[{b}:{b+3}]'
vr=lambda b,n:f'v[{b}:{b+n-1}]'
ar=lambda b,n:f'a[{b}:{b+n-1}]'
vL,vM,vHH16,vL16=1,2,3,4
vNat=[5,6,7,8]; vXo=[9,10,11,12]; vWF=[13,14,15]
vRA=[16,17,18,19]; vRAw=[20,21,22,23]; vTR=[24,25,26]
vLr,vLi,vL16r,vL16i,vL128r,vL128i,vL1kr,vL1ki,vC2r,vNC2i,vM8=27,28,29,30,31,32,33,34,35,36,37
vCinv=40
vW2o=[42,43,44,45]; vHEo=46; vFLo=47
URE=48; UIM=64; ACC=80; WR=176; T=208
ZA=T+44
def gen(opt=None):
    opt=opt or {}
    O=opt.get
    g=Gen(); e=g.e
    stamps=[]
    def stamp(name):
        if not O('stamps'): return
        k=len(stamps); stamps.append(name)
        e('s_memtime s[92:93]'); e('s_waitcnt lgkmcnt(0)'); g.lg_done=g.nlg; g.smem=False
        e(f'v_writelane_b32 v39, s92, {k}')
    g.stamps=stamps
    e('s_cmp_ge_u32 s2, 256'); e('s_cbranch_scc1 L_end')
    if O('stamps'):
        e('s_memrealtime s[94:95]'); e('v_mov_b32 v39, 0')
        stamp('start'); e('v_writelane_b32 v39, s94, 62')
    e('s_load_dwordx16 s[16:31], s[0:1], 0')
    e('s_load_dwordx16 s[32:47], s[0:1], 64')
    e('s_load_dwordx2 s[48:49], s[0:1], 128')
    e('s_getpc_b64 s[50:51]')
    e('s_lshr_b32 s13, s2, 3')
    e('s_and_b32 s14, s13, 7'); e('s_lshl_b32 s14, s14, 12')
    e(f'v_lshl_add_u32 v{T}, v0, 4, s14')
    g.vm(f'global_load_dwordx4 {vr(T+4,4)}, v{T}, s[50:51]')
    e(f'v_lshrrev_b32 v{T+1}, 6, v0')
    e(f'v_and_b32 v{vL}, 63, v0')
    e(f'v_readfirstlane_b32 s{sW}, v{T+1}')
    e('s_and_b32 s12, s2, 7')
    e(f's_and_b32 s{sRH}, s12, 1'); e('s_lshr_b32 s14, s12, 1')
    e(f's_lshl_b32 s{sRT}, s14, 2'); e('s_lshr_b32 s15, s13, 3'); e(f's_add_u32 s{sRT}, s{sRT}, s15')
    e(f's_and_b32 s{sCT}, s13, 7')
    e(f's_lshl_b32 s{sCG}, s{sRH}, 3'); e(f's_add_u32 s{sCG}, s{sCG}, s{sCT}')
    e(f's_lshl_b32 s{sROT}, s14, 1'); e(f's_and_b32 s11, s{sCT}, {O("rotmask",7)}'); e(f's_add_u32 s{sROT}, s{sROT}, s11')
    l3,l7,l4,hh,sw0=T+8,T+9,T+10,T+11,T+12
    e(f'v_lshrrev_b32 v{l3}, 3, v{vL}'); e(f'v_and_b32 v{l7}, 7, v{vL}'); e(f'v_lshrrev_b32 v{l4}, 4, v{vL}'); e(f'v_lshrrev_b32 v{hh}, 5, v{vL}')
    e(f'v_xor_b32 v{sw0}, v{l7}, v{l4}'); e(f'v_lshlrev_b32 v{sw0}, 4, v{sw0}')
    e(f'v_lshl_add_u32 v{vNat[0]}, v{l3}, 10, v{sw0}')
    e(f'v_xor_b32 v{vNat[1]}, 64, v{vNat[0]}'); e(f'v_add_u32 v{vNat[1]}, 7168, v{vNat[1]}')
    e(f'v_and_b32 v{T+13}, 3, v{l3}'); e(f'v_lshl_add_u32 v{T+13}, v{hh}, 4, v{T+13}')
    e(f'v_lshl_add_u32 v{vXo[0]}, v{T+13}, 10, v{sw0}')
    e(f'v_xor_b32 v{vXo[1]}, 64, v{vXo[0]}'); e(f'v_add_u32 v{vXo[1]}, 3072, v{vXo[1]}')
    e(f'v_add_u32 v{vXo[2]}, 6144, v{vXo[0]}'); e(f'v_add_u32 v{vXo[3]}, 6144, v{vXo[1]}')
    e(f's_lshl_b32 s{sXB}, s{sRT}, 17'); e(f's_lshl_b32 s11, s{sW}, 15'); e(f's_add_u32 s{sXB}, s{sXB}, s11')
    e(f's_lshl_b32 s{sW0B}, s{sCG}, 15'); e(f's_and_b32 s11, s{sW}, 1'); e('s_lshl_b32 s11, s11, 14'); e(f's_add_u32 s{sW0B}, s{sW0B}, s11')
    e(f's_lshl_b32 s{sM0X}, s{sW}, 12'); e(f's_add_u32 s{sM0X}, s{sM0X}, {RING}')
    e(f's_lshl_b32 s{sM0W}, s{sW}, 11'); e(f's_add_u32 s{sM0W}, s{sM0W}, {RING+16384}')
    def mksrd(b,p): e(f's_mov_b32 s{b}, s{p}'); e(f's_mov_b32 s{b+1}, s{p+1}')
    def srdc(b,size): e(f's_mov_b32 s{b+2}, {size}'); e(f's_mov_b32 s{b+3}, 0x20000')
    srdc(SX,2048*1024); srdc(SW0,512*1024)
    e(f's_cmp_lt_u32 s{sW}, 2')
    e('s_waitcnt lgkmcnt(0)')
    stamp('karg')
    if O('stamps'): e(f's_cmp_lt_u32 s{sW}, 2')
    mksrd(SX,16)
    e(f's_cselect_b32 s{SW0}, s22, s24'); e(f's_cselect_b32 s{SW0+1}, s23, s25')
    blk_last={}
    st={'barr':-1,'free':[0,1],'pendC':[],'pendRel':[],'Frow':{},'Flast':{},'w2n':0,'m0':None,'w2on':False}
    D=O('D',3)
    def setm0(base,c):
        if st['m0']!=(base,c):
            e(f's_add_u32 m0, s{base}, {c}'); st['m0']=(base,c)
    def streamP():
        for q in range(16):
            while q>=O('pre',2) and st['barr']<q-D: yield 'blocked'
            sl=q%NS
            if q<8:
                e(f's_add_u32 s11, s{sROT}, {q}'); e('s_and_b32 s11, s11, 7'); e('s_lshl_b32 s11, s11, 7')
                e(f's_add_u32 s{sSO}, s{sXB}, s11'); e(f's_add_u32 s{sSO2}, s{sW0B}, s11')
                for a in range(4):
                    setm0(sM0X,sl*SLOT)
                    g.vm(f'buffer_load_dwordx4 v{vXo[a]}, {srd(SX)}, s{sSO} offen offset:{1024*a} lds'); yield
                for a in range(2):
                    setm0(sM0W,sl*SLOT)
                    blk_last[q]=g.vm(f'buffer_load_dwordx4 v{vNat[a]}, {srd(SW0)}, s{sSO2} offen offset:{1024*a} lds'); yield
            else:
                e(f's_add_u32 s11, s{sROT}, {q-8}'); e('s_and_b32 s11, s11, 7'); e(f's_mul_i32 s{sSO}, s11, s{sFST}')
                for mt,S_ in enumerate((SW1,SW3)):
                    for a in range(3):
                        setm0(sM0F,sl*SLOT+mt*12288)
                        blk_last[q]=g.vm(f'buffer_load_dwordx4 v{vWF[a]}, {srd(S_)}, s{sSO} offen offset:{1024*a} lds'); yield
        while True: yield 'done'
    def moveC(gi,row,last):
        mt,cb,db=gi>>2,(gi>>1)&1,gi&1
        g.wait(vm=last)
        for s in range(4):
            kap=4*(2*cb+(s>>1))+2*mt+(s&1)
            dst=128+(kap*2+db)*4
            if row<4: ad=vRAw[s]; off=row*16384
            else:
                ad=T+44+s; off=0
                e(f'v_add_u32 v{ad}, {row*16384}, v{vRAw[s]}')
            i=g.lg(f'ds_read_b128 {ar(dst,4)}, v{ad} offset:{off}')
        st['pendRel'].append((row,i))
    def service(force=False):
        for it in list(st['pendRel']):
            if force: g.wait(lg=it[1])
            if g.lg_done>=it[1]: st['free'].append(it[0]); st['pendRel'].remove(it)
        if st['pendC'] and (force or g.nvm-st['pendC'][0][2]>=O('cage',10) or g.vm_done>=st['pendC'][0][2]):
            moveC(*st['pendC'].pop(0))
    def granF(u,row):
        e(f's_add_u32 s{sSO3}, s{sW2B}, {32*1024*u}')
        st['Frow'][u]=row
        for a in range(4):
            setm0(sM0R,row*16384)
            st['Flast'][u]=g.vm(f'buffer_load_dwordx4 v{vW2o[a]}, {srd(SW2)}, s{sSO3} offen offset:{1024*a} lds'); st['w2n']+=1; yield
    def streamW():
        for gi in range(8):
            while not st['free']: yield 'blocked'
            row=st['free'].pop(0)
            mt,cb,db=gi>>2,(gi>>1)&1,gi&1
            e(f's_add_u32 s{sSO3}, s{sCB}, {db*32*1024+cb*128}')
            for a in range(4):
                setm0(sM0R,row*16384)
                last=g.vm(f'buffer_load_dwordx4 v{vNat[a]}, {srd(SCIM if mt else SCRE)}, s{sSO3} offen offset:{1024*a} lds')
                if a==3: st['pendC'].append((gi,row,last))
                st['w2n']+=1
                yield
        for u in range(9):
            while not st['free']: yield 'blocked'
            row=st['free'].pop(0)
            yield from granF(u,row)
        while True: yield 'done'
    SP=streamP(); SWs=streamW()
    def pump(n=1):
        r=None
        for _ in range(n):
            r=next(SP)
            if r and st['w2on']:
                service(); r=next(SWs)
        return r
    def barrier(q):
        e('s_barrier'); st['barr']=q
        rel={13:[4],14:[5],15:[6,7],17:[8,2,3]}
        st['free']+=rel.get(q,[])
        if q>=O('w2from',10): st['w2on']=True
    pump(6)
    e(f's_load_dword s{sNON}, s[48:49], {Z_OFF}'); g.smem=True
    e(f'v_add_u32 v{T+14}, s{sROT}, v{l3}'); e(f'v_and_b32 v{T+14}, 7, v{T+14}'); e(f'v_lshlrev_b32 v{T+14}, 7, v{T+14}')
    e(f'v_lshl_add_u32 v{T+14}, v{l7}, 4, v{T+14}')
    e('s_mov_b32 m0, 0'); st['m0']=None
    e(f'v_and_b32 v{vM}, 31, v{vL}')
    blk_last[0]=g.vm(f'global_load_lds_dwordx4 v{T+14}, s[42:43]')
    e(f's_lshl_b32 s11, s{sCG}, 6')
    e(f'v_lshl_add_u32 v{T+15}, v{vM}, 1, s11')
    pump(6*(O('pre',2)-1))
    pl=[g.vm(f'global_load_ushort v{T+16}, v{T+15}, s[18:19]'),g.vm(f'global_load_ushort v{T+17}, v{T+15}, s[20:21]'),g.vm(f'global_load_ushort v{T+18}, v{T+15}, s[30:31]')]
    e(f'v_mov_b32 v{T+36}, 0'); e(f'v_mov_b32 v{T+37}, 0'); e(f'v_lshlrev_b32 v{T+38}, 3, v0')
    g.lg(f'ds_write_b64 v{T+38}, {vr(T+36,2)} offset:{XCH_L}')
    e(f'v_lshlrev_b32 v{vHH16}, 4, v{hh}')
    e(f's_lshl_b32 s{sM0R}, s{sW}, 12'); e(f's_add_u32 s{sM0R}, s{sM0R}, {ROW0}')
    e(f'v_bfe_u32 v{T+20}, v{vM}, 1, 3'); e(f'v_xor_b32 v{T+20}, v{T+20}, v{hh}'); e(f'v_lshlrev_b32 v{T+20}, 4, v{T+20}')
    e(f'v_lshl_add_u32 v{vRA[0]}, v{vM}, 7, v{T+20}')
    for s in range(1,4): e(f'v_xor_b32 v{vRA[s]}, {32*s}, v{vRA[0]}')
    XA2=[T+24+s for s in range(4)]; WA=[vRA,[T+28+s for s in range(4)],[T+32+s for s in range(4)]]
    for s in range(4):
        e(f'v_add_u32 v{vRAw[s]}, s{sM0R}, v{vRA[s]}')
        e(f'v_add_u32 v{XA2[s]}, {RING-ROW0+2*SLOT}, v{vRAw[s]}')
        e(f'v_add_u32 v{WA[1][s]}, {RING+16384+2*SLOT}, v{vRA[s]}'); e(f'v_add_u32 v{WA[2][s]}, {RING+16384+4*SLOT}, v{vRA[s]}')
        e(f'v_add_u32 v{vRA[s]}, {RING+16384}, v{vRA[s]}')
    vGA=T+40
    e(f'v_xor_b32 v{T+20}, v{vL}, v{l4}'); e(f'v_and_b32 v{T+20}, 1, v{T+20}'); e(f'v_lshl_add_u32 v{vGA}, v{T+20}, 10, v{vHH16}')
    def side_setup():
        L=[]; A=L.append
        def mk(b,p): A(f's_mov_b32 s{b}, s{p}'); A(f's_mov_b32 s{b+1}, s{p+1}')
        def sc(b,size): A(f's_mov_b32 s{b+2}, {size}'); A(f's_mov_b32 s{b+3}, 0x20000')
        for b,p,size in [(SW1,36,512*2752),(SW3,38,512*2752),(SCRE,26,512*1024),(SCIM,28,512*1024),(SW2,40,1376*1024),(SWS,48,WS_SIZE),(SOUT,44,2048*2048)]:
            mk(b,p); sc(b,size)
        sc(SHE,8192)
        A(f's_mul_i32 s{sM0F}, s{sW}, 3072'); A(f's_add_u32 s{sM0F}, s{sM0F}, {RING}')
        A(f's_mov_b32 s{sFST}, {64*2752}')
        A(f'v_lshlrev_b32 v{vL16}, 4, v{vL}'); A(f'v_lshlrev_b32 v{vM8}, 3, v{vM}')
        A(f's_mul_i32 s15, s{sW}, {16*2752}'); A(f's_mul_i32 s12, s{sCG}, 192'); A('s_add_u32 s15, s15, s12')
        A(f's_mul_i32 s12, s{sCG}, 12'); A('s_movk_i32 s13, 2752'); A(f'v_mov_b32 v{T+23}, {OOB:#x}')
        for a in range(3):
            A(f'v_add_u32 v{T+20}, {64*a}, v{vL}')
            A(f'v_mul_u32_u24 v{T+21}, 43691, v{T+20}'); A(f'v_lshrrev_b32 v{T+21}, 19, v{T+21}')
            A(f'v_mul_u32_u24 v{T+22}, 12, v{T+21}'); A(f'v_sub_u32 v{T+22}, v{T+20}, v{T+22}')
            A(f'v_mul_u32_u24 v{T+21}, s13, v{T+21}')
            A(f'v_lshl_add_u32 v{T+21}, v{T+22}, 4, v{T+21}')
            A(f'v_add_u32 v{T+22}, s12, v{T+22}')
            A(f'v_cmp_gt_u32 vcc, 172, v{T+22}')
            A(f'v_add_u32 v{T+21}, s15, v{T+21}')
            if a: A(f'v_subrev_u32 v{T+21}, {1024*a}, v{T+21}')
            A(f'v_cndmask_b32 v{vWF[a]}, v{T+23}, v{T+21}, vcc')
        if O('pf15',1):
            A('\n'.join([f's_cmp_eq_u32 s{sCG}, 15','s_cbranch_scc0 L_no15',
              f's_mul_i32 s12, s{sRT}, {96*1024}', f's_add_u32 s{SW1}, s40, s12', f's_addc_u32 s{SW1+1}, s41, 0',
              f's_sub_u32 s{SW1+2}, {1376*1024}, s12', f's_max_i32 s{SW1+2}, s{SW1+2}, 0',
              f's_and_b32 s12, s{sRT}, 7', f's_mul_i32 s12, s12, {64*1024}', f's_cmp_lt_u32 s{sRT}, 8',
              f's_cselect_b32 s{SW3}, s26, s28', f's_cselect_b32 s{SW3+1}, s27, s29',
              f's_add_u32 s{SW3}, s{SW3}, s12', f's_addc_u32 s{SW3+1}, s{SW3+1}, 0', f's_mov_b32 s{SW3+2}, {64*1024}',
              f's_movk_i32 s{sFST}, 12288', f's_mul_i32 s12, s{sW}, 3072',
              f'v_lshl_add_u32 v{vWF[0]}, v{vL}, 4, s12', f'v_mov_b32 v{vWF[1]}, v{vWF[0]}', f'v_mov_b32 v{vWF[2]}, v{vWF[0]}',
              'L_no15:']))
        A(f's_lshl_b32 s12, s{sCG}, 13'); A(f's_add_u32 s12, s12, {HE_OFF}')
        A(f's_add_u32 s{SHE}, s48, s12\ns_addc_u32 s{SHE+1}, s49, 0')
        A(f's_lshl_b32 s{sCB}, s{sCT}, 16'); A(f's_lshl_b32 s12, s{sW}, 8'); A(f's_add_u32 s{sCB}, s{sCB}, s12')
        A(f's_mul_i32 s{sW2B}, s{sW}, {352*1024}'); A(f's_lshl_b32 s12, s{sCT}, 7'); A(f's_add_u32 s{sW2B}, s{sW2B}, s12')
        A(f's_lshl_b32 s13, s{sRT}, 2'); A(f's_add_u32 s12, s13, s{sW}'); A(f's_mul_i32 s{sA2S}, s12, {160*1024}'); A(f's_add_u32 s{sA2S}, s{sA2S}, {A2_OFF}')
        A(f's_lshl_b32 s12, s{sRH}, 1'); A('s_add_u32 s12, s12, s13'); A(f's_mul_i32 s{sA2L0}, s12, {160*1024}'); A(f's_add_u32 s{sA2L0}, s{sA2L0}, {A2_OFF}')
        A(f's_add_u32 s{sA2L1}, s{sA2L0}, {160*1024}')
        A(f's_mov_b32 s{sNL2E}, {NLOG2E:#x}')
        A(f'v_add_u32 v{vNat[2]}, {2*7168}, v{vNat[0]}'); A(f'v_add_u32 v{vNat[3]}, {2*7168}, v{vNat[1]}')
        r_,c_,g1=T+20,T+21,T+22
        A(f'v_bfe_u32 v{r_}, v{vL}, 2, 2'); A(f'v_and_b32 v{c_}, 3, v{vL}'); A(f'v_and_b32 v{g1}, 1, v{l4}')
        A(f'v_lshl_add_u32 v{T+19}, v{hh}, 3, v{r_}'); A(f'v_mul_u32_u24 v{T+19}, 192, v{T+19}')
        A(f'v_lshl_add_u32 v{T+19}, v{g1}, 5, v{T+19}'); A(f'v_lshl_add_u32 v{T+19}, v{c_}, 3, v{T+19}')
        for k in range(3): A(f'v_add_u32 v{vTR[k]}, {RING+2*k*SLOT}, v{T+19}')
        A(f'v_lshlrev_b32 v{T+19}, 2, v{g1}'); A(f'v_xor_b32 v{T+19}, v{T+19}, v{l7}'); A(f'v_lshlrev_b32 v{T+19}, 4, v{T+19}')
        A(f'v_lshl_add_u32 v{vW2o[0]}, v{l3}, 10, v{T+19}')
        for a in range(1,4): A(f'v_add_u32 v{vW2o[a]}, {7168*a}, v{vW2o[0]}')
        A(f's_sub_u32 s12, 15, s{sRT}'); A('s_lshl_b32 s12, s12, 9')
        A(f'v_lshl_add_u32 v{T+20}, v{vM}, 4, s12')
        A(f'v_cmp_eq_u32 vcc, s{sW}, v{l3}')
        A(f'v_lshl_add_u32 v{vHEo}, v{vHH16}, 8, v{T+20}'); A(f'v_add_u32 v{vHEo}, 512, v{vHEo}')
        A(f'v_cndmask_b32 v{T+10}, v{T+23}, v{T+20}, vcc')
        A(f's_mul_i32 s{sNON}, s{sNON}, 1664525'); A(f's_add_u32 s{sNON}, s{sNON}, 1013904223')
        A(f's_cmp_eq_u32 s{sNON}, 0\ns_cselect_b32 s{sNON}, 1013904223, s{sNON}')
        return L
    Ls=side_setup()
    npre=O('setup_pre',len(Ls)-3)
    for t in Ls[:npre]: e(t)
    g.wait_all_lg()
    stamp('setup')
    def side_params():
        for i,t in enumerate(Ls[npre:]):
            e(t)
            if i%3==2: yield
        g.wait(vm=pl[2])
        lre,lim,dt=T+16,T+17,T+18
        a_,b_,t0,t1=T+36,T+37,T+38,T+39
        L=[]; A=L.append
        for r in (lre,lim,dt): A(f'v_lshlrev_b32 v{r}, 16, v{r}')
        A(f'v_mul_f32 v{dt}, {LOG2E:#x}, v{dt}'); A(f'v_exp_f32 v{dt}, v{dt}')
        A(f'v_mul_f32 v{t0}, v{lre}, v{lre}')
        A(f'v_cvt_pk_bf16_f32 v{dt}, v{dt}, v{dt}'); A(f'v_lshlrev_b32 v{dt}, 16, v{dt}')
        A(f'v_mul_f32 v{a_}, v{dt}, v{lre}'); A(f'v_mul_f32 v{b_}, v{dt}, v{lim}')
        A(f'v_fma_f32 v{dt}, v{lim}, v{lim}, v{t0}'); A(f'v_rcp_f32 v{dt}, v{dt}')
        A(f'v_mul_f32 v{a_}, {LOG2E:#x}, v{a_}'); A(f'v_exp_f32 v{a_}, v{a_}')
        A(f'v_mul_f32 v{b_}, {INV2PI:#x}, v{b_}'); A(f'v_rndne_f32 v{t0}, v{b_}'); A(f'v_sub_f32 v{b_}, v{b_}, v{t0}')
        A(f'v_cos_f32 v{t0}, v{b_}'); A(f'v_sin_f32 v{t1}, v{b_}')
        A(f'v_add_f32 v{dt}, v{dt}, v{dt}')
        A(f'v_mul_f32 v{vLr}, v{a_}, v{t0}'); A(f'v_mul_f32 v{vLi}, v{a_}, v{t1}')
        A(f'v_add_f32 v{a_}, -1.0, v{vLr}')
        A(f'v_mul_f32 v{vNC2i}, v{vLi}, v{lre}'); A(f'v_mul_f32 v{vC2r}, v{a_}, v{lre}')
        A(f'v_fma_f32 v{vNC2i}, v{a_}, v{lim}, -v{vNC2i}'); A(f'v_fma_f32 v{vC2r}, v{vLi}, v{lim}, v{vC2r}')
        A(f'v_mul_f32 v{vNC2i}, v{vNC2i}, v{dt}'); A(f'v_mul_f32 v{vC2r}, v{vC2r}, v{dt}')
        def csq(dr,di,sr,si,n):
            for k in range(n):
                A(f'v_mul_f32 v{t0}, v{si}, v{si}'); A(f'v_mul_f32 v{t1}, v{sr}, v{si}')
                A(f'v_fma_f32 v{dr}, v{sr}, v{sr}, -v{t0}'); A(f'v_add_f32 v{di}, v{t1}, v{t1}')
                sr,si=dr,di
        csq(vL16r,vL16i,vLr,vLi,4); csq(vL128r,vL128i,vL16r,vL16i,3); csq(vL1kr,vL1ki,vL128r,vL128i,3)
        for i,t in enumerate(L):
            e(t)
            if i&1: yield
    FB=ACC; NR=6; LA1=O('la1',3)
    ids={}
    def readsA(n):
        q,s=n>>2,n&3; sl=q%NS
        if s==0:
            g.wait(vm=blk_last[q]); barrier(q); stamp(f'B{q}')
        b=FB+12*(n%NR)
        xa,xo=(vRAw[s],RING-ROW0+sl*SLOT) if sl<2 else (XA2[s],(sl-2)*SLOT)
        wa=WA[sl>>1][s]; wo=(sl&1)*SLOT
        g.lg(f'ds_read_b128 {ar(16*q+4*s,4)}, v{xa} offset:{xo}')
        ids[n,0]=g.lg(f'ds_read_b128 {vr(b,4)}, v{wa} offset:{wo}')
        ids[n,1]=g.lg(f'ds_read_b128 {vr(b+4,4)}, v{wa} offset:{wo+4096}')
        ids[n,2]=g.lg(f'ds_read_b128 {vr(b+8,4)}, v{vGA} offset:{GW_L+q*128+s*32}')
    for n in range(LA1): readsA(n)
    side=side_params()
    LA=6; rid={}
    def trread(n,half):
        q,s,f=8+n//24,(n%24)//6,n%6
        if n%24==0 and half==0:
            g.wait(vm=blk_last[q],lg=st.get('elw')); barrier(q); stamp(f'B{q}')
        sl=q%NS; pair,mt=f>>1,f&1
        off=(sl&1)*SLOT+mt*12288+s*3072+pair*64
        b=WR+4*(n%8)
        rid[n]=g.lg(f'ds_read_b64_tr_b16 {vr(b+2*half,2)}, v{vTR[sl>>1]} offset:{off+768*half}')
    for n in range(32):
        b=FB+12*(n%NR); first=(n==0); x=ar(4*n,4)
        g.wait(lg=ids[n,2])
        e(f'v_mfma_f32_32x32x16_bf16 {vr(URE,16)}, {x}, {vr(b,4)}, {"0" if first else vr(URE,16)}')
        pump(1)
        next(side,None)
        e(f'v_mfma_f32_32x32x16_bf16 {vr(UIM,16)}, {x}, {vr(b+4,4)}, {"0" if first else vr(UIM,16)}')
        pump(1)
        next(side,None)
        e(f'v_mfma_f32_16x16x32_bf16 {vr(ZA,4)}, {vr(b+8,4)}, {x}, {"0" if first else vr(ZA,4)}')
        if n+LA1<32: readsA(n+LA1)
        else:
            k=n+LA1-32
            for m_ in range(2*k,2*k+2): trread(m_,0); trread(m_,1)
    for _ in side: pass
    stamp('1a_end')
    NLi,NL16i,NL128i,NC2r=vXo
    def cfma_ip(ar_,ai_,lr,li,nli,sr,si):
        e(f'v_fmac_f32 v{ar_}, v{lr}, v{sr}'); e(f'v_fmac_f32 v{ai_}, v{lr}, v{si}')
        e(f'v_fmac_f32 v{ar_}, v{nli}, v{si}'); e(f'v_fmac_f32 v{ai_}, v{li}, v{sr}')
    def side_mid():
        e(f'v_xor_b32 v{NLi}, 0x80000000, v{vLi}'); e(f'v_xor_b32 v{NL16i}, 0x80000000, v{vL16i}'); yield
        e(f'v_xor_b32 v{NL128i}, 0x80000000, v{vL128i}'); e(f'v_xor_b32 v{NC2r}, 0x80000000, v{vC2r}'); yield
        e(f'v_lshlrev_b32 v{T+4}, 3, v0'); yield
        P=[(T,T+1),(T+2,T+3)]
        cur=(URE,UIM)
        for t in range(1,16):
            d=P[t&1]
            e(f'v_fma_f32 v{d[0]}, v{vLr}, v{cur[0]}, v{URE+t}'); e(f'v_fma_f32 v{d[1]}, v{vLr}, v{cur[1]}, v{UIM+t}')
            e(f'v_fmac_f32 v{d[0]}, v{NLi}, v{cur[1]}'); e(f'v_fmac_f32 v{d[1]}, v{vLi}, v{cur[0]}')
            cur=d; yield
        st['elw']=g.lg(f'ds_write_b64 v{T+4}, {vr(T+2,2)} offset:{E_L}'); b0=st['barr']; yield
        z=T+6
        e(f'v_and_b32 v{z+1}, 16, v{vL}'); e(f'v_cmp_eq_u32 vcc, 0, v{z+1}'); yield
        e(f'v_cndmask_b32 v{z}, v{ZA+1}, v{ZA}, vcc')
        e(f'v_cvt_pk_bf16_f32 v{z}, v{z}, v{z}'); e(f'v_lshlrev_b32 v{z}, 16, v{z}'); yield
        e(f'v_mul_f32 v{z}, s{sNL2E}, v{z}'); e(f'v_exp_f32 v{z}, v{z}'); yield
        e(f'v_add_f32 v{z}, 1.0, v{z}'); e(f'v_rcp_f32 v{z}, v{z}'); yield
        e(f'v_cvt_pk_bf16_f32 v{z}, v{z}, v{z}'); e(f'v_lshlrev_b32 v{z}, 16, v{z}'); yield
        e(f'v_sub_f32 v{z+1}, 1.0, v{z}'); e(f'v_cvt_pk_bf16_f32 v{z+1}, v{z+1}, v{z+1}'); e(f'v_lshlrev_b32 v{z+1}, 16, v{z+1}'); yield
        e(f'v_rcp_f32 v{vCinv}, v{z+1}'); e(f's_lshl_b32 s12, s{sW}, 7'); e(f'v_lshl_add_u32 v{T+5}, v{vM}, 2, s12'); yield
        e(f'v_min_f32 v{vCinv}, 0x7e967699, v{vCinv}')
        g.lg(f'ds_write_b32 v{T+5}, v{z} offset:{G_L}'); yield
        e(f'v_mov_b32 v{T+13}, s{sNON}'); e(f'v_mov_b32 v{T+15}, s{sNON}'); yield
        while st['barr']==b0: yield
        ids=[]
        for s in range(8):
            ids.append(g.lg(f'ds_read_b64 {vr(T+16+2*s,2)}, v{vM8} offset:{E_L+256*s}'))
            if s&1: yield
        yield; yield
        for s in range(1,8):
            g.wait(lg=ids[s])
            cfma_ip(T+16+2*s,T+17+2*s,vL16r,vL16i,NL16i,T+14+2*s,T+15+2*s); yield
        e(f'v_mov_b32 v{T+12}, v{T+30}'); e(f'v_mov_b32 v{T+14}, v{T+31}')
        g.vm(f'buffer_store_dwordx4 {vr(T+12,4)}, v{T+10}, {srd(SHE)}, 0 offen sc1'); stamp('he_pub'); yield
        e(f's_lshl_b32 s15, s{sRT}, 1'); e(f's_lshr_b32 s12, s{sW}, 1'); e('s_add_u32 s12, s12, s15'); e('s_lshl_b32 s12, s12, 8'); yield
        e(f's_and_b32 s13, s{sW}, 1'); e(f's_lshl_b32 s14, s{sCG}, 1'); e('s_add_u32 s13, s13, s14'); e('s_lshl_b32 s13, s13, 2'); yield
        e('s_add_u32 s12, s12, s13'); e(f's_add_u32 s12, s12, {FL_OFF}'); e(f'v_mov_b32 v{T+2}, s12'); yield
        e(f'v_mov_b32 v{T+3}, {OOB:#x}'); e(f'v_cmp_eq_u32 vcc, 0, v{vL}'); e(f's_add_u32 s15, s15, s{sRH}'); yield
        e('s_lshl_b32 s15, s15, 8'); e(f's_add_u32 s15, s15, {FL_OFF}'); e(f'v_cndmask_b32 v{vFS}, v{T+3}, v{T+2}, vcc'); yield
        e(f'v_mov_b32 v{vNON}, s{sNON}'); e(f'v_lshl_add_u32 v{vFLo}, v{vM}, 2, s15'); yield
        e(f's_lshl_b32 s12, s{sW}, 11'); e(f's_add_u32 s12, s12, {TRB_L}'); e(f'v_lshlrev_b32 v{vTW}, 6, v{vM}'); yield
        e(f'v_lshl_add_u32 v{vTW}, v{vHH16}, 1, v{vTW}'); e(f'v_add_u32 v{vTW}, s12, v{vTW}'); yield
        e(f'v_bfe_u32 v{vTRd}, v{vL}, 2, 2'); e(f'v_lshlrev_b32 v{vTRd}, 6, v{vTRd}'); yield
        e(f'v_lshl_add_u32 v{vTRd}, v{vHH16}, 5, v{vTRd}'); e(f'v_and_b32 v{T+2}, 1, v{vL}'); yield
        e(f'v_lshl_add_u32 v{vTRd}, v{T+2}, 5, v{vTRd}'); e(f'v_and_b32 v{T+2}, 16, v{vL}'); e(f'v_add_u32 v{vTRd}, v{T+2}, v{vTRd}'); yield
        e(f'v_and_b32 v{T+2}, 2, v{vL}'); e(f'v_lshl_add_u32 v{vTRd}, v{T+2}, 2, v{vTRd}'); e(f'v_add_u32 v{vTRd}, s12, v{vTRd}'); yield
        e(f'v_lshrrev_b32 v{vEX}, 1, v{vHH16}'); e(f'v_sub_u32 v{vEX}, s{sRT}, v{vEX}'); e(f'v_max_i32 v{vEX}, 0, v{vEX}'); yield
        e(f'v_min_i32 v{vEX}, 8, v{vEX}'); e(f'v_lshlrev_b32 v{vEX}, 1, v{vEX}'); e(f'v_mov_b32 v{vCinv+1}, v{vCinv}'); yield
        e(f'v_lshlrev_b32 v{T+40}, 3, v0'); yield
        e(f's_lshl_b32 s{sT0}, s{sCG}, 12'); e(f's_add_u32 s{sT0}, s{sT0}, s{sA2S}'); yield
    vFS,vNON,vTW,vTRd=vRA; vEX=38
    side=side_mid()
    he={}; he_at=O('he_at',150)
    for n in range(192):
        q,s,f=n//24,(n%24)//6,n%6
        ph=n%3
        if ph==0: g.wait(lg=rid[n+2])
        acc=vr(ACC+16*f,16)
        e(f'v_mfma_f32_32x32x16_bf16 {acc}, {vr(WR+4*(n%8),4)}, {ar(16*q+4*s,4)}, {"0" if n<6 else acc}')
        b=n-ph+LA
        if b<192:
            if ph==0: trread(b,0); trread(b,1); trread(b+1,0)
            if ph==1: trread(b+1,1); trread(b+2,0); trread(b+2,1)
        if ph==2:
            jj=(n-he_at)//3
            if n>=he_at and jj<8 and O('he_rep',1):
                he[jj]=g.vm(f'buffer_load_dwordx4 {vr(T+4*jj,4)}, v{vHEo}, {srd(SHE)}, 0 offen offset:{512*jj} sc1')
            else: pump(1)
        next(side,None)
    for _ in side: raise Exception('side work left')
    g.wait_all_lg(); barrier(17); stamp('1b_end'); print('w2n at 1b_end',st['w2n'])
    tick=[0]
    PER=O('per',90)
    def tk(c):
        tick[0]+=c
        if tick[0]>=PER: tick[0]-=PER; pump(1)
    pump(1)
    cnt=T+32
    e(f's_mov_b32 s{sCNT}, 0')
    g.wait(vm=he[7])
    e('L_he_chk:')
    e(f'v_mov_b32 v{cnt}, 0')
    for jj in range(8):
        e(f'v_cmp_eq_u32 vcc, s{sNON}, v{T+4*jj+1}'); e(f'v_cmp_eq_u32 s[12:13], s{sNON}, v{T+4*jj+3}')
        e(f'v_addc_co_u32 v{cnt}, vcc, 0, v{cnt}, vcc'); e(f'v_addc_co_u32 v{cnt}, s[12:13], 0, v{cnt}, s[12:13]')
    e(f'v_cmp_ne_u32 vcc, v{cnt}, v{vEX}')
    e('s_nop 1')
    e('s_cbranch_vccz L_he_ok')
    e(f's_add_u32 s{sCNT}, s{sCNT}, 1'); e(f's_cmp_gt_u32 s{sCNT}, {SPIN}'); e('s_cbranch_scc1 L_he_ok')
    e('s_sleep 2')
    for jj in range(8): e(f'buffer_load_dwordx4 {vr(T+4*jj,4)}, v{vHEo}, {srd(SHE)}, 0 offen offset:{512*jj} sc1')
    e('s_waitcnt vmcnt(0)'); e('s_branch L_he_chk')
    e('L_he_ok:'); stamp('he_ok')
    if O('stamps'): e(f'v_writelane_b32 v39, s{sCNT}, 60')
    pump(2)
    for jj in range(6,-1,-1):
        cfma_ip(T+4*jj,T+4*jj+2,vL128r,vL128i,NL128i,T+4*jj+4,T+4*jj+6); tk(22)
    e(f'v_mov_b32 v{T+36}, v{T}'); e(f'v_mov_b32 v{T+37}, v{T+2}'); e(f'v_mov_b32 v{T+35}, v{T+2}'); e(f'v_mov_b32 v{T+34}, v{T}')
    e(f'v_permlane32_swap_b32 v{T+35}, v{T+37}'); e(f'v_permlane32_swap_b32 v{T+34}, v{T+36}')
    e(f'v_fmac_f32 v{T+34}, v{vL1kr}, v{T+36}'); e(f'v_fmac_f32 v{T+35}, v{vL1kr}, v{T+37}')
    e(f'v_fma_f32 v{T+34}, -v{vL1ki}, v{T+37}, v{T+34}'); e(f'v_fmac_f32 v{T+35}, v{vL1ki}, v{T+36}')
    stamp('s1')
    g.lg(f'ds_write_b64 v{vM8}, {vr(T+34,2)} offset:{HIN_L}')
    ids=[g.lg(f'ds_read_b64 {vr(T+2*k,2)}, v{T+40} offset:{XCH_L+256*k}') for k in range(8)]
    pump(2)
    for k in range(1,8):
        g.wait(lg=ids[k])
        cfma_ip(T+2*k,T+2*k+1,vL16r,vL16i,NL16i,T+2*k-2,T+2*k-1); tk(22)
    cur=(T+14,T+15)
    OB=T+32
    stamp('s2')
    for t in range(17):
        if t<16:
            e(f'v_fmac_f32 v{URE+t}, v{vLr}, v{cur[0]}'); e(f'v_fmac_f32 v{UIM+t}, v{vLr}, v{cur[1]}')
        if t>0:
            u=t-1; o=OB+(u&1)
            e(f'v_mul_f32 v{o}, v{vC2r}, v{URE+u}'); e(f'v_mul_f32 v{o+2}, v{NC2r}, v{UIM+u}')
        if t<16:
            e(f'v_fmac_f32 v{URE+t}, v{NLi}, v{cur[1]}'); e(f'v_fmac_f32 v{UIM+t}, v{vLi}, v{cur[0]}'); cur=(URE+t,UIM+t)
        if t>0:
            e(f'v_fmac_f32 v{o}, v{vNC2i}, v{UIM+u}'); e(f'v_fmac_f32 v{o+2}, v{vNC2i}, v{URE+u}')
            if u&1:
                e(f'v_cvt_pk_bf16_f32 v{T+16+(u>>1)}, v{OB}, v{OB+1}'); e(f'v_cvt_pk_bf16_f32 v{T+24+(u>>1)}, v{OB+2}, v{OB+3}')
        tk(38)
    stamp('s3')
    tid={}
    for mt in range(2):
        g.lg(f'ds_write_b128 v{vTW}, {vr(T+16+8*mt,4)}'); g.lg(f'ds_write_b128 v{vTW}, {vr(T+16+8*mt+4,4)} offset:16')
        for ks in range(2):
            for rho in range(2):
                tid[mt,ks]=g.lg(f'ds_read_b64_tr_b16 {vr(T+8*mt+4*ks+2*rho,2)}, v{vTRd} offset:{ks*1024+rho*256}')
    sq=[(mt,ks) for mt in range(2) for ks in range(2)]
    def ssm_store():
        if not sq: return False
        mt,ks=sq.pop(0)
        g.wait(lg=tid[mt,ks])
        st['sst']=g.vm(f'buffer_store_dwordx4 {vr(T+8*mt+4*ks,4)}, v{vL16}, {srd(SWS)}, s{sT0} offen offset:{(2*mt+ks)*1024} sc1'); tick[0]-=PER
        return True
    stamp('ssm_fin')
    e(f's_mul_i32 s{sT1}, s{sCG}, {6*1024}'); e(f's_add_u32 s{sT1}, s{sT1}, s{sA2S}'); e(f's_add_u32 s16, s{sT1}, {64*1024}')
    e(f's_add_u32 s17, s16, 4096')
    E0=URE
    pol=T+18
    last_st=None; pid=None
    for pr in range(3):
        G=ACC+32*pr; Uu=G+16
        for h in range(2):
            k=2*pr+h
            R=range(8*h,8*h+8,2)
            for i in R: e(f'v_pk_mul_f32 {vr(E0+i%8,2)}, {vr(G+i,2)}, s[{sNL2E}:{sNL2E+1}] op_sel_hi:[1,0]')
            tk(21)
            for i in range(8): e(f'v_exp_f32 v{E0+i}, v{E0+i}')
            tk(64)
            if k<2: ssm_store()
            for i in R: e(f'v_pk_mul_f32 {vr(G+i,2)}, {vr(G+i,2)}, {vr(Uu+i,2)}')
            for i in R: e(f'v_pk_fma_f32 {vr(E0+i%8,2)}, {vr(E0+i%8,2)}, {vr(vCinv,2)}, {vr(vCinv,2)}')
            tk(42)
            for i in range(8): e(f'v_rcp_f32 v{E0+i}, v{E0+i}')
            tk(64)
            if k<2: ssm_store()
            for i in R: e(f'v_pk_mul_f32 {vr(G+i,2)}, {vr(G+i,2)}, {vr(E0+i%8,2)}')
            pk=E0+8+4*(k%4)
            for i in range(4): e(f'v_cvt_pk_bf16_f32 v{pk+i}, v{G+8*h+2*i}, v{G+8*h+2*i+1}')
            tk(42)
            if k==O('sflag_at',5):
                g.wait(vm=st['sst']); g.vm(f'buffer_store_dword v{vNON}, v{vFS}, {srd(SWS)}, 0 offen sc1'); stamp('sflag')
            last_st=g.vm(f'buffer_store_dwordx4 {vr(pk,4)}, v{vL16}, {srd(SWS)}, s{16 if k<4 else 17} offen offset:{(k%4)*1024} sc1'); tick[0]-=PER
    stamp('ffn_epi'); print('w2n at ffn_epi',st['w2n'])
    def drain(n):
        k=0
        while k<n and st['w2n']<68:
            r=pump(1)
            if r=='blocked': service(force=True)
            else: k+=1
    vT0=[T+4,T+5,T+6]; vT1=[T+7,T+8,T+9]; vG=[T+10,T+11]
    x0,x1=T+14,T+15
    e(f'v_bfe_u32 v{x0}, v{vL}, 2, 2'); e(f'v_lshlrev_b32 v{x0}, 7, v{x0}'); e(f'v_lshl_add_u32 v{x0}, v{vHH16}, 5, v{x0}')
    e(f'v_and_b32 v{x1}, 8, v{vL}'); e(f'v_lshl_add_u32 v{x0}, v{x1}, 3, v{x0}')
    e(f'v_and_b32 v{x1}, 16, v{vL}'); e(f'v_lshl_add_u32 v{x0}, v{x1}, 1, v{x0}')
    e(f'v_and_b32 v{x1}, 3, v{vL}'); e(f'v_lshl_add_u32 v{x0}, v{x1}, 3, v{x0}')
    e(f'v_add_u32 v{vT0[0]}, s{sM0R}, v{x0}'); e(f'v_xor_b32 v{vT1[0]}, 64, v{vT0[0]}')
    for k in (1,2):
        e(f'v_add_u32 v{vT0[k]}, {65536*k}, v{vT0[0]}'); e(f'v_add_u32 v{vT1[k]}, {65536*k}, v{vT1[0]}')
    drain(1)
    e(f's_lshl_b32 s12, s{sRH}, 8'); e(f'v_lshl_add_u32 v{x0}, v{vM}, 2, s12')
    g.lg(f'ds_read_b32 v{vG[0]}, v{x0} offset:{G_L}'); gid=g.lg(f'ds_read_b32 v{vG[1]}, v{x0} offset:{G_L+128}')
    XS=T+20; DS=T+28; vXa=T+30; vOa=T+31; vGe=T+32
    e(f's_lshl_b32 s13, s{sRT}, 7'); e(f's_lshl_b32 s12, s{sRH}, 6'); e('s_add_u32 s13, s13, s12')
    e(f's_lshr_b32 s12, s{sW}, 1'); e('s_lshl_b32 s12, s12, 5'); e('s_add_u32 s13, s13, s12')
    e(f's_and_b32 s12, s{sW}, 1'); e('s_lshl_b32 s12, s12, 3'); e('s_add_u32 s13, s13, s12')
    e(f'v_lshrrev_b32 v{x0}, 4, v{vL}'); e(f'v_add_u32 v{x0}, s13, v{x0}')
    e(f'v_and_b32 v{x1}, 15, v{vL}'); e(f's_lshl_b32 s12, s{sCT}, 7'); e(f'v_lshl_add_u32 v{x1}, v{x1}, 3, s12')
    e(f'v_lshl_add_u32 v{vXa}, v{x0}, 10, v{x1}'); e(f'v_lshlrev_b32 v{vOa}, 1, v{vXa}')
    g.vm(f'global_load_dwordx2 {vr(DS,2)}, v{x1}, s[32:33]')
    for it in range(4):
        e(f's_movk_i32 s12, {(16*(it&1)+4*(it>>1))*1024}')
        xl=g.vm(f'buffer_load_dwordx2 {vr(XS+2*it,2)}, v{vXa}, {srd(SX)}, s12 offen')
    e(f's_lshl_b32 s12, s{sW}, 14'); e(f's_add_u32 s16, s{sA2L0}, s12'); e(f's_add_u32 s17, s{sA2L1}, s12')
    e(f's_mul_i32 s12, s{sW}, {22*1024}'); e(f's_add_u32 s12, s12, {64*1024}'); e(f's_add_u32 s18, s{sA2L0}, s12'); e(f's_add_u32 s19, s{sA2L1}, s12')
    e(f's_lshl_b32 s13, s{sCG}, 2'); e(f's_add_u32 s13, s13, s{sW}'); e(f's_xor_b32 s12, s{sRT}, 15'); e('s_or_b32 s13, s13, s12')
    e(f'v_or_b32 v{x0}, s13, v{vL}'); e(f'v_cmp_eq_u32 vcc, 0, v{x0}'); e(f'v_mov_b32 v{x0}, {OOB:#x}'); e(f'v_cndmask_b32 v{x0}, v{x0}, 0, vcc')
    fl={'done':False}
    def fflag():
        if fl['done']: return
        g.wait(vm=last_st)
        g.vm(f'buffer_store_dword v{vNON}, v{vFS}, {srd(SWS)}, 0 offen offset:128 sc1'); stamp('fflag'); fl['done']=True
    lag=O('flag_lag',10)
    while st['w2n']<68-O('poll_lead',8):
        if g.nvm-last_st>=lag: fflag()
        drain(1)
    pid=g.vm(f'buffer_load_dword v{pol}, v{vFLo}, {srd(SWS)}, 0 offen sc1')
    while st['w2n']<68:
        if g.nvm-last_st>=lag: fflag()
        drain(1)
    while st['pendC'] or st['pendRel']: service(force=True)
    def check(pid,reg,off,tag,lane):
        e(f's_mov_b32 s{sCNT}, 0')
        g.wait(vm=pid)
        e(f'L_{tag}_chk:')
        e(f'v_cmp_ne_u32 vcc, s{sNON}, v{reg}')
        e('s_nop 1')
        e(f's_cbranch_vccz L_{tag}_ok')
        e(f's_add_u32 s{sCNT}, s{sCNT}, 1'); e(f's_cmp_gt_u32 s{sCNT}, {SPIN}'); e(f's_cbranch_scc1 L_{tag}_ok')
        e('s_sleep 1')
        e(f'buffer_load_dword v{reg}, v{vFLo}, {srd(SWS)}, 0 offen offset:{off} sc1')
        e('s_waitcnt vmcnt(0)'); e(f's_branch L_{tag}_chk')
        e(f'L_{tag}_ok:'); stamp(tag+'_ok')
        if O('stamps'): e(f'v_writelane_b32 v39, s{sCNT}, {lane}')
    stamp('w2_issued')
    fflag()
    check(pid,pol,0,'fs',61)
    aid={}
    def aload(k):
        base,kk=(16,k) if k<16 else (18,k-16)
        if kk%4==0:
            e(f's_add_u32 s20, s{base}, {kk*1024}'); e(f's_add_u32 s21, s{base+1}, {kk*1024}')
        for tb in range(2):
            aid[k]=g.vm(f'buffer_load_dwordx4 {ar(8*(k%16)+4*tb,4)}, v{vL16}, {srd(SWS)}, s{20+tb} offen offset:{(kk%4)*1024} sc1')
    ALA=O('ala',8)
    for k in range(ALA): aload(k)
    g.vm(f'buffer_store_dword v{vNON}, v{x0}, {srd(SWS)}, 0 offen offset:{Z_OFF} sc1')
    wid={}
    def wread(k):
        kk=k-16; u,ks=kk>>1,kk&1
        g.wait(vm=st['Flast'][u])
        row=st['Frow'][u]
        for db in range(2):
            b=WR+8*(k%4)+4*db
            ad=(vT0,vT1)[db][row>>2]
            for rho in range(2):
                wid[k]=g.lg(f'ds_read_b64_tr_b16 {vr(b+2*rho,2)}, v{ad} offset:{(row&3)*16384+ks*2048+rho*1024}')
    wj=[T+36+j for j in range(4)]; rd=[T+40,T+41]; SK=URE; dsk=[T+42+i for i in range(4)]
    def side_fin():
        y0,y1=T+16,T+17
        e(f'v_lshrrev_b32 v{y0}, 4, v{vM}'); e(f'v_lshlrev_b32 v{y0}, 14, v{y0}'); e(f'v_and_b32 v{y1}, 15, v{vM}'); yield
        e(f'v_lshl_add_u32 v{y0}, v{y1}, 8, v{y0}'); e(f'v_and_b32 v{y1}, 7, v{vM}'); e(f'v_lshlrev_b32 v{y1}, 4, v{y1}'); yield
        e(f'v_xor_b32 v{y1}, v{y1}, v{vHH16}'); e(f'v_add3_u32 v{wj[0]}, v{y0}, v{y1}, s{sM0R}'); yield
        for j in range(1,4): e(f'v_xor_b32 v{wj[j]}, {32*j}, v{wj[0]}')
        yield
        e(f'v_lshrrev_b32 v{y0}, 4, v{vL}'); e(f'v_and_b32 v{y1}, 15, v{vL}'); e(f'v_xor_b32 v{y1}, v{y1}, v{y0}'); yield
        e(f'v_lshlrev_b32 v{y1}, 4, v{y1}'); e(f'v_lshl_add_u32 v{y1}, v{y0}, 8, v{y1}'); yield
        e(f's_lshl_b32 s12, s{sW}, 14'); e(f's_add_u32 s12, s12, {ROW0}'); e(f'v_add_u32 v{rd[0]}, s12, v{y1}'); e(f'v_xor_b32 v{rd[1]}, 64, v{rd[0]}'); yield
        e(f's_lshl_b32 s13, s{sRH}, 8'); e(f's_lshl_b32 s12, s{sW}, 6'); e('s_add_u32 s12, s12, s13'); e(f'v_lshl_add_u32 v{y0}, v{y0}, 2, s12'); yield
        for it in range(4): gl=g.lg(f'ds_read_b32 v{vGe+it}, v{y0} offset:{G_L+16*it}')
        yield
        g.wait(vm=xl)
        e(f'v_lshlrev_b32 v{dsk[0]}, 16, v{DS}'); e(f'v_and_b32 v{dsk[1]}, 0xffff0000, v{DS}'); yield
        e(f'v_lshlrev_b32 v{dsk[2]}, 16, v{DS+1}'); e(f'v_and_b32 v{dsk[3]}, 0xffff0000, v{DS+1}'); yield
        g.wait(lg=gl)
        for it in range(4):
            for h in range(2):
                a,b=SK+4*it+2*h,SK+4*it+2*h+1
                e(f'v_lshlrev_b32 v{a}, 16, v{XS+2*it+h}'); e(f'v_and_b32 v{b}, 0xffff0000, v{XS+2*it+h}')
                e(f'v_mul_f32 v{a}, v{a}, v{dsk[2*h]}'); yield
                e(f'v_mul_f32 v{b}, v{b}, v{dsk[2*h+1]}')
                e(f'v_cvt_pk_bf16_f32 v{b}, v{a}, v{b}')
                e(f'v_lshlrev_b32 v{a}, 16, v{b}'); yield
                e(f'v_and_b32 v{b}, 0xffff0000, v{b}')
                e(f'v_mul_f32 v{a}, v{a}, v{vGe+it}'); e(f'v_mul_f32 v{b}, v{b}, v{vGe+it}'); yield
    side=side_fin()
    pid2=None
    for k in range(38):
        if k+2>=16 and k+2<38: wread(k+2)
        g.wait(vm=aid[k])
        if k>=16: g.wait(lg=wid[k])
        if k in (0,8,16,24,32): stamp(f'k{k}')
        if k==16:
            g.wait(lg=gid)
            for db in range(2):
                for tb in range(2):
                    for i in range(16):
                        r=ACC+16*(2*db+tb)+i
                        e(f'v_mul_f32 v{r}, v{vG[tb]}, v{r}')
        for db in range(2):
            for tb in range(2):
                acc=vr(ACC+16*(2*db+tb),16)
                Wf=ar(128+(k*2+db)*4,4) if k<16 else vr(WR+8*(k%4)+4*db,4)
                e(f'v_mfma_f32_32x32x16_bf16 {acc}, {Wf}, {ar(8*(k%16)+4*tb,4)}, {"0" if k==0 else acc}')
                next(side,None)
            if db==0 and k+ALA<38:
                if k+ALA==16: check(pid2,pol+1,128,'ff',59)
                aload(k+ALA)
                if k+ALA==16-O('poll2_lead',4): pid2=g.vm(f'buffer_load_dword v{pol+1}, v{vFLo}, {srd(SWS)}, 0 offen offset:128 sc1')
        if k in (17,19):
            u=9+(k-17)//2
            for _ in granF(u,st['Frow'][u-9]): pass
    stamp('p2_end')
    for db in range(2):
        for tb in range(2):
            for j in range(4):
                g.lg(f'ds_write_b128 v{wj[j]}, {vr(ACC+16*(2*db+tb)+4*j,4)} offset:{db*128+tb*32768}')
    g.wait_all_lg(); e('s_barrier'); stamp('red')
    RB=ACC
    ids={}
    for it in range(4):
        for w2 in range(4):
            ids[it,w2]=g.lg(f'ds_read_b128 {vr(RB+16*it+4*w2,4)}, v{rd[it&1]} offset:{w2*4096+it*1024}')
    for it in range(4):
        g.wait(lg=ids[it,3])
        b=RB+16*it
        for i in (0,2): e(f'v_pk_add_f32 {vr(b+i,2)}, {vr(b+i,2)}, {vr(SK+4*it+i,2)}')
        for i in (0,2): e(f'v_pk_add_f32 {vr(b+4+i,2)}, {vr(b+4+i,2)}, {vr(b+8+i,2)}')
        for i in (0,2): e(f'v_pk_add_f32 {vr(b+i,2)}, {vr(b+i,2)}, {vr(b+12+i,2)}')
        for i in (0,2): e(f'v_pk_add_f32 {vr(b+i,2)}, {vr(b+i,2)}, {vr(b+4+i,2)}')
        e(f's_mov_b32 s12, {(16*(it&1)+4*(it>>1))*2048}')
        g.vm(f'buffer_store_dwordx4 {vr(b,4)}, v{vOa}, {srd(SOUT)}, s12 offen {O("outfl","")}')
    if O('stamps'):
        stamp('st_iss')
        e('s_waitcnt vmcnt(0)'); stamp('end')
        e('s_memrealtime s[94:95]'); e('s_waitcnt lgkmcnt(0)'); e('v_writelane_b32 v39, s94, 63')
        e(f's_lshl_b32 s11, s2, 10'); e(f's_add_u32 s11, s11, {WS_SIZE}'); e(f's_add_u32 s{SWS+2}, s{SWS+2}, 0x40000')
        e(f'v_lshlrev_b32 v{T}, 2, v0')
        e(f'buffer_store_dword v39, v{T}, {srd(SWS)}, s11 offen')
    e('L_end:')
    e('s_endpgm')
    hdr=open('gated_mix__ssm_conv_s5__glu_gated_swiglu__prompt.s.ref').read().split('; Override')[0]
    out=hdr+'; @launch grid=(256,1,1) block=(256,1,1) lds=163840\n'
    out+=f'.amdgcn_target "amdgcn-amd-amdhsa--gfx950"\n.text\n.globl {NAME}\n.p2align 8\n.type {NAME},@function\n{NAME}:\n'
    out+=g.text()
    out+=f'.fill (32768+256-(.-{NAME}))/4, 4, 0xbf810000\n'
    out+=f'''.section .rodata,"a"
.p2align 6
.amdhsa_kernel {NAME}
  .amdhsa_next_free_vgpr 512
  .amdhsa_next_free_sgpr 102
  .amdhsa_accum_offset 256
  .amdhsa_group_segment_fixed_size 0
  .amdhsa_kernarg_size 136
  .amdhsa_user_sgpr_count 2
  .amdhsa_user_sgpr_kernarg_segment_ptr 1
  .amdhsa_system_sgpr_workgroup_id_x 1
.end_amdhsa_kernel
'''
    return out,g
if __name__=='__main__':
    import json
    opt=json.loads(sys.argv[2]) if len(sys.argv)>2 else {}
    out,g=gen(opt)
    open(sys.argv[1],'w').write(out)
    if g.stamps: json.dump(g.stamps,open(sys.argv[1]+'.names','w'))
    from collections import Counter
    print(len(g.ins),Counter(i.cls for i in g.ins), 'nops',sum(1 for i in g.ins if i.mn=='s_nop'))
```

```python
import sys
from asmlib import *
NAME='gated_mix__ssm_conv_s5__glu_gated_swiglu__prompt_kernel'
ROW0=8192; RING=40960; SLOT=24576; NS=5
Z_OFF=0; FL_OFF=0x1000; HE_OFF=0x10000; A2_OFF=0x40000; WS_SIZE=A2_OFF+16*4*160*1024
OOB=0x80000000
GW_L=0; XCH_L=1024; HIN_L=2816; E_L=3072; G_L=5120; TRB_L=155648
LOG2E=0x3fb8aa3b; NLOG2E=0xbfb8aa3b; INV2PI=0x3e22f983
SPIN=200000
sW,sRT,sCG,sCT,sRH,sROT,sNON=4,5,6,7,8,9,10
SX,SW0,SW1,SW3,SCRE,SCIM,SW2,SWS,SHE,SOUT=52,56,60,64,68,72,76,80,84,88
sXB,sW0B,sM0X,sM0W,sM0F,sSO,sSO2=96,97,98,99,100,101,3
sCB,sW2B,sA2S,sA2L0,sA2L1,sCNT,sT0,sT1=34,35,36,37,38,39,40,41
sM0R,sSO3,sFST,sNL2E=50,51,22,24
srd=lambda b:f's[{b}:{b+3}]'
vr=lambda b,n:f'v[{b}:{b+n-1}]'
ar=lambda b,n:f'a[{b}:{b+n-1}]'
vL,vM,vHH16,vL16=1,2,3,4
vNat=[5,6,7,8]; vXo=[9,10,11,12]; vWF=[13,14,15]
vRA=[16,17,18,19]; vRAw=[20,21,22,23]; vTR=[24,25,26]
vLr,vLi,vL16r,vL16i,vL128r,vL128i,vL1kr,vL1ki,vC2r,vNC2i,vM8=27,28,29,30,31,32,33,34,35,36,37
vCinv=40
vW2o=[42,43,44,45]; vHEo=46; vFLo=47
URE=48; UIM=64; ACC=80; WR=176; T=208
ZA=T+44
def gen(opt=None):
    opt=opt or {}
    O=opt.get
    g=Gen(); e=g.e
    stamps=[]
    def stamp(name):
        if not O('stamps'): return
        k=len(stamps); stamps.append(name)
        e('s_memtime s[92:93]'); e('s_waitcnt lgkmcnt(0)'); g.lg_done=g.nlg; g.smem=False
        e(f'v_writelane_b32 v39, s92, {k}')
    g.stamps=stamps
    e('s_cmp_ge_u32 s2, 256'); e('s_cbranch_scc1 L_end')
    if O('stamps'):
        e('s_memrealtime s[94:95]'); e('v_mov_b32 v39, 0')
        stamp('start'); e('v_writelane_b32 v39, s94, 62')
    e('s_load_dwordx16 s[16:31], s[0:1], 0')
    e('s_load_dwordx16 s[32:47], s[0:1], 64')
    e('s_load_dwordx2 s[48:49], s[0:1], 128')
    e('s_getpc_b64 s[50:51]')
    e('s_lshr_b32 s13, s2, 3')
    e('s_and_b32 s14, s13, 7'); e('s_lshl_b32 s14, s14, 12')
    e(f'v_lshl_add_u32 v{T}, v0, 4, s14')
    g.vm(f'global_load_dwordx4 {vr(T+4,4)}, v{T}, s[50:51]')
    e(f'v_lshrrev_b32 v{T+1}, 6, v0')
    e(f'v_and_b32 v{vL}, 63, v0')
    e(f'v_readfirstlane_b32 s{sW}, v{T+1}')
    e('s_and_b32 s12, s2, 7')
    e(f's_and_b32 s{sRH}, s12, 1'); e('s_lshr_b32 s14, s12, 1')
    e(f's_lshl_b32 s{sRT}, s14, 2'); e('s_lshr_b32 s15, s13, 3'); e(f's_add_u32 s{sRT}, s{sRT}, s15')
    e(f's_and_b32 s{sCT}, s13, 7')
    e(f's_lshl_b32 s{sCG}, s{sRH}, 3'); e(f's_add_u32 s{sCG}, s{sCG}, s{sCT}')
    e(f's_lshl_b32 s{sROT}, s14, 1'); e(f's_and_b32 s11, s{sCT}, {O("rotmask",7)}'); e(f's_add_u32 s{sROT}, s{sROT}, s11')
    l3,l7,l4,hh,sw0=T+8,T+9,T+10,T+11,T+12
    e(f'v_lshrrev_b32 v{l3}, 3, v{vL}'); e(f'v_and_b32 v{l7}, 7, v{vL}'); e(f'v_lshrrev_b32 v{l4}, 4, v{vL}'); e(f'v_lshrrev_b32 v{hh}, 5, v{vL}')
    e(f'v_xor_b32 v{sw0}, v{l7}, v{l4}'); e(f'v_lshlrev_b32 v{sw0}, 4, v{sw0}')
    e(f'v_lshl_add_u32 v{vNat[0]}, v{l3}, 10, v{sw0}')
    e(f'v_xor_b32 v{vNat[1]}, 64, v{vNat[0]}'); e(f'v_add_u32 v{vNat[1]}, 7168, v{vNat[1]}')
    e(f'v_and_b32 v{T+13}, 3, v{l3}'); e(f'v_lshl_add_u32 v{T+13}, v{hh}, 4, v{T+13}')
    e(f'v_lshl_add_u32 v{vXo[0]}, v{T+13}, 10, v{sw0}')
    e(f'v_xor_b32 v{vXo[1]}, 64, v{vXo[0]}'); e(f'v_add_u32 v{vXo[1]}, 3072, v{vXo[1]}')
    e(f'v_add_u32 v{vXo[2]}, 6144, v{vXo[0]}'); e(f'v_add_u32 v{vXo[3]}, 6144, v{vXo[1]}')
    e(f's_lshl_b32 s{sXB}, s{sRT}, 17'); e(f's_lshl_b32 s11, s{sW}, 15'); e(f's_add_u32 s{sXB}, s{sXB}, s11')
    e(f's_lshl_b32 s{sW0B}, s{sCG}, 15'); e(f's_and_b32 s11, s{sW}, 1'); e('s_lshl_b32 s11, s11, 14'); e(f's_add_u32 s{sW0B}, s{sW0B}, s11')
    e(f's_lshl_b32 s{sM0X}, s{sW}, 12'); e(f's_add_u32 s{sM0X}, s{sM0X}, {RING}')
    e(f's_lshl_b32 s{sM0W}, s{sW}, 11'); e(f's_add_u32 s{sM0W}, s{sM0W}, {RING+16384}')
    def mksrd(b,p): e(f's_mov_b32 s{b}, s{p}'); e(f's_mov_b32 s{b+1}, s{p+1}')
    def srdc(b,size): e(f's_mov_b32 s{b+2}, {size}'); e(f's_mov_b32 s{b+3}, 0x20000')
    srdc(SX,2048*1024); srdc(SW0,512*1024)
    e(f's_cmp_lt_u32 s{sW}, 2')
    e('s_waitcnt lgkmcnt(0)')
    stamp('karg')
    if O('stamps'): e(f's_cmp_lt_u32 s{sW}, 2')
    mksrd(SX,16)
    e(f's_cselect_b32 s{SW0}, s22, s24'); e(f's_cselect_b32 s{SW0+1}, s23, s25')
    blk_last={}
    st={'barr':-1,'free':[0,1],'pendC':[],'pendRel':[],'Frow':{},'Flast':{},'w2n':0,'m0':None,'w2on':False}
    D=O('D',3)
    def setm0(base,c):
        if st['m0']!=(base,c):
            e(f's_add_u32 m0, s{base}, {c}'); st['m0']=(base,c)
    def streamP():
        for q in range(16):
            while q>=O('pre',2) and st['barr']<q-D: yield 'blocked'
            sl=q%NS
            if q<8:
                e(f's_add_u32 s11, s{sROT}, {q}'); e('s_and_b32 s11, s11, 7'); e('s_lshl_b32 s11, s11, 7')
                e(f's_add_u32 s{sSO}, s{sXB}, s11'); e(f's_add_u32 s{sSO2}, s{sW0B}, s11')
                for a in range(4):
                    setm0(sM0X,sl*SLOT)
                    g.vm(f'buffer_load_dwordx4 v{vXo[a]}, {srd(SX)}, s{sSO} offen offset:{1024*a} lds'); yield
                for a in range(2):
                    setm0(sM0W,sl*SLOT)
                    blk_last[q]=g.vm(f'buffer_load_dwordx4 v{vNat[a]}, {srd(SW0)}, s{sSO2} offen offset:{1024*a} lds'); yield
            else:
                e(f's_add_u32 s11, s{sROT}, {q-8}'); e('s_and_b32 s11, s11, 7'); e(f's_mul_i32 s{sSO}, s11, s{sFST}')
                for mt,S_ in enumerate((SW1,SW3)):
                    for a in range(3):
                        setm0(sM0F,sl*SLOT+mt*12288)
                        blk_last[q]=g.vm(f'buffer_load_dwordx4 v{vWF[a]}, {srd(S_)}, s{sSO} offen offset:{1024*a} lds'); yield
        while True: yield 'done'
    def moveC(gi,row,last):
        mt,cb,db=gi>>2,(gi>>1)&1,gi&1
        g.wait(vm=last)
        for s in range(4):
            kap=4*(2*cb+(s>>1))+2*mt+(s&1)
            dst=128+(kap*2+db)*4
            if row<4: ad=vRAw[s]; off=row*16384
            else:
                ad=T+44+s; off=0
                e(f'v_add_u32 v{ad}, {row*16384}, v{vRAw[s]}')
            i=g.lg(f'ds_read_b128 {ar(dst,4)}, v{ad} offset:{off}')
        st['pendRel'].append((row,i))
    def service(force=False):
        for it in list(st['pendRel']):
            if force: g.wait(lg=it[1])
            if g.lg_done>=it[1]: st['free'].append(it[0]); st['pendRel'].remove(it)
        if st['pendC'] and (force or g.nvm-st['pendC'][0][2]>=O('cage',10) or g.vm_done>=st['pendC'][0][2]):
            moveC(*st['pendC'].pop(0))
    def granF(u,row):
        e(f's_add_u32 s{sSO3}, s{sW2B}, {32*1024*u}')
        st['Frow'][u]=row
        for a in range(4):
            setm0(sM0R,row*16384)
            st['Flast'][u]=g.vm(f'buffer_load_dwordx4 v{vW2o[a]}, {srd(SW2)}, s{sSO3} offen offset:{1024*a} lds'); st['w2n']+=1; yield
    def streamW():
        for gi in range(8):
            while not st['free']: yield 'blocked'
            row=st['free'].pop(0)
            mt,cb,db=gi>>2,(gi>>1)&1,gi&1
            e(f's_add_u32 s{sSO3}, s{sCB}, {db*32*1024+cb*128}')
            for a in range(4):
                setm0(sM0R,row*16384)
                last=g.vm(f'buffer_load_dwordx4 v{vNat[a]}, {srd(SCIM if mt else SCRE)}, s{sSO3} offen offset:{1024*a} lds')
                if a==3: st['pendC'].append((gi,row,last))
                st['w2n']+=1
                yield
        for u in range(9):
            while not st['free']: yield 'blocked'
            row=st['free'].pop(0)
            yield from granF(u,row)
        while True: yield 'done'
    SP=streamP(); SWs=streamW()
    def pump(n=1):
        r=None
        for _ in range(n):
            r=next(SP)
            if r and st['w2on']:
                service(); r=next(SWs)
        return r
    def barrier(q):
        e('s_barrier'); st['barr']=q
        rel={13:[4],14:[5],15:[6,7],17:[8,2,3]}
        st['free']+=rel.get(q,[])
        if q>=O('w2from',10): st['w2on']=True
    pump(6)
    e(f's_load_dword s{sNON}, s[48:49], {Z_OFF}'); g.smem=True
    e(f'v_add_u32 v{T+14}, s{sROT}, v{l3}'); e(f'v_and_b32 v{T+14}, 7, v{T+14}'); e(f'v_lshlrev_b32 v{T+14}, 7, v{T+14}')
    e(f'v_lshl_add_u32 v{T+14}, v{l7}, 4, v{T+14}')
    e('s_mov_b32 m0, 0'); st['m0']=None
    e(f'v_and_b32 v{vM}, 31, v{vL}')
    blk_last[0]=g.vm(f'global_load_lds_dwordx4 v{T+14}, s[42:43]')
    e(f's_lshl_b32 s11, s{sCG}, 6')
    e(f'v_lshl_add_u32 v{T+15}, v{vM}, 1, s11')
    pump(6*(O('pre',2)-1))
    pl=[g.vm(f'global_load_ushort v{T+16}, v{T+15}, s[18:19]'),g.vm(f'global_load_ushort v{T+17}, v{T+15}, s[20:21]'),g.vm(f'global_load_ushort v{T+18}, v{T+15}, s[30:31]')]
    e(f'v_mov_b32 v{T+36}, 0'); e(f'v_mov_b32 v{T+37}, 0'); e(f'v_lshlrev_b32 v{T+38}, 3, v0')
    g.lg(f'ds_write_b64 v{T+38}, {vr(T+36,2)} offset:{XCH_L}')
    e(f'v_lshlrev_b32 v{vHH16}, 4, v{hh}')
    e(f's_lshl_b32 s{sM0R}, s{sW}, 12'); e(f's_add_u32 s{sM0R}, s{sM0R}, {ROW0}')
    e(f'v_bfe_u32 v{T+20}, v{vM}, 1, 3'); e(f'v_xor_b32 v{T+20}, v{T+20}, v{hh}'); e(f'v_lshlrev_b32 v{T+20}, 4, v{T+20}')
    e(f'v_lshl_add_u32 v{vRA[0]}, v{vM}, 7, v{T+20}')
    for s in range(1,4): e(f'v_xor_b32 v{vRA[s]}, {32*s}, v{vRA[0]}')
    XA2=[T+24+s for s in range(4)]; WA=[vRA,[T+28+s for s in range(4)],[T+32+s for s in range(4)]]
    for s in range(4):
        e(f'v_add_u32 v{vRAw[s]}, s{sM0R}, v{vRA[s]}')
        e(f'v_add_u32 v{XA2[s]}, {RING-ROW0+2*SLOT}, v{vRAw[s]}')
        e(f'v_add_u32 v{WA[1][s]}, {RING+16384+2*SLOT}, v{vRA[s]}'); e(f'v_add_u32 v{WA[2][s]}, {RING+16384+4*SLOT}, v{vRA[s]}')
        e(f'v_add_u32 v{vRA[s]}, {RING+16384}, v{vRA[s]}')
    vGA=T+40
    e(f'v_xor_b32 v{T+20}, v{vL}, v{l4}'); e(f'v_and_b32 v{T+20}, 1, v{T+20}'); e(f'v_lshl_add_u32 v{vGA}, v{T+20}, 10, v{vHH16}')
    def side_setup():
        L=[]; A=L.append
        def mk(b,p): A(f's_mov_b32 s{b}, s{p}'); A(f's_mov_b32 s{b+1}, s{p+1}')
        def sc(b,size): A(f's_mov_b32 s{b+2}, {size}'); A(f's_mov_b32 s{b+3}, 0x20000')
        for b,p,size in [(SW1,36,512*2752),(SW3,38,512*2752),(SCRE,26,512*1024),(SCIM,28,512*1024),(SW2,40,1376*1024),(SWS,48,WS_SIZE),(SOUT,44,2048*2048)]:
            mk(b,p); sc(b,size)
        sc(SHE,8192)
        A(f's_mul_i32 s{sM0F}, s{sW}, 3072'); A(f's_add_u32 s{sM0F}, s{sM0F}, {RING}')
        A(f's_mov_b32 s{sFST}, {64*2752}')
        A(f'v_lshlrev_b32 v{vL16}, 4, v{vL}'); A(f'v_lshlrev_b32 v{vM8}, 3, v{vM}')
        A(f's_mul_i32 s15, s{sW}, {16*2752}'); A(f's_mul_i32 s12, s{sCG}, 192'); A('s_add_u32 s15, s15, s12')
        A(f's_mul_i32 s12, s{sCG}, 12'); A('s_movk_i32 s13, 2752'); A(f'v_mov_b32 v{T+23}, {OOB:#x}')
        for a in range(3):
            A(f'v_add_u32 v{T+20}, {64*a}, v{vL}')
            A(f'v_mul_u32_u24 v{T+21}, 43691, v{T+20}'); A(f'v_lshrrev_b32 v{T+21}, 19, v{T+21}')
            A(f'v_mul_u32_u24 v{T+22}, 12, v{T+21}'); A(f'v_sub_u32 v{T+22}, v{T+20}, v{T+22}')
            A(f'v_mul_u32_u24 v{T+21}, s13, v{T+21}')
            A(f'v_lshl_add_u32 v{T+21}, v{T+22}, 4, v{T+21}')
            A(f'v_add_u32 v{T+22}, s12, v{T+22}')
            A(f'v_cmp_gt_u32 vcc, 172, v{T+22}')
            A(f'v_add_u32 v{T+21}, s15, v{T+21}')
            if a: A(f'v_subrev_u32 v{T+21}, {1024*a}, v{T+21}')
            A(f'v_cndmask_b32 v{vWF[a]}, v{T+23}, v{T+21}, vcc')
        if O('pf15',1):
            A('\n'.join([f's_cmp_eq_u32 s{sCG}, 15','s_cbranch_scc0 L_no15',
              f's_mul_i32 s12, s{sRT}, {96*1024}', f's_add_u32 s{SW1}, s40, s12', f's_addc_u32 s{SW1+1}, s41, 0',
              f's_sub_u32 s{SW1+2}, {1376*1024}, s12', f's_max_i32 s{SW1+2}, s{SW1+2}, 0',
              f's_and_b32 s12, s{sRT}, 7', f's_mul_i32 s12, s12, {64*1024}', f's_cmp_lt_u32 s{sRT}, 8',
              f's_cselect_b32 s{SW3}, s26, s28', f's_cselect_b32 s{SW3+1}, s27, s29',
              f's_add_u32 s{SW3}, s{SW3}, s12', f's_addc_u32 s{SW3+1}, s{SW3+1}, 0', f's_mov_b32 s{SW3+2}, {64*1024}',
              f's_movk_i32 s{sFST}, 12288', f's_mul_i32 s12, s{sW}, 3072',
              f'v_lshl_add_u32 v{vWF[0]}, v{vL}, 4, s12', f'v_mov_b32 v{vWF[1]}, v{vWF[0]}', f'v_mov_b32 v{vWF[2]}, v{vWF[0]}',
              'L_no15:']))
        A(f's_lshl_b32 s12, s{sCG}, 13'); A(f's_add_u32 s12, s12, {HE_OFF}')
        A(f's_add_u32 s{SHE}, s48, s12\ns_addc_u32 s{SHE+1}, s49, 0')
        A(f's_lshl_b32 s{sCB}, s{sCT}, 16'); A(f's_lshl_b32 s12, s{sW}, 8'); A(f's_add_u32 s{sCB}, s{sCB}, s12')
        A(f's_mul_i32 s{sW2B}, s{sW}, {352*1024}'); A(f's_lshl_b32 s12, s{sCT}, 7'); A(f's_add_u32 s{sW2B}, s{sW2B}, s12')
        A(f's_lshl_b32 s13, s{sRT}, 2'); A(f's_add_u32 s12, s13, s{sW}'); A(f's_mul_i32 s{sA2S}, s12, {160*1024}'); A(f's_add_u32 s{sA2S}, s{sA2S}, {A2_OFF}')
        A(f's_lshl_b32 s12, s{sRH}, 1'); A('s_add_u32 s12, s12, s13'); A(f's_mul_i32 s{sA2L0}, s12, {160*1024}'); A(f's_add_u32 s{sA2L0}, s{sA2L0}, {A2_OFF}')
        A(f's_add_u32 s{sA2L1}, s{sA2L0}, {160*1024}')
        A(f's_mov_b32 s{sNL2E}, {NLOG2E:#x}')
        A(f'v_add_u32 v{vNat[2]}, {2*7168}, v{vNat[0]}'); A(f'v_add_u32 v{vNat[3]}, {2*7168}, v{vNat[1]}')
        r_,c_,g1=T+20,T+21,T+22
        A(f'v_bfe_u32 v{r_}, v{vL}, 2, 2'); A(f'v_and_b32 v{c_}, 3, v{vL}'); A(f'v_and_b32 v{g1}, 1, v{l4}')
        A(f'v_lshl_add_u32 v{T+19}, v{hh}, 3, v{r_}'); A(f'v_mul_u32_u24 v{T+19}, 192, v{T+19}')
        A(f'v_lshl_add_u32 v{T+19}, v{g1}, 5, v{T+19}'); A(f'v_lshl_add_u32 v{T+19}, v{c_}, 3, v{T+19}')
        for k in range(3): A(f'v_add_u32 v{vTR[k]}, {RING+2*k*SLOT}, v{T+19}')
        A(f'v_lshlrev_b32 v{T+19}, 2, v{g1}'); A(f'v_xor_b32 v{T+19}, v{T+19}, v{l7}'); A(f'v_lshlrev_b32 v{T+19}, 4, v{T+19}')
        A(f'v_lshl_add_u32 v{vW2o[0]}, v{l3}, 10, v{T+19}')
        for a in range(1,4): A(f'v_add_u32 v{vW2o[a]}, {7168*a}, v{vW2o[0]}')
        A(f's_sub_u32 s12, 15, s{sRT}'); A('s_lshl_b32 s12, s12, 9')
        A(f'v_lshl_add_u32 v{T+20}, v{vM}, 4, s12')
        A(f'v_cmp_eq_u32 vcc, s{sW}, v{l3}')
        A(f'v_lshl_add_u32 v{vHEo}, v{vHH16}, 8, v{T+20}'); A(f'v_add_u32 v{vHEo}, 512, v{vHEo}')
        A(f'v_cndmask_b32 v{T+10}, v{T+23}, v{T+20}, vcc')
        A(f's_mul_i32 s{sNON}, s{sNON}, 1664525'); A(f's_add_u32 s{sNON}, s{sNON}, 1013904223')
        A(f's_cmp_eq_u32 s{sNON}, 0\ns_cselect_b32 s{sNON}, 1013904223, s{sNON}')
        return L
    Ls=side_setup()
    npre=O('setup_pre',len(Ls)-3)
    for t in Ls[:npre]: e(t)
    g.wait_all_lg()
    stamp('setup')
    def side_params():
        for i,t in enumerate(Ls[npre:]):
            e(t)
            if i%3==2: yield
        g.wait(vm=pl[2])
        lre,lim,dt=T+16,T+17,T+18
        a_,b_,t0,t1=T+36,T+37,T+38,T+39
        L=[]; A=L.append
        for r in (lre,lim,dt): A(f'v_lshlrev_b32 v{r}, 16, v{r}')
        A(f'v_mul_f32 v{dt}, {LOG2E:#x}, v{dt}'); A(f'v_exp_f32 v{dt}, v{dt}')
        A(f'v_mul_f32 v{t0}, v{lre}, v{lre}')
        A(f'v_cvt_pk_bf16_f32 v{dt}, v{dt}, v{dt}'); A(f'v_lshlrev_b32 v{dt}, 16, v{dt}')
        A(f'v_mul_f32 v{a_}, v{dt}, v{lre}'); A(f'v_mul_f32 v{b_}, v{dt}, v{lim}')
        A(f'v_fma_f32 v{dt}, v{lim}, v{lim}, v{t0}'); A(f'v_rcp_f32 v{dt}, v{dt}')
        A(f'v_mul_f32 v{a_}, {LOG2E:#x}, v{a_}'); A(f'v_exp_f32 v{a_}, v{a_}')
        A(f'v_mul_f32 v{b_}, {INV2PI:#x}, v{b_}'); A(f'v_rndne_f32 v{t0}, v{b_}'); A(f'v_sub_f32 v{b_}, v{b_}, v{t0}')
        A(f'v_cos_f32 v{t0}, v{b_}'); A(f'v_sin_f32 v{t1}, v{b_}')
        A(f'v_add_f32 v{dt}, v{dt}, v{dt}')
        A(f'v_mul_f32 v{vLr}, v{a_}, v{t0}'); A(f'v_mul_f32 v{vLi}, v{a_}, v{t1}')
        A(f'v_add_f32 v{a_}, -1.0, v{vLr}')
        A(f'v_mul_f32 v{vNC2i}, v{vLi}, v{lre}'); A(f'v_mul_f32 v{vC2r}, v{a_}, v{lre}')
        A(f'v_fma_f32 v{vNC2i}, v{a_}, v{lim}, -v{vNC2i}'); A(f'v_fma_f32 v{vC2r}, v{vLi}, v{lim}, v{vC2r}')
        A(f'v_mul_f32 v{vNC2i}, v{vNC2i}, v{dt}'); A(f'v_mul_f32 v{vC2r}, v{vC2r}, v{dt}')
        def csq(dr,di,sr,si,n):
            for k in range(n):
                A(f'v_mul_f32 v{t0}, v{si}, v{si}'); A(f'v_mul_f32 v{t1}, v{sr}, v{si}')
                A(f'v_fma_f32 v{dr}, v{sr}, v{sr}, -v{t0}'); A(f'v_add_f32 v{di}, v{t1}, v{t1}')
                sr,si=dr,di
        csq(vL16r,vL16i,vLr,vLi,4); csq(vL128r,vL128i,vL16r,vL16i,3); csq(vL1kr,vL1ki,vL128r,vL128i,3)
        for i,t in enumerate(L):
            e(t)
            if i&1: yield
    FB=ACC; NR=6; LA1=O('la1',3)
    ids={}
    def readsA(n):
        q,s=n>>2,n&3; sl=q%NS
        if s==0:
            g.wait(vm=blk_last[q]); barrier(q); stamp(f'B{q}')
        b=FB+12*(n%NR)
        xa,xo=(vRAw[s],RING-ROW0+sl*SLOT) if sl<2 else (XA2[s],(sl-2)*SLOT)
        wa=WA[sl>>1][s]; wo=(sl&1)*SLOT
        g.lg(f'ds_read_b128 {ar(16*q+4*s,4)}, v{xa} offset:{xo}')
        ids[n,0]=g.lg(f'ds_read_b128 {vr(b,4)}, v{wa} offset:{wo}')
        ids[n,1]=g.lg(f'ds_read_b128 {vr(b+4,4)}, v{wa} offset:{wo+4096}')
        ids[n,2]=g.lg(f'ds_read_b128 {vr(b+8,4)}, v{vGA} offset:{GW_L+q*128+s*32}')
    for n in range(LA1): readsA(n)
    side=side_params()
    LA=6; rid={}
    def trread(n,half):
        q,s,f=8+n//24,(n%24)//6,n%6
        if n%24==0 and half==0:
            g.wait(vm=blk_last[q],lg=st.get('elw')); barrier(q); stamp(f'B{q}')
        sl=q%NS; pair,mt=f>>1,f&1
        off=(sl&1)*SLOT+mt*12288+s*3072+pair*64
        b=WR+4*(n%8)
        rid[n]=g.lg(f'ds_read_b64_tr_b16 {vr(b+2*half,2)}, v{vTR[sl>>1]} offset:{off+768*half}')
    for n in range(32):
        b=FB+12*(n%NR); first=(n==0); x=ar(4*n,4)
        g.wait(lg=ids[n,2])
        e(f'v_mfma_f32_32x32x16_bf16 {vr(URE,16)}, {x}, {vr(b,4)}, {"0" if first else vr(URE,16)}')
        pump(1)
        next(side,None)
        e(f'v_mfma_f32_32x32x16_bf16 {vr(UIM,16)}, {x}, {vr(b+4,4)}, {"0" if first else vr(UIM,16)}')
        pump(1)
        next(side,None)
        e(f'v_mfma_f32_16x16x32_bf16 {vr(ZA,4)}, {vr(b+8,4)}, {x}, {"0" if first else vr(ZA,4)}')
        if n+LA1<32: readsA(n+LA1)
        else:
            k=n+LA1-32
            for m_ in range(2*k,2*k+2): trread(m_,0); trread(m_,1)
    for _ in side: pass
    stamp('1a_end')
    NLi,NL16i,NL128i,NC2r=vXo
    def cfma_ip(ar_,ai_,lr,li,nli,sr,si):
        e(f'v_fmac_f32 v{ar_}, v{lr}, v{sr}'); e(f'v_fmac_f32 v{ai_}, v{lr}, v{si}')
        e(f'v_fmac_f32 v{ar_}, v{nli}, v{si}'); e(f'v_fmac_f32 v{ai_}, v{li}, v{sr}')
    def side_mid():
        e(f'v_xor_b32 v{NLi}, 0x80000000, v{vLi}'); e(f'v_xor_b32 v{NL16i}, 0x80000000, v{vL16i}'); yield
        e(f'v_xor_b32 v{NL128i}, 0x80000000, v{vL128i}'); e(f'v_xor_b32 v{NC2r}, 0x80000000, v{vC2r}'); yield
        e(f'v_lshlrev_b32 v{T+4}, 3, v0'); yield
        P=[(T,T+1),(T+2,T+3)]
        cur=(URE,UIM)
        for t in range(1,16):
            d=P[t&1]
            e(f'v_fma_f32 v{d[0]}, v{vLr}, v{cur[0]}, v{URE+t}'); e(f'v_fma_f32 v{d[1]}, v{vLr}, v{cur[1]}, v{UIM+t}')
            e(f'v_fmac_f32 v{d[0]}, v{NLi}, v{cur[1]}'); e(f'v_fmac_f32 v{d[1]}, v{vLi}, v{cur[0]}')
            cur=d; yield
        st['elw']=g.lg(f'ds_write_b64 v{T+4}, {vr(T+2,2)} offset:{E_L}'); b0=st['barr']; yield
        z=T+6
        e(f'v_and_b32 v{z+1}, 16, v{vL}'); e(f'v_cmp_eq_u32 vcc, 0, v{z+1}'); yield
        e(f'v_cndmask_b32 v{z}, v{ZA+1}, v{ZA}, vcc')
        e(f'v_cvt_pk_bf16_f32 v{z}, v{z}, v{z}'); e(f'v_lshlrev_b32 v{z}, 16, v{z}'); yield
        e(f'v_mul_f32 v{z}, s{sNL2E}, v{z}'); e(f'v_exp_f32 v{z}, v{z}'); yield
        e(f'v_add_f32 v{z}, 1.0, v{z}'); e(f'v_rcp_f32 v{z}, v{z}'); yield
        e(f'v_cvt_pk_bf16_f32 v{z}, v{z}, v{z}'); e(f'v_lshlrev_b32 v{z}, 16, v{z}'); yield
        e(f'v_sub_f32 v{z+1}, 1.0, v{z}'); e(f'v_cvt_pk_bf16_f32 v{z+1}, v{z+1}, v{z+1}'); e(f'v_lshlrev_b32 v{z+1}, 16, v{z+1}'); yield
        e(f'v_rcp_f32 v{vCinv}, v{z+1}'); e(f's_lshl_b32 s12, s{sW}, 7'); e(f'v_lshl_add_u32 v{T+5}, v{vM}, 2, s12'); yield
        e(f'v_min_f32 v{vCinv}, 0x7e967699, v{vCinv}')
        g.lg(f'ds_write_b32 v{T+5}, v{z} offset:{G_L}'); yield
        e(f'v_mov_b32 v{T+13}, s{sNON}'); e(f'v_mov_b32 v{T+15}, s{sNON}'); yield
        while st['barr']==b0: yield
        ids=[]
        for s in range(8):
            ids.append(g.lg(f'ds_read_b64 {vr(T+16+2*s,2)}, v{vM8} offset:{E_L+256*s}'))
            if s&1: yield
        yield; yield
        for s in range(1,8):
            g.wait(lg=ids[s])
            cfma_ip(T+16+2*s,T+17+2*s,vL16r,vL16i,NL16i,T+14+2*s,T+15+2*s); yield
        e(f'v_mov_b32 v{T+12}, v{T+30}'); e(f'v_mov_b32 v{T+14}, v{T+31}')
        g.vm(f'buffer_store_dwordx4 {vr(T+12,4)}, v{T+10}, {srd(SHE)}, 0 offen sc1'); stamp('he_pub'); yield
        e(f's_lshl_b32 s15, s{sRT}, 1'); e(f's_lshr_b32 s12, s{sW}, 1'); e('s_add_u32 s12, s12, s15'); e('s_lshl_b32 s12, s12, 8'); yield
        e(f's_and_b32 s13, s{sW}, 1'); e(f's_lshl_b32 s14, s{sCG}, 1'); e('s_add_u32 s13, s13, s14'); e('s_lshl_b32 s13, s13, 2'); yield
        e('s_add_u32 s12, s12, s13'); e(f's_add_u32 s12, s12, {FL_OFF}'); e(f'v_mov_b32 v{T+2}, s12'); yield
        e(f'v_mov_b32 v{T+3}, {OOB:#x}'); e(f'v_cmp_eq_u32 vcc, 0, v{vL}'); e(f's_add_u32 s15, s15, s{sRH}'); yield
        e('s_lshl_b32 s15, s15, 8'); e(f's_add_u32 s15, s15, {FL_OFF}'); e(f'v_cndmask_b32 v{vFS}, v{T+3}, v{T+2}, vcc'); yield
        e(f'v_mov_b32 v{vNON}, s{sNON}'); e(f'v_lshl_add_u32 v{vFLo}, v{vM}, 2, s15'); yield
        e(f's_lshl_b32 s12, s{sW}, 11'); e(f's_add_u32 s12, s12, {TRB_L}'); e(f'v_lshlrev_b32 v{vTW}, 6, v{vM}'); yield
        e(f'v_lshl_add_u32 v{vTW}, v{vHH16}, 1, v{vTW}'); e(f'v_add_u32 v{vTW}, s12, v{vTW}'); yield
        e(f'v_bfe_u32 v{vTRd}, v{vL}, 2, 2'); e(f'v_lshlrev_b32 v{vTRd}, 6, v{vTRd}'); yield
        e(f'v_lshl_add_u32 v{vTRd}, v{vHH16}, 5, v{vTRd}'); e(f'v_and_b32 v{T+2}, 1, v{vL}'); yield
        e(f'v_lshl_add_u32 v{vTRd}, v{T+2}, 5, v{vTRd}'); e(f'v_and_b32 v{T+2}, 16, v{vL}'); e(f'v_add_u32 v{vTRd}, v{T+2}, v{vTRd}'); yield
        e(f'v_and_b32 v{T+2}, 2, v{vL}'); e(f'v_lshl_add_u32 v{vTRd}, v{T+2}, 2, v{vTRd}'); e(f'v_add_u32 v{vTRd}, s12, v{vTRd}'); yield
        e(f'v_lshrrev_b32 v{vEX}, 1, v{vHH16}'); e(f'v_sub_u32 v{vEX}, s{sRT}, v{vEX}'); e(f'v_max_i32 v{vEX}, 0, v{vEX}'); yield
        e(f'v_min_i32 v{vEX}, 8, v{vEX}'); e(f'v_lshlrev_b32 v{vEX}, 1, v{vEX}'); e(f'v_mov_b32 v{vCinv+1}, v{vCinv}'); yield
        e(f'v_lshlrev_b32 v{T+40}, 3, v0'); yield
        e(f's_lshl_b32 s{sT0}, s{sCG}, 12'); e(f's_add_u32 s{sT0}, s{sT0}, s{sA2S}'); yield
    vFS,vNON,vTW,vTRd=vRA; vEX=38
    side=side_mid()
    he={}; he_at=O('he_at',150)
    for n in range(192):
        q,s,f=n//24,(n%24)//6,n%6
        ph=n%3
        if ph==0: g.wait(lg=rid[n+2])
        acc=vr(ACC+16*f,16)
        e(f'v_mfma_f32_32x32x16_bf16 {acc}, {vr(WR+4*(n%8),4)}, {ar(16*q+4*s,4)}, {"0" if n<6 else acc}')
        b=n-ph+LA
        if b<192:
            if ph==0: trread(b,0); trread(b,1); trread(b+1,0)
            if ph==1: trread(b+1,1); trread(b+2,0); trread(b+2,1)
        if ph==2:
            jj=(n-he_at)//3
            if n>=he_at and jj<8 and O('he_rep',1):
                he[jj]=g.vm(f'buffer_load_dwordx4 {vr(T+4*jj,4)}, v{vHEo}, {srd(SHE)}, 0 offen offset:{512*jj} sc1')
            else: pump(1)
        next(side,None)
    for _ in side: raise Exception('side work left')
    g.wait_all_lg(); barrier(17); stamp('1b_end'); print('w2n at 1b_end',st['w2n'])
    tick=[0]
    PER=O('per',90)
    def tk(c):
        tick[0]+=c
        if tick[0]>=PER: tick[0]-=PER; pump(1)
    pump(1)
    cnt=T+32
    e(f's_mov_b32 s{sCNT}, 0')
    g.wait(vm=he[7])
    e('L_he_chk:')
    e(f'v_mov_b32 v{cnt}, 0')
    for jj in range(8):
        e(f'v_cmp_eq_u32 vcc, s{sNON}, v{T+4*jj+1}'); e(f'v_cmp_eq_u32 s[12:13], s{sNON}, v{T+4*jj+3}')
        e(f'v_addc_co_u32 v{cnt}, vcc, 0, v{cnt}, vcc'); e(f'v_addc_co_u32 v{cnt}, s[12:13], 0, v{cnt}, s[12:13]')
    e(f'v_cmp_ne_u32 vcc, v{cnt}, v{vEX}')
    e('s_nop 1')
    e('s_cbranch_vccz L_he_ok')
    e(f's_add_u32 s{sCNT}, s{sCNT}, 1'); e(f's_cmp_gt_u32 s{sCNT}, {SPIN}'); e('s_cbranch_scc1 L_he_ok')
    e('s_sleep 2')
    for jj in range(8): e(f'buffer_load_dwordx4 {vr(T+4*jj,4)}, v{vHEo}, {srd(SHE)}, 0 offen offset:{512*jj} sc1')
    e('s_waitcnt vmcnt(0)'); e('s_branch L_he_chk')
    e('L_he_ok:'); stamp('he_ok')
    if O('stamps'): e(f'v_writelane_b32 v39, s{sCNT}, 60')
    pump(2)
    for jj in range(6,-1,-1):
        cfma_ip(T+4*jj,T+4*jj+2,vL128r,vL128i,NL128i,T+4*jj+4,T+4*jj+6); tk(22)
    e(f'v_mov_b32 v{T+36}, v{T}'); e(f'v_mov_b32 v{T+37}, v{T+2}'); e(f'v_mov_b32 v{T+35}, v{T+2}'); e(f'v_mov_b32 v{T+34}, v{T}')
    e(f'v_permlane32_swap_b32 v{T+35}, v{T+37}'); e(f'v_permlane32_swap_b32 v{T+34}, v{T+36}')
    e(f'v_fmac_f32 v{T+34}, v{vL1kr}, v{T+36}'); e(f'v_fmac_f32 v{T+35}, v{vL1kr}, v{T+37}')
    e(f'v_fma_f32 v{T+34}, -v{vL1ki}, v{T+37}, v{T+34}'); e(f'v_fmac_f32 v{T+35}, v{vL1ki}, v{T+36}')
    stamp('s1')
    g.lg(f'ds_write_b64 v{vM8}, {vr(T+34,2)} offset:{HIN_L}')
    ids=[g.lg(f'ds_read_b64 {vr(T+2*k,2)}, v{T+40} offset:{XCH_L+256*k}') for k in range(8)]
    pump(2)
    for k in range(1,8):
        g.wait(lg=ids[k])
        cfma_ip(T+2*k,T+2*k+1,vL16r,vL16i,NL16i,T+2*k-2,T+2*k-1); tk(22)
    cur=(T+14,T+15)
    OB=T+32
    stamp('s2')
    for t in range(17):
        if t<16:
            e(f'v_fmac_f32 v{URE+t}, v{vLr}, v{cur[0]}'); e(f'v_fmac_f32 v{UIM+t}, v{vLr}, v{cur[1]}')
        if t>0:
            u=t-1; o=OB+(u&1)
            e(f'v_mul_f32 v{o}, v{vC2r}, v{URE+u}'); e(f'v_mul_f32 v{o+2}, v{NC2r}, v{UIM+u}')
        if t<16:
            e(f'v_fmac_f32 v{URE+t}, v{NLi}, v{cur[1]}'); e(f'v_fmac_f32 v{UIM+t}, v{vLi}, v{cur[0]}'); cur=(URE+t,UIM+t)
        if t>0:
            e(f'v_fmac_f32 v{o}, v{vNC2i}, v{UIM+u}'); e(f'v_fmac_f32 v{o+2}, v{vNC2i}, v{URE+u}')
            if u&1:
                e(f'v_cvt_pk_bf16_f32 v{T+16+(u>>1)}, v{OB}, v{OB+1}'); e(f'v_cvt_pk_bf16_f32 v{T+24+(u>>1)}, v{OB+2}, v{OB+3}')
        tk(38)
    stamp('s3')
    tid={}
    for mt in range(2):
        g.lg(f'ds_write_b128 v{vTW}, {vr(T+16+8*mt,4)}'); g.lg(f'ds_write_b128 v{vTW}, {vr(T+16+8*mt+4,4)} offset:16')
        for ks in range(2):
            for rho in range(2):
                tid[mt,ks]=g.lg(f'ds_read_b64_tr_b16 {vr(T+8*mt+4*ks+2*rho,2)}, v{vTRd} offset:{ks*1024+rho*256}')
    sq=[(mt,ks) for mt in range(2) for ks in range(2)]
    def ssm_store():
        if not sq: return False
        mt,ks=sq.pop(0)
        g.wait(lg=tid[mt,ks])
        st['sst']=g.vm(f'buffer_store_dwordx4 {vr(T+8*mt+4*ks,4)}, v{vL16}, {srd(SWS)}, s{sT0} offen offset:{(2*mt+ks)*1024} sc1'); tick[0]-=PER
        return True
    stamp('ssm_fin')
    e(f's_mul_i32 s{sT1}, s{sCG}, {6*1024}'); e(f's_add_u32 s{sT1}, s{sT1}, s{sA2S}'); e(f's_add_u32 s16, s{sT1}, {64*1024}')
    e(f's_add_u32 s17, s16, 4096')
    E0=URE
    pol=T+18
    last_st=None; pid=None
    for pr in range(3):
        G=ACC+32*pr; Uu=G+16
        for h in range(2):
            k=2*pr+h
            R=range(8*h,8*h+8,2)
            for i in R: e(f'v_pk_mul_f32 {vr(E0+i%8,2)}, {vr(G+i,2)}, s[{sNL2E}:{sNL2E+1}] op_sel_hi:[1,0]')
            tk(21)
            for i in range(8): e(f'v_exp_f32 v{E0+i}, v{E0+i}')
            tk(64)
            if k<2: ssm_store()
            for i in R: e(f'v_pk_mul_f32 {vr(G+i,2)}, {vr(G+i,2)}, {vr(Uu+i,2)}')
            for i in R: e(f'v_pk_fma_f32 {vr(E0+i%8,2)}, {vr(E0+i%8,2)}, {vr(vCinv,2)}, {vr(vCinv,2)}')
            tk(42)
            for i in range(8): e(f'v_rcp_f32 v{E0+i}, v{E0+i}')
            tk(64)
            if k<2: ssm_store()
            for i in R: e(f'v_pk_mul_f32 {vr(G+i,2)}, {vr(G+i,2)}, {vr(E0+i%8,2)}')
            pk=E0+8+4*(k%4)
            for i in range(4): e(f'v_cvt_pk_bf16_f32 v{pk+i}, v{G+8*h+2*i}, v{G+8*h+2*i+1}')
            tk(42)
            if k==O('sflag_at',5):
                g.wait(vm=st['sst']); g.vm(f'buffer_store_dword v{vNON}, v{vFS}, {srd(SWS)}, 0 offen sc1'); stamp('sflag')
            last_st=g.vm(f'buffer_store_dwordx4 {vr(pk,4)}, v{vL16}, {srd(SWS)}, s{16 if k<4 else 17} offen offset:{(k%4)*1024} sc1'); tick[0]-=PER
    stamp('ffn_epi'); print('w2n at ffn_epi',st['w2n'])
    def drain(n):
        k=0
        while k<n and st['w2n']<68:
            r=pump(1)
            if r=='blocked': service(force=True)
            else: k+=1
    vT0=[T+4,T+5,T+6]; vT1=[T+7,T+8,T+9]; vG=[T+10,T+11]
    x0,x1=T+14,T+15
    e(f'v_bfe_u32 v{x0}, v{vL}, 2, 2'); e(f'v_lshlrev_b32 v{x0}, 7, v{x0}'); e(f'v_lshl_add_u32 v{x0}, v{vHH16}, 5, v{x0}')
    e(f'v_and_b32 v{x1}, 8, v{vL}'); e(f'v_lshl_add_u32 v{x0}, v{x1}, 3, v{x0}')
    e(f'v_and_b32 v{x1}, 16, v{vL}'); e(f'v_lshl_add_u32 v{x0}, v{x1}, 1, v{x0}')
    e(f'v_and_b32 v{x1}, 3, v{vL}'); e(f'v_lshl_add_u32 v{x0}, v{x1}, 3, v{x0}')
    e(f'v_add_u32 v{vT0[0]}, s{sM0R}, v{x0}'); e(f'v_xor_b32 v{vT1[0]}, 64, v{vT0[0]}')
    for k in (1,2):
        e(f'v_add_u32 v{vT0[k]}, {65536*k}, v{vT0[0]}'); e(f'v_add_u32 v{vT1[k]}, {65536*k}, v{vT1[0]}')
    drain(1)
    e(f's_lshl_b32 s12, s{sRH}, 8'); e(f'v_lshl_add_u32 v{x0}, v{vM}, 2, s12')
    g.lg(f'ds_read_b32 v{vG[0]}, v{x0} offset:{G_L}'); gid=g.lg(f'ds_read_b32 v{vG[1]}, v{x0} offset:{G_L+128}')
    XS=T+20; DS=T+28; vXa=T+30; vOa=T+31; vGe=T+32
    e(f's_lshl_b32 s13, s{sRT}, 7'); e(f's_lshl_b32 s12, s{sRH}, 6'); e('s_add_u32 s13, s13, s12')
    e(f's_lshr_b32 s12, s{sW}, 1'); e('s_lshl_b32 s12, s12, 5'); e('s_add_u32 s13, s13, s12')
    e(f's_and_b32 s12, s{sW}, 1'); e('s_lshl_b32 s12, s12, 3'); e('s_add_u32 s13, s13, s12')
    e(f'v_lshrrev_b32 v{x0}, 4, v{vL}'); e(f'v_add_u32 v{x0}, s13, v{x0}')
    e(f'v_and_b32 v{x1}, 15, v{vL}'); e(f's_lshl_b32 s12, s{sCT}, 7'); e(f'v_lshl_add_u32 v{x1}, v{x1}, 3, s12')
    e(f'v_lshl_add_u32 v{vXa}, v{x0}, 10, v{x1}'); e(f'v_lshlrev_b32 v{vOa}, 1, v{vXa}')
    g.vm(f'global_load_dwordx2 {vr(DS,2)}, v{x1}, s[32:33]')
    for it in range(4):
        e(f's_movk_i32 s12, {(16*(it&1)+4*(it>>1))*1024}')
        xl=g.vm(f'buffer_load_dwordx2 {vr(XS+2*it,2)}, v{vXa}, {srd(SX)}, s12 offen')
    e(f's_lshl_b32 s12, s{sW}, 14'); e(f's_add_u32 s16, s{sA2L0}, s12'); e(f's_add_u32 s17, s{sA2L1}, s12')
    e(f's_mul_i32 s12, s{sW}, {22*1024}'); e(f's_add_u32 s12, s12, {64*1024}'); e(f's_add_u32 s18, s{sA2L0}, s12'); e(f's_add_u32 s19, s{sA2L1}, s12')
    e(f's_lshl_b32 s13, s{sCG}, 2'); e(f's_add_u32 s13, s13, s{sW}'); e(f's_xor_b32 s12, s{sRT}, 15'); e('s_or_b32 s13, s13, s12')
    e(f'v_or_b32 v{x0}, s13, v{vL}'); e(f'v_cmp_eq_u32 vcc, 0, v{x0}'); e(f'v_mov_b32 v{x0}, {OOB:#x}'); e(f'v_cndmask_b32 v{x0}, v{x0}, 0, vcc')
    fl={'done':False}
    def fflag():
        if fl['done']: return
        g.wait(vm=last_st)
        g.vm(f'buffer_store_dword v{vNON}, v{vFS}, {srd(SWS)}, 0 offen offset:128 sc1'); stamp('fflag'); fl['done']=True
    lag=O('flag_lag',10)
    while st['w2n']<68-O('poll_lead',8):
        if g.nvm-last_st>=lag: fflag()
        drain(1)
    pid=g.vm(f'buffer_load_dword v{pol}, v{vFLo}, {srd(SWS)}, 0 offen sc1')
    while st['w2n']<68:
        if g.nvm-last_st>=lag: fflag()
        drain(1)
    while st['pendC'] or st['pendRel']: service(force=True)
    def check(pid,reg,off,tag,lane):
        e(f's_mov_b32 s{sCNT}, 0')
        g.wait(vm=pid)
        e(f'L_{tag}_chk:')
        e(f'v_cmp_ne_u32 vcc, s{sNON}, v{reg}')
        e('s_nop 1')
        e(f's_cbranch_vccz L_{tag}_ok')
        e(f's_add_u32 s{sCNT}, s{sCNT}, 1'); e(f's_cmp_gt_u32 s{sCNT}, {SPIN}'); e(f's_cbranch_scc1 L_{tag}_ok')
        e('s_sleep 1')
        e(f'buffer_load_dword v{reg}, v{vFLo}, {srd(SWS)}, 0 offen offset:{off} sc1')
        e('s_waitcnt vmcnt(0)'); e(f's_branch L_{tag}_chk')
        e(f'L_{tag}_ok:'); stamp(tag+'_ok')
        if O('stamps'): e(f'v_writelane_b32 v39, s{sCNT}, {lane}')
    stamp('w2_issued')
    fflag()
    check(pid,pol,0,'fs',61)
    aid={}
    def aload(k):
        base,kk=(16,k) if k<16 else (18,k-16)
        if kk%4==0:
            e(f's_add_u32 s20, s{base}, {kk*1024}'); e(f's_add_u32 s21, s{base+1}, {kk*1024}')
        for tb in range(2):
            aid[k]=g.vm(f'buffer_load_dwordx4 {ar(8*(k%16)+4*tb,4)}, v{vL16}, {srd(SWS)}, s{20+tb} offen offset:{(kk%4)*1024} sc1')
    ALA=O('ala',8)
    for k in range(ALA): aload(k)
    g.vm(f'buffer_store_dword v{vNON}, v{x0}, {srd(SWS)}, 0 offen offset:{Z_OFF} sc1')
    wid={}
    def wread(k):
        kk=k-16; u,ks=kk>>1,kk&1
        g.wait(vm=st['Flast'][u])
        row=st['Frow'][u]
        for db in range(2):
            b=WR+8*(k%4)+4*db
            ad=(vT0,vT1)[db][row>>2]
            for rho in range(2):
                wid[k]=g.lg(f'ds_read_b64_tr_b16 {vr(b+2*rho,2)}, v{ad} offset:{(row&3)*16384+ks*2048+rho*1024}')
    wj=[T+36+j for j in range(4)]; rd=[T+40,T+41]; SK=URE; dsk=[T+42+i for i in range(4)]
    def side_fin():
        y0,y1=T+16,T+17
        e(f'v_lshrrev_b32 v{y0}, 4, v{vM}'); e(f'v_lshlrev_b32 v{y0}, 14, v{y0}'); e(f'v_and_b32 v{y1}, 15, v{vM}'); yield
        e(f'v_lshl_add_u32 v{y0}, v{y1}, 8, v{y0}'); e(f'v_and_b32 v{y1}, 7, v{vM}'); e(f'v_lshlrev_b32 v{y1}, 4, v{y1}'); yield
        e(f'v_xor_b32 v{y1}, v{y1}, v{vHH16}'); e(f'v_add3_u32 v{wj[0]}, v{y0}, v{y1}, s{sM0R}'); yield
        for j in range(1,4): e(f'v_xor_b32 v{wj[j]}, {32*j}, v{wj[0]}')
        yield
        e(f'v_lshrrev_b32 v{y0}, 4, v{vL}'); e(f'v_and_b32 v{y1}, 15, v{vL}'); e(f'v_xor_b32 v{y1}, v{y1}, v{y0}'); yield
        e(f'v_lshlrev_b32 v{y1}, 4, v{y1}'); e(f'v_lshl_add_u32 v{y1}, v{y0}, 8, v{y1}'); yield
        e(f's_lshl_b32 s12, s{sW}, 14'); e(f's_add_u32 s12, s12, {ROW0}'); e(f'v_add_u32 v{rd[0]}, s12, v{y1}'); e(f'v_xor_b32 v{rd[1]}, 64, v{rd[0]}'); yield
        e(f's_lshl_b32 s13, s{sRH}, 8'); e(f's_lshl_b32 s12, s{sW}, 6'); e('s_add_u32 s12, s12, s13'); e(f'v_lshl_add_u32 v{y0}, v{y0}, 2, s12'); yield
        for it in range(4): gl=g.lg(f'ds_read_b32 v{vGe+it}, v{y0} offset:{G_L+16*it}')
        yield
        g.wait(vm=xl)
        e(f'v_lshlrev_b32 v{dsk[0]}, 16, v{DS}'); e(f'v_and_b32 v{dsk[1]}, 0xffff0000, v{DS}'); yield
        e(f'v_lshlrev_b32 v{dsk[2]}, 16, v{DS+1}'); e(f'v_and_b32 v{dsk[3]}, 0xffff0000, v{DS+1}'); yield
        g.wait(lg=gl)
        for it in range(4):
            for h in range(2):
                a,b=SK+4*it+2*h,SK+4*it+2*h+1
                e(f'v_lshlrev_b32 v{a}, 16, v{XS+2*it+h}'); e(f'v_and_b32 v{b}, 0xffff0000, v{XS+2*it+h}')
                e(f'v_mul_f32 v{a}, v{a}, v{dsk[2*h]}'); yield
                e(f'v_mul_f32 v{b}, v{b}, v{dsk[2*h+1]}')
                e(f'v_cvt_pk_bf16_f32 v{b}, v{a}, v{b}')
                e(f'v_lshlrev_b32 v{a}, 16, v{b}'); yield
                e(f'v_and_b32 v{b}, 0xffff0000, v{b}')
                e(f'v_mul_f32 v{a}, v{a}, v{vGe+it}'); e(f'v_mul_f32 v{b}, v{b}, v{vGe+it}'); yield
    side=side_fin()
    pid2=None
    for k in range(38):
        if k+2>=16 and k+2<38: wread(k+2)
        g.wait(vm=aid[k])
        if k>=16: g.wait(lg=wid[k])
        if k in (0,8,16,24,32): stamp(f'k{k}')
        if k==16:
            g.wait(lg=gid)
            for db in range(2):
                for tb in range(2):
                    for i in range(16):
                        r=ACC+16*(2*db+tb)+i
                        e(f'v_mul_f32 v{r}, v{vG[tb]}, v{r}')
        for db in range(2):
            for tb in range(2):
                acc=vr(ACC+16*(2*db+tb),16)
                Wf=ar(128+(k*2+db)*4,4) if k<16 else vr(WR+8*(k%4)+4*db,4)
                e(f'v_mfma_f32_32x32x16_bf16 {acc}, {Wf}, {ar(8*(k%16)+4*tb,4)}, {"0" if k==0 else acc}')
                next(side,None)
            if db==0 and k+ALA<38:
                if k+ALA==16: check(pid2,pol+1,128,'ff',59)
                aload(k+ALA)
                if k+ALA==16-O('poll2_lead',4): pid2=g.vm(f'buffer_load_dword v{pol+1}, v{vFLo}, {srd(SWS)}, 0 offen offset:128 sc1')
        if k in (17,19):
            u=9+(k-17)//2
            for _ in granF(u,st['Frow'][u-9]): pass
    stamp('p2_end')
    for db in range(2):
        for tb in range(2):
            for j in range(4):
                g.lg(f'ds_write_b128 v{wj[j]}, {vr(ACC+16*(2*db+tb)+4*j,4)} offset:{db*128+tb*32768}')
    g.wait_all_lg(); e('s_barrier'); stamp('red')
    RB=ACC
    ids={}
    for it in range(4):
        for w2 in range(4):
            ids[it,w2]=g.lg(f'ds_read_b128 {vr(RB+16*it+4*w2,4)}, v{rd[it&1]} offset:{w2*4096+it*1024}')
    for it in range(4):
        g.wait(lg=ids[it,3])
        b=RB+16*it
        for i in (0,2): e(f'v_pk_add_f32 {vr(b+i,2)}, {vr(b+i,2)}, {vr(SK+4*it+i,2)}')
        for i in (0,2): e(f'v_pk_add_f32 {vr(b+4+i,2)}, {vr(b+4+i,2)}, {vr(b+8+i,2)}')
        for i in (0,2): e(f'v_pk_add_f32 {vr(b+i,2)}, {vr(b+i,2)}, {vr(b+12+i,2)}')
        for i in (0,2): e(f'v_pk_add_f32 {vr(b+i,2)}, {vr(b+i,2)}, {vr(b+4+i,2)}')
        e(f's_mov_b32 s12, {(16*(it&1)+4*(it>>1))*2048}')
        g.vm(f'buffer_store_dwordx4 {vr(b,4)}, v{vOa}, {srd(SOUT)}, s12 offen {O("outfl","")}')
    if O('stamps'):
        stamp('st_iss')
        e('s_waitcnt vmcnt(0)'); stamp('end')
        e('s_memrealtime s[94:95]'); e('s_waitcnt lgkmcnt(0)'); e('v_writelane_b32 v39, s94, 63')
        e(f's_lshl_b32 s11, s2, 10'); e(f's_add_u32 s11, s11, {WS_SIZE}'); e(f's_add_u32 s{SWS+2}, s{SWS+2}, 0x40000')
        e(f'v_lshlrev_b32 v{T}, 2, v0')
        e(f'buffer_store_dword v39, v{T}, {srd(SWS)}, s11 offen')
        if O('dbg'):
            sel=['start','setup','B0','B4','B8','B12','1b_end','ssm_fin','ffn_epi','w2_issued','fs_ok','k16','p2_end','end']
            e('s_mov_b32 s60, s46'); e('s_mov_b32 s61, s47'); e('s_mov_b32 s62, 256'); e('s_mov_b32 s63, 0x20000')
            e('v_readlane_b32 s12, v39, 62'); e('v_readlane_b32 s13, v39, 0'); e('s_not_b32 s12, s12')
            e(f'v_mov_b32 v{T+1}, s94'); e(f'v_mov_b32 v{T+2}, s12'); e(f'v_mov_b32 v{T+3}, 0'); e(f'v_mov_b32 v{T+4}, {OOB:#x}')
            e(f'v_cmp_eq_u32 vcc, 0, v0'); e(f'v_cndmask_b32 v{T+3}, v{T+4}, v{T+3}, vcc')
            e(f'buffer_atomic_umax v{T+1}, v{T+3}, s[60:63], 0 offen'); e(f'buffer_atomic_umax v{T+2}, v{T+3}, s[60:63], 0 offen offset:4')
            e('s_cmp_eq_u32 s2, 100'); e('s_cbranch_scc0 L_end')
            for i,nm in enumerate(sel):
                e(f'v_readlane_b32 s12, v39, {stamps.index(nm)}'); e('s_sub_u32 s12, s12, s13'); e(f'v_mov_b32 v{T+1}, s12')
                e(f'buffer_store_dword v{T+1}, v{T+3}, s[60:63], 0 offen offset:{8+4*i}')
    e('L_end:')
    e('s_endpgm')
    hdr=open('gated_mix__ssm_conv_s5__glu_gated_swiglu__prompt.s.ref').read().split('; Override')[0]
    out=hdr+'; @launch grid=(256,1,1) block=(256,1,1) lds=163840\n'
    out+=f'.amdgcn_target "amdgcn-amd-amdhsa--gfx950"\n.text\n.globl {NAME}\n.p2align 8\n.type {NAME},@function\n{NAME}:\n'
    out+=g.text()
    out+=f'.fill (32768+256-(.-{NAME}))/4, 4, 0xbf810000\n'
    out+=f'''.section .rodata,"a"
.p2align 6
.amdhsa_kernel {NAME}
  .amdhsa_next_free_vgpr 512
  .amdhsa_next_free_sgpr 102
  .amdhsa_accum_offset 256
  .amdhsa_group_segment_fixed_size 0
  .amdhsa_kernarg_size 136
  .amdhsa_user_sgpr_count 2
  .amdhsa_user_sgpr_kernarg_segment_ptr 1
  .amdhsa_system_sgpr_workgroup_id_x 1
.end_amdhsa_kernel
'''
    return out,g
if __name__=='__main__':
    import json
    opt=json.loads(sys.argv[2]) if len(sys.argv)>2 else {}
    out,g=gen(opt)
    open(sys.argv[1],'w').write(out)
    if g.stamps: json.dump(g.stamps,open(sys.argv[1]+'.names','w'))
    from collections import Counter
    print(len(g.ins),Counter(i.cls for i in g.ins), 'nops',sum(1 for i in g.ins if i.mn=='s_nop'))
```

```python
import sys
from asmlib import *
NAME='gated_mix__ssm_conv_s5__glu_gated_swiglu__prompt_kernel'
ROW0=8192; RING=40960; SLOT=24576; NS=5
Z_OFF=0; FL_OFF=0x1000; HE_OFF=0x10000; A2_OFF=0x40000; WS_SIZE=A2_OFF+16*4*160*1024
OOB=0x80000000
GW_L=0; XCH_L=1024; HIN_L=2816; E_L=3072; G_L=5120; PQ_L=5632
LOG2E=0x3fb8aa3b; NLOG2E=0xbfb8aa3b; INV2PI=0x3e22f983
SPIN=200000
sW,sRT,sCG,sCT,sRH,sROT,sNON=4,5,6,7,8,9,10
SX,SW0,SW1,SW3,SCRE,SCIM,SW2,SWS,SHE,SOUT=52,56,60,64,68,72,76,80,84,88
sXB,sW0B,sM0X,sM0W,sM0F,sSO,sSO2=96,97,98,99,100,101,3
sCB,sW2B,sA2S,sA2L0,sA2L1,sCNT,sT0,sT1=34,35,36,37,38,39,40,41
sM0R,sSO3,sFST,sNL2E,sROTF=50,51,22,24,23
srd=lambda b:f's[{b}:{b+3}]'
vr=lambda b,n:f'v[{b}:{b+n-1}]'
ar=lambda b,n:f'a[{b}:{b+n-1}]'
vL,vM,vHH16,vL16=1,2,3,4
vNat=[5,6,7,8]; vXo=[9,10,11,12]; vWF=[13,14,15]
vRA=[16,17,18,19]; vRAw=[20,21,22,23]; vTR=[24,25,26]
vLr,vLi,vL16r,vL16i,vL128r,vL128i,vL1kr,vL1ki,vC2r,vNC2i,vM8=27,28,29,30,31,32,33,34,35,36,37
vCinv=40
vW2o=[42,43,44,45]; vHEo=46; vFLo=47
URE=48; UIM=64; ACC=80; WR=176; T=208
ZA=T+44
vFS,vNON,vTW,vTRd=T+36,T+37,T+38,T+39; vEX=38; vT8=T+41
def gen(opt=None):
    opt=opt or {}
    O=opt.get
    g=Gen(); e=g.e
    stamps=[]
    def stamp(name,flush=False):
        if not O('stamps'): return
        k=len(stamps); stamps.append(name)
        if k>=2: e(f'v_writelane_b32 v39, s{92+2*(k%2)}, {k-2}')
        e(f's_memtime s[{92+2*(k%2)}:{93+2*(k%2)}]')
        if flush:
            e('s_waitcnt lgkmcnt(0)')
            e(f'v_writelane_b32 v39, s{92+2*((k-1)%2)}, {k-1}'); e(f'v_writelane_b32 v39, s{92+2*(k%2)}, {k}')
    g.stamps=stamps
    e('s_cmp_ge_u32 s2, 256'); e('s_cbranch_scc1 L_end')
    if O('stamps'):
        e('s_memrealtime s[94:95]'); e('v_mov_b32 v39, 0'); e('s_waitcnt lgkmcnt(0)'); e('v_writelane_b32 v39, s94, 62')
        stamp('start')
    e('s_load_dwordx16 s[16:31], s[0:1], 0')
    e('s_load_dwordx16 s[32:47], s[0:1], 64')
    e('s_load_dwordx2 s[48:49], s[0:1], 128')
    e('s_getpc_b64 s[50:51]')
    e('s_lshr_b32 s13, s2, 3')
    e('s_and_b32 s14, s13, 7'); e('s_lshl_b32 s14, s14, 12')
    e(f'v_lshl_add_u32 v{T}, v0, 4, s14')
    g.vm(f'global_load_dwordx4 {vr(T+4,4)}, v{T}, s[50:51]')
    e(f'v_lshrrev_b32 v{T+1}, 6, v0')
    e(f'v_and_b32 v{vL}, 63, v0')
    e(f'v_readfirstlane_b32 s{sW}, v{T+1}')
    if O('map','B')=='A':
        e('s_and_b32 s12, s2, 7')
        e(f's_and_b32 s{sRH}, s12, 1'); e('s_lshr_b32 s14, s12, 1')
        e(f's_lshl_b32 s{sRT}, s14, 2'); e('s_lshr_b32 s15, s13, 3'); e(f's_add_u32 s{sRT}, s{sRT}, s15')
        e(f's_and_b32 s{sCT}, s13, 7')
        e(f's_lshl_b32 s{sCG}, s{sRH}, 3'); e(f's_add_u32 s{sCG}, s{sCG}, s{sCT}')
        e(f's_lshl_b32 s{sROT}, s14, 1'); e(f's_and_b32 s11, s{sCT}, {O("rotmask",4)}'); e(f's_add_u32 s{sROT}, s{sROT}, s11')
    else:
        e(f's_and_b32 s12, s2, 4'); e(f's_lshl_b32 s{sRT}, s12, 1'); e('s_lshr_b32 s15, s2, 5'); e(f's_add_u32 s{sRT}, s{sRT}, s15')
        e('s_and_b32 s14, s13, 3')
        e(f's_and_b32 s11, s2, 3'); e(f's_lshl_b32 s{sCG}, s11, 2'); e(f's_add_u32 s{sCG}, s{sCG}, s14')
        e(f's_and_b32 s{sRH}, s2, 1'); e(f's_and_b32 s{sCT}, s2, 2'); e(f's_lshl_b32 s{sCT}, s{sCT}, 1'); e(f's_add_u32 s{sCT}, s{sCT}, s14')
        ra,rb,rc,rd_=O('rot',[2,1,0,0])
        e(f's_mul_i32 s{sROT}, s14, {ra}')
        if rb: e(f's_mul_i32 s15, s15, {rb}'); e(f's_add_u32 s{sROT}, s{sROT}, s15')
        if rc: e(f's_lshr_b32 s12, s12, 2'); e(f's_mul_i32 s12, s12, {rc}'); e(f's_add_u32 s{sROT}, s{sROT}, s12')
        if rd_: e(f's_mul_i32 s11, s11, {rd_}'); e(f's_add_u32 s{sROT}, s{sROT}, s11')
    l3,l7,l4,hh,sw0=T+8,T+9,T+10,T+11,T+12
    e(f'v_lshrrev_b32 v{l3}, 3, v{vL}'); e(f'v_and_b32 v{l7}, 7, v{vL}'); e(f'v_lshrrev_b32 v{l4}, 4, v{vL}'); e(f'v_lshrrev_b32 v{hh}, 5, v{vL}')
    e(f'v_xor_b32 v{sw0}, v{l7}, v{l4}'); e(f'v_lshlrev_b32 v{sw0}, 4, v{sw0}')
    e(f'v_lshl_add_u32 v{vNat[0]}, v{l3}, 10, v{sw0}')
    e(f'v_xor_b32 v{vNat[1]}, 64, v{vNat[0]}'); e(f'v_add_u32 v{vNat[1]}, 7168, v{vNat[1]}')
    e(f'v_and_b32 v{T+13}, 3, v{l3}'); e(f'v_lshl_add_u32 v{T+13}, v{hh}, 4, v{T+13}')
    e(f'v_lshl_add_u32 v{vXo[0]}, v{T+13}, 10, v{sw0}')
    e(f'v_xor_b32 v{vXo[1]}, 64, v{vXo[0]}'); e(f'v_add_u32 v{vXo[1]}, 3072, v{vXo[1]}')
    e(f'v_add_u32 v{vXo[2]}, 6144, v{vXo[0]}'); e(f'v_add_u32 v{vXo[3]}, 6144, v{vXo[1]}')
    e(f's_lshl_b32 s{sXB}, s{sRT}, 17'); e(f's_lshl_b32 s11, s{sW}, 15'); e(f's_add_u32 s{sXB}, s{sXB}, s11')
    e(f's_lshl_b32 s{sW0B}, s{sCG}, 15'); e(f's_and_b32 s11, s{sW}, 1'); e('s_lshl_b32 s11, s11, 14'); e(f's_add_u32 s{sW0B}, s{sW0B}, s11')
    e(f's_lshl_b32 s{sM0X}, s{sW}, 12'); e(f's_add_u32 s{sM0X}, s{sM0X}, {RING}')
    e(f's_lshl_b32 s{sM0W}, s{sW}, 11'); e(f's_add_u32 s{sM0W}, s{sM0W}, {RING+16384}')
    def mksrd(b,p): e(f's_mov_b32 s{b}, s{p}'); e(f's_mov_b32 s{b+1}, s{p+1}')
    def srdc(b,size): e(f's_mov_b32 s{b+2}, {size}'); e(f's_mov_b32 s{b+3}, 0x20000')
    srdc(SX,2048*1024); srdc(SW0,512*1024)
    e(f's_cmp_lt_u32 s{sW}, 2')
    e('s_waitcnt lgkmcnt(0)')
    stamp('karg')
    if O('stamps'): e(f's_cmp_lt_u32 s{sW}, 2')
    mksrd(SX,16)
    e(f's_cselect_b32 s{SW0}, s22, s24'); e(f's_cselect_b32 s{SW0+1}, s23, s25')
    blk_last={}
    st={'barr':-1,'free':[0,1],'pendC':[],'pendRel':[],'Frow':{},'Flast':{},'w2n':0,'m0':None,'w2on':False}
    D=O('D',3)
    cur_n=[0]
    def setm0(base,c):
        if st['m0']!=(base,c):
            e(f's_add_u32 m0, s{base}, {c}'); st['m0']=(base,c)
    def streamP():
        for q in range(16):
            while q>=O('pre',2) and st['barr']<q-D: yield 'blocked'
            sl=q%NS
            if q<8:
                e(f's_add_u32 s11, s{sROT}, {q}'); e('s_and_b32 s11, s11, 7'); e('s_lshl_b32 s11, s11, 7')
                e(f's_add_u32 s{sSO}, s{sXB}, s11'); e(f's_add_u32 s{sSO2}, s{sW0B}, s11')
                for a in range(4):
                    setm0(sM0X,sl*SLOT)
                    g.vm(f'buffer_load_dwordx4 v{vXo[a]}, {srd(SX)}, s{sSO} offen offset:{1024*a} lds'); yield
                for a in range(2):
                    setm0(sM0W,sl*SLOT)
                    blk_last[q]=g.vm(f'buffer_load_dwordx4 v{vNat[a]}, {srd(SW0)}, s{sSO2} offen offset:{1024*a} lds'); yield
            else:
                if q==11 and O('pf15',1):
                    e('\n'.join([f's_cmp_eq_u32 s{sCG}, 15','s_cbranch_scc0 L_no15b',
                      f's_mul_i32 s11, s{sRT}, {88*1024}', f's_add_u32 s{SW1}, s{SW2}, s11', f's_addc_u32 s{SW1+1}, s{SW2+1}, 0',
                      f's_add_u32 s{SW3}, s{SW1}, {44*1024}', f's_addc_u32 s{SW3+1}, s{SW1+1}, 0',
                      f's_mov_b32 s{SW1+2}, {44*1024}', f's_cmp_eq_u32 s{sRT}, 15', f's_cselect_b32 s{SW3+2}, {12*1024}, s{SW1+2}',
                      f's_mov_b32 s{sROTF}, 5', 'L_no15b:']))
                e(f's_add_u32 s11, s{sROTF}, {q-8}'); e('s_and_b32 s11, s11, 7'); e(f's_mul_i32 s{sSO}, s11, s{sFST}')
                for mt,S_ in enumerate((SW1,SW3)):
                    for a in range(3):
                        setm0(sM0F,sl*SLOT+mt*12288)
                        blk_last[q]=g.vm(f'buffer_load_dwordx4 v{vWF[a]}, {srd(S_)}, s{sSO} offen offset:{1024*a} lds'); yield
        while True: yield 'done'
    def moveC(gi,row,last):
        mt,cb,db=gi>>2,(gi>>1)&1,gi&1
        g.wait(vm=last)
        for s in range(4):
            kap=4*(2*cb+(s>>1))+2*mt+(s&1)
            dst=128+(kap*2+db)*4
            if row<4: ad=vRAw[s]; off=row*16384
            else:
                ad=T+44+s; off=0
                e(f'v_add_u32 v{ad}, {row*16384}, v{vRAw[s]}')
            i=g.lg(f'ds_read_b128 {ar(dst,4)}, v{ad} offset:{off}')
        st['pendRel'].append((row,i))
    def service(force=False):
        for it in list(st['pendRel']):
            if force: g.wait(lg=it[1])
            if g.lg_done>=it[1]: st['free'].append(it[0]); st['pendRel'].remove(it)
        if st['pendC'] and (force or cur_n[0]-st['pendC'][0][3]>=O('cagen',22) or g.vm_done>=st['pendC'][0][2]):
            moveC(*st['pendC'].pop(0)[:3])
    def granF(u,row):
        e(f's_add_u32 s{sSO3}, s{sW2B}, {32*1024*u}')
        st['Frow'][u]=row
        for a in range(4):
            setm0(sM0R,row*16384)
            st['Flast'][u]=g.vm(f'buffer_load_dwordx4 v{vW2o[a]}, {srd(SW2)}, s{sSO3} offen offset:{1024*a} lds'); st['w2n']+=1; yield
    def streamW():
        for gi in range(8):
            while not st['free']: yield 'blocked'
            row=st['free'].pop(0)
            mt,cb,db=gi>>2,(gi>>1)&1,gi&1
            e(f's_add_u32 s{sSO3}, s{sCB}, {db*32*1024+cb*128}')
            for a in range(4):
                setm0(sM0R,row*16384)
                last=g.vm(f'buffer_load_dwordx4 v{vNat[a]}, {srd(SCIM if mt else SCRE)}, s{sSO3} offen offset:{1024*a} lds')
                if a==3: st['pendC'].append((gi,row,last,cur_n[0]))
                st['w2n']+=1
                yield
        for u in range(9):
            while not st['free']: yield 'blocked'
            row=st['free'].pop(0)
            yield from granF(u,row)
        while True: yield 'done'
    SP=streamP(); SWs=streamW()
    def pump(n=1):
        r=None
        for _ in range(n):
            r=next(SP)
            if r and st['w2on']:
                service(); r=next(SWs)
        return r
    def barrier(q):
        e('s_barrier'); st['barr']=q
        rel={13:[4],14:[5],15:[6,7],17:[8,2,3]}
        st['free']+=rel.get(q,[])
        if q>=O('w2from',9): st['w2on']=True
    pump(6)
    stamp('p0')
    e(f'v_add_u32 v{T+14}, s{sROT}, v{l3}'); e(f'v_and_b32 v{T+14}, 7, v{T+14}'); e(f'v_lshlrev_b32 v{T+14}, 7, v{T+14}')
    e(f'v_lshl_add_u32 v{T+14}, v{l7}, 4, v{T+14}')
    e('s_mov_b32 m0, 0'); st['m0']=None
    e(f'v_and_b32 v{vM}, 31, v{vL}')
    blk_last[0]=g.vm(f'global_load_lds_dwordx4 v{T+14}, s[42:43]')
    e(f's_lshl_b32 s11, s{sCG}, 6')
    e(f'v_lshl_add_u32 v{T+15}, v{vM}, 1, s11')
    e(f's_load_dword s{sNON}, s[48:49], {Z_OFF}'); g.smem=True
    pl=[g.vm(f'global_load_ushort v{T+16}, v{T+15}, s[18:19]'),g.vm(f'global_load_ushort v{T+17}, v{T+15}, s[20:21]'),g.vm(f'global_load_ushort v{T+18}, v{T+15}, s[30:31]')]
    if O('dwarm',1): g.vm(f'global_load_ushort v{T+43}, v{T+15}, s[32:33]')
    e(f'v_mov_b32 v{T+2}, 0'); e(f'v_mov_b32 v{T+3}, 0'); e(f'v_lshlrev_b32 v{vT8}, 3, v0')
    g.lg(f'ds_write_b64 v{vT8}, {vr(T+2,2)} offset:{XCH_L}')
    e(f'v_lshlrev_b32 v{vHH16}, 4, v{hh}')
    e(f's_lshl_b32 s{sM0R}, s{sW}, 12'); e(f's_add_u32 s{sM0R}, s{sM0R}, {ROW0}')
    e(f'v_bfe_u32 v{T+20}, v{vM}, 1, 3'); e(f'v_xor_b32 v{T+20}, v{T+20}, v{hh}'); e(f'v_lshlrev_b32 v{T+20}, 4, v{T+20}')
    e(f'v_lshl_add_u32 v{vRA[0]}, v{vM}, 7, v{T+20}')
    for s in range(1,4): e(f'v_xor_b32 v{vRA[s]}, {32*s}, v{vRA[0]}')
    XA2=[T+24+s for s in range(4)]; WA=[vRA,[T+28+s for s in range(4)],[T+32+s for s in range(4)]]
    for s in range(4):
        e(f'v_add_u32 v{vRAw[s]}, s{sM0R}, v{vRA[s]}')
        e(f'v_add_u32 v{XA2[s]}, {RING-ROW0+2*SLOT}, v{vRAw[s]}')
        e(f'v_add_u32 v{WA[1][s]}, {RING+16384+2*SLOT}, v{vRA[s]}'); e(f'v_add_u32 v{WA[2][s]}, {RING+16384+4*SLOT}, v{vRA[s]}')
        e(f'v_add_u32 v{vRA[s]}, {RING+16384}, v{vRA[s]}')
    vGA=T+40
    e(f'v_xor_b32 v{T+20}, v{vL}, v{l4}'); e(f'v_and_b32 v{T+20}, 1, v{T+20}'); e(f'v_lshl_add_u32 v{vGA}, v{T+20}, 10, v{vHH16}')
    def side_setup():
        L=[]; A=L.append
        def mk(b,p): A(f's_mov_b32 s{b}, s{p}'); A(f's_mov_b32 s{b+1}, s{p+1}')
        def sc(b,size): A(f's_mov_b32 s{b+2}, {size}'); A(f's_mov_b32 s{b+3}, 0x20000')
        for b,p,size in [(SW1,36,512*2752),(SW3,38,512*2752),(SCRE,26,512*1024),(SCIM,28,512*1024),(SW2,40,1376*1024),(SWS,48,WS_SIZE),(SOUT,44,2048*2048)]:
            mk(b,p); sc(b,size)
        sc(SHE,8192)
        A(f's_mul_i32 s{sM0F}, s{sW}, 3072'); A(f's_add_u32 s{sM0F}, s{sM0F}, {RING}')
        A(f's_mov_b32 s{sFST}, {64*2752}'); A(f's_mov_b32 s{sROTF}, s{sROT}')
        A(f'v_lshlrev_b32 v{vL16}, 4, v{vL}'); A(f'v_lshlrev_b32 v{vM8}, 3, v{vM}')
        A(f's_mul_i32 s15, s{sW}, {16*2752}'); A(f's_mul_i32 s12, s{sCG}, 192'); A('s_add_u32 s15, s15, s12')
        A(f's_mul_i32 s12, s{sCG}, 12'); A('s_movk_i32 s13, 2752'); A(f'v_mov_b32 v{T+23}, {OOB:#x}')
        for a in range(3):
            A(f'v_add_u32 v{T+20}, {64*a}, v{vL}')
            A(f'v_mul_u32_u24 v{T+21}, 43691, v{T+20}'); A(f'v_lshrrev_b32 v{T+21}, 19, v{T+21}')
            A(f'v_mul_u32_u24 v{T+22}, 12, v{T+21}'); A(f'v_sub_u32 v{T+22}, v{T+20}, v{T+22}')
            A(f'v_mul_u32_u24 v{T+21}, s13, v{T+21}')
            A(f'v_lshl_add_u32 v{T+21}, v{T+22}, 4, v{T+21}')
            A(f'v_add_u32 v{T+22}, s12, v{T+22}')
            A(f'v_cmp_gt_u32 vcc, 172, v{T+22}')
            A(f'v_add_u32 v{T+21}, s15, v{T+21}')
            if a: A(f'v_subrev_u32 v{T+21}, {1024*a}, v{T+21}')
            A(f'v_cndmask_b32 v{vWF[a]}, v{T+23}, v{T+21}, vcc')
        if O('pf15',1):
            A('\n'.join([f's_cmp_eq_u32 s{sCG}, 15','s_cbranch_scc0 L_no15',
              f's_lshl_b32 s12, s{sRT}, 15', f's_add_u32 s{SW1}, s26, s12', f's_addc_u32 s{SW1+1}, s27, 0',
              f's_add_u32 s{SW3}, s28, s12', f's_addc_u32 s{SW3+1}, s29, 0',
              f's_mov_b32 s{SW1+2}, 0x8000', f's_mov_b32 s{SW3+2}, 0x8000', f's_mov_b32 s{sROTF}, 0',
              f's_movk_i32 s{sFST}, 12288', f's_mul_i32 s12, s{sW}, 3072',
              f'v_lshl_add_u32 v{vWF[0]}, v{vL}, 4, s12', f'v_mov_b32 v{vWF[1]}, v{vWF[0]}', f'v_mov_b32 v{vWF[2]}, v{vWF[0]}',
              'L_no15:']))
        A(f's_lshl_b32 s12, s{sCG}, 13'); A(f's_add_u32 s12, s12, {HE_OFF}')
        A(f's_add_u32 s{SHE}, s48, s12\ns_addc_u32 s{SHE+1}, s49, 0')
        A(f's_lshl_b32 s{sCB}, s{sCT}, 16'); A(f's_lshl_b32 s12, s{sW}, 8'); A(f's_add_u32 s{sCB}, s{sCB}, s12')
        A(f's_mul_i32 s{sW2B}, s{sW}, {352*1024}'); A(f's_lshl_b32 s12, s{sCT}, 7'); A(f's_add_u32 s{sW2B}, s{sW2B}, s12')
        A(f's_lshl_b32 s13, s{sRT}, 2'); A(f's_add_u32 s12, s13, s{sW}'); A(f's_mul_i32 s{sA2S}, s12, {160*1024}'); A(f's_add_u32 s{sA2S}, s{sA2S}, {A2_OFF}')
        A(f's_lshl_b32 s12, s{sRH}, 1'); A('s_add_u32 s12, s12, s13'); A(f's_mul_i32 s{sA2L0}, s12, {160*1024}'); A(f's_add_u32 s{sA2L0}, s{sA2L0}, {A2_OFF}')
        A(f's_add_u32 s{sA2L1}, s{sA2L0}, {160*1024}')
        A(f's_mov_b32 s{sNL2E}, {NLOG2E:#x}')
        A(f'v_add_u32 v{vNat[2]}, {2*7168}, v{vNat[0]}'); A(f'v_add_u32 v{vNat[3]}, {2*7168}, v{vNat[1]}')
        r_,c_,g1=T+20,T+21,T+22
        A(f'v_bfe_u32 v{r_}, v{vL}, 2, 2'); A(f'v_and_b32 v{c_}, 3, v{vL}'); A(f'v_and_b32 v{g1}, 1, v{l4}')
        A(f'v_lshl_add_u32 v{T+19}, v{hh}, 3, v{r_}'); A(f'v_mul_u32_u24 v{T+19}, 192, v{T+19}')
        A(f'v_lshl_add_u32 v{T+19}, v{g1}, 5, v{T+19}'); A(f'v_lshl_add_u32 v{T+19}, v{c_}, 3, v{T+19}')
        for k in range(3): A(f'v_add_u32 v{vTR[k]}, {RING+2*k*SLOT}, v{T+19}')
        A(f'v_lshlrev_b32 v{T+19}, 2, v{g1}'); A(f'v_xor_b32 v{T+19}, v{T+19}, v{l7}'); A(f'v_lshlrev_b32 v{T+19}, 4, v{T+19}')
        A(f'v_lshl_add_u32 v{vW2o[0]}, v{l3}, 10, v{T+19}')
        for a in range(1,4): A(f'v_add_u32 v{vW2o[a]}, {7168*a}, v{vW2o[0]}')
        A(f's_sub_u32 s12, 15, s{sRT}'); A('s_lshl_b32 s12, s12, 9')
        A(f'v_lshl_add_u32 v{T+20}, v{vM}, 4, s12')
        A(f'v_cmp_eq_u32 vcc, s{sW}, v{l3}')
        A(f'v_lshl_add_u32 v{vHEo}, v{vHH16}, 6, v{T+20}'); A(f's_lshl_b32 s12, s{sW}, 11'); A('s_add_u32 s12, s12, 512'); A(f'v_add_u32 v{vHEo}, s12, v{vHEo}')
        A(f'v_cndmask_b32 v{T+10}, v{T+23}, v{T+20}, vcc')
        A(f's_lshl_b32 s15, s{sRT}, 1'); A(f's_lshr_b32 s12, s{sW}, 1'); A('s_add_u32 s12, s12, s15'); A('s_lshl_b32 s12, s12, 8')
        A(f's_and_b32 s13, s{sW}, 1'); A(f's_lshl_b32 s14, s{sCG}, 1'); A('s_add_u32 s13, s13, s14'); A('s_lshl_b32 s13, s13, 2')
        A('s_add_u32 s12, s12, s13'); A(f's_add_u32 s12, s12, {FL_OFF}'); A(f'v_mov_b32 v{T+20}, s12')
        A(f'v_cmp_eq_u32 vcc, 0, v{vL}'); A(f's_add_u32 s15, s15, s{sRH}')
        A('s_lshl_b32 s15, s15, 8'); A(f's_add_u32 s15, s15, {FL_OFF}'); A(f'v_cndmask_b32 v{vFS}, v{T+23}, v{T+20}, vcc')
        A(f'v_lshl_add_u32 v{vFLo}, v{vM}, 2, s15')
        A(f'v_lshlrev_b32 v{vTW}, 6, v{vM}'); A(f'v_lshl_add_u32 v{vTW}, v{vHH16}, 1, v{vTW}'); A(f'v_add_u32 v{vTW}, s{sM0R}, v{vTW}')
        A(f'v_bfe_u32 v{vTRd}, v{vL}, 2, 2'); A(f'v_lshlrev_b32 v{vTRd}, 6, v{vTRd}')
        A(f'v_lshl_add_u32 v{vTRd}, v{vHH16}, 5, v{vTRd}'); A(f'v_and_b32 v{T+20}, 1, v{vL}')
        A(f'v_lshl_add_u32 v{vTRd}, v{T+20}, 5, v{vTRd}'); A(f'v_and_b32 v{T+20}, 16, v{vL}'); A(f'v_add_u32 v{vTRd}, v{T+20}, v{vTRd}')
        A(f'v_and_b32 v{T+20}, 2, v{vL}'); A(f'v_lshl_add_u32 v{vTRd}, v{T+20}, 2, v{vTRd}'); A(f'v_add_u32 v{vTRd}, s{sM0R}, v{vTRd}')
        A(f's_lshl_b32 s12, s{sW}, 2'); A(f's_sub_u32 s12, s{sRT}, s12'); A(f'v_lshrrev_b32 v{vEX}, 3, v{vHH16}'); A(f'v_sub_u32 v{vEX}, s12, v{vEX}')
        A(f'v_max_i32 v{vEX}, 0, v{vEX}'); A(f'v_min_i32 v{vEX}, 2, v{vEX}'); A(f'v_lshlrev_b32 v{vEX}, 1, v{vEX}')
        A(f's_lshl_b32 s{sT0}, s{sCG}, 12'); A(f's_add_u32 s{sT0}, s{sT0}, s{sA2S}')
        A(f's_mul_i32 s{sT1}, s{sCG}, {6*1024}'); A(f's_add_u32 s{sT1}, s{sT1}, s{sA2S}')
        A(f's_add_u32 s16, s{sT1}, {64*1024}'); A(f's_add_u32 s17, s16, 4096')
        A(f's_lshl_b32 s12, s{sW}, 14'); A(f's_add_u32 s26, s{sA2L0}, s12'); A(f's_add_u32 s27, s{sA2L1}, s12')
        A(f's_mul_i32 s12, s{sW}, {22*1024}'); A(f's_add_u32 s12, s12, {64*1024}'); A(f's_add_u32 s28, s{sA2L0}, s12'); A(f's_add_u32 s29, s{sA2L1}, s12')
        A(f's_lshl_b32 s12, s{sW}, 7'); A(f'v_lshl_add_u32 v{T+42}, v{vM}, 2, s12')
        A(f's_mul_i32 s{sNON}, s{sNON}, 1664525'); A(f's_add_u32 s{sNON}, s{sNON}, 1013904223')
        A(f's_cmp_eq_u32 s{sNON}, 0\ns_cselect_b32 s{sNON}, 1013904223, s{sNON}')
        return L
    Ls=side_setup()
    npre=O('setup_pre',80)
    Ls.append(f'v_mov_b32 v{vNON}, s{sNON}')
    print('setup list',len(Ls))
    for i,t in enumerate(Ls[:npre]):
        e(t)
        if i==29 and O('touch',0):
            e(f'v_mov_b32 v{T+19}, 0')
            for S_ in (SW1,SW3,SCRE,SCIM,SW2,SWS): g.vm(f'buffer_load_dword v{T+43}, v{T+19}, {srd(S_)}, 0 offen')
            e(f's_mul_i32 s12, s{sRT}, {640*1024}'); e(f's_add_u32 s12, s12, {A2_OFF}'); e(f's_add_u32 s13, s12, {639*1024}'); e(f's_lshl_b32 s14, s{sRT}, 18')
            g.vm(f'buffer_load_dword v{T+43}, v{T+19}, {srd(SWS)}, s12 offen'); g.vm(f'buffer_load_dword v{T+43}, v{T+19}, {srd(SWS)}, s13 offen')
            g.vm(f'buffer_load_dword v{T+43}, v{T+19}, {srd(SOUT)}, s14 offen')
    g.wait_all_lg()
    stamp('setup')
    pump(6*(O('pre',2)-1))
    stamp('p1')
    def side_params():
        for i,t in enumerate(Ls[npre:]):
            e(t)
            if i%4==3: yield
        g.wait(vm=pl[2])
        lre,lim,dt=T+16,T+17,T+18
        a_,b_,t0,t1=T,T+1,T+2,T+3
        L=[]; A=L.append
        for r in (lre,lim,dt): A(f'v_lshlrev_b32 v{r}, 16, v{r}')
        A(f'v_mul_f32 v{dt}, {LOG2E:#x}, v{dt}'); A(f'v_exp_f32 v{dt}, v{dt}')
        A(f'v_mul_f32 v{t0}, v{lre}, v{lre}')
        A(f'v_cvt_pk_bf16_f32 v{dt}, v{dt}, v{dt}'); A(f'v_lshlrev_b32 v{dt}, 16, v{dt}')
        A(f'v_mul_f32 v{a_}, v{dt}, v{lre}'); A(f'v_mul_f32 v{b_}, v{dt}, v{lim}')
        A(f'v_fma_f32 v{dt}, v{lim}, v{lim}, v{t0}'); A(f'v_rcp_f32 v{dt}, v{dt}')
        A(f'v_mul_f32 v{a_}, {LOG2E:#x}, v{a_}'); A(f'v_exp_f32 v{a_}, v{a_}')
        A(f'v_mul_f32 v{b_}, {INV2PI:#x}, v{b_}'); A(f'v_rndne_f32 v{t0}, v{b_}'); A(f'v_sub_f32 v{b_}, v{b_}, v{t0}')
        A(f'v_cos_f32 v{t0}, v{b_}'); A(f'v_sin_f32 v{t1}, v{b_}')
        A(f'v_add_f32 v{dt}, v{dt}, v{dt}')
        A(f'v_mul_f32 v{vLr}, v{a_}, v{t0}'); A(f'v_mul_f32 v{vLi}, v{a_}, v{t1}')
        A(f'v_add_f32 v{a_}, -1.0, v{vLr}')
        A(f'v_mul_f32 v{vNC2i}, v{vLi}, v{lre}'); A(f'v_mul_f32 v{vC2r}, v{a_}, v{lre}')
        A(f'v_fma_f32 v{vNC2i}, v{a_}, v{lim}, -v{vNC2i}'); A(f'v_fma_f32 v{vC2r}, v{vLi}, v{lim}, v{vC2r}')
        A(f'v_mul_f32 v{vNC2i}, v{vNC2i}, v{dt}'); A(f'v_mul_f32 v{vC2r}, v{vC2r}, v{dt}')
        def csq(dr,di,sr,si,n):
            for k in range(n):
                A(f'v_mul_f32 v{t0}, v{si}, v{si}'); A(f'v_mul_f32 v{t1}, v{sr}, v{si}')
                A(f'v_fma_f32 v{dr}, v{sr}, v{sr}, -v{t0}'); A(f'v_add_f32 v{di}, v{t1}, v{t1}')
                sr,si=dr,di
        csq(vL16r,vL16i,vLr,vLi,4); csq(vL128r,vL128i,vL16r,vL16i,3); csq(vL1kr,vL1ki,vL128r,vL128i,1)
        for i,t in enumerate(L):
            e(t)
            if i&1: yield
    FB=ACC; NR=6; LA1=O('la1',3)
    ids={}
    def readsA(n):
        q,s=n>>2,n&3; sl=q%NS
        if s==0:
            g.wait(vm=blk_last[q]); barrier(q); stamp(f'B{q}')
        b=FB+12*(n%NR)
        xa,xo=(vRAw[s],RING-ROW0+sl*SLOT) if sl<2 else (XA2[s],(sl-2)*SLOT)
        wa=WA[sl>>1][s]; wo=(sl&1)*SLOT
        g.lg(f'ds_read_b128 {ar(16*q+4*s,4)}, v{xa} offset:{xo}')
        ids[n,0]=g.lg(f'ds_read_b128 {vr(b,4)}, v{wa} offset:{wo}')
        ids[n,1]=g.lg(f'ds_read_b128 {vr(b+4,4)}, v{wa} offset:{wo+4096}')
        ids[n,2]=g.lg(f'ds_read_b128 {vr(b+8,4)}, v{vGA} offset:{GW_L+q*128+s*32}')
    for n in range(LA1): readsA(n)
    side=side_params()
    LA=6; rid={}
    def trread(n,half):
        q,s,f=8+n//24,(n%24)//6,n%6
        if n%24==0 and half==0:
            g.wait(vm=blk_last[q],lg=st.get('elw')); barrier(q); stamp(f'B{q}')
        sl=q%NS; pair,mt=f>>1,f&1
        off=(sl&1)*SLOT+mt*12288+s*3072+pair*64
        b=WR+4*(n%8)
        rid[n]=g.lg(f'ds_read_b64_tr_b16 {vr(b+2*half,2)}, v{vTR[sl>>1]} offset:{off+768*half}')
    for n in range(32):
        b=FB+12*(n%NR); first=(n==0); x=ar(4*n,4)
        g.wait(lg=ids[n,2])
        e(f'v_mfma_f32_32x32x16_bf16 {vr(URE,16)}, {x}, {vr(b,4)}, {"0" if first else vr(URE,16)}')
        pump(1)
        next(side,None)
        e(f'v_mfma_f32_32x32x16_bf16 {vr(UIM,16)}, {x}, {vr(b+4,4)}, {"0" if first else vr(UIM,16)}')
        pump(1)
        next(side,None)
        e(f'v_mfma_f32_16x16x32_bf16 {vr(ZA,4)}, {vr(b+8,4)}, {x}, {"0" if first else vr(ZA,4)}')
        if n+LA1<32: readsA(n+LA1)
        else:
            k=n+LA1-32
            for m_ in range(2*k,2*k+2): trread(m_,0); trread(m_,1)
    for _ in side: pass
    stamp('1a_end')
    NLi,NL16i,NL128i,NC2r=vXo
    def cfma_ip(ar_,ai_,lr,li,nli,sr,si):
        e(f'v_fmac_f32 v{ar_}, v{lr}, v{sr}'); e(f'v_fmac_f32 v{ai_}, v{lr}, v{si}')
        e(f'v_fmac_f32 v{ar_}, v{nli}, v{si}'); e(f'v_fmac_f32 v{ai_}, v{li}, v{sr}')
    def check(pid,reg,off,tag,lane):
        e(f's_mov_b32 s{sCNT}, 0')
        g.wait(vm=pid)
        e(f'L_{tag}_chk:')
        e(f'v_cmp_ne_u32 vcc, s{sNON}, v{reg}')
        e('s_nop 1')
        e(f's_cbranch_vccz L_{tag}_ok')
        e(f's_add_u32 s{sCNT}, s{sCNT}, 1'); e(f's_cmp_gt_u32 s{sCNT}, {SPIN}'); e(f's_cbranch_scc1 L_{tag}_ok')
        e('s_sleep 1')
        e(f'buffer_load_dword v{reg}, v{vFLo}, {srd(SWS)}, 0 offen offset:{off} sc1')
        e('s_waitcnt vmcnt(0)'); e(f's_branch L_{tag}_chk')
        e(f'L_{tag}_ok:'); stamp(tag+'_ok')
        if O('stamps'): e(f'v_writelane_b32 v39, s{sCNT}, {lane}')
    vq=[]
    def cf(ar_,ai_,lr,li,nli,sr,si):
        e(f'v_fmac_f32 v{ar_}, v{lr}, v{sr}'); yield
        e(f'v_fmac_f32 v{ai_}, v{lr}, v{si}'); yield
        e(f'v_fmac_f32 v{ar_}, v{nli}, v{si}'); yield
        e(f'v_fmac_f32 v{ai_}, v{li}, v{sr}'); yield
    def seq(L):
        for t in L:
            e(t); yield
    def side_mid():
        st['rate']=O('rate0',[4,4,4])
        yield from seq([f'v_xor_b32 v{NLi}, 0x80000000, v{vLi}',f'v_xor_b32 v{NL16i}, 0x80000000, v{vL16i}',f'v_mov_b32 v{T+13}, s{sNON}',f'v_mov_b32 v{T+15}, s{sNON}'])
        yield 'gap'
        P=[(T,T+1),(T+2,T+3)]
        cur=(URE,UIM)
        for t in range(1,16):
            d=P[t&1]
            yield from seq([f'v_fma_f32 v{d[0]}, v{vLr}, v{cur[0]}, v{URE+t}',f'v_fma_f32 v{d[1]}, v{vLr}, v{cur[1]}, v{UIM+t}',
                            f'v_fmac_f32 v{d[0]}, v{NLi}, v{cur[1]}',f'v_fmac_f32 v{d[1]}, v{vLi}, v{cur[0]}'])
            cur=d
        st['elw']=g.lg(f'ds_write_b64 v{vT8}, {vr(T+2,2)} offset:{E_L}'); b0=st['barr']; print('E write gap',cur_n[0]); yield
        st['rate']=O('rate1',[3,3,2])
        while st['barr']==b0: yield 'gap'
        ids=[]
        for s in range(8):
            ids.append(g.lg(f'ds_read_b64 {vr(T+16+2*s,2)}, v{vM8} offset:{E_L+256*s}')); yield
        yield 'gap'
        for s in range(1,8):
            g.wait(lg=ids[s])
            yield from cf(T+16+2*s,T+17+2*s,vL16r,vL16i,NL16i,T+14+2*s,T+15+2*s)
        e(f'v_mov_b32 v{T+12}, v{T+30}'); e(f'v_mov_b32 v{T+14}, v{T+31}')
        g.vm(f'buffer_store_dwordx4 {vr(T+12,4)}, v{T+10}, {srd(SHE)}, 0 offen sc1'); stamp('he_pub'); print('he_pub gap',cur_n[0]); yield 'gap'
        st['rate']=O('rate2',[1,1,1])
        z=T+6
        yield from seq([f'v_and_b32 v{z+1}, 16, v{vL}',f'v_cmp_eq_u32 vcc, 0, v{z+1}',f'v_xor_b32 v{NL128i}, 0x80000000, v{vL1ki}',
            f'v_cndmask_b32 v{z}, v{ZA+1}, v{ZA}, vcc',f'v_cvt_pk_bf16_f32 v{z}, v{z}, v{z}',f'v_lshlrev_b32 v{z}, 16, v{z}',
            f'v_mul_f32 v{z}, s{sNL2E}, v{z}',f'v_exp_f32 v{z}, v{z}',f'v_add_f32 v{z}, 1.0, v{z}',f'v_rcp_f32 v{z}, v{z}',
            f'v_cvt_pk_bf16_f32 v{z}, v{z}, v{z}',f'v_lshlrev_b32 v{z}, 16, v{z}',
            f'v_sub_f32 v{z+1}, 1.0, v{z}',f'v_cvt_pk_bf16_f32 v{z+1}, v{z+1}, v{z+1}',f'v_lshlrev_b32 v{z+1}, 16, v{z+1}',
            f'v_rcp_f32 v{vCinv}, v{z+1}',f'v_xor_b32 v{NC2r}, 0x80000000, v{vC2r}',f'v_min_f32 v{vCinv}, 0x7e967699, v{vCinv}',f'v_mov_b32 v{vCinv+1}, v{vCinv}'])
        g.lg(f'ds_write_b32 v{T+42}, v{z} offset:{G_L}'); yield
        while cur_n[0]<O('he_at',64): yield 'gap'
        he={}
        hel=lambda jj:f'buffer_load_dwordx4 {vr(T+16+4*jj,4)}, v{vHEo}, {srd(SHE)}, 0 offen offset:{512*jj} sc1'
        for jj in range(2): vq.append(lambda jj=jj: he.__setitem__(jj,g.vm(hel(jj))))
        while cur_n[0]<O('he_chk',86): yield 'gap'
        st['rate']=O('rate3',[4,4,3])
        cnt=T+8
        e(f's_mov_b32 s{sCNT}, 0')
        g.wait(vm=he[1])
        e('L_he_chk:')
        e(f'v_mov_b32 v{cnt}, 0')
        for jj in range(2):
            e(f'v_cmp_eq_u32 vcc, s{sNON}, v{T+16+4*jj+1}'); e(f'v_cmp_eq_u32 s[12:13], s{sNON}, v{T+16+4*jj+3}')
            e(f'v_addc_co_u32 v{cnt}, vcc, 0, v{cnt}, vcc'); e(f'v_addc_co_u32 v{cnt}, s[12:13], 0, v{cnt}, s[12:13]')
        e(f'v_cmp_ne_u32 vcc, v{cnt}, v{vEX}')
        e('s_nop 1')
        e('s_cbranch_vccz L_he_ok')
        e(f's_add_u32 s{sCNT}, s{sCNT}, 1'); e(f's_cmp_gt_u32 s{sCNT}, {SPIN}'); e('s_cbranch_scc1 L_he_ok')
        e('s_sleep 1')
        for jj in range(2): e(hel(jj))
        e('s_waitcnt vmcnt(0)'); e('s_branch L_he_chk')
        e('L_he_ok:'); stamp('he_ok')
        if O('stamps'): e(f'v_writelane_b32 v39, s{sCNT}, 60')
        yield 'gap'
        yield from seq([f'v_fma_f32 v{T+8}, v{vL128r}, v{T+20}, v{T+16}',f'v_fma_f32 v{T+9}, v{vL128r}, v{T+22}, v{T+18}',
                        f'v_fma_f32 v{T+8}, -v{vL128i}, v{T+22}, v{T+8}',f'v_fmac_f32 v{T+9}, v{vL128i}, v{T+20}'])
        st['elw']=g.lg(f'ds_write_b64 v{vT8}, {vr(T+8,2)} offset:{PQ_L}'); b0=st['barr']; yield
        while st['barr']==b0: yield 'gap'
        print('pq barrier gap',cur_n[0])
        ids=[]
        for s in range(8):
            ids.append(g.lg(f'ds_read_b64 {vr(T+16+2*s,2)}, v{vM8} offset:{PQ_L+256*(7-s)}')); yield
        yield 'gap'
        for s in range(1,8):
            g.wait(lg=ids[s])
            yield from cf(T+16+2*s,T+17+2*s,vL1kr,vL1ki,NL128i,T+14+2*s,T+15+2*s)
        g.lg(f'ds_write_b64 v{vM8}, {vr(T+30,2)} offset:{HIN_L}'); yield
        ids=[]
        for k in range(8):
            ids.append(g.lg(f'ds_read_b64 {vr(T+2*k,2)}, v{vT8} offset:{XCH_L+256*k}')); yield
        yield 'gap'
        for k in range(1,8):
            g.wait(lg=ids[k])
            yield from cf(T+2*k,T+2*k+1,vL16r,vL16i,NL16i,T+2*k-2,T+2*k-1)
        cur=(T+14,T+15); OB=T+32
        for t in range(17):
            L=[]
            u=t-1; o=OB+(u&1)
            if t<16: L+=[f'v_fmac_f32 v{URE+t}, v{vLr}, v{cur[0]}',f'v_fmac_f32 v{UIM+t}, v{vLr}, v{cur[1]}']
            if t>0: L+=[f'v_mul_f32 v{o}, v{vC2r}, v{URE+u}',f'v_mul_f32 v{o+2}, v{NC2r}, v{UIM+u}']
            if t<16: L+=[f'v_fmac_f32 v{URE+t}, v{NLi}, v{cur[1]}',f'v_fmac_f32 v{UIM+t}, v{vLi}, v{cur[0]}']; cur=(URE+t,UIM+t)
            if t>0: L+=[f'v_fmac_f32 v{o}, v{vNC2i}, v{UIM+u}',f'v_fmac_f32 v{o+2}, v{vNC2i}, v{URE+u}']
            if t>0 and u&1: L+=[f'v_cvt_pk_bf16_f32 v{T+16+(u>>1)}, v{OB}, v{OB+1}',f'v_cvt_pk_bf16_f32 v{T+24+(u>>1)}, v{OB+2}, v{OB+3}']
            yield from seq(L)
            if t==10: st['wantrow']=True
        while st.get('trow') is None: yield 'gap'
        row=st['trow']
        if row>=4:
            e(f'v_add_u32 v{vTW}, {row*16384}, v{vTW}'); e(f'v_add_u32 v{vTRd}, {row*16384}, v{vTRd}'); ro=0
        else: ro=row*16384
        tid={}
        for mt in range(2):
            g.lg(f'ds_write_b128 v{vTW}, {vr(T+16+8*mt,4)} offset:{ro+2048*mt}'); yield 'gap'
            g.lg(f'ds_write_b128 v{vTW}, {vr(T+16+8*mt+4,4)} offset:{ro+2048*mt+16}'); yield 'gap'
        for mt in range(2):
            for ks in range(2):
                for rho in range(2):
                    tid[mt,ks]=g.lg(f'ds_read_b64_tr_b16 {vr(T+8*mt+4*ks+2*rho,2)}, v{vTRd} offset:{ro+2048*mt+ks*1024+rho*256}'); yield
        st['pendRel'].append((row,tid[1,1]))
        print('ssm fin gap',cur_n[0])
        def sst(mt,ks):
            g.wait(lg=tid[mt,ks])
            st['sst']=g.vm(f'buffer_store_dwordx4 {vr(T+8*mt+4*ks,4)}, v{vL16}, {srd(SWS)}, s{sT0} offen offset:{(2*mt+ks)*1024} sc1'); st['sn']=st.get('sn',0)+1; st['sstn']=cur_n[0]
        yield 'gap'
        for mt in range(2):
            for ks in range(2):
                vq.append(lambda mt=mt,ks=ks: sst(mt,ks))
    def sflag():
        g.wait(vm=st['sst']); st['sf']=g.vm(f'buffer_store_dword v{vNON}, v{vFS}, {srd(SWS)}, 0 offen sc1'); stamp('sflag'); print('sflag gap',cur_n[0])
    def slot():
        if st.get('wantrow') and st.get('trow') is None:
            service()
            if st['free']: st['trow']=st['free'].pop(0)
        if st.get('sn')==4 and 'sf' not in st and cur_n[0]-st['sstn']>=O('flag_lagn',24): sflag()
        if vq:
            f=vq.pop(0)
            if f: f(); return None
        return pump(1)
    side=side_mid()
    for n in range(192):
        cur_n[0]=n
        q,s,f=n//24,(n%24)//6,n%6
        ph=n%3
        if ph==0: g.wait(lg=rid[n+2])
        acc=vr(ACC+16*f,16)
        e(f'v_mfma_f32_32x32x16_bf16 {acc}, {vr(WR+4*(n%8),4)}, {ar(16*q+4*s,4)}, {"0" if n<6 else acc}')
        b=n-ph+LA
        if b<192:
            if ph==0: trread(b,0); trread(b,1); trread(b+1,0)
            if ph==1: trread(b+1,1); trread(b+2,0); trread(b+2,1)
        if ph==2: slot()
        if O('xs',6) and n%O('xs',6)==0 and n>=O('xs0',0): slot()
        for _ in range(st.get('rate',[4,4,4])[ph]):
            if next(side,'gap')=='gap': break
    g.wait_all_lg(); barrier(17); stamp('1b_end'); print('w2n at 1b_end',st['w2n'])
    for r in side:
        if r=='gap' and st.get('wantrow') and st.get('trow') is None: slot()
    while vq: slot()
    stamp('sst')
    pump(O('t0pump',4))
    tick=[0]
    PER=O('per',100000)
    def tk(c):
        tick[0]+=c
        if tick[0]>=PER: tick[0]-=PER; pump(1)
    E0=URE
    pol=T+18
    for pr in range(3):
        G=ACC+32*pr; Uu=G+16
        for h in range(2):
            k=2*pr+h
            R=range(8*h,8*h+8,2)
            for i in R: e(f'v_pk_mul_f32 {vr(E0+i%8,2)}, {vr(G+i,2)}, s[{sNL2E}:{sNL2E+1}] op_sel_hi:[1,0]')
            tk(21)
            for i in range(8): e(f'v_exp_f32 v{E0+i}, v{E0+i}')
            tk(64)
            for i in R: e(f'v_pk_mul_f32 {vr(G+i,2)}, {vr(G+i,2)}, {vr(Uu+i,2)}')
            for i in R: e(f'v_pk_fma_f32 {vr(E0+i%8,2)}, {vr(E0+i%8,2)}, {vr(vCinv,2)}, {vr(vCinv,2)}')
            tk(42)
            for i in range(8): e(f'v_rcp_f32 v{E0+i}, v{E0+i}')
            tk(64)
            for i in R: e(f'v_pk_mul_f32 {vr(G+i,2)}, {vr(G+i,2)}, {vr(E0+i%8,2)}')
            pk=E0+8+4*k
            for i in range(4): e(f'v_cvt_pk_bf16_f32 v{pk+i}, v{G+8*h+2*i}, v{G+8*h+2*i+1}')
            if k==O('sflag_at',1) and 'sf' not in st: sflag()
            if k==O('poll_at',3): pid=g.vm(f'buffer_load_dword v{pol}, v{vFLo}, {srd(SWS)}, 0 offen sc1')
            fst=g.vm(f'buffer_store_dwordx4 {vr(pk,4)}, v{vL16}, {srd(SWS)}, s{16 if k<4 else 17} offen offset:{(k%4)*1024} sc1')
            tk(42)
    stamp('ffn_epi'); print('w2n at ffn_epi',st['w2n'])
    def drain(n):
        for _ in range(n):
            r=pump(1)
            if r=='blocked':
                service(force=True); service(force=True); r=pump(1)
    assert st['w2n']>=32
    while st['pendC']: service(force=True)
    check(pid,pol,0,'fs',61)
    aid={}
    def aload(k):
        base,kk=(26,k) if k<16 else (28,k-16)
        if kk%4==0:
            e(f's_add_u32 s20, s{base}, {kk*1024}'); e(f's_add_u32 s21, s{base+1}, {kk*1024}')
        for tb in range(2):
            aid[k]=g.vm(f'buffer_load_dwordx4 {ar(8*(k%16)+4*tb,4)}, v{vL16}, {srd(SWS)}, s{20+tb} offen offset:{(kk%4)*1024} sc1')
    ALA=O('ala',8)
    for k in range(ALA): aload(k)
    vT0=[T+4,T+5,T+6]; vT1=[T+7,T+8,T+9]; vG=[T+10,T+11]
    x0,x1=T+14,T+15
    e(f'v_bfe_u32 v{x0}, v{vL}, 2, 2'); e(f'v_lshlrev_b32 v{x0}, 7, v{x0}'); e(f'v_lshl_add_u32 v{x0}, v{vHH16}, 5, v{x0}')
    e(f'v_and_b32 v{x1}, 8, v{vL}'); e(f'v_lshl_add_u32 v{x0}, v{x1}, 3, v{x0}')
    e(f'v_and_b32 v{x1}, 16, v{vL}'); e(f'v_lshl_add_u32 v{x0}, v{x1}, 1, v{x0}')
    e(f'v_and_b32 v{x1}, 3, v{vL}'); e(f'v_lshl_add_u32 v{x0}, v{x1}, 3, v{x0}')
    e(f'v_add_u32 v{vT0[0]}, s{sM0R}, v{x0}'); e(f'v_xor_b32 v{vT1[0]}, 64, v{vT0[0]}')
    for k in (1,2):
        e(f'v_add_u32 v{vT0[k]}, {65536*k}, v{vT0[0]}'); e(f'v_add_u32 v{vT1[k]}, {65536*k}, v{vT1[0]}')
    e(f's_lshl_b32 s12, s{sRH}, 8'); e(f'v_lshl_add_u32 v{x0}, v{vM}, 2, s12')
    g.lg(f'ds_read_b32 v{vG[0]}, v{x0} offset:{G_L}'); gid=g.lg(f'ds_read_b32 v{vG[1]}, v{x0} offset:{G_L+128}')
    XS=T+20; DS=T+28; vXa=T+30; vOa=T+31; vGe=T+32
    e(f's_lshl_b32 s13, s{sRT}, 7'); e(f's_lshl_b32 s12, s{sRH}, 6'); e('s_add_u32 s13, s13, s12')
    e(f's_lshr_b32 s12, s{sW}, 1'); e('s_lshl_b32 s12, s12, 5'); e('s_add_u32 s13, s13, s12')
    e(f's_and_b32 s12, s{sW}, 1'); e('s_lshl_b32 s12, s12, 3'); e('s_add_u32 s13, s13, s12')
    e(f'v_lshrrev_b32 v{x0}, 4, v{vL}'); e(f'v_add_u32 v{x0}, s13, v{x0}')
    e(f'v_and_b32 v{x1}, 15, v{vL}'); e(f's_lshl_b32 s12, s{sCT}, 7'); e(f'v_lshl_add_u32 v{x1}, v{x1}, 3, s12')
    e(f'v_lshl_add_u32 v{vXa}, v{x0}, 10, v{x1}'); e(f'v_lshlrev_b32 v{vOa}, 1, v{vXa}')
    def small_loads():
        g.vm(f'global_load_dwordx2 {vr(DS,2)}, v{x1}, s[32:33]')
        for it in range(4):
            e(f's_movk_i32 s14, {(16*(it&1)+4*(it>>1))*1024}')
            st['xl']=g.vm(f'buffer_load_dwordx2 {vr(XS+2*it,2)}, v{vXa}, {srd(SX)}, s14 offen')
    e(f's_lshl_b32 s13, s{sCG}, 2'); e(f's_add_u32 s13, s13, s{sW}'); e(f's_xor_b32 s12, s{sRT}, 15'); e('s_or_b32 s13, s13, s12')
    e(f'v_or_b32 v{x0}, s13, v{vL}'); e(f'v_cmp_eq_u32 vcc, 0, v{x0}'); e(f'v_mov_b32 v{x0}, {OOB:#x}'); e(f'v_cndmask_b32 v{x0}, v{x0}, 0, vcc')
    stamp('p2s')
    g.wait(vm=fst)
    g.vm(f'buffer_store_dword v{vNON}, v{vFS}, {srd(SWS)}, 0 offen offset:128 sc1'); stamp('fflag')
    g.vm(f'buffer_store_dword v{vNON}, v{x0}, {srd(SWS)}, 0 offen offset:{Z_OFF} sc1')
    wid={}
    def wread(k):
        kk=k-16; u,ks=kk>>1,kk&1
        g.wait(vm=st['Flast'][u])
        row=st['Frow'][u]
        for db in range(2):
            b=WR+8*(k%4)+4*db
            ad=(vT0,vT1)[db][row>>2]
            for rho in range(2):
                wid[k]=g.lg(f'ds_read_b64_tr_b16 {vr(b+2*rho,2)}, v{ad} offset:{(row&3)*16384+ks*2048+rho*1024}')
    wj=vRA; rd=[T+40,T+41]; SK=URE; dsk=[T+42+i for i in range(4)]
    def side_fin():
        y0,y1=T+16,T+17
        e(f'v_lshrrev_b32 v{y0}, 4, v{vM}'); e(f'v_lshlrev_b32 v{y0}, 14, v{y0}'); e(f'v_and_b32 v{y1}, 15, v{vM}'); yield
        e(f'v_lshl_add_u32 v{y0}, v{y1}, 8, v{y0}'); e(f'v_and_b32 v{y1}, 7, v{vM}'); e(f'v_lshlrev_b32 v{y1}, 4, v{y1}'); yield
        e(f'v_xor_b32 v{y1}, v{y1}, v{vHH16}'); e(f'v_add3_u32 v{wj[0]}, v{y0}, v{y1}, s{sM0R}'); yield
        for j in range(1,4): e(f'v_xor_b32 v{wj[j]}, {32*j}, v{wj[0]}')
        yield
        e(f'v_lshrrev_b32 v{y0}, 4, v{vL}'); e(f'v_and_b32 v{y1}, 15, v{vL}'); e(f'v_xor_b32 v{y1}, v{y1}, v{y0}'); yield
        e(f'v_lshlrev_b32 v{y1}, 4, v{y1}'); e(f'v_lshl_add_u32 v{y1}, v{y0}, 8, v{y1}'); yield
        e(f's_lshl_b32 s12, s{sW}, 14'); e(f's_add_u32 s12, s12, {ROW0}'); e(f'v_add_u32 v{rd[0]}, s12, v{y1}'); e(f'v_xor_b32 v{rd[1]}, 64, v{rd[0]}'); yield
        e(f's_lshl_b32 s13, s{sRH}, 8'); e(f's_lshl_b32 s12, s{sW}, 6'); e('s_add_u32 s12, s12, s13'); e(f'v_lshl_add_u32 v{y0}, v{y0}, 2, s12'); yield
        for it in range(4): gl=g.lg(f'ds_read_b32 v{vGe+it}, v{y0} offset:{G_L+16*it}')
        yield
        while 'xl' not in st or g.nvm-st['xl']<12: yield
        g.wait(vm=st['xl'])
        e(f'v_lshlrev_b32 v{dsk[0]}, 16, v{DS}'); e(f'v_and_b32 v{dsk[1]}, 0xffff0000, v{DS}'); yield
        e(f'v_lshlrev_b32 v{dsk[2]}, 16, v{DS+1}'); e(f'v_and_b32 v{dsk[3]}, 0xffff0000, v{DS+1}'); yield
        g.wait(lg=gl)
        for it in range(4):
            for h in range(2):
                a,b=SK+4*it+2*h,SK+4*it+2*h+1
                e(f'v_lshlrev_b32 v{a}, 16, v{XS+2*it+h}'); e(f'v_and_b32 v{b}, 0xffff0000, v{XS+2*it+h}')
                e(f'v_mul_f32 v{a}, v{a}, v{dsk[2*h]}'); yield
                e(f'v_mul_f32 v{b}, v{b}, v{dsk[2*h+1]}')
                e(f'v_cvt_pk_bf16_f32 v{b}, v{a}, v{b}')
                e(f'v_lshlrev_b32 v{a}, 16, v{b}'); yield
                e(f'v_and_b32 v{b}, 0xffff0000, v{b}')
                e(f'v_mul_f32 v{a}, v{a}, v{vGe+it}'); e(f'v_mul_f32 v{b}, v{b}, v{vGe+it}'); yield
    side=side_fin()
    pid2=None
    for k in range(38):
        if k+2>=16 and k+2<38: wread(k+2)
        g.wait(vm=aid[k])
        if k>=16: g.wait(lg=wid[k])
        if k in (0,8,16,24,32): stamp(f'k{k}')
        if k==16:
            g.wait(lg=gid)
            for db in range(2):
                for tb in range(2):
                    for i in range(16):
                        r=ACC+16*(2*db+tb)+i
                        e(f'v_mul_f32 v{r}, v{vG[tb]}, v{r}')
        for db in range(2):
            for tb in range(2):
                acc=vr(ACC+16*(2*db+tb),16)
                Wf=ar(128+(k*2+db)*4,4) if k<16 else vr(WR+8*(k%4)+4*db,4)
                e(f'v_mfma_f32_32x32x16_bf16 {acc}, {Wf}, {ar(8*(k%16)+4*tb,4)}, {"0" if k==0 else acc}')
                next(side,None)
            if db==0 and k+ALA<38:
                if k+ALA==16:
                    check(pid2,pol+1,128,'ff',59)
                aload(k+ALA)
                if k+ALA==16-O('poll2_lead',4): pid2=g.vm(f'buffer_load_dword v{pol+1}, v{vFLo}, {srd(SWS)}, 0 offen offset:128 sc1')
        if k<16 and st['w2n']<68: drain(O('mix',2))
        if k==O('small_at',2): small_loads()
        if k==15: assert st['w2n']>=68, st['w2n']
        if k in (17,19):
            u=9+(k-17)//2
            for _ in granF(u,st['Frow'][u-9]): pass
    for _ in side: raise Exception('side_fin left')
    stamp('p2_end')
    for db in range(2):
        for tb in range(2):
            for j in range(4):
                g.lg(f'ds_write_b128 v{wj[j]}, {vr(ACC+16*(2*db+tb)+4*j,4)} offset:{db*128+tb*32768}')
    g.wait_all_lg(); e('s_barrier'); stamp('red')
    RB=ACC
    ids={}
    for it in range(4):
        for w2 in range(4):
            ids[it,w2]=g.lg(f'ds_read_b128 {vr(RB+16*it+4*w2,4)}, v{rd[it&1]} offset:{w2*4096+it*1024}')
    for it in range(4):
        g.wait(lg=ids[it,3])
        b=RB+16*it
        for i in (0,2): e(f'v_pk_add_f32 {vr(b+i,2)}, {vr(b+i,2)}, {vr(SK+4*it+i,2)}')
        for i in (0,2): e(f'v_pk_add_f32 {vr(b+4+i,2)}, {vr(b+4+i,2)}, {vr(b+8+i,2)}')
        for i in (0,2): e(f'v_pk_add_f32 {vr(b+i,2)}, {vr(b+i,2)}, {vr(b+12+i,2)}')
        for i in (0,2): e(f'v_pk_add_f32 {vr(b+i,2)}, {vr(b+i,2)}, {vr(b+4+i,2)}')
        e(f's_mov_b32 s12, {(16*(it&1)+4*(it>>1))*2048}')
        g.vm(f'buffer_store_dwordx4 {vr(b,4)}, v{vOa}, {srd(SOUT)}, s12 offen {O("outfl","sc1")}')
    if O('stamps'):
        stamp('st_iss')
        e('s_waitcnt vmcnt(0)'); stamp('end',True)
        e('s_memrealtime s[94:95]'); e('s_waitcnt lgkmcnt(0)'); e('v_writelane_b32 v39, s94, 63')
        e(f's_lshl_b32 s11, s2, 10'); e(f's_add_u32 s11, s11, {WS_SIZE}'); e(f's_add_u32 s{SWS+2}, s{SWS+2}, 0x40000')
        e(f'v_lshlrev_b32 v{T}, 2, v0')
        e(f'buffer_store_dword v39, v{T}, {srd(SWS)}, s11 offen')
        if O('dbg'):
            sel=['start','setup','B0','B4','B8','B12','1b_end','ssm_fin','ffn_epi','w2_issued','fs_ok','k16','p2_end','end']
            e('s_mov_b32 s60, s46'); e('s_mov_b32 s61, s47'); e('s_mov_b32 s62, 256'); e('s_mov_b32 s63, 0x20000')
            e('v_readlane_b32 s12, v39, 62'); e('v_readlane_b32 s13, v39, 0'); e('s_not_b32 s12, s12')
            e(f'v_mov_b32 v{T+1}, s94'); e(f'v_mov_b32 v{T+2}, s12'); e(f'v_mov_b32 v{T+3}, 0'); e(f'v_mov_b32 v{T+4}, {OOB:#x}')
            e(f'v_cmp_eq_u32 vcc, 0, v0'); e(f'v_cndmask_b32 v{T+3}, v{T+4}, v{T+3}, vcc')
            e(f'buffer_atomic_umax v{T+1}, v{T+3}, s[60:63], 0 offen'); e(f'buffer_atomic_umax v{T+2}, v{T+3}, s[60:63], 0 offen offset:4')
            e('s_cmp_eq_u32 s2, 100'); e('s_cbranch_scc0 L_end')
            for i,nm in enumerate(sel):
                e(f'v_readlane_b32 s12, v39, {stamps.index(nm)}'); e('s_sub_u32 s12, s12, s13'); e(f'v_mov_b32 v{T+1}, s12')
                e(f'buffer_store_dword v{T+1}, v{T+3}, s[60:63], 0 offen offset:{8+4*i}')
    e('L_end:')
    e('s_endpgm')
    hdr=open('gated_mix__ssm_conv_s5__glu_gated_swiglu__prompt.s.ref').read().split('; Override')[0]
    out=hdr+'; @launch grid=(256,1,1) block=(256,1,1) lds=163840\n'
    out+=f'.amdgcn_target "amdgcn-amd-amdhsa--gfx950"\n.text\n.globl {NAME}\n.p2align 8\n.type {NAME},@function\n{NAME}:\n'
    out+=g.text()
    out+=f'.fill (32768+256-(.-{NAME}))/4, 4, 0xbf810000\n'
    out+=f'''.section .rodata,"a"
.p2align 6
.amdhsa_kernel {NAME}
  .amdhsa_next_free_vgpr 512
  .amdhsa_next_free_sgpr 102
  .amdhsa_accum_offset 256
  .amdhsa_group_segment_fixed_size 0
  .amdhsa_kernarg_size 136
  .amdhsa_user_sgpr_count 2
  .amdhsa_user_sgpr_kernarg_segment_ptr 1
  .amdhsa_system_sgpr_workgroup_id_x 1
.end_amdhsa_kernel
'''
    return out,g
if __name__=='__main__':
    import json
    opt=json.loads(sys.argv[2]) if len(sys.argv)>2 else {}
    out,g=gen(opt)
    open(sys.argv[1],'w').write(out)
    if g.stamps: json.dump(g.stamps,open(sys.argv[1]+'.names','w'))
    from collections import Counter
    print(len(g.ins),Counter(i.cls for i in g.ins), 'nops',sum(1 for i in g.ins if i.mn=='s_nop'))
```

```python
import sys
from asmlib import *
NAME='gated_mix__ssm_conv_s5__glu_gated_swiglu__prompt_kernel'
ROW0=8192; RING=40960; SLOT=24576; NS=5
Z_OFF=0; FL_OFF=0x40000; HE_OFF=0x10000; A2_OFF=0x80000; WS_SIZE=A2_OFF+16*4*160*1024
OOB=0x80000000
GW_L=0; XCH_L=1024; HIN_L=2816; E_L=3072; G_L=5120; PQ_L=5632; TRB_L=155648
LOG2E=0x3fb8aa3b; NLOG2E=0xbfb8aa3b; INV2PI=0x3e22f983
SPIN=200000
sW,sRT,sCG,sCT,sRH,sROT,sNON=4,5,6,7,8,9,10
SX,SW0,SW1,SW3,SCRE,SCIM,SW2,SWS,SHE,SOUT=52,56,60,64,68,72,76,80,84,88
sXB,sW0B,sM0X,sM0W,sM0F,sSO,sSO2=96,97,98,99,100,101,3
sCB,sW2B,sA2S,sA2L0,sA2L1,sCNT,sT0,sT1=34,35,36,37,38,39,40,41
sM0R,sSO3,sFST,sNL2E,sROTF=50,51,22,24,23
srd=lambda b:f's[{b}:{b+3}]'
vr=lambda b,n:f'v[{b}:{b+n-1}]'
ar=lambda b,n:f'a[{b}:{b+n-1}]'
vL,vM,vHH16,vL16=1,2,3,4
vNat=[5,6,7,8]; vXo=[9,10,11,12]; vWF=[13,14,15]
vRA=[16,17,18,19]; vRAw=[20,21,22,23]; vTR=[24,25,26]
vLr,vLi,vL16r,vL16i,vL128r,vL128i,vL1kr,vL1ki,vC2r,vNC2i,vM8=27,28,29,30,31,32,33,34,35,36,37
vCinv=40
vW2o=[42,43,44,45]; vHEo=46; vFLo=47
URE=48; UIM=64; ACC=80; WR=176; T=208
ZA=T+44
vFS,vNON,vTW,vTRd=T+36,T+37,T+38,T+39; vEX=38; vT8=T+41
def gen(opt=None):
    opt=opt or {}
    O=opt.get
    g=Gen(); e=g.e
    FS=O('fs',8)
    SEQ=O('seq','AAAAAAAAFFFFFFFF'); assert SEQ.count('A')==8 and SEQ.count('F')==8 and SEQ[0]=='A'
    POS=[(c,SEQ[:i].count(c)) for i,c in enumerate(SEQ)]
    for i,(c,q) in enumerate(POS): assert c=='A' or SEQ[:i].count('A')>q
    stamps=[]
    def stamp(name,flush=False):
        if not O('stamps'): return
        k=len(stamps); stamps.append(name)
        if k>=2: e(f'v_writelane_b32 v39, s{92+2*(k%2)}, {k-2}')
        e(f's_memtime s[{92+2*(k%2)}:{93+2*(k%2)}]')
        if flush:
            e('s_waitcnt lgkmcnt(0)')
            e(f'v_writelane_b32 v39, s{92+2*((k-1)%2)}, {k-1}'); e(f'v_writelane_b32 v39, s{92+2*(k%2)}, {k}')
    g.stamps=stamps
    e('s_cmp_ge_u32 s2, 256'); e('s_cbranch_scc1 L_end')
    if O('stamps'):
        e('s_memrealtime s[94:95]'); e('v_mov_b32 v39, 0'); e('s_waitcnt lgkmcnt(0)'); e('v_writelane_b32 v39, s94, 62')
        stamp('start')
    if O('diag'): e('s_memrealtime s[94:95]')
    e('s_load_dwordx16 s[16:31], s[0:1], 0')
    e('s_load_dwordx16 s[32:47], s[0:1], 64')
    e('s_load_dwordx2 s[48:49], s[0:1], 128')
    e('s_getpc_b64 s[50:51]')
    e('s_lshr_b32 s13, s2, 3')
    e('s_and_b32 s14, s13, 7'); e('s_lshl_b32 s14, s14, 12')
    e(f'v_lshl_add_u32 v{T}, v0, 4, s14')
    g.vm(f'global_load_dwordx4 {vr(T+4,4)}, v{T}, s[50:51]')
    PF0=O('pf0',0)
    pX,pB,pW=T+40,T+41,T+42
    def pfA():
        g.vm(f'global_load_dword v{T+43}, v{pX}, s[16:17]'); g.vm(f'global_load_dword v{T+43}, v{pB}, s[22:23]'); g.vm(f'global_load_dword v{T+43}, v{pB}, s[24:25]')
    def pfF():
        g.vm(f'global_load_dword v{T+43}, v{pW}, s[36:37]'); g.vm(f'global_load_dword v{T+43}, v{pW}, s[38:39]')
    if PF0:
        e('s_lshl_b32 s12, s2, 6'); e(f'v_lshrrev_b32 v{pX}, 2, v0'); e(f'v_add_lshl_u32 v{pX}, v{pX}, s12, 7')
        e('s_lshl_b32 s12, s2, 4'); e(f'v_lshrrev_b32 v{pB}, 4, v0'); e(f'v_add_lshl_u32 v{pB}, v{pB}, s12, 7')
        e('s_mul_i32 s12, s2, 43'); e(f'v_mul_u32_u24 v{pW}, 43, v0'); e(f'v_lshrrev_b32 v{pW}, 8, v{pW}'); e(f'v_add_lshl_u32 v{pW}, v{pW}, s12, 7')
        e('s_waitcnt lgkmcnt(0)')
        if PF0&1: pfA()
        if PF0&2: pfF()
        e(f's_load_dword s{sNON}, s[48:49], {Z_OFF}'); g.smem=True
        stamp('pf')
    e(f'v_lshrrev_b32 v{T+1}, 6, v0')
    e(f'v_and_b32 v{vL}, 63, v0')
    e(f'v_readfirstlane_b32 s{sW}, v{T+1}')
    if O('map','B')=='A':
        e('s_and_b32 s12, s2, 7')
        e(f's_and_b32 s{sRH}, s12, 1'); e('s_lshr_b32 s14, s12, 1')
        e(f's_lshl_b32 s{sRT}, s14, 2'); e('s_lshr_b32 s15, s13, 3'); e(f's_add_u32 s{sRT}, s{sRT}, s15')
        e(f's_and_b32 s{sCT}, s13, 7')
        e(f's_lshl_b32 s{sCG}, s{sRH}, 3'); e(f's_add_u32 s{sCG}, s{sCG}, s{sCT}')
        e(f's_lshl_b32 s{sROT}, s14, 1'); e(f's_and_b32 s11, s{sCT}, {O("rotmask",4)}'); e(f's_add_u32 s{sROT}, s{sROT}, s11')
    else:
        e(f's_and_b32 s12, s2, 4'); e(f's_lshl_b32 s{sRT}, s12, 1'); e('s_lshr_b32 s15, s2, 5'); e(f's_add_u32 s{sRT}, s{sRT}, s15')
        e('s_and_b32 s14, s13, 3')
        e(f's_and_b32 s11, s2, 3'); e(f's_lshl_b32 s{sCG}, s11, 2'); e(f's_add_u32 s{sCG}, s{sCG}, s14')
        e(f's_and_b32 s{sRH}, s2, 1'); e(f's_and_b32 s{sCT}, s2, 2'); e(f's_lshl_b32 s{sCT}, s{sCT}, 1'); e(f's_add_u32 s{sCT}, s{sCT}, s14')
        ra,rb,rc,rd_=O('rot',[2,1,0,0])
        e(f's_mul_i32 s{sROT}, s14, {ra}')
        if O('rtmask',7)!=7: e(f's_and_b32 s15, s15, {O("rtmask",7)}')
        if rb: e(f's_mul_i32 s15, s15, {rb}'); e(f's_add_u32 s{sROT}, s{sROT}, s15')
        if rc: e(f's_lshr_b32 s12, s12, 2'); e(f's_mul_i32 s12, s12, {rc}'); e(f's_add_u32 s{sROT}, s{sROT}, s12')
        if rd_: e(f's_mul_i32 s11, s11, {rd_}'); e(f's_add_u32 s{sROT}, s{sROT}, s11')
    l3,l7,l4,hh,sw0=T+8,T+9,T+10,T+11,T+12
    e(f'v_lshrrev_b32 v{l3}, 3, v{vL}'); e(f'v_and_b32 v{l7}, 7, v{vL}'); e(f'v_lshrrev_b32 v{l4}, 4, v{vL}'); e(f'v_lshrrev_b32 v{hh}, 5, v{vL}')
    e(f'v_xor_b32 v{sw0}, v{l7}, v{l4}'); e(f'v_lshlrev_b32 v{sw0}, 4, v{sw0}')
    e(f'v_lshl_add_u32 v{vNat[0]}, v{l3}, 10, v{sw0}')
    e(f'v_xor_b32 v{vNat[1]}, 64, v{vNat[0]}'); e(f'v_add_u32 v{vNat[1]}, 7168, v{vNat[1]}')
    e(f'v_and_b32 v{T+13}, 3, v{l3}'); e(f'v_lshl_add_u32 v{T+13}, v{hh}, 4, v{T+13}')
    e(f'v_lshl_add_u32 v{vXo[0]}, v{T+13}, 10, v{sw0}')
    e(f'v_xor_b32 v{vXo[1]}, 64, v{vXo[0]}'); e(f'v_add_u32 v{vXo[1]}, 3072, v{vXo[1]}')
    e(f'v_add_u32 v{vXo[2]}, 6144, v{vXo[0]}'); e(f'v_add_u32 v{vXo[3]}, 6144, v{vXo[1]}')
    e(f's_lshl_b32 s{sXB}, s{sRT}, 17'); e(f's_lshl_b32 s11, s{sW}, 15'); e(f's_add_u32 s{sXB}, s{sXB}, s11')
    e(f's_lshl_b32 s{sW0B}, s{sCG}, 15'); e(f's_and_b32 s11, s{sW}, 1'); e('s_lshl_b32 s11, s11, 14'); e(f's_add_u32 s{sW0B}, s{sW0B}, s11')
    e(f's_lshl_b32 s{sM0X}, s{sW}, 12'); e(f's_add_u32 s{sM0X}, s{sM0X}, {RING}')
    e(f's_lshl_b32 s{sM0W}, s{sW}, 11'); e(f's_add_u32 s{sM0W}, s{sM0W}, {RING+16384}')
    def mksrd(b,p): e(f's_mov_b32 s{b}, s{p}'); e(f's_mov_b32 s{b+1}, s{p+1}')
    def srdc(b,size): e(f's_mov_b32 s{b+2}, {size}'); e(f's_mov_b32 s{b+3}, 0x20000')
    srdc(SX,2048*1024); srdc(SW0,512*1024)
    e(f's_cmp_lt_u32 s{sW}, 2')
    if not PF0: e('s_waitcnt lgkmcnt(0)')
    stamp('karg')
    if O('stamps'): e(f's_cmp_lt_u32 s{sW}, 2')
    mksrd(SX,16)
    if O('diag')==2:
        e('s_not_b32 s92, s94'); e(f'v_mov_b32 v{T+30}, s92'); e(f'v_mov_b32 v{T+31}, 0')
        e('s_mov_b64 exec, 1'); g.vm(f'global_atomic_umax v{T+31}, v{T+30}, s[46:47]'); e('s_mov_b64 exec, -1')
        e(f's_cmp_lt_u32 s{sW}, 2')
    e(f's_cselect_b32 s{SW0}, s22, s24'); e(f's_cselect_b32 s{SW0+1}, s23, s25')
    blk_last={}
    st={'barr':-1,'free':[0,1],'pendC':[],'pendRel':[],'Frow':{},'Flast':{},'w2n':0,'m0':None,'w2on':False}
    D=O('D',3)
    cur_n=[0]
    def setm0(base,c):
        if st['m0']!=(base,c):
            e(f's_add_u32 m0, s{base}, {c}'); st['m0']=(base,c)
    def streamP():
        for p in range(16):
            while p>=O('pre',2) and st['barr']<p-D: yield 'blocked'
            sl=p%NS; ty,q=POS[p]
            if ty=='A':
                e(f's_add_u32 s11, s{sROT}, {q}'); e('s_and_b32 s11, s11, 7'); e('s_lshl_b32 s11, s11, 7')
                e(f's_add_u32 s{sSO}, s{sXB}, s11'); e(f's_add_u32 s{sSO2}, s{sW0B}, s11')
                for a in range(4):
                    setm0(sM0X,sl*SLOT)
                    g.vm(f'buffer_load_dwordx4 v{vXo[a]}, {srd(SX)}, s{sSO} offen offset:{1024*a} lds'); yield
                for a in range(2):
                    setm0(sM0W,sl*SLOT)
                    blk_last[p]=g.vm(f'buffer_load_dwordx4 v{vNat[a]}, {srd(SW0)}, s{sSO2} offen offset:{1024*a} lds'); yield
            else:
                if q==4 and O('pf15',1):
                    e('\n'.join([f's_cmp_eq_u32 s{sCG}, 15','s_cbranch_scc0 L_no15b',
                      f's_lshl_b32 s11, s{sRT}, 15', f's_add_u32 s{SW1}, s{SCRE}, s11', f's_addc_u32 s{SW1+1}, s{SCRE+1}, 0',
                      f's_add_u32 s{SW3}, s{SCIM}, s11', f's_addc_u32 s{SW3+1}, s{SCIM+1}, 0',
                      f's_mov_b32 s{SW1+2}, 0x8000', f's_mov_b32 s{SW3+2}, 0x8000',
                      f's_mov_b32 s{sROTF}, 4', 'L_no15b:']))
                e(f's_add_u32 s11, s{sROTF}, {q}'); e('s_and_b32 s11, s11, 7'); e(f's_mul_i32 s{sSO}, s11, s{sFST}')
                for mt,S_ in enumerate((SW1,SW3)):
                    for a in range(3):
                        setm0(sM0F,sl*SLOT+mt*12288)
                        blk_last[p]=g.vm(f'buffer_load_dwordx4 v{vWF[a]}, {srd(S_)}, s{sSO} offen offset:{1024*a} lds'); yield
        while True: yield 'done'
    vTa=[vRA[0],vRA[1]]
    def moveC(u,row,last):
        assert st.get('tra')
        g.wait(vm=last)
        for db in range(2):
            if row<4: ad=vTa[db]; off=row*16384
            else:
                ad=T+46+db; off=0
                e(f'v_add_u32 v{ad}, {row*16384}, v{vTa[db]}')
            for ks in range(2):
                for rho in range(2):
                    i=g.lg(f'ds_read_b64_tr_b16 {ar(128+((2*u+ks)*2+db)*4+2*rho,2)}, v{ad} offset:{off+ks*2048+rho*1024}')
        st['pendRel'].append((row,i)); st.setdefault('moved',{})[u]=i
    def service(force=False):
        for it in list(st['pendRel']):
            if force: g.wait(lg=it[1])
            if g.lg_done>=it[1]: st['free'].append(it[0]); st['pendRel'].remove(it)
        if st['pendC'] and st.get('tra') and (force or cur_n[0]-st['pendC'][0][3]>=O('cagen',22) or g.vm_done>=st['pendC'][0][2]):
            moveC(*st['pendC'].pop(0)[:3])
    def gran(gi,row):
        st['Frow'][gi]=row
        if gi<11:
            e(f's_add_u32 s{sSO3}, s{sW2B}, {32*1024*gi}'); S_,vo=SW2,vW2o
        else:
            c=gi-11; mt,cb,db=c>>2,(c>>1)&1,c&1
            e(f's_add_u32 s{sSO3}, s{sCB}, {db*32*1024+cb*128}'); S_,vo=(SCIM if mt else SCRE),vNat
        for a in range(4):
            setm0(sM0R,row*16384)
            st['Flast'][gi]=g.vm(f'buffer_load_dwordx4 v{vo[a]}, {srd(S_)}, s{sSO3} offen offset:{1024*a} lds'); st['w2n']+=1
            if a==3 and gi<8: st['pendC'].append((gi,row,st['Flast'][gi],cur_n[0]))
            yield
    def streamW():
        for gi in range(19):
            while not st['free']: yield 'blocked'
            yield from gran(gi,st['free'].pop(0))
        while True: yield 'done'
    SP=streamP(); SWs=streamW()
    def pump(n=1):
        r=None
        for _ in range(n):
            r=next(SP)
            if r and st['w2on']:
                service(); r=next(SWs)
        return r
    def barrier(q):
        e('s_barrier'); st['barr']=q
        rel={13:[4],14:[5],15:[6,7],16:[8],17:[2,3]} if O('b16',1) else {13:[4],14:[5],15:[6,7],17:[8,2,3]}
        st['free']+=rel.get(q,[])
        if q>=O('w2from',9): st['w2on']=True
    if O('a0first',1): pump(6)
    e(f'v_add_u32 v{T+14}, s{sROT}, v{l3}'); e(f'v_and_b32 v{T+14}, 7, v{T+14}'); e(f'v_lshlrev_b32 v{T+14}, 7, v{T+14}')
    e(f'v_lshl_add_u32 v{T+14}, v{l7}, 4, v{T+14}')
    e('s_mov_b32 m0, 0'); st['m0']=None
    e(f'v_and_b32 v{vM}, 31, v{vL}')
    gwid=g.vm(f'global_load_lds_dwordx4 v{T+14}, s[42:43]')
    if O('a0first',1): blk_last[0]=gwid
    e(f's_lshl_b32 s11, s{sCG}, 6')
    e(f'v_lshl_add_u32 v{T+15}, v{vM}, 1, s11')
    if not PF0: e(f's_load_dword s{sNON}, s[48:49], {Z_OFF}'); g.smem=True
    pl=[g.vm(f'global_load_ushort v{T+16}, v{T+15}, s[18:19]'),g.vm(f'global_load_ushort v{T+17}, v{T+15}, s[20:21]'),g.vm(f'global_load_ushort v{T+18}, v{T+15}, s[30:31]')]
    if O('dwarm',1): g.vm(f'global_load_ushort v{T+43}, v{T+15}, s[32:33]')
    if not O('a0first',1): pump(O('a0pre',6))
    if PF0&4: pfF()
    stamp('p0')
    e(f'v_mov_b32 v{T+2}, 0'); e(f'v_mov_b32 v{T+3}, 0'); e(f'v_lshlrev_b32 v{vT8}, 3, v0')
    g.lg(f'ds_write_b64 v{vT8}, {vr(T+2,2)} offset:{XCH_L}')
    e(f'v_lshlrev_b32 v{vHH16}, 4, v{hh}')
    e(f's_lshl_b32 s{sM0R}, s{sW}, 12'); e(f's_add_u32 s{sM0R}, s{sM0R}, {ROW0}')
    e(f'v_bfe_u32 v{T+20}, v{vM}, 1, 3'); e(f'v_xor_b32 v{T+20}, v{T+20}, v{hh}'); e(f'v_lshlrev_b32 v{T+20}, 4, v{T+20}')
    e(f'v_lshl_add_u32 v{vRA[0]}, v{vM}, 7, v{T+20}')
    for s in range(1,4): e(f'v_xor_b32 v{vRA[s]}, {32*s}, v{vRA[0]}')
    XA2=[T+24+s for s in range(4)]; WA=[vRA,[T+28+s for s in range(4)],[T+32+s for s in range(4)]]
    for s in range(4):
        e(f'v_add_u32 v{vRAw[s]}, s{sM0R}, v{vRA[s]}')
        e(f'v_add_u32 v{XA2[s]}, {RING-ROW0+2*SLOT}, v{vRAw[s]}')
        e(f'v_add_u32 v{WA[1][s]}, {RING+16384+2*SLOT}, v{vRA[s]}'); e(f'v_add_u32 v{WA[2][s]}, {RING+16384+4*SLOT}, v{vRA[s]}')
        e(f'v_add_u32 v{vRA[s]}, {RING+16384}, v{vRA[s]}')
    vGA=T+40
    e(f'v_xor_b32 v{T+20}, v{vL}, v{l4}'); e(f'v_and_b32 v{T+20}, 1, v{T+20}'); e(f'v_lshl_add_u32 v{vGA}, v{T+20}, 10, v{vHH16}')
    def side_setup():
        L=[]; A=L.append
        def mk(b,p): A(f's_mov_b32 s{b}, s{p}'); A(f's_mov_b32 s{b+1}, s{p+1}')
        def sc(b,size): A(f's_mov_b32 s{b+2}, {size}'); A(f's_mov_b32 s{b+3}, 0x20000')
        for b,p,size in [(SW1,36,512*2752),(SW3,38,512*2752),(SCRE,26,512*1024),(SCIM,28,512*1024),(SW2,40,1376*1024),(SWS,48,WS_SIZE),(SOUT,44,2048*2048)]:
            mk(b,p); sc(b,size)
        sc(SHE,8192)
        A(f's_mul_i32 s{sM0F}, s{sW}, 3072'); A(f's_add_u32 s{sM0F}, s{sM0F}, {RING}')
        A(f's_mov_b32 s{sFST}, {64*2752}'); A(f's_mov_b32 s{sROTF}, s{sROT}')
        A(f'v_lshlrev_b32 v{vL16}, 4, v{vL}'); A(f'v_lshlrev_b32 v{vM8}, 3, v{vM}')
        A(f's_mul_i32 s15, s{sW}, {16*2752}'); A(f's_mul_i32 s12, s{sCG}, 192'); A('s_add_u32 s15, s15, s12')
        A(f's_mul_i32 s12, s{sCG}, 12'); A('s_movk_i32 s13, 2752'); A(f'v_mov_b32 v{T+23}, {OOB:#x}')
        for a in range(3):
            A(f'v_add_u32 v{T+20}, {64*a}, v{vL}')
            A(f'v_mul_u32_u24 v{T+21}, 43691, v{T+20}'); A(f'v_lshrrev_b32 v{T+21}, 19, v{T+21}')
            A(f'v_mul_u32_u24 v{T+22}, 12, v{T+21}'); A(f'v_sub_u32 v{T+22}, v{T+20}, v{T+22}')
            A(f'v_mul_u32_u24 v{T+21}, s13, v{T+21}')
            A(f'v_lshl_add_u32 v{T+21}, v{T+22}, 4, v{T+21}')
            A(f'v_add_u32 v{T+22}, s12, v{T+22}')
            A(f'v_cmp_gt_u32 vcc, 172, v{T+22}')
            A(f'v_add_u32 v{T+21}, s15, v{T+21}')
            if a: A(f'v_subrev_u32 v{T+21}, {1024*a}, v{T+21}')
            A(f'v_cndmask_b32 v{vWF[a]}, v{T+23}, v{T+21}, vcc')
        if O('pf15',1):
            A('\n'.join([f's_cmp_eq_u32 s{sCG}, 15','s_cbranch_scc0 L_no15',
              f's_mul_i32 s12, s{sRT}, {88*1024}', f's_add_u32 s{SW1}, s40, s12', f's_addc_u32 s{SW1+1}, s41, 0',
              f's_add_u32 s{SW3}, s{SW1}, {44*1024}', f's_addc_u32 s{SW3+1}, s{SW1+1}, 0',
              f's_mov_b32 s{SW1+2}, {44*1024}', f's_cmp_eq_u32 s{sRT}, 15', f's_cselect_b32 s{SW3+2}, {12*1024}, s{SW1+2}', f's_mov_b32 s{sROTF}, 0',
              f's_movk_i32 s{sFST}, 12288', f's_mul_i32 s12, s{sW}, 3072',
              f'v_lshl_add_u32 v{vWF[0]}, v{vL}, 4, s12', f'v_mov_b32 v{vWF[1]}, v{vWF[0]}', f'v_mov_b32 v{vWF[2]}, v{vWF[0]}',
              'L_no15:']))
        r_,c_,g1=T+20,T+21,T+22
        A(f'v_bfe_u32 v{r_}, v{vL}, 2, 2'); A(f'v_and_b32 v{c_}, 3, v{vL}'); A(f'v_and_b32 v{g1}, 1, v{l4}')
        A(f'v_lshl_add_u32 v{T+19}, v{hh}, 3, v{r_}'); A(f'v_mul_u32_u24 v{T+19}, 192, v{T+19}')
        A(f'v_lshl_add_u32 v{T+19}, v{g1}, 5, v{T+19}'); A(f'v_lshl_add_u32 v{T+19}, v{c_}, 3, v{T+19}')
        for k in range(3): A(f'v_add_u32 v{vTR[k]}, {RING+2*k*SLOT}, v{T+19}')
        A(f's_lshl_b32 s12, s{sCG}, 13'); A(f's_add_u32 s12, s12, {HE_OFF}')
        A(f's_add_u32 s{SHE}, s48, s12\ns_addc_u32 s{SHE+1}, s49, 0')
        A(f's_lshl_b32 s{sCB}, s{sCT}, 16'); A(f's_lshl_b32 s12, s{sW}, 8'); A(f's_add_u32 s{sCB}, s{sCB}, s12')
        A(f's_mul_i32 s{sW2B}, s{sW}, {352*1024}'); A(f's_lshl_b32 s12, s{sCT}, 7'); A(f's_add_u32 s{sW2B}, s{sW2B}, s12')
        A(f's_lshl_b32 s13, s{sRT}, 2'); A(f's_add_u32 s12, s13, s{sW}'); A(f's_mul_i32 s{sA2S}, s12, {160*1024}'); A(f's_add_u32 s{sA2S}, s{sA2S}, {A2_OFF}')
        A(f's_lshl_b32 s12, s{sRH}, 1'); A('s_add_u32 s12, s12, s13'); A(f's_mul_i32 s{sA2L0}, s12, {160*1024}'); A(f's_add_u32 s{sA2L0}, s{sA2L0}, {A2_OFF}')
        A(f's_add_u32 s{sA2L1}, s{sA2L0}, {160*1024}')
        A(f's_mov_b32 s{sNL2E}, {NLOG2E:#x}')
        A(f'v_add_u32 v{vNat[2]}, {2*7168}, v{vNat[0]}'); A(f'v_add_u32 v{vNat[3]}, {2*7168}, v{vNat[1]}')
        A(f'v_and_b32 v{g1}, 1, v{l4}')
        A(f'v_lshlrev_b32 v{T+19}, 2, v{g1}'); A(f'v_xor_b32 v{T+19}, v{T+19}, v{l7}'); A(f'v_lshlrev_b32 v{T+19}, 4, v{T+19}')
        A(f'v_lshl_add_u32 v{vW2o[0]}, v{l3}, 10, v{T+19}')
        for a in range(1,4): A(f'v_add_u32 v{vW2o[a]}, {7168*a}, v{vW2o[0]}')
        A(f's_sub_u32 s12, 15, s{sRT}'); A('s_lshl_b32 s12, s12, 9')
        A(f'v_lshl_add_u32 v{T+20}, v{vM}, 4, s12')
        A(f'v_cmp_eq_u32 vcc, s{sW}, v{l3}')
        A(f'v_lshl_add_u32 v{vHEo}, v{vHH16}, 6, v{T+20}'); A(f's_lshl_b32 s12, s{sW}, 11'); A('s_add_u32 s12, s12, 512'); A(f'v_add_u32 v{vHEo}, s12, v{vHEo}')
        A(f'v_cndmask_b32 v{T+10}, v{T+23}, v{T+20}, vcc')
        A(f's_lshl_b32 s15, s{sRT}, 1'); A(f's_lshr_b32 s12, s{sW}, 1'); A('s_add_u32 s12, s12, s15'); A(f's_lshl_b32 s12, s12, {FS+5 if FS>2 else 8}')
        A(f's_and_b32 s13, s{sW}, 1'); A(f's_lshl_b32 s14, s{sCG}, 1'); A('s_add_u32 s13, s13, s14'); A(f's_lshl_b32 s13, s13, {FS}')
        A('s_add_u32 s12, s12, s13'); A(f's_add_u32 s12, s12, {FL_OFF}'); A(f'v_lshl_add_u32 v{T+20}, v{vL}, 2, s12')
        A(f'v_cmp_gt_u32 vcc, {32 if FS>2 else 1}, v{vL}'); A(f's_add_u32 s15, s15, s{sRH}')
        A(f's_lshl_b32 s15, s15, {FS+5 if FS>2 else 8}'); A(f's_add_u32 s15, s15, {FL_OFF}'); A(f'v_cndmask_b32 v{vFS}, v{T+23}, v{T+20}, vcc')
        A(f'v_lshl_add_u32 v{vFLo}, v{vM}, {FS}, s15')
        A(f'v_lshlrev_b32 v{vTW}, 6, v{vM}'); A(f'v_lshl_add_u32 v{vTW}, v{vHH16}, 1, v{vTW}'); A(f's_lshl_b32 s14, s{sW}, 11'); A(f's_add_u32 s14, s14, {TRB_L}'); A(f'v_add_u32 v{vTW}, s14, v{vTW}')
        A(f'v_bfe_u32 v{vTRd}, v{vL}, 2, 2'); A(f'v_lshlrev_b32 v{vTRd}, 6, v{vTRd}')
        A(f'v_lshl_add_u32 v{vTRd}, v{vHH16}, 5, v{vTRd}'); A(f'v_and_b32 v{T+20}, 1, v{vL}')
        A(f'v_lshl_add_u32 v{vTRd}, v{T+20}, 5, v{vTRd}'); A(f'v_and_b32 v{T+20}, 16, v{vL}'); A(f'v_add_u32 v{vTRd}, v{T+20}, v{vTRd}')
        A(f'v_and_b32 v{T+20}, 2, v{vL}'); A(f'v_lshl_add_u32 v{vTRd}, v{T+20}, 2, v{vTRd}'); A(f'v_add_u32 v{vTRd}, s14, v{vTRd}')
        A(f's_lshl_b32 s12, s{sW}, 2'); A(f's_sub_u32 s12, s{sRT}, s12'); A(f'v_lshrrev_b32 v{vEX}, 3, v{vHH16}'); A(f'v_sub_u32 v{vEX}, s12, v{vEX}')
        A(f'v_max_i32 v{vEX}, 0, v{vEX}'); A(f'v_min_i32 v{vEX}, 2, v{vEX}'); A(f'v_lshlrev_b32 v{vEX}, 1, v{vEX}')
        A(f's_lshl_b32 s{sT0}, s{sCG}, 12'); A(f's_add_u32 s{sT0}, s{sT0}, s{sA2S}')
        A(f's_mul_i32 s{sT1}, s{sCG}, {6*1024}'); A(f's_add_u32 s{sT1}, s{sT1}, s{sA2S}')
        A(f's_add_u32 s16, s{sT1}, {64*1024}'); A(f's_add_u32 s17, s16, 4096')
        A(f's_lshl_b32 s12, s{sW}, 14'); A(f's_add_u32 s26, s{sA2L0}, s12'); A(f's_add_u32 s27, s{sA2L1}, s12')
        A(f's_mul_i32 s12, s{sW}, {22*1024}'); A(f's_add_u32 s12, s12, {64*1024}'); A(f's_add_u32 s28, s{sA2L0}, s12'); A(f's_add_u32 s29, s{sA2L1}, s12')
        A(f's_lshl_b32 s12, s{sW}, 7'); A(f'v_lshl_add_u32 v{T+42}, v{vM}, 2, s12')
        A(f's_mul_i32 s{sNON}, s{sNON}, 1664525'); A(f's_add_u32 s{sNON}, s{sNON}, 1013904223')
        A(f's_cmp_eq_u32 s{sNON}, 0\ns_cselect_b32 s{sNON}, 1013904223, s{sNON}')
        return L
    Ls=side_setup()
    npre=O('setup_pre',90)
    Ls.append(f'v_mov_b32 v{vNON}, s{sNON}')
    print('setup list',len(Ls))
    for i,t in enumerate(Ls[:npre]):
        e(t)
        if i==29 and O('touch',0):
            e(f'v_mov_b32 v{T+19}, 0')
            for S_ in (SW1,SW3,SCRE,SCIM,SW2,SWS): g.vm(f'buffer_load_dword v{T+43}, v{T+19}, {srd(S_)}, 0 offen')
            e(f's_mul_i32 s12, s{sRT}, {640*1024}'); e(f's_add_u32 s12, s12, {A2_OFF}'); e(f's_add_u32 s13, s12, {639*1024}'); e(f's_lshl_b32 s14, s{sRT}, 18')
            g.vm(f'buffer_load_dword v{T+43}, v{T+19}, {srd(SWS)}, s12 offen'); g.vm(f'buffer_load_dword v{T+43}, v{T+19}, {srd(SWS)}, s13 offen')
            g.vm(f'buffer_load_dword v{T+43}, v{T+19}, {srd(SOUT)}, s14 offen')
    g.wait_all_lg()
    stamp('setup')
    pump(6*O('pre',2)-O('a0pre',6))
    if PF0&8: pfF()
    stamp('p1')
    def side_params():
        for i,t in enumerate(Ls[npre:]):
            e(t)
            if i%4==3: yield
        g.wait(vm=pl[2])
        lre,lim,dt=T+16,T+17,T+18
        a_,b_,t0,t1=T,T+1,T+2,T+3
        L=[]; A=L.append
        for r in (lre,lim,dt): A(f'v_lshlrev_b32 v{r}, 16, v{r}')
        A(f'v_mul_f32 v{dt}, {LOG2E:#x}, v{dt}'); A(f'v_exp_f32 v{dt}, v{dt}')
        A(f'v_mul_f32 v{t0}, v{lre}, v{lre}')
        A(f'v_cvt_pk_bf16_f32 v{dt}, v{dt}, v{dt}'); A(f'v_lshlrev_b32 v{dt}, 16, v{dt}')
        A(f'v_mul_f32 v{a_}, v{dt}, v{lre}'); A(f'v_mul_f32 v{b_}, v{dt}, v{lim}')
        A(f'v_fma_f32 v{dt}, v{lim}, v{lim}, v{t0}'); A(f'v_rcp_f32 v{dt}, v{dt}')
        A(f'v_mul_f32 v{a_}, {LOG2E:#x}, v{a_}'); A(f'v_exp_f32 v{a_}, v{a_}')
        A(f'v_mul_f32 v{b_}, {INV2PI:#x}, v{b_}'); A(f'v_rndne_f32 v{t0}, v{b_}'); A(f'v_sub_f32 v{b_}, v{b_}, v{t0}')
        A(f'v_cos_f32 v{t0}, v{b_}'); A(f'v_sin_f32 v{t1}, v{b_}')
        A(f'v_add_f32 v{dt}, v{dt}, v{dt}')
        A(f'v_mul_f32 v{vLr}, v{a_}, v{t0}'); A(f'v_mul_f32 v{vLi}, v{a_}, v{t1}')
        A(f'v_add_f32 v{a_}, -1.0, v{vLr}')
        A(f'v_mul_f32 v{vNC2i}, v{vLi}, v{lre}'); A(f'v_mul_f32 v{vC2r}, v{a_}, v{lre}')
        A(f'v_fma_f32 v{vNC2i}, v{a_}, v{lim}, -v{vNC2i}'); A(f'v_fma_f32 v{vC2r}, v{vLi}, v{lim}, v{vC2r}')
        A(f'v_mul_f32 v{vNC2i}, v{vNC2i}, v{dt}'); A(f'v_mul_f32 v{vC2r}, v{vC2r}, v{dt}')
        def csq(dr,di,sr,si,n):
            for k in range(n):
                A(f'v_mul_f32 v{t0}, v{si}, v{si}'); A(f'v_mul_f32 v{t1}, v{sr}, v{si}')
                A(f'v_fma_f32 v{dr}, v{sr}, v{sr}, -v{t0}'); A(f'v_add_f32 v{di}, v{t1}, v{t1}')
                sr,si=dr,di
        csq(vL16r,vL16i,vLr,vLi,4); csq(vL128r,vL128i,vL16r,vL16i,3); csq(vL1kr,vL1ki,vL128r,vL128i,1)
        for i,t in enumerate(L):
            e(t)
            if i&1: yield
    NLi,NL16i,NL128i,NC2r=vXo
    def cfma_ip(ar_,ai_,lr,li,nli,sr,si):
        e(f'v_fmac_f32 v{ar_}, v{lr}, v{sr}'); e(f'v_fmac_f32 v{ai_}, v{lr}, v{si}')
        e(f'v_fmac_f32 v{ar_}, v{nli}, v{si}'); e(f'v_fmac_f32 v{ai_}, v{li}, v{sr}')
    def check(pid,reg,off,tag,lane,vP):
        e(f's_mov_b32 s{sCNT}, 0')
        g.wait(vm=pid)
        e(f'L_{tag}_chk:')
        e(f'v_cmp_ne_u32 vcc, s{sNON}, v{reg}')
        e('s_nop 1')
        e(f's_cbranch_vccz L_{tag}_ok')
        e(f's_add_u32 s{sCNT}, s{sCNT}, 1'); e(f's_cmp_gt_u32 s{sCNT}, {SPIN}'); e(f's_cbranch_scc1 L_{tag}_ok')
        e('s_sleep 1')
        e(f'buffer_load_dword v{reg}, v{vP}, {srd(SWS)}, 0 offen offset:{off} sc1')
        e('s_waitcnt vmcnt(0)'); e(f's_branch L_{tag}_chk')
        e(f'L_{tag}_ok:'); stamp(tag+'_ok')
        if O('stamps'): e(f'v_writelane_b32 v39, s{sCNT}, {lane}')
    vq=[]
    def cf(ar_,ai_,lr,li,nli,sr,si):
        e(f'v_fmac_f32 v{ar_}, v{lr}, v{sr}'); yield
        e(f'v_fmac_f32 v{ai_}, v{lr}, v{si}'); yield
        e(f'v_fmac_f32 v{ar_}, v{nli}, v{si}'); yield
        e(f'v_fmac_f32 v{ai_}, v{li}, v{sr}'); yield
    def seq(L):
        for t in L:
            e(t); yield
    def side_mid():
        st['rate']=O('rate0',[4,4,4])
        yield from seq([f'v_xor_b32 v{NLi}, 0x80000000, v{vLi}',f'v_xor_b32 v{NL16i}, 0x80000000, v{vL16i}',f'v_mov_b32 v{T+13}, s{sNON}',f'v_mov_b32 v{T+15}, s{sNON}'])
        yield 'gap'
        P=[(T,T+1),(T+2,T+3)]
        cur=(URE,UIM)
        for t in range(1,16):
            d=P[t&1]
            yield from seq([f'v_fma_f32 v{d[0]}, v{vLr}, v{cur[0]}, v{URE+t}',f'v_fma_f32 v{d[1]}, v{vLr}, v{cur[1]}, v{UIM+t}',
                            f'v_fmac_f32 v{d[0]}, v{NLi}, v{cur[1]}',f'v_fmac_f32 v{d[1]}, v{vLi}, v{cur[0]}'])
            cur=d
        st['elw']=g.lg(f'ds_write_b64 v{vT8}, {vr(T+2,2)} offset:{E_L}'); b0=st['barr']; print('E write gap',cur_n[0]); yield
        st['rate']=O('rate1',[2,2,1])
        while st['barr']==b0: yield 'gap'
        ids=[]
        for s in range(8):
            ids.append(g.lg(f'ds_read_b64 {vr(T+16+2*s,2)}, v{vM8} offset:{E_L+256*s}')); yield
        x0,x1=T+4,T+5
        yield from seq([f'v_bfe_u32 v{x0}, v{vL}, 2, 2',f'v_lshlrev_b32 v{x0}, 7, v{x0}',f'v_lshl_add_u32 v{x0}, v{vHH16}, 5, v{x0}',
            f'v_and_b32 v{x1}, 8, v{vL}',f'v_lshl_add_u32 v{x0}, v{x1}, 3, v{x0}',f'v_and_b32 v{x1}, 16, v{vL}',f'v_lshl_add_u32 v{x0}, v{x1}, 1, v{x0}',
            f'v_and_b32 v{x1}, 3, v{vL}',f'v_lshl_add_u32 v{x0}, v{x1}, 3, v{x0}',f'v_add_u32 v{vTa[0]}, s{sM0R}, v{x0}',f'v_xor_b32 v{vTa[1]}, 64, v{vTa[0]}'])
        st['tra']=True
        while g.lg_done<ids[7]: yield 'gap'
        for s in range(1,8):
            yield from cf(T+16+2*s,T+17+2*s,vL16r,vL16i,NL16i,T+14+2*s,T+15+2*s)
        e(f'v_mov_b32 v{T+12}, v{T+30}'); e(f'v_mov_b32 v{T+14}, v{T+31}')
        g.vm(f'buffer_store_dwordx4 {vr(T+12,4)}, v{T+10}, {srd(SHE)}, 0 offen sc1'); stamp('he_pub'); print('he_pub gap',cur_n[0]); yield 'gap'
        st['rate']=O('rate2',[1,1,1])
        z=T+6
        yield from seq([f'v_and_b32 v{z+1}, 16, v{vL}',f'v_cmp_eq_u32 vcc, 0, v{z+1}',f'v_xor_b32 v{NL128i}, 0x80000000, v{vL1ki}',
            f'v_cndmask_b32 v{z}, v{ZA+1}, v{ZA}, vcc',f'v_cvt_pk_bf16_f32 v{z}, v{z}, v{z}',f'v_lshlrev_b32 v{z}, 16, v{z}',
            f'v_mul_f32 v{z}, s{sNL2E}, v{z}',f'v_exp_f32 v{z}, v{z}',f'v_add_f32 v{z}, 1.0, v{z}',f'v_rcp_f32 v{z}, v{z}',
            f'v_cvt_pk_bf16_f32 v{z}, v{z}, v{z}',f'v_lshlrev_b32 v{z}, 16, v{z}',
            f'v_sub_f32 v{z+1}, 1.0, v{z}',f'v_cvt_pk_bf16_f32 v{z+1}, v{z+1}, v{z+1}',f'v_lshlrev_b32 v{z+1}, 16, v{z+1}',
            f'v_rcp_f32 v{vCinv}, v{z+1}',f'v_xor_b32 v{NC2r}, 0x80000000, v{vC2r}',f'v_min_f32 v{vCinv}, 0x7e967699, v{vCinv}',f'v_mov_b32 v{vCinv+1}, v{vCinv}'])
        g.lg(f'ds_write_b32 v{T+42}, v{z} offset:{G_L}'); yield
    def slot():
        if vq:
            f=vq.pop(0)
            if f: f(); return None
        return pump(1)
    GR=[]
    for p,(ty,q) in enumerate(POS):
        for i in range(4 if ty=='A' else 8): GR.append((p,ty,q,i))
    lastA=max(i for i,x in enumerate(GR) if x[1]=='A')
    rdone={}
    def greads(gi):
        p,ty,q,i=GR[gi]; sl=p%NS; L=[]
        if i==0:
            def b_():
                g.wait(vm=blk_last[p],lg=st.get('elw')); barrier(p); stamp(f'{ty}{q}')
            pre=b_
        else: pre=None
        if ty=='A':
            s=i; b=128+12*((4*q+s)%8)
            xa,xo=(vRAw[s],RING-ROW0+sl*SLOT) if sl<2 else (XA2[s],(sl-2)*SLOT)
            wa=WA[sl>>1][s]; wo=(sl&1)*SLOT
            L=[f'ds_read_b128 {ar(16*q+4*s,4)}, v{xa} offset:{xo}',f'ds_read_b128 {ar(b,4)}, v{wa} offset:{wo}',
               f'ds_read_b128 {ar(b+4,4)}, v{wa} offset:{wo+4096}',f'ds_read_b128 {ar(b+8,4)}, v{vGA} offset:{GW_L+q*128+s*32}']
        else:
            for j in range(3):
                n=24*q+3*i+j; s,f=(n%24)//6,n%6; pair,mt=f>>1,f&1
                off=(sl&1)*SLOT+mt*12288+s*3072+pair*64; b=WR+4*(n%8)
                L+=[f'ds_read_b64_tr_b16 {vr(b+2*h,2)}, v{vTR[sl>>1]} offset:{off+768*h}' for h in range(2)]
        return pre,L
    def doreads(gi,part):
        if gi>=len(GR): return
        pre,L=greads(gi); h=len(L)//2
        if part==0 and pre: pre()
        for t in (L[:h] if part==0 else L[h:]): rdone[gi]=g.lg(t)
    def gm(gi,j):
        p,ty,q,i=GR[gi]
        if ty=='A':
            n=4*q+i; b=128+12*(n%8); x=ar(4*n,4); z=(n==0)
            if j==0: e(f'v_mfma_f32_32x32x16_bf16 {vr(URE,16)}, {x}, {ar(b,4)}, {"0" if z else vr(URE,16)}')
            if j==1: e(f'v_mfma_f32_32x32x16_bf16 {vr(UIM,16)}, {x}, {ar(b+4,4)}, {"0" if z else vr(UIM,16)}')
            if j==2: e(f'v_mfma_f32_16x16x32_bf16 {vr(ZA,4)}, {ar(b+8,4)}, {x}, {"0" if z else vr(ZA,4)}')
        else:
            n=24*q+3*i+j; s,f=(n%24)//6,n%6; acc=vr(ACC+16*f,16)
            e(f'v_mfma_f32_32x32x16_bf16 {acc}, {vr(WR+4*(n%8),4)}, {ar(16*q+4*s,4)}, {"0" if n<6 else acc}')
    for gi in range(2): doreads(gi,0); doreads(gi,1)
    side=side_params(); mid=False
    for gi in range(len(GR)):
        p,ty,q,i=GR[gi]
        g.wait(lg=rdone[gi])
        for j in range(3):
            cur_n[0]=3*gi+j
            gm(gi,j)
            if j<2: doreads(gi+2,j)
            if p==15 and i==0 and j==1 and O('b16',1): barrier(16)
            if j==2 or (ty=='A' and j==0) or (j==0 and O('xs',2) and gi%O('xs',2)==0 and gi>=O('xs0',0)): slot()
            if not mid: next(side,None)
            else:
                for _ in range(st.get('rate',[4,4,4])[j]):
                    if next(side,'gap')=='gap': break
        if gi==lastA:
            for _ in side: pass
            side=side_mid(); mid=True; stamp('A_end')
    for _ in side: raise Exception('side left')
    g.wait_all_lg(); barrier(17); stamp('1b_end'); print('w2n at 1b_end',st['w2n'])
    hel=lambda jj:f'buffer_load_dwordx4 {vr(T+16+4*jj,4)}, v{vHEo}, {srd(SHE)}, 0 offen offset:{512*jj} sc1'
    he=[g.vm(hel(jj)) for jj in range(2)]
    pump(O('t0pump',0))
    def hecheck():
        cnt=T+8
        e(f's_mov_b32 s{sCNT}, 0')
        g.wait(vm=he[1])
        e('L_he_chk:')
        e(f'v_mov_b32 v{cnt}, 0')
        for jj in range(2):
            e(f'v_cmp_eq_u32 vcc, s{sNON}, v{T+16+4*jj+1}'); e(f'v_cmp_eq_u32 s[12:13], s{sNON}, v{T+16+4*jj+3}')
            e(f'v_addc_co_u32 v{cnt}, vcc, 0, v{cnt}, vcc'); e(f'v_addc_co_u32 v{cnt}, s[12:13], 0, v{cnt}, s[12:13]')
        e(f'v_cmp_ne_u32 vcc, v{cnt}, v{vEX}')
        e('s_nop 1')
        e('s_cbranch_vccz L_he_ok')
        e(f's_add_u32 s{sCNT}, s{sCNT}, 1'); e(f's_cmp_gt_u32 s{sCNT}, {SPIN}'); e('s_cbranch_scc1 L_he_ok')
        e('s_sleep 1')
        for jj in range(2): e(hel(jj))
        e('s_waitcnt vmcnt(0)'); e('s_branch L_he_chk')
        e('L_he_ok:'); stamp('he_ok')
        if O('stamps'): e(f'v_writelane_b32 v39, s{sCNT}, 60')
        for t in [f'v_fma_f32 v{T+8}, v{vL128r}, v{T+20}, v{T+16}',f'v_fma_f32 v{T+9}, v{vL128r}, v{T+22}, v{T+18}',
                  f'v_fma_f32 v{T+8}, -v{vL128i}, v{T+22}, v{T+8}',f'v_fmac_f32 v{T+9}, v{vL128i}, v{T+20}']: e(t)
        return g.lg(f'ds_write_b64 v{vT8}, {vr(T+8,2)} offset:{PQ_L}')
    E0=WR
    vL16F=T+2
    e(f's_cmp_eq_u32 s{sCG}, 15'); e(f's_cselect_b32 s12, {OOB:#x}, 0'); e(f'v_or_b32 v{vL16F}, s12, v{vL16}')
    for pr in range(3):
        G=ACC+32*pr; Uu=G+16
        for h in range(2):
            k=2*pr+h
            R=range(8*h,8*h+8,2)
            for i in R: e(f'v_pk_mul_f32 {vr(E0+i%8,2)}, {vr(G+i,2)}, s[{sNL2E}:{sNL2E+1}] op_sel_hi:[1,0]')
            for i in range(8): e(f'v_exp_f32 v{E0+i}, v{E0+i}')
            for i in R: e(f'v_pk_mul_f32 {vr(G+i,2)}, {vr(G+i,2)}, {vr(Uu+i,2)}')
            for i in R: e(f'v_pk_fma_f32 {vr(E0+i%8,2)}, {vr(E0+i%8,2)}, {vr(vCinv,2)}, {vr(vCinv,2)}')
            for i in range(8): e(f'v_rcp_f32 v{E0+i}, v{E0+i}')
            for i in R: e(f'v_pk_mul_f32 {vr(G+i,2)}, {vr(G+i,2)}, {vr(E0+i%8,2)}')
            pk=E0+8+4*k
            for i in range(4): e(f'v_cvt_pk_bf16_f32 v{pk+i}, v{G+8*h+2*i}, v{G+8*h+2*i+1}')
            fst=g.vm(f'buffer_store_dwordx4 {vr(pk,4)}, v{vL16F}, {srd(SWS)}, s{16 if k<4 else 17} offen offset:{(k%4)*1024} sc1')
            if k==O('he_k',4): pw=hecheck()
    g.wait(lg=pw); e('s_barrier')
    pq=[g.lg(f'ds_read_b64 {vr(T+16+2*s,2)}, v{vM8} offset:{PQ_L+256*(7-s)}') for s in range(8)]
    stamp('ffn_epi'); print('w2n at ffn_epi',st['w2n'])
    def cfi(*a):
        for _ in cf(*a): pass
    g.wait(lg=pq[7])
    for s in range(1,8): cfi(T+16+2*s,T+17+2*s,vL1kr,vL1ki,NL128i,T+14+2*s,T+15+2*s)
    g.lg(f'ds_write_b64 v{vM8}, {vr(T+30,2)} offset:{HIN_L}')
    ids=[g.lg(f'ds_read_b64 {vr(T+2*k,2)}, v{vT8} offset:{XCH_L+256*k}') for k in range(8)]
    GG=ACC; CP=ACC+16; OB=ACC+20; Y=ACC+32
    e(f's_lshl_b32 s12, s{sW}, 7'); e(f'v_add_u32 v{Y}, s12, v{vHH16}')
    for j in range(4): gid=g.lg(f'ds_read_b128 {vr(GG+4*j,4)}, v{Y} offset:{G_L+32*j}')
    e(f'v_mov_b32 v{CP}, v{vC2r}'); e(f'v_mov_b32 v{CP+1}, v{vNC2i}')
    vPF,vPS=vXo[3],vEX
    e(f's_mul_i32 s12, s{sW}, 11'); e('s_mul_i32 s13, s12, 43691'); e('s_lshr_b32 s13, s13, 17'); e('s_lshl_b32 s13, s13, 1')
    e('s_add_u32 s12, s12, 10'); e('s_mul_i32 s14, s12, 43691'); e('s_lshr_b32 s14, s14, 17'); e('s_lshl_b32 s14, s14, 1'); e('s_add_u32 s14, s14, 1')
    e(f'v_max_u32 v{Y+1}, s13, v{vM}'); e(f'v_min_u32 v{Y+1}, s14, v{Y+1}'); e(f'v_sub_u32 v{Y+1}, v{Y+1}, v{vM}'); e(f'v_lshl_add_u32 v{vPF}, v{Y+1}, {FS}, v{vFLo}')
    e(f's_lshl_b32 s13, s{sW}, 3'); e(f'v_and_b32 v{Y+1}, 7, v{vM}'); e(f'v_add_u32 v{Y+1}, s13, v{Y+1}'); e(f'v_sub_u32 v{Y+1}, v{Y+1}, v{vM}'); e(f'v_lshl_add_u32 v{vPS}, v{Y+1}, {FS}, v{vFLo}')
    for k in range(1,8):
        g.wait(lg=ids[k]); cfi(T+2*k,T+2*k+1,vL16r,vL16i,NL16i,T+2*k-2,T+2*k-1)
    g.wait(lg=gid)
    cur=(T+14,T+15)
    def outp(u):
        o=OB+4*((u>>1)&1)
        return [f'v_pk_mul_f32 {vr(o,2)}, {vr(URE+u,2)}, {vr(CP,2)} op_sel_hi:[1,0]',
                f'v_pk_mul_f32 {vr(o+2,2)}, {vr(UIM+u,2)}, {vr(CP,2)} op_sel_hi:[1,0] neg_lo:[0,1] neg_hi:[0,1]',
                f'v_pk_fma_f32 {vr(o,2)}, {vr(UIM+u,2)}, {vr(CP,2)}, {vr(o,2)} op_sel:[0,1,0] op_sel_hi:[1,1,1]',
                f'v_pk_fma_f32 {vr(o+2,2)}, {vr(URE+u,2)}, {vr(CP,2)}, {vr(o+2,2)} op_sel:[0,1,0] op_sel_hi:[1,1,1]',
                f'v_pk_mul_f32 {vr(o,2)}, {vr(o,2)}, {vr(GG+u,2)}', f'v_pk_mul_f32 {vr(o+2,2)}, {vr(o+2,2)}, {vr(GG+u,2)}',
                f'v_cvt_pk_bf16_f32 v{T+16+(u>>1)}, v{o}, v{o+1}', f'v_cvt_pk_bf16_f32 v{T+24+(u>>1)}, v{o+2}, v{o+3}']
    def skap(k):
        c=(k-22)>>2; s=(k-22)&3; mt,cb=c>>1,c&1
        return mt,cb,s,4*(2*cb+(s>>1))+2*mt+(s&1)
    aid={}
    def aload(k):
        if k<22:
            if k%4==0: e(f's_add_u32 s20, s28, {k*1024}'); e(f's_add_u32 s21, s29, {k*1024}')
            off=(k%4)*1024
        else:
            kap=skap(k)[3]
            if kap%2==0: e(f's_add_u32 s20, s26, {kap*1024}'); e(f's_add_u32 s21, s27, {kap*1024}')
            off=(kap%2)*1024
        for tb in range(2):
            aid[k]=g.vm(f'buffer_load_dwordx4 {ar(8*(k%16)+4*tb,4)}, v{vL16}, {srd(SWS)}, s{20+tb} offen offset:{off} sc1')
    ALA=O('ala',8)
    pol=T+34
    PM=O('pollmode',1)
    pendo=[]
    fl={}
    def fflag():
        g.wait(vm=fst); g.vm(f'buffer_store_dword v{vNON}, v{vFS}, {srd(SWS)}, 0 offen offset:128 sc1'); stamp('fflag'); fl['f']=1
    for t in range(16):
        L=[f'v_fmac_f32 v{URE+t}, v{vLr}, v{cur[0]}',f'v_fmac_f32 v{UIM+t}, v{vLr}, v{cur[1]}',f'v_fmac_f32 v{URE+t}, v{NLi}, v{cur[1]}',f'v_fmac_f32 v{UIM+t}, v{vLi}, v{cur[0]}']
        cur=(URE+t,UIM+t)
        for i in range(2):
            e(L[2*i]); e(L[2*i+1])
            for _ in range(2):
                if pendo: e(pendo.pop(0))
        if t&1: pendo+=outp(t-1)
        if t==O('fflag_t',3): fflag()
        if PM==3 and t==O('poll_t',12): pid=g.vm(f'buffer_load_dword v{pol}, v{vPF}, {srd(SWS)}, 0 offen offset:128 sc1')
        if 'f' in fl and t<O('scan_stop',16): cur_n[0]+=3; pump(O('scanpump',1))
    for t_ in pendo: e(t_)
    tid={}
    for mt in range(2):
        g.lg(f'ds_write_b128 v{vTW}, {vr(T+16+8*mt,4)}'); g.lg(f'ds_write_b128 v{vTW}, {vr(T+16+8*mt+4,4)} offset:16')
        for ks in range(2):
            for rho in range(2):
                tid[mt,ks]=g.lg(f'ds_read_b64_tr_b16 {vr(T+8*mt+4*ks+2*rho,2)}, v{vTRd} offset:{ks*1024+rho*256}')
    stamp('scan')
    if 'f' not in fl: fflag()
    if PM==3:
        check(pid,pol,128,'ff',59,vPF)
        for k in range(ALA): aload(k)
    if PM==1: pid=g.vm(f'buffer_load_dword v{pol}, v{vPF}, {srd(SWS)}, 0 offen offset:128 sc1')
    for mt in range(2):
        for ks in range(2):
            g.wait(lg=tid[mt,ks])
            sst=g.vm(f'buffer_store_dwordx4 {vr(T+8*mt+4*ks,4)}, v{vL16}, {srd(SWS)}, s{sT0} offen offset:{(2*mt+ks)*1024} sc1')
    if PM==2: pid=g.vm(f'buffer_load_dword v{pol}, v{vPF}, {srd(SWS)}, 0 offen offset:128 sc1')
    stamp('sst')
    def drain(n):
        for _ in range(n):
            r=pump(1)
            if r=='blocked' and (st['pendC'] or st['pendRel']):
                service(force=True); service(force=True); r=pump(1)
    vT0=[vTa[0],T+20,T+21]; vT1=[vTa[1],T+22,T+23]
    RW=[vRAw,[T+24+s for s in range(4)],[T+28+s for s in range(4)]]
    for k in (1,2):
        e(f'v_add_u32 v{vT0[k]}, {65536*k}, v{vT0[0]}'); e(f'v_add_u32 v{vT1[k]}, {65536*k}, v{vT1[0]}')
        for s in range(4): e(f'v_add_u32 v{RW[k][s]}, {65536*k}, v{vRAw[s]}')
    x0,x1=URE+30,URE+31
    XS=URE+16; DS=URE+24; vXa=URE+26; vOa=URE+27; vGe=T+8; vZa=URE+28
    e(f's_lshl_b32 s13, s{sRT}, 7'); e(f's_lshl_b32 s12, s{sRH}, 6'); e('s_add_u32 s13, s13, s12')
    e(f's_lshr_b32 s12, s{sW}, 1'); e('s_lshl_b32 s12, s12, 5'); e('s_add_u32 s13, s13, s12')
    e(f's_and_b32 s12, s{sW}, 1'); e('s_lshl_b32 s12, s12, 3'); e('s_add_u32 s13, s13, s12')
    e(f'v_lshrrev_b32 v{x0}, 4, v{vL}'); e(f'v_add_u32 v{x0}, s13, v{x0}')
    e(f'v_and_b32 v{x1}, 15, v{vL}'); e(f's_lshl_b32 s12, s{sCT}, 7'); e(f'v_lshl_add_u32 v{x1}, v{x1}, 3, s12')
    e(f'v_lshl_add_u32 v{vXa}, v{x0}, 10, v{x1}'); e(f'v_lshlrev_b32 v{vOa}, 1, v{vXa}')
    e(f's_lshl_b32 s13, s{sCG}, 2'); e(f's_add_u32 s13, s13, s{sW}'); e(f's_xor_b32 s12, s{sRT}, 15'); e('s_or_b32 s13, s13, s12')
    e(f'v_or_b32 v{vZa}, s13, v{vL}'); e(f'v_cmp_eq_u32 vcc, 0, v{vZa}'); e(f'v_mov_b32 v{vZa}, {OOB:#x}'); e(f'v_cndmask_b32 v{vZa}, v{vZa}, 0, vcc')
    def small_loads():
        g.vm(f'global_load_dwordx2 {vr(DS,2)}, v{x1}, s[32:33]')
        for it in range(4):
            e(f's_movk_i32 s14, {(16*(it&1)+4*(it>>1))*1024}')
            st['xl']=g.vm(f'buffer_load_dwordx2 {vr(XS+2*it,2)}, v{vXa}, {srd(SX)}, s14 offen')
    def sflag():
        g.wait(vm=sst); g.vm(f'buffer_store_dword v{vNON}, v{vFS}, {srd(SWS)}, 0 offen sc1'); stamp('sflag'); fl['s']=1
    stamp('p2s')
    if PM==2: sflag()
    drain(O('poll_lead',0))
    while st['w2n']<O('w2min',16): drain(1)
    print('w2n at F check',st['w2n'])
    if PM!=3: check(pid,pol,128,'ff',59,vPF)
    if PM!=3:
        for k in range(ALA): aload(k)
    wid={}
    def wread(k):
        if k<22:
            u,ks=k>>1,k&1
            g.wait(vm=st['Flast'][u]); row=st['Frow'][u]
            for db in range(2):
                b=WR+8*(k%4)+4*db
                ad=(vT0,vT1)[db][row>>2]
                for rho in range(2):
                    wid[k]=g.lg(f'ds_read_b64_tr_b16 {vr(b+2*rho,2)}, v{ad} offset:{(row&3)*16384+ks*2048+rho*1024}')
        else:
            mt,cb,s,kap=skap(k)
            for db in range(2):
                gi=11+4*mt+2*cb+db
                assert st['w2n']>=4*gi+4
                g.wait(vm=st['Flast'][gi]); row=st['Frow'][gi]
                wid[k]=g.lg(f'ds_read_b128 {vr(WR+8*(k%4)+4*db,4)}, v{RW[row>>2][s]} offset:{(row&3)*16384}')
    wj=[T+4,T+5,T+6,T+7]; rd=[T+40,T+41]; SK=URE; dsk=[T+42+i for i in range(4)]
    def side_fin():
        y0,y1=T+16,T+17
        e(f'v_lshrrev_b32 v{y0}, 4, v{vM}'); e(f'v_lshlrev_b32 v{y0}, 14, v{y0}'); e(f'v_and_b32 v{y1}, 15, v{vM}'); yield
        e(f'v_lshl_add_u32 v{y0}, v{y1}, 8, v{y0}'); e(f'v_and_b32 v{y1}, 7, v{vM}'); e(f'v_lshlrev_b32 v{y1}, 4, v{y1}'); yield
        e(f'v_xor_b32 v{y1}, v{y1}, v{vHH16}'); e(f'v_add3_u32 v{wj[0]}, v{y0}, v{y1}, s{sM0R}'); yield
        for j in range(1,4): e(f'v_xor_b32 v{wj[j]}, {32*j}, v{wj[0]}')
        yield
        e(f'v_lshrrev_b32 v{y0}, 4, v{vL}'); e(f'v_and_b32 v{y1}, 15, v{vL}'); e(f'v_xor_b32 v{y1}, v{y1}, v{y0}'); yield
        e(f'v_lshlrev_b32 v{y1}, 4, v{y1}'); e(f'v_lshl_add_u32 v{y1}, v{y0}, 8, v{y1}'); yield
        e(f's_lshl_b32 s12, s{sW}, 14'); e(f's_add_u32 s12, s12, {ROW0}'); e(f'v_add_u32 v{rd[0]}, s12, v{y1}'); e(f'v_xor_b32 v{rd[1]}, 64, v{rd[0]}'); yield
        e(f's_lshl_b32 s13, s{sRH}, 8'); e(f's_lshl_b32 s12, s{sW}, 6'); e('s_add_u32 s12, s12, s13'); e(f'v_lshl_add_u32 v{y0}, v{y0}, 2, s12'); yield
        for it in range(4): gl=g.lg(f'ds_read_b32 v{vGe+it}, v{y0} offset:{G_L+16*it}')
        yield
        while 'xl' not in st or g.nvm-st['xl']<12: yield
        g.wait(vm=st['xl'])
        e(f'v_lshlrev_b32 v{dsk[0]}, 16, v{DS}'); e(f'v_and_b32 v{dsk[1]}, 0xffff0000, v{DS}'); yield
        e(f'v_lshlrev_b32 v{dsk[2]}, 16, v{DS+1}'); e(f'v_and_b32 v{dsk[3]}, 0xffff0000, v{DS+1}'); yield
        g.wait(lg=gl)
        for it in range(4):
            for h in range(2):
                a,b=SK+4*it+2*h,SK+4*it+2*h+1
                e(f'v_lshlrev_b32 v{a}, 16, v{XS+2*it+h}'); e(f'v_and_b32 v{b}, 0xffff0000, v{XS+2*it+h}')
                e(f'v_mul_f32 v{a}, v{a}, v{dsk[2*h]}'); yield
                e(f'v_mul_f32 v{b}, v{b}, v{dsk[2*h+1]}')
                e(f'v_cvt_pk_bf16_f32 v{b}, v{a}, v{b}')
                e(f'v_lshlrev_b32 v{a}, 16, v{b}'); yield
                e(f'v_and_b32 v{b}, 0xffff0000, v{b}')
                e(f'v_mul_f32 v{a}, v{a}, v{vGe+it}'); e(f'v_mul_f32 v{b}, v{b}, v{vGe+it}'); yield
    side=side_fin()
    pid2=None
    for k in range(38):
        if 16<=k+2<38: wread(k+2)
        while k<16 and ((k>>1) not in st['moved'] or g.lg_done<st['moved'][k>>1]):
            if (k>>1) in st['moved']: g.wait(lg=st['moved'][k>>1])
            else: assert st['pendC']; service(force=True)
        g.wait(vm=aid[k])
        if k>=16: g.wait(lg=wid[k])
        if k in (0,8,16,24,32): stamp(f'k{k}')
        for db in range(2):
            for tb in range(2):
                acc=vr(ACC+16*(2*db+tb),16)
                Wf=ar(128+(k*2+db)*4,4) if k<16 else vr(WR+8*(k%4)+4*db,4)
                e(f'v_mfma_f32_32x32x16_bf16 {acc}, {Wf}, {ar(8*(k%16)+4*tb,4)}, {"0" if k==0 else acc}')
                next(side,None)
            if db==0 and k+ALA<38:
                if k+ALA==22: assert 's' in fl; check(pid2,pol+1,0,'fs',61,vPS)
                aload(k+ALA)
                if k+ALA==22-O('poll2_lead',4): pid2=g.vm(f'buffer_load_dword v{pol+1}, v{vPS}, {srd(SWS)}, 0 offen sc1')
        if k in (17,19): st['free'].append(st['Frow'][k>>1])
        cur_n[0]+=6
        if st['w2n']<76: drain(O('mix',2))
        if k==O('small_at',2): small_loads()
        if 's' not in fl and k==O('sflag_k',0 if PM!=3 else 6): sflag()
    for _ in side: raise Exception('side_fin left')
    stamp('p2_end')
    for db in range(2):
        for tb in range(2):
            for j in range(4):
                g.lg(f'ds_write_b128 v{wj[j]}, {vr(ACC+16*(2*db+tb)+4*j,4)} offset:{db*128+tb*32768}')
    g.wait_all_lg(); e('s_barrier'); stamp('red')
    g.vm(f'buffer_store_dword v{vNON}, v{vZa}, {srd(SWS)}, 0 offen offset:{Z_OFF} sc1')
    RB=ACC
    ids={}
    for it in range(4):
        for w2 in range(4):
            ids[it,w2]=g.lg(f'ds_read_b128 {vr(RB+16*it+4*w2,4)}, v{rd[it&1]} offset:{w2*4096+it*1024}')
    for it in range(4):
        g.wait(lg=ids[it,3])
        b=RB+16*it
        for i in (0,2): e(f'v_pk_add_f32 {vr(b+i,2)}, {vr(b+i,2)}, {vr(SK+4*it+i,2)}')
        for i in (0,2): e(f'v_pk_add_f32 {vr(b+4+i,2)}, {vr(b+4+i,2)}, {vr(b+8+i,2)}')
        for i in (0,2): e(f'v_pk_add_f32 {vr(b+i,2)}, {vr(b+i,2)}, {vr(b+12+i,2)}')
        for i in (0,2): e(f'v_pk_add_f32 {vr(b+i,2)}, {vr(b+i,2)}, {vr(b+4+i,2)}')
        e(f's_mov_b32 s12, {(16*(it&1)+4*(it>>1))*2048}')
        g.vm(f'buffer_store_dwordx4 {vr(b,4)}, v{vOa}, {srd(SOUT)}, s12 offen {O("outfl","sc1")}')
    if O('stamps'):
        stamp('st_iss')
        e('s_waitcnt vmcnt(0)'); stamp('end',True)
        e('s_memrealtime s[94:95]'); e('s_waitcnt lgkmcnt(0)'); e('v_writelane_b32 v39, s94, 63')
        e(f's_lshl_b32 s11, s2, 10'); e(f's_add_u32 s11, s11, {WS_SIZE}'); e(f's_add_u32 s{SWS+2}, s{SWS+2}, 0x40000')
        e(f'v_lshlrev_b32 v{T}, 2, v0')
        e(f'buffer_store_dword v39, v{T}, {srd(SWS)}, s11 offen')
        if O('dbg'):
            sel=['start','setup','B0','B4','B8','B12','1b_end','ssm_fin','ffn_epi','w2_issued','fs_ok','k16','p2_end','end']
            e('s_mov_b32 s60, s46'); e('s_mov_b32 s61, s47'); e('s_mov_b32 s62, 256'); e('s_mov_b32 s63, 0x20000')
            e('v_readlane_b32 s12, v39, 62'); e('v_readlane_b32 s13, v39, 0'); e('s_not_b32 s12, s12')
            e(f'v_mov_b32 v{T+1}, s94'); e(f'v_mov_b32 v{T+2}, s12'); e(f'v_mov_b32 v{T+3}, 0'); e(f'v_mov_b32 v{T+4}, {OOB:#x}')
            e(f'v_cmp_eq_u32 vcc, 0, v0'); e(f'v_cndmask_b32 v{T+3}, v{T+4}, v{T+3}, vcc')
            e(f'buffer_atomic_umax v{T+1}, v{T+3}, s[60:63], 0 offen'); e(f'buffer_atomic_umax v{T+2}, v{T+3}, s[60:63], 0 offen offset:4')
            e('s_cmp_eq_u32 s2, 100'); e('s_cbranch_scc0 L_end')
            for i,nm in enumerate(sel):
                e(f'v_readlane_b32 s12, v39, {stamps.index(nm)}'); e('s_sub_u32 s12, s12, s13'); e(f'v_mov_b32 v{T+1}, s12')
                e(f'buffer_store_dword v{T+1}, v{T+3}, s[60:63], 0 offen offset:{8+4*i}')
    if O('diag'):
        e('s_waitcnt vmcnt(0)')
        if O('diag')==2:
            e(f'v_mov_b32 v{T+31}, 0'); e(f'global_load_dword v{T+30}, v{T+31}, s[46:47] sc1'); e('s_waitcnt vmcnt(0)')
            e(f'v_readfirstlane_b32 s94, v{T+30}'); e('s_nop 3'); e('s_not_b32 s94, s94')
        e('s_memrealtime s[92:93]'); e('s_waitcnt lgkmcnt(0)')
        e('s_sub_u32 s12, s92, s94'); e('s_min_u32 s12, s12, 20000'); e('s_add_u32 s12, s12, s92')
        e('L_dg:'); e('s_memrealtime s[92:93]'); e('s_waitcnt lgkmcnt(0)'); e('s_sub_u32 s13, s92, s12'); e('s_cmp_lt_i32 s13, 0'); e('s_cbranch_scc1 L_dg')
    e('L_end:')
    e('s_endpgm')
    hdr=open('gated_mix__ssm_conv_s5__glu_gated_swiglu__prompt.s.ref').read().split('; Override')[0]
    out=hdr+'; @launch grid=(256,1,1) block=(256,1,1) lds=163840\n'
    out+=f'.amdgcn_target "amdgcn-amd-amdhsa--gfx950"\n.text\n.globl {NAME}\n.p2align 8\n.type {NAME},@function\n{NAME}:\n'
    out+=g.text()
    out+=f'.fill (32768+256-(.-{NAME}))/4, 4, 0xbf810000\n'
    out+=f'''.section .rodata,"a"
.p2align 6
.amdhsa_kernel {NAME}
  .amdhsa_next_free_vgpr 512
  .amdhsa_next_free_sgpr 102
  .amdhsa_accum_offset 256
  .amdhsa_group_segment_fixed_size 0
  .amdhsa_kernarg_size 136
  .amdhsa_user_sgpr_count 2
  .amdhsa_user_sgpr_kernarg_segment_ptr 1
  .amdhsa_system_sgpr_workgroup_id_x 1
.end_amdhsa_kernel
'''
    return out,g
if __name__=='__main__':
    import json
    opt=json.loads(sys.argv[2]) if len(sys.argv)>2 else {}
    out,g=gen(opt)
    open(sys.argv[1],'w').write(out)
    if g.stamps: json.dump(g.stamps,open(sys.argv[1]+'.names','w'))
    from collections import Counter
    print(len(g.ins),Counter(i.cls for i in g.ins), 'nops',sum(1 for i in g.ins if i.mn=='s_nop'))
```

```python
import sys
from asmlib import *
NAME='gated_mix__ssm_conv_s5__glu_gated_swiglu__prompt_kernel'
ROW0=8192; RING=40960; SLOT=24576; NS=5
Z_OFF=0; FL_OFF=0x40000; HE_OFF=0x10000; A2_OFF=0x80000; WS_SIZE=A2_OFF+16*4*160*1024
OOB=0x80000000
GW_L=0; XCH_L=1024; HIN_L=2816; E_L=3072; G_L=5120; PQ_L=5632; TRB_L=155648
LOG2E=0x3fb8aa3b; NLOG2E=0xbfb8aa3b; INV2PI=0x3e22f983
SPIN=200000
sW,sRT,sCG,sCT,sRH,sROT,sNON=4,5,6,7,8,9,10
SX,SW0,SW1,SW3,SCRE,SCIM,SW2,SWS,SHE,SOUT=52,56,60,64,68,72,76,80,84,88
sXB,sW0B,sM0X,sM0W,sM0F,sSO,sSO2=96,97,98,99,100,101,3
sCB,sW2B,sA2S,sA2L0,sA2L1,sCNT,sT0,sT1=34,35,36,37,38,39,40,41
sM0R,sSO3,sFST,sNL2E,sROTF=50,51,22,24,23
srd=lambda b:f's[{b}:{b+3}]'
vr=lambda b,n:f'v[{b}:{b+n-1}]'
ar=lambda b,n:f'a[{b}:{b+n-1}]'
vL,vM,vHH16,vL16=1,2,3,4
vNat=[5,6,7,8]; vXo=[9,10,11,12]; vWF=[13,14,15]
vRA=[16,17,18,19]; vRAw=[20,21,22,23]; vTR=[24,25,26]
vLr,vLi,vL16r,vL16i,vL128r,vL128i,vL1kr,vL1ki,vC2r,vNC2i,vM8=27,28,29,30,31,32,33,34,35,36,37
vCinv=40
vW2o=[42,43,44,45]; vHEo=46; vFLo=47
URE=48; UIM=64; ACC=80; WR=176; T=208
ZA=T+44
vFS,vNON,vTW,vTRd=T+36,T+37,T+38,T+39; vEX=38; vT8=T+41
def gen(opt=None):
    opt=opt or {}
    O=opt.get
    g=Gen(); e=g.e
    FS=O('fs',8)
    SEQ=O('seq','AAAAAAAAFFFFFFFF'); assert SEQ.count('A')==8 and SEQ.count('F')==8 and SEQ[0]=='A'
    POS=[(c,SEQ[:i].count(c)) for i,c in enumerate(SEQ)]
    for i,(c,q) in enumerate(POS): assert c=='A' or SEQ[:i].count('A')>q
    stamps=[]
    def stamp(name,flush=False):
        if not O('stamps'): return
        k=len(stamps); stamps.append(name)
        if k>=2: e(f'v_writelane_b32 v39, s{92+2*(k%2)}, {k-2}')
        e(f's_memtime s[{92+2*(k%2)}:{93+2*(k%2)}]')
        if flush:
            e('s_waitcnt lgkmcnt(0)')
            e(f'v_writelane_b32 v39, s{92+2*((k-1)%2)}, {k-1}'); e(f'v_writelane_b32 v39, s{92+2*(k%2)}, {k}')
    g.stamps=stamps
    e('s_cmp_ge_u32 s2, 256'); e('s_cbranch_scc1 L_end')
    if O('stamps'):
        e('s_memrealtime s[94:95]'); e('v_mov_b32 v39, 0'); e('s_waitcnt lgkmcnt(0)'); e('v_writelane_b32 v39, s94, 62')
        stamp('start')
    if O('diag'): e('s_memrealtime s[94:95]')
    e('s_load_dwordx16 s[16:31], s[0:1], 0')
    e('s_load_dwordx16 s[32:47], s[0:1], 64')
    e('s_load_dwordx2 s[48:49], s[0:1], 128')
    e('s_getpc_b64 s[50:51]')
    e('s_lshr_b32 s13, s2, 3')
    e('s_and_b32 s14, s13, 7'); e('s_lshl_b32 s14, s14, 12')
    e(f'v_lshl_add_u32 v{T}, v0, 4, s14')
    g.vm(f'global_load_dwordx4 {vr(T+4,4)}, v{T}, s[50:51]')
    PF0=O('pf0',0)
    pX,pB,pW=T+40,T+41,T+42
    def pfA():
        g.vm(f'global_load_dword v{T+43}, v{pX}, s[16:17]'); g.vm(f'global_load_dword v{T+43}, v{pB}, s[22:23]'); g.vm(f'global_load_dword v{T+43}, v{pB}, s[24:25]')
    def pfF():
        g.vm(f'global_load_dword v{T+43}, v{pW}, s[36:37]'); g.vm(f'global_load_dword v{T+43}, v{pW}, s[38:39]')
    if PF0:
        e('s_lshl_b32 s12, s2, 6'); e(f'v_lshrrev_b32 v{pX}, 2, v0'); e(f'v_add_lshl_u32 v{pX}, v{pX}, s12, 7')
        e('s_lshl_b32 s12, s2, 4'); e(f'v_lshrrev_b32 v{pB}, 4, v0'); e(f'v_add_lshl_u32 v{pB}, v{pB}, s12, 7')
        e('s_mul_i32 s12, s2, 43'); e(f'v_mul_u32_u24 v{pW}, 43, v0'); e(f'v_lshrrev_b32 v{pW}, 8, v{pW}'); e(f'v_add_lshl_u32 v{pW}, v{pW}, s12, 7')
        e('s_waitcnt lgkmcnt(0)')
        if PF0&1: pfA()
        if PF0&2: pfF()
        e(f's_load_dword s{sNON}, s[48:49], {Z_OFF}'); g.smem=True
        stamp('pf')
    e(f'v_lshrrev_b32 v{T+1}, 6, v0')
    e(f'v_and_b32 v{vL}, 63, v0')
    e(f'v_readfirstlane_b32 s{sW}, v{T+1}')
    if O('map','B')=='A':
        e('s_and_b32 s12, s2, 7')
        e(f's_and_b32 s{sRH}, s12, 1'); e('s_lshr_b32 s14, s12, 1')
        e(f's_lshl_b32 s{sRT}, s14, 2'); e('s_lshr_b32 s15, s13, 3'); e(f's_add_u32 s{sRT}, s{sRT}, s15')
        e(f's_and_b32 s{sCT}, s13, 7')
        e(f's_lshl_b32 s{sCG}, s{sRH}, 3'); e(f's_add_u32 s{sCG}, s{sCG}, s{sCT}')
        e(f's_lshl_b32 s{sROT}, s14, 1'); e(f's_and_b32 s11, s{sCT}, {O("rotmask",4)}'); e(f's_add_u32 s{sROT}, s{sROT}, s11')
    else:
        e(f's_and_b32 s12, s2, 4'); e(f's_lshl_b32 s{sRT}, s12, 1'); e('s_lshr_b32 s15, s2, 5'); e(f's_add_u32 s{sRT}, s{sRT}, s15')
        e('s_and_b32 s14, s13, 3')
        e(f's_and_b32 s11, s2, 3'); e(f's_lshl_b32 s{sCG}, s11, 2'); e(f's_add_u32 s{sCG}, s{sCG}, s14')
        e(f's_and_b32 s{sRH}, s2, 1'); e(f's_and_b32 s{sCT}, s2, 2'); e(f's_lshl_b32 s{sCT}, s{sCT}, 1'); e(f's_add_u32 s{sCT}, s{sCT}, s14')
        ra,rb,rc,rd_=O('rot',[2,1,0,0])
        e(f's_mul_i32 s{sROT}, s14, {ra}')
        if O('rtmask',7)!=7: e(f's_and_b32 s15, s15, {O("rtmask",7)}')
        if rb: e(f's_mul_i32 s15, s15, {rb}'); e(f's_add_u32 s{sROT}, s{sROT}, s15')
        if rc: e(f's_lshr_b32 s12, s12, 2'); e(f's_mul_i32 s12, s12, {rc}'); e(f's_add_u32 s{sROT}, s{sROT}, s12')
        if rd_: e(f's_mul_i32 s11, s11, {rd_}'); e(f's_add_u32 s{sROT}, s{sROT}, s11')
    l3,l7,l4,hh,sw0=T+8,T+9,T+10,T+11,T+12
    e(f'v_lshrrev_b32 v{l3}, 3, v{vL}'); e(f'v_and_b32 v{l7}, 7, v{vL}'); e(f'v_lshrrev_b32 v{l4}, 4, v{vL}'); e(f'v_lshrrev_b32 v{hh}, 5, v{vL}')
    e(f'v_xor_b32 v{sw0}, v{l7}, v{l4}'); e(f'v_lshlrev_b32 v{sw0}, 4, v{sw0}')
    e(f'v_lshl_add_u32 v{vNat[0]}, v{l3}, 10, v{sw0}')
    e(f'v_xor_b32 v{vNat[1]}, 64, v{vNat[0]}'); e(f'v_add_u32 v{vNat[1]}, 7168, v{vNat[1]}')
    e(f'v_and_b32 v{T+13}, 3, v{l3}'); e(f'v_lshl_add_u32 v{T+13}, v{hh}, 4, v{T+13}')
    e(f'v_lshl_add_u32 v{vXo[0]}, v{T+13}, 10, v{sw0}')
    e(f'v_xor_b32 v{vXo[1]}, 64, v{vXo[0]}'); e(f'v_add_u32 v{vXo[1]}, 3072, v{vXo[1]}')
    e(f'v_add_u32 v{vXo[2]}, 6144, v{vXo[0]}'); e(f'v_add_u32 v{vXo[3]}, 6144, v{vXo[1]}')
    e(f's_lshl_b32 s{sXB}, s{sRT}, 17'); e(f's_lshl_b32 s11, s{sW}, 15'); e(f's_add_u32 s{sXB}, s{sXB}, s11')
    e(f's_lshl_b32 s{sW0B}, s{sCG}, 15'); e(f's_and_b32 s11, s{sW}, 1'); e('s_lshl_b32 s11, s11, 14'); e(f's_add_u32 s{sW0B}, s{sW0B}, s11')
    e(f's_lshl_b32 s{sM0X}, s{sW}, 12'); e(f's_add_u32 s{sM0X}, s{sM0X}, {RING}')
    e(f's_lshl_b32 s{sM0W}, s{sW}, 11'); e(f's_add_u32 s{sM0W}, s{sM0W}, {RING+16384}')
    def mksrd(b,p): e(f's_mov_b32 s{b}, s{p}'); e(f's_mov_b32 s{b+1}, s{p+1}')
    def srdc(b,size): e(f's_mov_b32 s{b+2}, {size}'); e(f's_mov_b32 s{b+3}, 0x20000')
    srdc(SX,2048*1024); srdc(SW0,512*1024)
    e(f's_cmp_lt_u32 s{sW}, 2')
    if not PF0: e('s_waitcnt lgkmcnt(0)')
    stamp('karg')
    if O('stamps'): e(f's_cmp_lt_u32 s{sW}, 2')
    mksrd(SX,16)
    if O('diag')==2:
        e('s_not_b32 s92, s94'); e(f'v_mov_b32 v{T+30}, s92'); e(f'v_mov_b32 v{T+31}, 0')
        e('s_mov_b64 exec, 1'); g.vm(f'global_atomic_umax v{T+31}, v{T+30}, s[46:47]'); e('s_mov_b64 exec, -1')
        e(f's_cmp_lt_u32 s{sW}, 2')
    e(f's_cselect_b32 s{SW0}, s22, s24'); e(f's_cselect_b32 s{SW0+1}, s23, s25')
    blk_last={}
    st={'barr':-1,'free':[0,1],'pendC':[],'pendRel':[],'Frow':{},'Flast':{},'w2n':0,'m0':None,'w2on':False}
    D=O('D',3)
    cur_n=[0]
    def setm0(base,c):
        if st['m0']!=(base,c):
            e(f's_add_u32 m0, s{base}, {c}'); st['m0']=(base,c)
    def streamP():
        for p in range(16):
            while (p>=O('pre',2) and st['barr']<p-D) or (p>=O('hold',9) and not st.get('burst')): yield 'blocked'
            sl=p%NS; ty,q=POS[p]
            if ty=='A':
                e(f's_add_u32 s11, s{sROT}, {q}'); e('s_and_b32 s11, s11, 7'); e('s_lshl_b32 s11, s11, 7')
                e(f's_add_u32 s{sSO}, s{sXB}, s11'); e(f's_add_u32 s{sSO2}, s{sW0B}, s11')
                for a in range(4):
                    setm0(sM0X,sl*SLOT)
                    g.vm(f'buffer_load_dwordx4 v{vXo[a]}, {srd(SX)}, s{sSO} offen offset:{1024*a} lds'); yield
                for a in range(2):
                    setm0(sM0W,sl*SLOT)
                    blk_last[p]=g.vm(f'buffer_load_dwordx4 v{vNat[a]}, {srd(SW0)}, s{sSO2} offen offset:{1024*a} lds'); yield
            else:
                if q==4 and O('pf15',1):
                    e('\n'.join([f's_cmp_eq_u32 s{sCG}, 15','s_cbranch_scc0 L_no15b',
                      f's_lshl_b32 s11, s{sRT}, 15', f's_add_u32 s{SW1}, s{SCRE}, s11', f's_addc_u32 s{SW1+1}, s{SCRE+1}, 0',
                      f's_add_u32 s{SW3}, s{SCIM}, s11', f's_addc_u32 s{SW3+1}, s{SCIM+1}, 0',
                      f's_mov_b32 s{SW1+2}, 0x8000', f's_mov_b32 s{SW3+2}, 0x8000',
                      f's_mov_b32 s{sROTF}, 4', 'L_no15b:']))
                e(f's_add_u32 s11, s{sROTF}, {q}'); e('s_and_b32 s11, s11, 7'); e(f's_mul_i32 s{sSO}, s11, s{sFST}')
                for mt,S_ in enumerate((SW1,SW3)):
                    for a in range(3):
                        setm0(sM0F,sl*SLOT+mt*12288)
                        blk_last[p]=g.vm(f'buffer_load_dwordx4 v{vWF[a]}, {srd(S_)}, s{sSO} offen offset:{1024*a} lds'); yield
        while True: yield 'done'
    vTa=[vRA[0],vRA[1]]
    def moveC(u,row,last):
        assert st.get('tra')
        g.wait(vm=last)
        for db in range(2):
            if row<4: ad=vTa[db]; off=row*16384
            else:
                ad=T+46+db; off=0
                e(f'v_add_u32 v{ad}, {row*16384}, v{vTa[db]}')
            for ks in range(2):
                for rho in range(2):
                    i=g.lg(f'ds_read_b64_tr_b16 {ar(128+((2*u+ks)*2+db)*4+2*rho,2)}, v{ad} offset:{off+ks*2048+rho*1024}')
        st['pendRel'].append((row,i)); st.setdefault('moved',{})[u]=i
    def service(force=False):
        for it in list(st['pendRel']):
            if force: g.wait(lg=it[1])
            if g.lg_done>=it[1]: st['free'].append(it[0]); st['pendRel'].remove(it)
        if st['pendC'] and st.get('tra') and (force or cur_n[0]-st['pendC'][0][3]>=O('cagen',22) or g.vm_done>=st['pendC'][0][2]):
            moveC(*st['pendC'].pop(0)[:3])
    def gran(gi,row):
        st['Frow'][gi]=row
        if gi<11:
            e(f's_add_u32 s{sSO3}, s{sW2B}, {32*1024*gi}'); S_,vo=SW2,vW2o
        else:
            c=gi-11; mt,cb,db=c>>2,(c>>1)&1,c&1
            e(f's_add_u32 s{sSO3}, s{sCB}, {db*32*1024+cb*128}'); S_,vo=(SCIM if mt else SCRE),vNat
        for a in range(4):
            setm0(sM0R,row*16384)
            st['Flast'][gi]=g.vm(f'buffer_load_dwordx4 v{vo[a]}, {srd(S_)}, s{sSO3} offen offset:{1024*a} lds'); st['w2n']+=1
            if a==3 and gi<8: st['pendC'].append((gi,row,st['Flast'][gi],cur_n[0]))
            yield
    def streamW():
        for gi in range(19):
            while not st['free']: yield 'blocked'
            yield from gran(gi,st['free'].pop(0))
        while True: yield 'done'
    SP=streamP(); SWs=streamW()
    def pump(n=1):
        r=None
        for _ in range(n):
            r=next(SP)
            if r and st['w2on']:
                service(); r=next(SWs)
        return r
    def barrier(q):
        e('s_barrier'); st['barr']=q
        rel={13:[4],14:[5],15:[6,7],16:[8],17:[2,3]} if O('b16',1) else {13:[4],14:[5],15:[6,7],17:[8,2,3]}
        st['free']+=rel.get(q,[])
        if q>=O('w2from',9): st['w2on']=True
    if O('a0first',1): pump(6)
    e(f's_cmp_eq_u32 s{sW}, 0'); e(f's_cselect_b32 s11, s{sROT}, 0'); e('s_cselect_b32 s12, s42, s18'); e('s_cselect_b32 s13, s43, s19'); e(f's_cselect_b32 s14, 0, {ROW0}')
    e(f'v_add_u32 v{T+14}, s11, v{l3}'); e(f'v_and_b32 v{T+14}, 7, v{T+14}'); e(f'v_lshlrev_b32 v{T+14}, 7, v{T+14}')
    e(f's_cmp_eq_u32 s{sW}, 2'); e('s_cselect_b32 s12, s20, s12'); e('s_cselect_b32 s13, s21, s13')
    e(f's_cmp_eq_u32 s{sW}, 3'); e('s_cselect_b32 s12, s30, s12'); e('s_cselect_b32 s13, s31, s13')
    e(f'v_lshl_add_u32 v{T+14}, v{l7}, 4, v{T+14}')
    e(f's_lshl_b32 s11, s{sW}, 10'); e('s_add_u32 m0, s14, s11'); st['m0']=None
    e(f'v_and_b32 v{vM}, 31, v{vL}')
    gwid=g.vm(f'global_load_lds_dwordx4 v{T+14}, s[12:13]')
    if O('a0first',1): blk_last[0]=gwid
    e(f's_lshl_b32 s11, s{sCG}, 6')
    e(f'v_lshl_add_u32 v{T+15}, v{vM}, 1, s11')
    if not PF0: e(f's_load_dword s{sNON}, s[48:49], {Z_OFF}'); g.smem=True
    if not O('a0first',1): pump(O('a0pre',6))
    if PF0&4: pfF()
    stamp('p0')
    e(f'v_mov_b32 v{T+2}, 0'); e(f'v_mov_b32 v{T+3}, 0'); e(f'v_lshlrev_b32 v{vT8}, 3, v0')
    g.lg(f'ds_write_b64 v{vT8}, {vr(T+2,2)} offset:{XCH_L}')
    e(f'v_lshlrev_b32 v{vHH16}, 4, v{hh}')
    e(f's_lshl_b32 s{sM0R}, s{sW}, 12'); e(f's_add_u32 s{sM0R}, s{sM0R}, {ROW0}')
    e(f'v_bfe_u32 v{T+20}, v{vM}, 1, 3'); e(f'v_xor_b32 v{T+20}, v{T+20}, v{hh}'); e(f'v_lshlrev_b32 v{T+20}, 4, v{T+20}')
    e(f'v_lshl_add_u32 v{vRA[0]}, v{vM}, 7, v{T+20}')
    for s in range(1,4): e(f'v_xor_b32 v{vRA[s]}, {32*s}, v{vRA[0]}')
    XA2=[T+24+s for s in range(4)]; WA=[vRA,[T+28+s for s in range(4)],[T+32+s for s in range(4)]]
    for s in range(4):
        e(f'v_add_u32 v{vRAw[s]}, s{sM0R}, v{vRA[s]}')
        e(f'v_add_u32 v{XA2[s]}, {RING-ROW0+2*SLOT}, v{vRAw[s]}')
        e(f'v_add_u32 v{WA[1][s]}, {RING+16384+2*SLOT}, v{vRA[s]}'); e(f'v_add_u32 v{WA[2][s]}, {RING+16384+4*SLOT}, v{vRA[s]}')
        e(f'v_add_u32 v{vRA[s]}, {RING+16384}, v{vRA[s]}')
    vGA=T+40
    e(f'v_xor_b32 v{T+20}, v{vL}, v{l4}'); e(f'v_and_b32 v{T+20}, 1, v{T+20}'); e(f'v_lshl_add_u32 v{vGA}, v{T+20}, 10, v{vHH16}')
    def side_setup():
        L=[]; A=L.append
        def mk(b,p): A(f's_mov_b32 s{b}, s{p}'); A(f's_mov_b32 s{b+1}, s{p+1}')
        def sc(b,size): A(f's_mov_b32 s{b+2}, {size}'); A(f's_mov_b32 s{b+3}, 0x20000')
        for b,p,size in [(SW1,36,512*2752),(SW3,38,512*2752),(SCRE,26,512*1024),(SCIM,28,512*1024),(SW2,40,1376*1024),(SWS,48,WS_SIZE),(SOUT,44,2048*2048)]:
            mk(b,p); sc(b,size)
        sc(SHE,8192)
        A(f's_mul_i32 s{sM0F}, s{sW}, 3072'); A(f's_add_u32 s{sM0F}, s{sM0F}, {RING}')
        A(f's_mov_b32 s{sFST}, {64*2752}'); A(f's_mov_b32 s{sROTF}, s{sROT}')
        A(f'v_lshlrev_b32 v{vL16}, 4, v{vL}'); A(f'v_lshlrev_b32 v{vM8}, 3, v{vM}')
        A(f's_mul_i32 s15, s{sW}, {16*2752}'); A(f's_mul_i32 s12, s{sCG}, 192'); A('s_add_u32 s15, s15, s12')
        A(f's_mul_i32 s12, s{sCG}, 12'); A('s_movk_i32 s13, 2752'); A(f'v_mov_b32 v{T+23}, {OOB:#x}')
        for a in range(3):
            A(f'v_add_u32 v{T+20}, {64*a}, v{vL}')
            A(f'v_mul_u32_u24 v{T+21}, 43691, v{T+20}'); A(f'v_lshrrev_b32 v{T+21}, 19, v{T+21}')
            A(f'v_mul_u32_u24 v{T+22}, 12, v{T+21}'); A(f'v_sub_u32 v{T+22}, v{T+20}, v{T+22}')
            A(f'v_mul_u32_u24 v{T+21}, s13, v{T+21}')
            A(f'v_lshl_add_u32 v{T+21}, v{T+22}, 4, v{T+21}')
            A(f'v_add_u32 v{T+22}, s12, v{T+22}')
            A(f'v_cmp_gt_u32 vcc, 172, v{T+22}')
            A(f'v_add_u32 v{T+21}, s15, v{T+21}')
            if a: A(f'v_subrev_u32 v{T+21}, {1024*a}, v{T+21}')
            A(f'v_cndmask_b32 v{vWF[a]}, v{T+23}, v{T+21}, vcc')
        if O('pf15',1):
            A('\n'.join([f's_cmp_eq_u32 s{sCG}, 15','s_cbranch_scc0 L_no15',
              f's_mul_i32 s12, s{sRT}, {88*1024}', f's_add_u32 s{SW1}, s40, s12', f's_addc_u32 s{SW1+1}, s41, 0',
              f's_add_u32 s{SW3}, s{SW1}, {44*1024}', f's_addc_u32 s{SW3+1}, s{SW1+1}, 0',
              f's_mov_b32 s{SW1+2}, {44*1024}', f's_cmp_eq_u32 s{sRT}, 15', f's_cselect_b32 s{SW3+2}, {12*1024}, s{SW1+2}', f's_mov_b32 s{sROTF}, 0',
              f's_movk_i32 s{sFST}, 12288', f's_mul_i32 s12, s{sW}, 3072',
              f'v_lshl_add_u32 v{vWF[0]}, v{vL}, 4, s12', f'v_mov_b32 v{vWF[1]}, v{vWF[0]}', f'v_mov_b32 v{vWF[2]}, v{vWF[0]}',
              'L_no15:']))
        r_,c_,g1=T+20,T+21,T+22
        A(f'v_bfe_u32 v{r_}, v{vL}, 2, 2'); A(f'v_and_b32 v{c_}, 3, v{vL}'); A(f'v_and_b32 v{g1}, 1, v{l4}')
        A(f'v_lshl_add_u32 v{T+19}, v{hh}, 3, v{r_}'); A(f'v_mul_u32_u24 v{T+19}, 192, v{T+19}')
        A(f'v_lshl_add_u32 v{T+19}, v{g1}, 5, v{T+19}'); A(f'v_lshl_add_u32 v{T+19}, v{c_}, 3, v{T+19}')
        for k in range(3): A(f'v_add_u32 v{vTR[k]}, {RING+2*k*SLOT}, v{T+19}')
        A(f's_lshl_b32 s12, s{sCG}, 13'); A(f's_add_u32 s12, s12, {HE_OFF}')
        A(f's_add_u32 s{SHE}, s48, s12\ns_addc_u32 s{SHE+1}, s49, 0')
        A(f's_lshl_b32 s{sCB}, s{sCT}, 16'); A(f's_lshl_b32 s12, s{sW}, 8'); A(f's_add_u32 s{sCB}, s{sCB}, s12')
        A(f's_mul_i32 s{sW2B}, s{sW}, {352*1024}'); A(f's_lshl_b32 s12, s{sCT}, 7'); A(f's_add_u32 s{sW2B}, s{sW2B}, s12')
        A(f's_lshl_b32 s13, s{sRT}, 2'); A(f's_add_u32 s12, s13, s{sW}'); A(f's_mul_i32 s{sA2S}, s12, {160*1024}'); A(f's_add_u32 s{sA2S}, s{sA2S}, {A2_OFF}')
        A(f's_lshl_b32 s12, s{sRH}, 1'); A('s_add_u32 s12, s12, s13'); A(f's_mul_i32 s{sA2L0}, s12, {160*1024}'); A(f's_add_u32 s{sA2L0}, s{sA2L0}, {A2_OFF}')
        A(f's_add_u32 s{sA2L1}, s{sA2L0}, {160*1024}')
        A(f's_mov_b32 s{sNL2E}, {NLOG2E:#x}')
        A(f'v_add_u32 v{vNat[2]}, {2*7168}, v{vNat[0]}'); A(f'v_add_u32 v{vNat[3]}, {2*7168}, v{vNat[1]}')
        A(f'v_and_b32 v{g1}, 1, v{l4}')
        A(f'v_lshlrev_b32 v{T+19}, 2, v{g1}'); A(f'v_xor_b32 v{T+19}, v{T+19}, v{l7}'); A(f'v_lshlrev_b32 v{T+19}, 4, v{T+19}')
        A(f'v_lshl_add_u32 v{vW2o[0]}, v{l3}, 10, v{T+19}')
        for a in range(1,4): A(f'v_add_u32 v{vW2o[a]}, {7168*a}, v{vW2o[0]}')
        A(f's_sub_u32 s12, 15, s{sRT}'); A('s_lshl_b32 s12, s12, 9')
        A(f'v_lshl_add_u32 v{T+20}, v{vM}, 4, s12')
        A(f'v_cmp_eq_u32 vcc, s{sW}, v{l3}')
        A(f'v_lshl_add_u32 v{vHEo}, v{vHH16}, 6, v{T+20}'); A(f's_lshl_b32 s12, s{sW}, 11'); A('s_add_u32 s12, s12, 512'); A(f'v_add_u32 v{vHEo}, s12, v{vHEo}')
        A(f'v_cndmask_b32 v{T+10}, v{T+23}, v{T+20}, vcc')
        A(f's_lshl_b32 s15, s{sRT}, 1'); A(f's_lshr_b32 s12, s{sW}, 1'); A('s_add_u32 s12, s12, s15'); A(f's_lshl_b32 s12, s12, {FS+5 if FS>2 else 8}')
        A(f's_and_b32 s13, s{sW}, 1'); A(f's_lshl_b32 s14, s{sCG}, 1'); A('s_add_u32 s13, s13, s14'); A(f's_lshl_b32 s13, s13, {FS}')
        A('s_add_u32 s12, s12, s13'); A(f's_add_u32 s12, s12, {FL_OFF}'); A(f'v_lshl_add_u32 v{T+20}, v{vL}, 2, s12')
        A(f'v_cmp_gt_u32 vcc, {32 if FS>2 else 1}, v{vL}'); A(f's_add_u32 s15, s15, s{sRH}')
        A(f's_lshl_b32 s15, s15, {FS+5 if FS>2 else 8}'); A(f's_add_u32 s15, s15, {FL_OFF}'); A(f'v_cndmask_b32 v{vFS}, v{T+23}, v{T+20}, vcc')
        A(f'v_lshl_add_u32 v{vFLo}, v{vM}, {FS}, s15')
        A(f'v_lshlrev_b32 v{vTW}, 6, v{vM}'); A(f'v_lshl_add_u32 v{vTW}, v{vHH16}, 1, v{vTW}'); A(f's_lshl_b32 s14, s{sW}, 11'); A(f's_add_u32 s14, s14, {TRB_L}'); A(f'v_add_u32 v{vTW}, s14, v{vTW}')
        A(f'v_bfe_u32 v{vTRd}, v{vL}, 2, 2'); A(f'v_lshlrev_b32 v{vTRd}, 6, v{vTRd}')
        A(f'v_lshl_add_u32 v{vTRd}, v{vHH16}, 5, v{vTRd}'); A(f'v_and_b32 v{T+20}, 1, v{vL}')
        A(f'v_lshl_add_u32 v{vTRd}, v{T+20}, 5, v{vTRd}'); A(f'v_and_b32 v{T+20}, 16, v{vL}'); A(f'v_add_u32 v{vTRd}, v{T+20}, v{vTRd}')
        A(f'v_and_b32 v{T+20}, 2, v{vL}'); A(f'v_lshl_add_u32 v{vTRd}, v{T+20}, 2, v{vTRd}'); A(f'v_add_u32 v{vTRd}, s14, v{vTRd}')
        A(f's_lshl_b32 s12, s{sW}, 2'); A(f's_sub_u32 s12, s{sRT}, s12'); A(f'v_lshrrev_b32 v{vEX}, 3, v{vHH16}'); A(f'v_sub_u32 v{vEX}, s12, v{vEX}')
        A(f'v_max_i32 v{vEX}, 0, v{vEX}'); A(f'v_min_i32 v{vEX}, 2, v{vEX}'); A(f'v_lshlrev_b32 v{vEX}, 1, v{vEX}')
        A(f's_lshl_b32 s{sT0}, s{sCG}, 12'); A(f's_add_u32 s{sT0}, s{sT0}, s{sA2S}')
        A(f's_mul_i32 s{sT1}, s{sCG}, {6*1024}'); A(f's_add_u32 s{sT1}, s{sT1}, s{sA2S}')
        A(f's_add_u32 s16, s{sT1}, {64*1024}'); A(f's_add_u32 s17, s16, 4096')
        A(f's_lshl_b32 s12, s{sW}, 14'); A(f's_add_u32 s26, s{sA2L0}, s12'); A(f's_add_u32 s27, s{sA2L1}, s12')
        A(f's_mul_i32 s12, s{sW}, {22*1024}'); A(f's_add_u32 s12, s12, {64*1024}'); A(f's_add_u32 s28, s{sA2L0}, s12'); A(f's_add_u32 s29, s{sA2L1}, s12')
        A(f's_lshl_b32 s12, s{sW}, 7'); A(f'v_lshl_add_u32 v{T+42}, v{vM}, 2, s12')
        A(f's_mul_i32 s{sNON}, s{sNON}, 1664525'); A(f's_add_u32 s{sNON}, s{sNON}, 1013904223')
        A(f's_cmp_eq_u32 s{sNON}, 0\ns_cselect_b32 s{sNON}, 1013904223, s{sNON}')
        return L
    Ls=side_setup()
    npre=O('setup_pre',90)
    Ls.append(f'v_mov_b32 v{vNON}, s{sNON}')
    print('setup list',len(Ls))
    for i,t in enumerate(Ls[:npre]):
        e(t)
        if i==29 and O('touch',0):
            e(f'v_mov_b32 v{T+19}, 0')
            for S_ in (SW1,SW3,SCRE,SCIM,SW2,SWS): g.vm(f'buffer_load_dword v{T+43}, v{T+19}, {srd(S_)}, 0 offen')
            e(f's_mul_i32 s12, s{sRT}, {640*1024}'); e(f's_add_u32 s12, s12, {A2_OFF}'); e(f's_add_u32 s13, s12, {639*1024}'); e(f's_lshl_b32 s14, s{sRT}, 18')
            g.vm(f'buffer_load_dword v{T+43}, v{T+19}, {srd(SWS)}, s12 offen'); g.vm(f'buffer_load_dword v{T+43}, v{T+19}, {srd(SWS)}, s13 offen')
            g.vm(f'buffer_load_dword v{T+43}, v{T+19}, {srd(SOUT)}, s14 offen')
    g.wait_all_lg()
    stamp('setup')
    pump(6*O('pre',2)-O('a0pre',6))
    if PF0&8: pfF()
    stamp('p1')
    def side_params():
        for i,t in enumerate(Ls[npre:]):
            e(t)
            if i%4==3: yield
        pl=[g.lg(f'ds_read_u16 v{T+16+i}, v{T+15} offset:{ROW0+1024*(i+1)}') for i in range(3)]
        if O('dwarm',1): g.vm(f'global_load_ushort v{T+43}, v{T+15}, s[32:33]')
        while g.lg_done<pl[2]: yield
        lre,lim,dt=T+16,T+17,T+18
        a_,b_,t0,t1=T,T+1,T+2,T+3
        L=[]; A=L.append
        for r in (lre,lim,dt): A(f'v_lshlrev_b32 v{r}, 16, v{r}')
        A(f'v_mul_f32 v{dt}, {LOG2E:#x}, v{dt}'); A(f'v_exp_f32 v{dt}, v{dt}')
        A(f'v_mul_f32 v{t0}, v{lre}, v{lre}')
        A(f'v_cvt_pk_bf16_f32 v{dt}, v{dt}, v{dt}'); A(f'v_lshlrev_b32 v{dt}, 16, v{dt}')
        A(f'v_mul_f32 v{a_}, v{dt}, v{lre}'); A(f'v_mul_f32 v{b_}, v{dt}, v{lim}')
        A(f'v_fma_f32 v{dt}, v{lim}, v{lim}, v{t0}'); A(f'v_rcp_f32 v{dt}, v{dt}')
        A(f'v_mul_f32 v{a_}, {LOG2E:#x}, v{a_}'); A(f'v_exp_f32 v{a_}, v{a_}')
        A(f'v_mul_f32 v{b_}, {INV2PI:#x}, v{b_}'); A(f'v_rndne_f32 v{t0}, v{b_}'); A(f'v_sub_f32 v{b_}, v{b_}, v{t0}')
        A(f'v_cos_f32 v{t0}, v{b_}'); A(f'v_sin_f32 v{t1}, v{b_}')
        A(f'v_add_f32 v{dt}, v{dt}, v{dt}')
        A(f'v_mul_f32 v{vLr}, v{a_}, v{t0}'); A(f'v_mul_f32 v{vLi}, v{a_}, v{t1}')
        A(f'v_add_f32 v{a_}, -1.0, v{vLr}')
        A(f'v_mul_f32 v{vNC2i}, v{vLi}, v{lre}'); A(f'v_mul_f32 v{vC2r}, v{a_}, v{lre}')
        A(f'v_fma_f32 v{vNC2i}, v{a_}, v{lim}, -v{vNC2i}'); A(f'v_fma_f32 v{vC2r}, v{vLi}, v{lim}, v{vC2r}')
        A(f'v_mul_f32 v{vNC2i}, v{vNC2i}, v{dt}'); A(f'v_mul_f32 v{vC2r}, v{vC2r}, v{dt}')
        def csq(dr,di,sr,si,n):
            for k in range(n):
                A(f'v_mul_f32 v{t0}, v{si}, v{si}'); A(f'v_mul_f32 v{t1}, v{sr}, v{si}')
                A(f'v_fma_f32 v{dr}, v{sr}, v{sr}, -v{t0}'); A(f'v_add_f32 v{di}, v{t1}, v{t1}')
                sr,si=dr,di
        csq(vL16r,vL16i,vLr,vLi,4); csq(vL128r,vL128i,vL16r,vL16i,3); csq(vL1kr,vL1ki,vL128r,vL128i,1)
        for i,t in enumerate(L):
            e(t)
            if i&1: yield
    NLi,NL16i,NL128i,NC2r=vXo
    def cfma_ip(ar_,ai_,lr,li,nli,sr,si):
        e(f'v_fmac_f32 v{ar_}, v{lr}, v{sr}'); e(f'v_fmac_f32 v{ai_}, v{lr}, v{si}')
        e(f'v_fmac_f32 v{ar_}, v{nli}, v{si}'); e(f'v_fmac_f32 v{ai_}, v{li}, v{sr}')
    def check(pid,reg,off,tag,lane,vP):
        e(f's_mov_b32 s{sCNT}, 0')
        g.wait(vm=pid)
        e(f'L_{tag}_chk:')
        e(f'v_cmp_ne_u32 vcc, s{sNON}, v{reg}')
        e('s_nop 1')
        e(f's_cbranch_vccz L_{tag}_ok')
        e(f's_add_u32 s{sCNT}, s{sCNT}, 1'); e(f's_cmp_gt_u32 s{sCNT}, {SPIN}'); e(f's_cbranch_scc1 L_{tag}_ok')
        e('s_sleep 1')
        e(f'buffer_load_dword v{reg}, v{vP}, {srd(SWS)}, 0 offen offset:{off} sc1')
        e('s_waitcnt vmcnt(0)'); e(f's_branch L_{tag}_chk')
        e(f'L_{tag}_ok:'); stamp(tag+'_ok')
        if O('stamps'): e(f'v_writelane_b32 v39, s{sCNT}, {lane}')
    vq=[]
    def cf(ar_,ai_,lr,li,nli,sr,si):
        e(f'v_fmac_f32 v{ar_}, v{lr}, v{sr}'); yield
        e(f'v_fmac_f32 v{ai_}, v{lr}, v{si}'); yield
        e(f'v_fmac_f32 v{ar_}, v{nli}, v{si}'); yield
        e(f'v_fmac_f32 v{ai_}, v{li}, v{sr}'); yield
    def seq(L):
        for t in L:
            e(t); yield
    def burst():
        for t in [f'v_xor_b32 v{NLi}, 0x80000000, v{vLi}',f'v_xor_b32 v{NL16i}, 0x80000000, v{vL16i}',f'v_mov_b32 v{T+13}, s{sNON}',f'v_mov_b32 v{T+15}, s{sNON}']: e(t)
        z=T+6; x0,x1=T+4,T+5
        fill=[f'v_and_b32 v{z+1}, 16, v{vL}',f'v_cmp_eq_u32 vcc, 0, v{z+1}',f'v_xor_b32 v{NL128i}, 0x80000000, v{vL1ki}',f'v_bfe_u32 v{x0}, v{vL}, 2, 2',
            f'v_cndmask_b32 v{z}, v{ZA+1}, v{ZA}, vcc',f'v_cvt_pk_bf16_f32 v{z}, v{z}, v{z}',f'v_lshlrev_b32 v{z}, 16, v{z}',
            f'v_mul_f32 v{z}, s{sNL2E}, v{z}',f'v_exp_f32 v{z}, v{z}',f'v_add_f32 v{z}, 1.0, v{z}',f'v_rcp_f32 v{z}, v{z}',
            f'v_cvt_pk_bf16_f32 v{z}, v{z}, v{z}',f'v_lshlrev_b32 v{z}, 16, v{z}',
            f'v_sub_f32 v{z+1}, 1.0, v{z}',f'v_cvt_pk_bf16_f32 v{z+1}, v{z+1}, v{z+1}',f'v_lshlrev_b32 v{z+1}, 16, v{z+1}',
            f'v_rcp_f32 v{vCinv}, v{z+1}',f'v_lshlrev_b32 v{x0}, 7, v{x0}',f'v_min_f32 v{vCinv}, 0x7e967699, v{vCinv}',f'v_mov_b32 v{vCinv+1}, v{vCinv}',
            f'v_lshl_add_u32 v{x0}, v{vHH16}, 5, v{x0}',
            f'v_and_b32 v{x1}, 8, v{vL}',f'v_lshl_add_u32 v{x0}, v{x1}, 3, v{x0}',f'v_and_b32 v{x1}, 16, v{vL}',f'v_lshl_add_u32 v{x0}, v{x1}, 1, v{x0}',
            f'v_and_b32 v{x1}, 3, v{vL}',f'v_lshl_add_u32 v{x0}, v{x1}, 3, v{x0}',f'v_add_u32 v{vTa[0]}, s{sM0R}, v{x0}',f'v_xor_b32 v{vTa[1]}, 64, v{vTa[0]}',
            f'v_mov_b32 v{T}, v{vC2r}',f'v_mov_b32 v{T+1}, v{vNC2i}']
        for t in range(1,16):
            e(f'v_fmac_f32 v{URE+t}, v{vLr}, v{URE+t-1}'); e(f'v_fmac_f32 v{UIM+t}, v{vLr}, v{UIM+t-1}'); e(fill.pop(0))
            e(f'v_fmac_f32 v{URE+t}, v{NLi}, v{UIM+t-1}'); e(f'v_fmac_f32 v{UIM+t}, v{vLi}, v{URE+t-1}'); e(fill.pop(0))
        e(f'v_mov_b32 v{T+2}, v{URE+15}'); e(f'v_mov_b32 v{T+3}, v{UIM+15}')
        for t in fill: e(t)
        g.lg(f'ds_write_b64 v{vT8}, {vr(T+2,2)} offset:{E_L}'); lw=g.lg(f'ds_write_b32 v{T+42}, v{z} offset:{G_L}')
        st['tra']=True
        def coef(u):
            o=T+32+2*((u>>1)&1)
            return [f'v_pk_mul_f32 {vr(o,2)}, {vr(UIM+u,2)}, {vr(T,2)} op_sel:[0,1] op_sel_hi:[1,1]',
                    f'v_pk_mul_f32 {vr(UIM+u,2)}, {vr(UIM+u,2)}, {vr(T,2)} op_sel_hi:[1,0] neg_lo:[0,1] neg_hi:[0,1]',
                    f'v_pk_fma_f32 {vr(UIM+u,2)}, {vr(URE+u,2)}, {vr(T,2)}, {vr(UIM+u,2)} op_sel:[0,1,0] op_sel_hi:[1,1,1]',
                    f'v_pk_fma_f32 {vr(URE+u,2)}, {vr(URE+u,2)}, {vr(T,2)}, {vr(o,2)} op_sel_hi:[1,0,1]']
        def coef2(u):
            a,b=coef(u),coef(u+2)
            for i in range(4): e(a[i]); e(b[i])
        coef2(0)
        g.wait(lg=lw); e('s_barrier')
        ids=[g.lg(f'ds_read_b64 {vr(T+16+2*s,2)}, v{vM8} offset:{E_L+256*s}') for s in range(8)]
        coef2(4); coef2(8); coef2(12)
        g.wait(lg=ids[7])
        for s in range(1,8): cfma_ip(T+16+2*s,T+17+2*s,vL16r,vL16i,NL16i,T+14+2*s,T+15+2*s)
        e(f'v_mov_b32 v{T+12}, v{T+30}'); e(f'v_mov_b32 v{T+14}, v{T+31}')
        st['burst']=True
        pump(O('bpump',6))
        g.vm(f'buffer_store_dwordx4 {vr(T+12,4)}, v{T+10}, {srd(SHE)}, 0 offen sc1'); stamp('he_pub')
    def slot():
        if vq:
            f=vq.pop(0)
            if f: f(); return None
        return pump(1)
    GR=[]
    for p,(ty,q) in enumerate(POS):
        for i in range(4 if ty=='A' else 8): GR.append((p,ty,q,i))
    lastA=max(i for i,x in enumerate(GR) if x[1]=='A')
    rdone={}
    def greads(gi):
        p,ty,q,i=GR[gi]; sl=p%NS; L=[]
        if i==0:
            def b_():
                g.wait(vm=blk_last[p],lg=st.get('elw')); barrier(p); stamp(f'{ty}{q}')
            pre=b_
        else: pre=None
        if ty=='A':
            s=i; b=128+12*((4*q+s)%8)
            xa,xo=(vRAw[s],RING-ROW0+sl*SLOT) if sl<2 else (XA2[s],(sl-2)*SLOT)
            wa=WA[sl>>1][s]; wo=(sl&1)*SLOT
            L=[f'ds_read_b128 {ar(16*q+4*s,4)}, v{xa} offset:{xo}',f'ds_read_b128 {ar(b,4)}, v{wa} offset:{wo}',
               f'ds_read_b128 {ar(b+4,4)}, v{wa} offset:{wo+4096}',f'ds_read_b128 {ar(b+8,4)}, v{vGA} offset:{GW_L+q*128+s*32}']
        else:
            for j in range(3):
                n=24*q+3*i+j; s,f=(n%24)//6,n%6; pair,mt=f>>1,f&1
                off=(sl&1)*SLOT+mt*12288+s*3072+pair*64; b=WR+4*(n%8)
                L+=[f'ds_read_b64_tr_b16 {vr(b+2*h,2)}, v{vTR[sl>>1]} offset:{off+768*h}' for h in range(2)]
        return pre,L
    def doreads(gi,part):
        if gi>=len(GR): return
        pre,L=greads(gi); h=len(L)//2
        if part==0 and pre: pre()
        for t in (L[:h] if part==0 else L[h:]): rdone[gi]=g.lg(t)
    def gm(gi,j):
        p,ty,q,i=GR[gi]
        if ty=='A':
            n=4*q+i; b=128+12*(n%8); x=ar(4*n,4); z=(n==0)
            if j==0: e(f'v_mfma_f32_32x32x16_bf16 {vr(URE,16)}, {x}, {ar(b,4)}, {"0" if z else vr(URE,16)}')
            if j==1: e(f'v_mfma_f32_32x32x16_bf16 {vr(UIM,16)}, {x}, {ar(b+4,4)}, {"0" if z else vr(UIM,16)}')
            if j==2: e(f'v_mfma_f32_16x16x32_bf16 {vr(ZA,4)}, {ar(b+8,4)}, {x}, {"0" if z else vr(ZA,4)}')
        else:
            n=24*q+3*i+j; s,f=(n%24)//6,n%6; acc=vr(ACC+16*f,16)
            e(f'v_mfma_f32_32x32x16_bf16 {acc}, {vr(WR+4*(n%8),4)}, {ar(16*q+4*s,4)}, {"0" if n<6 else acc}')
    for gi in range(2): doreads(gi,0); doreads(gi,1)
    side=side_params(); mid=False
    for gi in range(len(GR)):
        p,ty,q,i=GR[gi]
        g.wait(lg=rdone[gi])
        for j in range(3):
            cur_n[0]=3*gi+j
            gm(gi,j)
            if j<2 and not (gi<=lastA<gi+2): doreads(gi+2,j)
            if p==15 and i==0 and j==1 and O('b16',1): barrier(16)
            if j==2 or (ty=='A' and j==0) or (j==0 and O('xs',2) and (gi%O('xs',2)==0 or gi>=O('xs1',999)) and gi>=O('xs0',0)): slot()
            if not mid: next(side,None)
            else:
                for _ in range(st.get('rate',[4,4,4])[j]):
                    if next(side,'gap')=='gap': break
        if gi==lastA:
            for _ in side: pass
            stamp('A_end'); burst(); side=iter(()); mid=True
            for k_ in (1,2): doreads(gi+k_,0); doreads(gi+k_,1)
    for _ in side: raise Exception('side left')
    g.wait_all_lg(); barrier(17); stamp('1b_end'); print('w2n at 1b_end',st['w2n'])
    hel=lambda jj:f'buffer_load_dwordx4 {vr(T+16+4*jj,4)}, v{vHEo}, {srd(SHE)}, 0 offen offset:{512*jj} sc1'
    he=[g.vm(hel(jj)) for jj in range(2)]
    pump(O('t0pump',0))
    def hecheck():
        cnt=T+8
        e(f's_mov_b32 s{sCNT}, 0')
        g.wait(vm=he[1])
        e('L_he_chk:')
        e(f'v_mov_b32 v{cnt}, 0')
        for jj in range(2):
            e(f'v_cmp_eq_u32 vcc, s{sNON}, v{T+16+4*jj+1}'); e(f'v_cmp_eq_u32 s[12:13], s{sNON}, v{T+16+4*jj+3}')
            e(f'v_addc_co_u32 v{cnt}, vcc, 0, v{cnt}, vcc'); e(f'v_addc_co_u32 v{cnt}, s[12:13], 0, v{cnt}, s[12:13]')
        e(f'v_cmp_ne_u32 vcc, v{cnt}, v{vEX}')
        e('s_nop 1')
        e('s_cbranch_vccz L_he_ok')
        e(f's_add_u32 s{sCNT}, s{sCNT}, 1'); e(f's_cmp_gt_u32 s{sCNT}, {SPIN}'); e('s_cbranch_scc1 L_he_ok')
        e('s_sleep 1')
        for jj in range(2): e(hel(jj))
        e('s_waitcnt vmcnt(0)'); e('s_branch L_he_chk')
        e('L_he_ok:'); stamp('he_ok')
        if O('stamps'): e(f'v_writelane_b32 v39, s{sCNT}, 60')
        for t in [f'v_fma_f32 v{T+8}, v{vL128r}, v{T+20}, v{T+16}',f'v_fma_f32 v{T+9}, v{vL128r}, v{T+22}, v{T+18}',
                  f'v_fma_f32 v{T+8}, -v{vL128i}, v{T+22}, v{T+8}',f'v_fmac_f32 v{T+9}, v{vL128i}, v{T+20}']: e(t)
        return g.lg(f'ds_write_b64 v{vT8}, {vr(T+8,2)} offset:{PQ_L}')
    E0=WR
    vL16F=T+2
    e(f's_cmp_eq_u32 s{sCG}, 15'); e(f's_cselect_b32 s12, {OOB:#x}, 0'); e(f'v_or_b32 v{vL16F}, s12, v{vL16}')
    for pr in range(3):
        G=ACC+32*pr; Uu=G+16
        for h in range(2):
            k=2*pr+h
            R=range(8*h,8*h+8,2)
            for i in R: e(f'v_pk_mul_f32 {vr(E0+i%8,2)}, {vr(G+i,2)}, s[{sNL2E}:{sNL2E+1}] op_sel_hi:[1,0]')
            for i in range(8): e(f'v_exp_f32 v{E0+i}, v{E0+i}')
            for i in R: e(f'v_pk_mul_f32 {vr(G+i,2)}, {vr(G+i,2)}, {vr(Uu+i,2)}')
            for i in R: e(f'v_pk_fma_f32 {vr(E0+i%8,2)}, {vr(E0+i%8,2)}, {vr(vCinv,2)}, {vr(vCinv,2)}')
            for i in range(8): e(f'v_rcp_f32 v{E0+i}, v{E0+i}')
            for i in R: e(f'v_pk_mul_f32 {vr(G+i,2)}, {vr(G+i,2)}, {vr(E0+i%8,2)}')
            pk=E0+8+4*k
            for i in range(4): e(f'v_cvt_pk_bf16_f32 v{pk+i}, v{G+8*h+2*i}, v{G+8*h+2*i+1}')
            fst=g.vm(f'buffer_store_dwordx4 {vr(pk,4)}, v{vL16F}, {srd(SWS)}, s{16 if k<4 else 17} offen offset:{(k%4)*1024} sc1')
            if k==O('he_k',4): pw=hecheck()
    g.wait(lg=pw); e('s_barrier')
    pq=[g.lg(f'ds_read_b64 {vr(T+16+2*s,2)}, v{vM8} offset:{PQ_L+256*(7-s)}') for s in range(8)]
    stamp('ffn_epi'); print('w2n at ffn_epi',st['w2n'])
    def cfi(*a):
        for _ in cf(*a): pass
    g.wait(lg=pq[7])
    for s in range(1,8): cfi(T+16+2*s,T+17+2*s,vL1kr,vL1ki,NL128i,T+14+2*s,T+15+2*s)
    g.lg(f'ds_write_b64 v{vM8}, {vr(T+30,2)} offset:{HIN_L}')
    ids=[g.lg(f'ds_read_b64 {vr(T+2*k,2)}, v{vT8} offset:{XCH_L+256*k}') for k in range(8)]
    GG=ACC; CP=ACC+16; OB=ACC+20; Y=ACC+32
    e(f's_lshl_b32 s12, s{sW}, 7'); e(f'v_add_u32 v{Y}, s12, v{vHH16}')
    for j in range(4): gid=g.lg(f'ds_read_b128 {vr(GG+4*j,4)}, v{Y} offset:{G_L+32*j}')
    e(f'v_mul_f32 v{CP}, v{vLi}, v{vLi}'); e(f'v_mul_f32 v{CP+1}, v{vLr}, v{vLi}'); e(f'v_fma_f32 v{CP}, v{vLr}, v{vLr}, -v{CP}'); e(f'v_add_f32 v{CP+1}, v{CP+1}, v{CP+1}')
    vPF,vPS=vXo[3],vEX
    e(f's_mul_i32 s12, s{sW}, 11'); e('s_mul_i32 s13, s12, 43691'); e('s_lshr_b32 s13, s13, 17'); e('s_lshl_b32 s13, s13, 1')
    e('s_add_u32 s12, s12, 10'); e('s_mul_i32 s14, s12, 43691'); e('s_lshr_b32 s14, s14, 17'); e('s_lshl_b32 s14, s14, 1'); e('s_add_u32 s14, s14, 1')
    e(f'v_max_u32 v{Y+1}, s13, v{vM}'); e(f'v_min_u32 v{Y+1}, s14, v{Y+1}'); e(f'v_sub_u32 v{Y+1}, v{Y+1}, v{vM}'); e(f'v_lshl_add_u32 v{vPF}, v{Y+1}, {FS}, v{vFLo}')
    e(f's_lshl_b32 s13, s{sW}, 3'); e(f'v_and_b32 v{Y+1}, 7, v{vM}'); e(f'v_add_u32 v{Y+1}, s13, v{Y+1}'); e(f'v_sub_u32 v{Y+1}, v{Y+1}, v{vM}'); e(f'v_lshl_add_u32 v{vPS}, v{Y+1}, {FS}, v{vFLo}')
    for k in range(1,8):
        g.wait(lg=ids[k]); cfi(T+2*k,T+2*k+1,vL16r,vL16i,NL16i,T+2*k-2,T+2*k-1)
    g.wait(lg=gid)
    WRe,WIm,L2=OB,OB+4,CP
    q0,q1=Y+2,Y+3
    e(f'v_mul_f32 v{q0}, v{vC2r}, v{T+14}'); e(f'v_mul_f32 v{q1}, v{vC2r}, v{T+15}')
    e(f'v_fmac_f32 v{q0}, v{vNC2i}, v{T+15}'); e(f'v_fma_f32 v{q1}, -v{vNC2i}, v{T+14}, v{q1}')
    e(f'v_mul_f32 v{WRe}, v{vLr}, v{q0}'); e(f'v_mul_f32 v{WIm}, v{vLr}, v{q1}')
    e(f'v_mul_f32 v{WRe+1}, v{L2}, v{q0}'); e(f'v_mul_f32 v{WIm+1}, v{L2}, v{q1}')
    e(f'v_fmac_f32 v{WRe}, v{NLi}, v{q1}'); e(f'v_fmac_f32 v{WIm}, v{vLi}, v{q0}')
    e(f'v_fma_f32 v{WRe+1}, -v{L2+1}, v{q1}, v{WRe+1}'); e(f'v_fmac_f32 v{WIm+1}, v{L2+1}, v{q0}')
    def skap(k):
        c=(k-22)>>2; s=(k-22)&3; mt,cb=c>>1,c&1
        return mt,cb,s,4*(2*cb+(s>>1))+2*mt+(s&1)
    aid={}
    def aload(k):
        if k<22:
            if k%4==0: e(f's_add_u32 s20, s28, {k*1024}'); e(f's_add_u32 s21, s29, {k*1024}')
            off=(k%4)*1024
        else:
            kap=skap(k)[3]
            if kap%2==0: e(f's_add_u32 s20, s26, {kap*1024}'); e(f's_add_u32 s21, s27, {kap*1024}')
            off=(kap%2)*1024
        for tb in range(2):
            aid[k]=g.vm(f'buffer_load_dwordx4 {ar(8*(k%16)+4*tb,4)}, v{vL16}, {srd(SWS)}, s{20+tb} offen offset:{off} sc1')
    ALA=O('ala',8)
    pol=T+34
    PM=O('pollmode',4)
    pendo=[]
    fl={}
    def fflag():
        g.wait(vm=fst); g.vm(f'buffer_store_dword v{vNON}, v{vFS}, {srd(SWS)}, 0 offen offset:128 sc1'); stamp('fflag'); fl['f']=1
    for u in range(0,16,2):
        c=2*((u>>1)&1); n_=2-c
        if u<14:
            e(f'v_pk_mul_f32 {vr(WRe+n_,2)}, {vr(WRe+c,2)}, {vr(L2,2)} op_sel_hi:[1,0]'); e(f'v_pk_mul_f32 {vr(WIm+n_,2)}, {vr(WIm+c,2)}, {vr(L2,2)} op_sel_hi:[1,0]')
        e(f'v_pk_add_f32 {vr(URE+u,2)}, {vr(URE+u,2)}, {vr(WRe+c,2)}'); e(f'v_pk_add_f32 {vr(UIM+u,2)}, {vr(UIM+u,2)}, {vr(WIm+c,2)} neg_lo:[0,1] neg_hi:[0,1]')
        if u<14:
            e(f'v_pk_fma_f32 {vr(WRe+n_,2)}, {vr(WIm+c,2)}, {vr(L2,2)}, {vr(WRe+n_,2)} op_sel:[0,1,0] op_sel_hi:[1,1,1] neg_lo:[0,1,0] neg_hi:[0,1,0]')
            e(f'v_pk_fma_f32 {vr(WIm+n_,2)}, {vr(WRe+c,2)}, {vr(L2,2)}, {vr(WIm+n_,2)} op_sel:[0,1,0] op_sel_hi:[1,1,1]')
        e(f'v_pk_mul_f32 {vr(URE+u,2)}, {vr(URE+u,2)}, {vr(GG+u,2)}'); e(f'v_pk_mul_f32 {vr(UIM+u,2)}, {vr(UIM+u,2)}, {vr(GG+u,2)}')
        if u: e(f'v_cvt_pk_bf16_f32 v{T+16+(u>>1)-1}, v{URE+u-2}, v{URE+u-1}'); e(f'v_cvt_pk_bf16_f32 v{T+24+(u>>1)-1}, v{UIM+u-2}, v{UIM+u-1}')
        if u==O('fflag_t',4): fflag()
    e(f'v_cvt_pk_bf16_f32 v{T+23}, v{URE+14}, v{URE+15}'); e(f'v_cvt_pk_bf16_f32 v{T+31}, v{UIM+14}, v{UIM+15}')
    tid={}
    for mt in range(2):
        g.lg(f'ds_write_b128 v{vTW}, {vr(T+16+8*mt,4)}'); g.lg(f'ds_write_b128 v{vTW}, {vr(T+16+8*mt+4,4)} offset:16')
        for ks in range(2):
            for rho in range(2):
                tid[mt,ks]=g.lg(f'ds_read_b64_tr_b16 {vr(T+8*mt+4*ks+2*rho,2)}, v{vTRd} offset:{ks*1024+rho*256}')
    stamp('scan')
    if 'f' not in fl: fflag()
    if PM==3:
        check(pid,pol,128,'ff',59,vPF)
        for k in range(ALA): aload(k)
    if PM==1: pid=g.vm(f'buffer_load_dword v{pol}, v{vPF}, {srd(SWS)}, 0 offen offset:128 sc1')
    for mt in range(2):
        for ks in range(2):
            g.wait(lg=tid[mt,ks])
            sst=g.vm(f'buffer_store_dwordx4 {vr(T+8*mt+4*ks,4)}, v{vL16}, {srd(SWS)}, s{sT0} offen offset:{(2*mt+ks)*1024} sc1')
    if PM==2: pid=g.vm(f'buffer_load_dword v{pol}, v{vPF}, {srd(SWS)}, 0 offen offset:128 sc1')
    stamp('sst')
    def drain(n):
        for _ in range(n):
            r=pump(1)
            if r=='blocked' and (st['pendC'] or st['pendRel']):
                service(force=True); service(force=True); r=pump(1)
    vT0=[vTa[0],T+20,T+21]; vT1=[vTa[1],T+22,T+23]
    RW=[vRAw,[T+24+s for s in range(4)],[T+28+s for s in range(4)]]
    for k in (1,2):
        e(f'v_add_u32 v{vT0[k]}, {65536*k}, v{vT0[0]}'); e(f'v_add_u32 v{vT1[k]}, {65536*k}, v{vT1[0]}')
        for s in range(4): e(f'v_add_u32 v{RW[k][s]}, {65536*k}, v{vRAw[s]}')
    x0,x1=URE+30,URE+31
    XS=URE+16; DS=URE+24; vXa=URE+26; vOa=URE+27; vGe=T+8; vZa=URE+28
    e(f's_lshl_b32 s13, s{sRT}, 7'); e(f's_lshl_b32 s12, s{sRH}, 6'); e('s_add_u32 s13, s13, s12')
    e(f's_lshr_b32 s12, s{sW}, 1'); e('s_lshl_b32 s12, s12, 5'); e('s_add_u32 s13, s13, s12')
    e(f's_and_b32 s12, s{sW}, 1'); e('s_lshl_b32 s12, s12, 3'); e('s_add_u32 s13, s13, s12')
    e(f'v_lshrrev_b32 v{x0}, 4, v{vL}'); e(f'v_add_u32 v{x0}, s13, v{x0}')
    e(f'v_and_b32 v{x1}, 15, v{vL}'); e(f's_lshl_b32 s12, s{sCT}, 7'); e(f'v_lshl_add_u32 v{x1}, v{x1}, 3, s12')
    e(f'v_lshl_add_u32 v{vXa}, v{x0}, 10, v{x1}'); e(f'v_lshlrev_b32 v{vOa}, 1, v{vXa}')
    e(f's_lshl_b32 s13, s{sCG}, 2'); e(f's_add_u32 s13, s13, s{sW}'); e(f's_xor_b32 s12, s{sRT}, 15'); e('s_or_b32 s13, s13, s12')
    e(f'v_or_b32 v{vZa}, s13, v{vL}'); e(f'v_cmp_eq_u32 vcc, 0, v{vZa}'); e(f'v_mov_b32 v{vZa}, {OOB:#x}'); e(f'v_cndmask_b32 v{vZa}, v{vZa}, 0, vcc')
    def small_loads():
        g.vm(f'global_load_dwordx2 {vr(DS,2)}, v{x1}, s[32:33]')
        for it in range(4):
            e(f's_movk_i32 s14, {(16*(it&1)+4*(it>>1))*1024}')
            st['xl']=g.vm(f'buffer_load_dwordx2 {vr(XS+2*it,2)}, v{vXa}, {srd(SX)}, s14 offen')
    def sflag():
        g.wait(vm=sst); g.vm(f'buffer_store_dword v{vNON}, v{vFS}, {srd(SWS)}, 0 offen sc1'); stamp('sflag'); fl['s']=1
    stamp('p2s')
    if PM in (2,4): sflag()
    if PM==4:
        drain(O('pre_poll',0))
        pid=g.vm(f'buffer_load_dword v{pol}, v{vPF}, {srd(SWS)}, 0 offen offset:128 sc1')
    drain(O('poll_lead',8))
    while st['w2n']<O('w2min',16): drain(1)
    print('w2n at F check',st['w2n'])
    if PM!=3: check(pid,pol,128,'ff',59,vPF)
    if PM!=3:
        for k in range(ALA): aload(k)
    wid={}
    def wread(k):
        if k<22:
            u,ks=k>>1,k&1
            g.wait(vm=st['Flast'][u]); row=st['Frow'][u]
            for db in range(2):
                b=WR+8*(k%4)+4*db
                ad=(vT0,vT1)[db][row>>2]
                for rho in range(2):
                    wid[k]=g.lg(f'ds_read_b64_tr_b16 {vr(b+2*rho,2)}, v{ad} offset:{(row&3)*16384+ks*2048+rho*1024}')
        else:
            mt,cb,s,kap=skap(k)
            for db in range(2):
                gi=11+4*mt+2*cb+db
                assert st['w2n']>=4*gi+4
                g.wait(vm=st['Flast'][gi]); row=st['Frow'][gi]
                wid[k]=g.lg(f'ds_read_b128 {vr(WR+8*(k%4)+4*db,4)}, v{RW[row>>2][s]} offset:{(row&3)*16384}')
    wj=[T+4,T+5,T+6,T+7]; rd=[T+40,T+41]; SK=URE; dsk=[T+42+i for i in range(4)]
    def side_fin():
        y0,y1=T+16,T+17
        e(f'v_lshrrev_b32 v{y0}, 4, v{vM}'); e(f'v_lshlrev_b32 v{y0}, 14, v{y0}'); e(f'v_and_b32 v{y1}, 15, v{vM}'); yield
        e(f'v_lshl_add_u32 v{y0}, v{y1}, 8, v{y0}'); e(f'v_and_b32 v{y1}, 7, v{vM}'); e(f'v_lshlrev_b32 v{y1}, 4, v{y1}'); yield
        e(f'v_xor_b32 v{y1}, v{y1}, v{vHH16}'); e(f'v_add3_u32 v{wj[0]}, v{y0}, v{y1}, s{sM0R}'); yield
        for j in range(1,4): e(f'v_xor_b32 v{wj[j]}, {32*j}, v{wj[0]}')
        yield
        e(f'v_lshrrev_b32 v{y0}, 4, v{vL}'); e(f'v_and_b32 v{y1}, 15, v{vL}'); e(f'v_xor_b32 v{y1}, v{y1}, v{y0}'); yield
        e(f'v_lshlrev_b32 v{y1}, 4, v{y1}'); e(f'v_lshl_add_u32 v{y1}, v{y0}, 8, v{y1}'); yield
        e(f's_lshl_b32 s12, s{sW}, 14'); e(f's_add_u32 s12, s12, {ROW0}'); e(f'v_add_u32 v{rd[0]}, s12, v{y1}'); e(f'v_xor_b32 v{rd[1]}, 64, v{rd[0]}'); yield
        e(f's_lshl_b32 s13, s{sRH}, 8'); e(f's_lshl_b32 s12, s{sW}, 6'); e('s_add_u32 s12, s12, s13'); e(f'v_lshl_add_u32 v{y0}, v{y0}, 2, s12'); yield
        for it in range(4): gl=g.lg(f'ds_read_b32 v{vGe+it}, v{y0} offset:{G_L+16*it}')
        yield
        while 'xl' not in st or g.nvm-st['xl']<12: yield
        g.wait(vm=st['xl'])
        e(f'v_lshlrev_b32 v{dsk[0]}, 16, v{DS}'); e(f'v_and_b32 v{dsk[1]}, 0xffff0000, v{DS}'); yield
        e(f'v_lshlrev_b32 v{dsk[2]}, 16, v{DS+1}'); e(f'v_and_b32 v{dsk[3]}, 0xffff0000, v{DS+1}'); yield
        g.wait(lg=gl)
        for it in range(4):
            for h in range(2):
                a,b=SK+4*it+2*h,SK+4*it+2*h+1
                e(f'v_lshlrev_b32 v{a}, 16, v{XS+2*it+h}'); e(f'v_and_b32 v{b}, 0xffff0000, v{XS+2*it+h}')
                e(f'v_mul_f32 v{a}, v{a}, v{dsk[2*h]}'); yield
                e(f'v_mul_f32 v{b}, v{b}, v{dsk[2*h+1]}')
                e(f'v_cvt_pk_bf16_f32 v{b}, v{a}, v{b}')
                e(f'v_lshlrev_b32 v{a}, 16, v{b}'); yield
                e(f'v_and_b32 v{b}, 0xffff0000, v{b}')
                e(f'v_mul_f32 v{a}, v{a}, v{vGe+it}'); e(f'v_mul_f32 v{b}, v{b}, v{vGe+it}'); yield
    side=side_fin()
    pid2=None
    for k in range(38):
        if 16<=k+2<38: wread(k+2)
        while k<16 and ((k>>1) not in st['moved'] or g.lg_done<st['moved'][k>>1]):
            if (k>>1) in st['moved']: g.wait(lg=st['moved'][k>>1])
            else: assert st['pendC']; service(force=True)
        g.wait(vm=aid[k])
        if k>=16: g.wait(lg=wid[k])
        if k in (0,8,16,24,32): stamp(f'k{k}')
        for db in range(2):
            for tb in range(2):
                acc=vr(ACC+16*(2*db+tb),16)
                Wf=ar(128+(k*2+db)*4,4) if k<16 else vr(WR+8*(k%4)+4*db,4)
                e(f'v_mfma_f32_32x32x16_bf16 {acc}, {Wf}, {ar(8*(k%16)+4*tb,4)}, {"0" if k==0 else acc}')
                next(side,None)
            if db==0 and k+ALA<38:
                if k+ALA==22: assert 's' in fl; check(pid2,pol+1,0,'fs',61,vPS)
                aload(k+ALA)
                if k+ALA==22-O('poll2_lead',4): pid2=g.vm(f'buffer_load_dword v{pol+1}, v{vPS}, {srd(SWS)}, 0 offen sc1')
        if k in (17,19): st['free'].append(st['Frow'][k>>1])
        cur_n[0]+=6
        if st['w2n']<76: drain(O('mix',2))
        if k==O('small_at',2): small_loads()
        if 's' not in fl and k==O('sflag_k',0 if PM!=3 else 6): sflag()
    for _ in side: raise Exception('side_fin left')
    stamp('p2_end')
    for db in range(2):
        for tb in range(2):
            for j in range(4):
                g.lg(f'ds_write_b128 v{wj[j]}, {vr(ACC+16*(2*db+tb)+4*j,4)} offset:{db*128+tb*32768}')
    g.wait_all_lg(); e('s_barrier'); stamp('red')
    g.vm(f'buffer_store_dword v{vNON}, v{vZa}, {srd(SWS)}, 0 offen offset:{Z_OFF} sc1')
    RB=ACC
    ids={}
    for it in range(4):
        for w2 in range(4):
            ids[it,w2]=g.lg(f'ds_read_b128 {vr(RB+16*it+4*w2,4)}, v{rd[it&1]} offset:{w2*4096+it*1024}')
    for it in range(4):
        g.wait(lg=ids[it,3])
        b=RB+16*it
        for i in (0,2): e(f'v_pk_add_f32 {vr(b+i,2)}, {vr(b+i,2)}, {vr(SK+4*it+i,2)}')
        for i in (0,2): e(f'v_pk_add_f32 {vr(b+4+i,2)}, {vr(b+4+i,2)}, {vr(b+8+i,2)}')
        for i in (0,2): e(f'v_pk_add_f32 {vr(b+i,2)}, {vr(b+i,2)}, {vr(b+12+i,2)}')
        for i in (0,2): e(f'v_pk_add_f32 {vr(b+i,2)}, {vr(b+i,2)}, {vr(b+4+i,2)}')
        e(f's_mov_b32 s12, {(16*(it&1)+4*(it>>1))*2048}')
        g.vm(f'buffer_store_dwordx4 {vr(b,4)}, v{vOa}, {srd(SOUT)}, s12 offen {O("outfl","sc1")}')
    if O('stamps'):
        stamp('st_iss')
        e('s_waitcnt vmcnt(0)'); stamp('end',True)
        e('s_memrealtime s[94:95]'); e('s_waitcnt lgkmcnt(0)'); e('v_writelane_b32 v39, s94, 63')
        e(f's_lshl_b32 s11, s2, 10'); e(f's_add_u32 s11, s11, {WS_SIZE}'); e(f's_add_u32 s{SWS+2}, s{SWS+2}, 0x40000')
        e(f'v_lshlrev_b32 v{T}, 2, v0')
        e(f'buffer_store_dword v39, v{T}, {srd(SWS)}, s11 offen')
        if O('dbg'):
            sel=['start','setup','B0','B4','B8','B12','1b_end','ssm_fin','ffn_epi','w2_issued','fs_ok','k16','p2_end','end']
            e('s_mov_b32 s60, s46'); e('s_mov_b32 s61, s47'); e('s_mov_b32 s62, 256'); e('s_mov_b32 s63, 0x20000')
            e('v_readlane_b32 s12, v39, 62'); e('v_readlane_b32 s13, v39, 0'); e('s_not_b32 s12, s12')
            e(f'v_mov_b32 v{T+1}, s94'); e(f'v_mov_b32 v{T+2}, s12'); e(f'v_mov_b32 v{T+3}, 0'); e(f'v_mov_b32 v{T+4}, {OOB:#x}')
            e(f'v_cmp_eq_u32 vcc, 0, v0'); e(f'v_cndmask_b32 v{T+3}, v{T+4}, v{T+3}, vcc')
            e(f'buffer_atomic_umax v{T+1}, v{T+3}, s[60:63], 0 offen'); e(f'buffer_atomic_umax v{T+2}, v{T+3}, s[60:63], 0 offen offset:4')
            e('s_cmp_eq_u32 s2, 100'); e('s_cbranch_scc0 L_end')
            for i,nm in enumerate(sel):
                e(f'v_readlane_b32 s12, v39, {stamps.index(nm)}'); e('s_sub_u32 s12, s12, s13'); e(f'v_mov_b32 v{T+1}, s12')
                e(f'buffer_store_dword v{T+1}, v{T+3}, s[60:63], 0 offen offset:{8+4*i}')
    if O('diag'):
        e('s_waitcnt vmcnt(0)')
        if O('diag')==2:
            e(f'v_mov_b32 v{T+31}, 0'); e(f'global_load_dword v{T+30}, v{T+31}, s[46:47] sc1'); e('s_waitcnt vmcnt(0)')
            e(f'v_readfirstlane_b32 s94, v{T+30}'); e('s_nop 3'); e('s_not_b32 s94, s94')
        e('s_memrealtime s[92:93]'); e('s_waitcnt lgkmcnt(0)')
        e('s_sub_u32 s12, s92, s94'); e('s_min_u32 s12, s12, 20000'); e('s_add_u32 s12, s12, s92')
        e('L_dg:'); e('s_memrealtime s[92:93]'); e('s_waitcnt lgkmcnt(0)'); e('s_sub_u32 s13, s92, s12'); e('s_cmp_lt_i32 s13, 0'); e('s_cbranch_scc1 L_dg')
    e('L_end:')
    e('s_endpgm')
    hdr=open('gated_mix__ssm_conv_s5__glu_gated_swiglu__prompt.s.ref').read().split('; Override')[0]
    out=hdr+'; @launch grid=(256,1,1) block=(256,1,1) lds=163840\n'
    out+=f'.amdgcn_target "amdgcn-amd-amdhsa--gfx950"\n.text\n.globl {NAME}\n.p2align 8\n.type {NAME},@function\n{NAME}:\n'
    out+=g.text()
    out+=f'.fill (32768+256-(.-{NAME}))/4, 4, 0xbf810000\n'
    out+=f'''.section .rodata,"a"
.p2align 6
.amdhsa_kernel {NAME}
  .amdhsa_next_free_vgpr 512
  .amdhsa_next_free_sgpr 102
  .amdhsa_accum_offset 256
  .amdhsa_group_segment_fixed_size 0
  .amdhsa_kernarg_size 136
  .amdhsa_user_sgpr_count 2
  .amdhsa_user_sgpr_kernarg_segment_ptr 1
  .amdhsa_system_sgpr_workgroup_id_x 1
.end_amdhsa_kernel
'''
    return out,g
if __name__=='__main__':
    import json
    opt=json.loads(sys.argv[2]) if len(sys.argv)>2 else {}
    out,g=gen(opt)
    open(sys.argv[1],'w').write(out)
    if g.stamps: json.dump(g.stamps,open(sys.argv[1]+'.names','w'))
    from collections import Counter
    print(len(g.ins),Counter(i.cls for i in g.ins), 'nops',sum(1 for i in g.ins if i.mn=='s_nop'))
```

```python
import sys
from asmlib import *
NAME='gated_mix__ssm_conv_s5__glu_gated_swiglu__prompt_kernel'
ROW0=8192; RING=40960; SLOT=24576; NS=5
Z_OFF=0; FL_OFF=0x40000; HE_OFF=0x10000; A2_OFF=0x80000; WS_SIZE=A2_OFF+16*4*160*1024
OOB=0x80000000
GW_L=0; XCH_L=1024; HIN_L=2816; E_L=3072; G_L=5120; PQ_L=5632; TRB_L=155648
LOG2E=0x3fb8aa3b; NLOG2E=0xbfb8aa3b; INV2PI=0x3e22f983
SPIN=200000
sW,sRT,sCG,sCT,sRH,sROT,sNON=4,5,6,7,8,9,10
SX,SW0,SW1,SW3,SCRE,SCIM,SW2,SWS,SHE,SOUT=52,56,60,64,68,72,76,80,84,88
sXB,sW0B,sM0X,sM0W,sM0F,sSO,sSO2=96,97,98,99,100,101,3
sCB,sW2B,sA2S,sA2L0,sA2L1,sCNT,sT0,sT1=34,35,36,37,38,39,40,41
sM0R,sSO3,sFST,sNL2E,sROTF=50,51,22,24,23
srd=lambda b:f's[{b}:{b+3}]'
vr=lambda b,n:f'v[{b}:{b+n-1}]'
ar=lambda b,n:f'a[{b}:{b+n-1}]'
vL,vM,vHH16,vL16=1,2,3,4
vNat=[5,6,7,8]; vXo=[9,10,11,12]; vWF=[13,14,15]
vRA=[16,17,18,19]; vRAw=[20,21,22,23]; vTR=[24,25,26]
vLr,vLi,vL16r,vL16i,vL128r,vL128i,vL1kr,vL1ki,vC2r,vNC2i,vM8=27,28,29,30,31,32,33,34,35,36,37
vCinv=40
vW2o=[42,43,44,45]; vHEo=46; vFLo=47
URE=48; UIM=64; ACC=80; WR=176; T=208
ZA=T+44
vFS,vNON,vTW,vTRd=T+36,T+37,T+38,T+39; vEX=38; vT8=T+41
def gen(opt=None):
    opt=opt or {}
    O=opt.get
    g=Gen(); e=g.e
    FS=O('fs',8)
    SEQ=O('seq','AAAAAAAAFFFFFFFF'); assert SEQ.count('A')==8 and SEQ.count('F')==8 and SEQ[0]=='A'
    POS=[(c,SEQ[:i].count(c)) for i,c in enumerate(SEQ)]
    for i,(c,q) in enumerate(POS): assert c=='A' or SEQ[:i].count('A')>q
    stamps=[]
    def stamp(name,flush=False):
        if O('dpt')==name: e('s_memrealtime s[92:93]')
        if not O('stamps'): return
        k=len(stamps); stamps.append(name)
        if k>=2: e(f'v_writelane_b32 v39, s{92+2*(k%2)}, {k-2}')
        e(f's_memtime s[{92+2*(k%2)}:{93+2*(k%2)}]')
        if flush:
            e('s_waitcnt lgkmcnt(0)')
            e(f'v_writelane_b32 v39, s{92+2*((k-1)%2)}, {k-1}'); e(f'v_writelane_b32 v39, s{92+2*(k%2)}, {k}')
    g.stamps=stamps
    e('s_cmp_ge_u32 s2, 256'); e('s_cbranch_scc1 L_end')
    if O('stamps'):
        e('s_memrealtime s[94:95]'); e('v_mov_b32 v39, 0'); e('s_waitcnt lgkmcnt(0)'); e('v_writelane_b32 v39, s94, 62')
        stamp('start')
    if O('diag'): e('s_memrealtime s[94:95]')
    e('s_load_dwordx16 s[16:31], s[0:1], 0')
    e('s_load_dwordx16 s[32:47], s[0:1], 64')
    e('s_load_dwordx2 s[48:49], s[0:1], 128')
    e('s_getpc_b64 s[50:51]')
    e('s_lshr_b32 s13, s2, 3')
    e('s_and_b32 s14, s13, 7'); e('s_lshl_b32 s14, s14, 12')
    e(f'v_lshl_add_u32 v{T}, v0, 4, s14')
    g.vm(f'global_load_dwordx4 {vr(T+4,4)}, v{T}, s[50:51]')
    PF0=O('pf0',0)
    pX,pB,pW=T+40,T+41,T+42
    def pfA():
        g.vm(f'global_load_dword v{T+43}, v{pX}, s[16:17]'); g.vm(f'global_load_dword v{T+43}, v{pB}, s[22:23]'); g.vm(f'global_load_dword v{T+43}, v{pB}, s[24:25]')
    def pfF():
        g.vm(f'global_load_dword v{T+43}, v{pW}, s[36:37]'); g.vm(f'global_load_dword v{T+43}, v{pW}, s[38:39]')
    if PF0:
        e('s_lshl_b32 s12, s2, 6'); e(f'v_lshrrev_b32 v{pX}, 2, v0'); e(f'v_add_lshl_u32 v{pX}, v{pX}, s12, 7')
        e('s_lshl_b32 s12, s2, 4'); e(f'v_lshrrev_b32 v{pB}, 4, v0'); e(f'v_add_lshl_u32 v{pB}, v{pB}, s12, 7')
        e('s_mul_i32 s12, s2, 43'); e(f'v_mul_u32_u24 v{pW}, 43, v0'); e(f'v_lshrrev_b32 v{pW}, 8, v{pW}'); e(f'v_add_lshl_u32 v{pW}, v{pW}, s12, 7')
        e('s_waitcnt lgkmcnt(0)')
        if PF0&1: pfA()
        if PF0&2: pfF()
        e(f's_load_dword s{sNON}, s[48:49], {Z_OFF}'); g.smem=True
        stamp('pf')
    e(f'v_lshrrev_b32 v{T+1}, 6, v0')
    e(f'v_and_b32 v{vL}, 63, v0')
    e(f'v_readfirstlane_b32 s{sW}, v{T+1}')
    if O('map','B')=='A':
        e('s_and_b32 s12, s2, 7')
        e(f's_and_b32 s{sRH}, s12, 1'); e('s_lshr_b32 s14, s12, 1')
        e(f's_lshl_b32 s{sRT}, s14, 2'); e('s_lshr_b32 s15, s13, 3'); e(f's_add_u32 s{sRT}, s{sRT}, s15')
        e(f's_and_b32 s{sCT}, s13, 7')
        e(f's_lshl_b32 s{sCG}, s{sRH}, 3'); e(f's_add_u32 s{sCG}, s{sCG}, s{sCT}')
        e(f's_lshl_b32 s{sROT}, s14, 1'); e(f's_and_b32 s11, s{sCT}, {O("rotmask",4)}'); e(f's_add_u32 s{sROT}, s{sROT}, s11')
    else:
        e(f's_and_b32 s12, s2, 4'); e(f's_lshl_b32 s{sRT}, s12, 1'); e('s_lshr_b32 s15, s2, 5'); e(f's_add_u32 s{sRT}, s{sRT}, s15')
        e('s_and_b32 s14, s13, 3')
        e(f's_and_b32 s11, s2, 3'); e(f's_lshl_b32 s{sCG}, s11, 2'); e(f's_add_u32 s{sCG}, s{sCG}, s14')
        e(f's_and_b32 s{sRH}, s2, 1'); e(f's_and_b32 s{sCT}, s2, 2'); e(f's_lshl_b32 s{sCT}, s{sCT}, 1'); e(f's_add_u32 s{sCT}, s{sCT}, s14')
        if O('ctx',5): e(f's_xor_b32 s{sCT}, s{sCT}, {O("ctx",5)}')
        ra,rb,rc,rd_=O('rot',[2,1,0,0])
        e(f's_mul_i32 s{sROT}, s14, {ra}')
        if O('rtmask',7)!=7: e(f's_and_b32 s15, s15, {O("rtmask",7)}')
        if rb: e(f's_mul_i32 s15, s15, {rb}'); e(f's_add_u32 s{sROT}, s{sROT}, s15')
        if rc: e(f's_lshr_b32 s12, s12, 2'); e(f's_mul_i32 s12, s12, {rc}'); e(f's_add_u32 s{sROT}, s{sROT}, s12')
        if rd_: e(f's_mul_i32 s11, s11, {rd_}'); e(f's_add_u32 s{sROT}, s{sROT}, s11')
    l3,l7,l4,hh,sw0=T+8,T+9,T+10,T+11,T+12
    e(f'v_lshrrev_b32 v{l3}, 3, v{vL}'); e(f'v_and_b32 v{l7}, 7, v{vL}'); e(f'v_lshrrev_b32 v{l4}, 4, v{vL}'); e(f'v_lshrrev_b32 v{hh}, 5, v{vL}')
    e(f'v_xor_b32 v{sw0}, v{l7}, v{l4}'); e(f'v_lshlrev_b32 v{sw0}, 4, v{sw0}')
    e(f'v_lshl_add_u32 v{vNat[0]}, v{l3}, 10, v{sw0}')
    e(f'v_xor_b32 v{vNat[1]}, 64, v{vNat[0]}'); e(f'v_add_u32 v{vNat[1]}, 7168, v{vNat[1]}')
    e(f'v_and_b32 v{T+13}, 3, v{l3}'); e(f'v_lshl_add_u32 v{T+13}, v{hh}, 4, v{T+13}')
    e(f'v_lshl_add_u32 v{vXo[0]}, v{T+13}, 10, v{sw0}')
    e(f'v_xor_b32 v{vXo[1]}, 64, v{vXo[0]}'); e(f'v_add_u32 v{vXo[1]}, 3072, v{vXo[1]}')
    e(f'v_add_u32 v{vXo[2]}, 6144, v{vXo[0]}'); e(f'v_add_u32 v{vXo[3]}, 6144, v{vXo[1]}')
    e(f's_lshl_b32 s{sXB}, s{sRT}, 17'); e(f's_lshl_b32 s11, s{sW}, 15'); e(f's_add_u32 s{sXB}, s{sXB}, s11')
    e(f's_lshl_b32 s{sW0B}, s{sCG}, 15'); e(f's_and_b32 s11, s{sW}, 1'); e('s_lshl_b32 s11, s11, 14'); e(f's_add_u32 s{sW0B}, s{sW0B}, s11')
    e(f's_lshl_b32 s{sM0X}, s{sW}, 12'); e(f's_add_u32 s{sM0X}, s{sM0X}, {RING}')
    e(f's_lshl_b32 s{sM0W}, s{sW}, 11'); e(f's_add_u32 s{sM0W}, s{sM0W}, {RING+16384}')
    def mksrd(b,p): e(f's_mov_b32 s{b}, s{p}'); e(f's_mov_b32 s{b+1}, s{p+1}')
    def srdc(b,size): e(f's_mov_b32 s{b+2}, {size}'); e(f's_mov_b32 s{b+3}, 0x20000')
    srdc(SX,2048*1024); srdc(SW0,512*1024)
    e(f's_cmp_lt_u32 s{sW}, 2')
    if not PF0: e('s_waitcnt lgkmcnt(0)')
    stamp('karg')
    if O('stamps'): e(f's_cmp_lt_u32 s{sW}, 2')
    mksrd(SX,16)
    if O('diag')==2:
        e('s_not_b32 s92, s94'); e(f'v_mov_b32 v{T+30}, s92'); e(f'v_mov_b32 v{T+31}, 0')
        e('s_mov_b64 exec, 1'); g.vm(f'global_atomic_umax v{T+31}, v{T+30}, s[46:47]'); e('s_mov_b64 exec, -1')
        e(f's_cmp_lt_u32 s{sW}, 2')
    e(f's_cselect_b32 s{SW0}, s22, s24'); e(f's_cselect_b32 s{SW0+1}, s23, s25')
    blk_last={}
    st={'barr':-1,'free':[0,1],'pendC':[],'pendRel':[],'Frow':{},'Flast':{},'w2n':0,'m0':None,'w2on':False}
    D=O('D',3)
    cur_n=[0]
    def setm0(base,c):
        if st['m0']!=(base,c):
            e(f's_add_u32 m0, s{base}, {c}'); st['m0']=(base,c)
    def streamP():
        for p in range(16):
            while (p>=O('pre',2) and st['barr']<p-D) or (p>=O('hold',9) and not st.get('burst')): yield 'blocked'
            sl=p%NS; ty,q=POS[p]
            if ty=='A':
                e(f's_add_u32 s11, s{sROT}, {q}'); e('s_and_b32 s11, s11, 7'); e('s_lshl_b32 s11, s11, 7')
                e(f's_add_u32 s{sSO}, s{sXB}, s11'); e(f's_add_u32 s{sSO2}, s{sW0B}, s11')
                for a in range(4):
                    setm0(sM0X,sl*SLOT)
                    g.vm(f'buffer_load_dwordx4 v{vXo[a]}, {srd(SX)}, s{sSO} offen offset:{1024*a} lds'); yield
                for a in range(2):
                    setm0(sM0W,sl*SLOT)
                    blk_last[p]=g.vm(f'buffer_load_dwordx4 v{vNat[a]}, {srd(SW0)}, s{sSO2} offen offset:{1024*a} lds'); yield
            else:
                if q==3 and O('pf15',1):
                    e('\n'.join([f's_cmp_eq_u32 s{sCG}, 15','s_cbranch_scc0 L_no15b',
                      f's_mul_i32 s11, s{sRT}, {88*1024}', f's_add_u32 s{SW1}, s{SW2}, s11', f's_addc_u32 s{SW1+1}, s{SW2+1}, 0',
                      f's_add_u32 s{SW3}, s{SW1}, {44*1024}', f's_addc_u32 s{SW3+1}, s{SW1+1}, 0',
                      f's_mov_b32 s{SW1+2}, {44*1024}', f's_cmp_eq_u32 s{sRT}, 15', f's_cselect_b32 s{SW3+2}, {12*1024}, s{SW1+2}',
                      f's_mov_b32 s{sROTF}, 5', 'L_no15b:']))
                e(f's_add_u32 s11, s{sROTF}, {q}'); e('s_and_b32 s11, s11, 7'); e(f's_mul_i32 s{sSO}, s11, s{sFST}')
                for mt,S_ in enumerate((SW1,SW3)):
                    for a in range(3):
                        setm0(sM0F,sl*SLOT+mt*12288)
                        blk_last[p]=g.vm(f'buffer_load_dwordx4 v{vWF[a]}, {srd(S_)}, s{sSO} offen offset:{1024*a} lds'); yield
        while True: yield 'done'
    vTa=[vRA[0],vRA[1]]
    def moveC(gi,row,last):
        assert st.get('tra')
        mt,cb,db=gi>>2,(gi>>1)&1,gi&1
        g.wait(vm=last)
        for s in range(4):
            kap=4*(2*cb+(s>>1))+2*mt+(s&1)
            if row<4: ad=vRAw[s]; off=row*16384
            else:
                ad=T+44+s; off=0
                e(f'v_add_u32 v{ad}, {row*16384}, v{vRAw[s]}')
            i=g.lg(f'ds_read_b128 {ar(128+(kap*2+db)*4,4)}, v{ad} offset:{off}')
        st['pendRel'].append((row,i))
    def service(force=False):
        for it in list(st['pendRel']):
            if force: g.wait(lg=it[1])
            if g.lg_done>=it[1]: st['free'].append(it[0]); st['pendRel'].remove(it)
        if st['pendC'] and st.get('tra') and (force or cur_n[0]-st['pendC'][0][3]>=O('cagen',18) or g.vm_done>=st['pendC'][0][2]):
            moveC(*st['pendC'].pop(0)[:3])
    def gran(gi,row):
        st['Frow'][gi]=row
        if gi>=8:
            e(f's_add_u32 s{sSO3}, s{sW2B}, {32*1024*(gi-8)}'); S_,vo=SW2,vW2o
        else:
            c=gi; mt,cb,db=c>>2,(c>>1)&1,c&1
            e(f's_add_u32 s{sSO3}, s{sCB}, {db*32*1024+cb*128}'); S_,vo=(SCIM if mt else SCRE),vNat
        for a in range(4):
            setm0(sM0R,row*16384)
            st['Flast'][gi]=g.vm(f'buffer_load_dwordx4 v{vo[a]}, {srd(S_)}, s{sSO3} offen offset:{1024*a} lds'); st['w2n']+=1
            if a==3 and gi<8: st['pendC'].append((gi,row,st['Flast'][gi],cur_n[0]))
            yield
    def streamW():
        for gi in range(19):
            while not st['free'] or st.get('quiet') or (st.get('wantrow') and st.get('trow') is None): yield 'blocked'
            yield from gran(gi,st['free'].pop(0))
        while True: yield 'done'
    SP=streamP(); SWs=streamW()
    def pump(n=1):
        r=None
        for _ in range(n):
            r=next(SP)
            if r and st['w2on']:
                service(); r=next(SWs)
        return r
    def barrier(q):
        e('s_barrier'); st['barr']=q
        rel={13:[4],14:[5],15:[6,7],16:[8],17:[2,3]} if O('b16',1) else {13:[4],14:[5],15:[6,7],17:[8,2,3]}
        st['free']+=rel.get(q,[])
        if q>=O('w2from',9): st['w2on']=True
    if O('a0first',1): pump(6)
    e(f's_cmp_eq_u32 s{sW}, 0'); e(f's_cselect_b32 s11, s{sROT}, 0'); e('s_cselect_b32 s12, s42, s18'); e('s_cselect_b32 s13, s43, s19'); e(f's_cselect_b32 s14, 0, {ROW0}')
    e(f'v_add_u32 v{T+14}, s11, v{l3}'); e(f'v_and_b32 v{T+14}, 7, v{T+14}'); e(f'v_lshlrev_b32 v{T+14}, 7, v{T+14}')
    e(f's_cmp_eq_u32 s{sW}, 2'); e('s_cselect_b32 s12, s20, s12'); e('s_cselect_b32 s13, s21, s13')
    e(f's_cmp_eq_u32 s{sW}, 3'); e('s_cselect_b32 s12, s30, s12'); e('s_cselect_b32 s13, s31, s13')
    e(f'v_lshl_add_u32 v{T+14}, v{l7}, 4, v{T+14}')
    e(f's_lshl_b32 s11, s{sW}, 10'); e('s_add_u32 m0, s14, s11'); st['m0']=None
    e(f'v_and_b32 v{vM}, 31, v{vL}')
    gwid=g.vm(f'global_load_lds_dwordx4 v{T+14}, s[12:13]')
    if O('a0first',1): blk_last[0]=gwid
    e(f's_lshl_b32 s11, s{sCG}, 6')
    e(f'v_lshl_add_u32 v{T+15}, v{vM}, 1, s11')
    if not PF0: e(f's_load_dword s{sNON}, s[48:49], {Z_OFF}'); g.smem=True
    if not O('a0first',1): pump(O('a0pre',6))
    if PF0&4: pfF()
    stamp('p0')
    e(f'v_mov_b32 v{T+2}, 0'); e(f'v_mov_b32 v{T+3}, 0'); e(f'v_lshlrev_b32 v{vT8}, 3, v0')
    g.lg(f'ds_write_b64 v{vT8}, {vr(T+2,2)} offset:{XCH_L}')
    e(f'v_lshlrev_b32 v{vHH16}, 4, v{hh}')
    e(f's_lshl_b32 s{sM0R}, s{sW}, 12'); e(f's_add_u32 s{sM0R}, s{sM0R}, {ROW0}')
    e(f'v_bfe_u32 v{T+20}, v{vM}, 1, 3'); e(f'v_xor_b32 v{T+20}, v{T+20}, v{hh}'); e(f'v_lshlrev_b32 v{T+20}, 4, v{T+20}')
    e(f'v_lshl_add_u32 v{vRA[0]}, v{vM}, 7, v{T+20}')
    for s in range(1,4): e(f'v_xor_b32 v{vRA[s]}, {32*s}, v{vRA[0]}')
    XA2=[T+24+s for s in range(4)]; WA=[vRA,[T+28+s for s in range(4)],[T+32+s for s in range(4)]]
    for s in range(4):
        e(f'v_add_u32 v{vRAw[s]}, s{sM0R}, v{vRA[s]}')
        e(f'v_add_u32 v{XA2[s]}, {RING-ROW0+2*SLOT}, v{vRAw[s]}')
        e(f'v_add_u32 v{WA[1][s]}, {RING+16384+2*SLOT}, v{vRA[s]}'); e(f'v_add_u32 v{WA[2][s]}, {RING+16384+4*SLOT}, v{vRA[s]}')
        e(f'v_add_u32 v{vRA[s]}, {RING+16384}, v{vRA[s]}')
    vGA=T+40
    e(f'v_xor_b32 v{T+20}, v{vL}, v{l4}'); e(f'v_and_b32 v{T+20}, 1, v{T+20}'); e(f'v_lshl_add_u32 v{vGA}, v{T+20}, 10, v{vHH16}')
    def side_setup():
        L=[]; A=L.append
        def mk(b,p): A(f's_mov_b32 s{b}, s{p}'); A(f's_mov_b32 s{b+1}, s{p+1}')
        def sc(b,size): A(f's_mov_b32 s{b+2}, {size}'); A(f's_mov_b32 s{b+3}, 0x20000')
        for b,p,size in [(SW1,36,512*2752),(SW3,38,512*2752),(SCRE,26,512*1024),(SCIM,28,512*1024),(SW2,40,1376*1024),(SWS,48,WS_SIZE),(SOUT,44,2048*2048)]:
            mk(b,p); sc(b,size)
        sc(SHE,8192)
        A(f's_mul_i32 s{sM0F}, s{sW}, 3072'); A(f's_add_u32 s{sM0F}, s{sM0F}, {RING}')
        A(f's_mov_b32 s{sFST}, {64*2752}'); A(f's_mov_b32 s{sROTF}, s{sROT}')
        A(f'v_lshlrev_b32 v{vL16}, 4, v{vL}'); A(f'v_lshlrev_b32 v{vM8}, 3, v{vM}')
        A(f's_mul_i32 s15, s{sW}, {16*2752}'); A(f's_mul_i32 s12, s{sCG}, 192'); A('s_add_u32 s15, s15, s12')
        A(f's_mul_i32 s12, s{sCG}, 12'); A('s_movk_i32 s13, 2752'); A(f'v_mov_b32 v{T+23}, {OOB:#x}')
        for a in range(3):
            A(f'v_add_u32 v{T+20}, {64*a}, v{vL}')
            A(f'v_mul_u32_u24 v{T+21}, 43691, v{T+20}'); A(f'v_lshrrev_b32 v{T+21}, 19, v{T+21}')
            A(f'v_mul_u32_u24 v{T+22}, 12, v{T+21}'); A(f'v_sub_u32 v{T+22}, v{T+20}, v{T+22}')
            A(f'v_mul_u32_u24 v{T+21}, s13, v{T+21}')
            A(f'v_lshl_add_u32 v{T+21}, v{T+22}, 4, v{T+21}')
            A(f'v_add_u32 v{T+22}, s12, v{T+22}')
            A(f'v_cmp_gt_u32 vcc, 172, v{T+22}')
            A(f'v_add_u32 v{T+21}, s15, v{T+21}')
            if a: A(f'v_subrev_u32 v{T+21}, {1024*a}, v{T+21}')
            A(f'v_cndmask_b32 v{vWF[a]}, v{T+23}, v{T+21}, vcc')
        if O('pf15',1):
            A('\n'.join([f's_cmp_eq_u32 s{sCG}, 15','s_cbranch_scc0 L_no15',
              f's_lshl_b32 s12, s{sRT}, 15', f's_add_u32 s{SW1}, s26, s12', f's_addc_u32 s{SW1+1}, s27, 0',
              f's_add_u32 s{SW3}, s28, s12', f's_addc_u32 s{SW3+1}, s29, 0',
              f's_mov_b32 s{SW1+2}, 0x8000', f's_mov_b32 s{SW3+2}, 0x8000', f's_mov_b32 s{sROTF}, 0',
              f's_movk_i32 s{sFST}, 12288', f's_mul_i32 s12, s{sW}, 3072',
              f'v_lshl_add_u32 v{vWF[0]}, v{vL}, 4, s12', f'v_mov_b32 v{vWF[1]}, v{vWF[0]}', f'v_mov_b32 v{vWF[2]}, v{vWF[0]}',
              'L_no15:']))
        r_,c_,g1=T+20,T+21,T+22
        A(f'v_bfe_u32 v{r_}, v{vL}, 2, 2'); A(f'v_and_b32 v{c_}, 3, v{vL}'); A(f'v_and_b32 v{g1}, 1, v{l4}')
        A(f'v_lshl_add_u32 v{T+19}, v{hh}, 3, v{r_}'); A(f'v_mul_u32_u24 v{T+19}, 192, v{T+19}')
        A(f'v_lshl_add_u32 v{T+19}, v{g1}, 5, v{T+19}'); A(f'v_lshl_add_u32 v{T+19}, v{c_}, 3, v{T+19}')
        for k in range(3): A(f'v_add_u32 v{vTR[k]}, {RING+2*k*SLOT}, v{T+19}')
        A(f's_lshl_b32 s12, s{sCG}, 13'); A(f's_add_u32 s12, s12, {HE_OFF}')
        A(f's_add_u32 s{SHE}, s48, s12\ns_addc_u32 s{SHE+1}, s49, 0')
        A(f's_lshl_b32 s{sCB}, s{sCT}, 16'); A(f's_lshl_b32 s12, s{sW}, 8'); A(f's_add_u32 s{sCB}, s{sCB}, s12')
        A(f's_mul_i32 s{sW2B}, s{sW}, {352*1024}'); A(f's_lshl_b32 s12, s{sCT}, 7'); A(f's_add_u32 s{sW2B}, s{sW2B}, s12')
        A(f's_lshl_b32 s13, s{sRT}, 2'); A(f's_add_u32 s12, s13, s{sW}'); A(f's_mul_i32 s{sA2S}, s12, {160*1024}'); A(f's_add_u32 s{sA2S}, s{sA2S}, {A2_OFF}')
        A(f's_lshl_b32 s12, s{sRH}, 1'); A('s_add_u32 s12, s12, s13'); A(f's_mul_i32 s{sA2L0}, s12, {160*1024}'); A(f's_add_u32 s{sA2L0}, s{sA2L0}, {A2_OFF}')
        A(f's_add_u32 s{sA2L1}, s{sA2L0}, {160*1024}')
        A(f's_mov_b32 s{sNL2E}, {NLOG2E:#x}')
        A(f'v_add_u32 v{vNat[2]}, {2*7168}, v{vNat[0]}'); A(f'v_add_u32 v{vNat[3]}, {2*7168}, v{vNat[1]}')
        A(f'v_and_b32 v{g1}, 1, v{l4}')
        A(f'v_lshlrev_b32 v{T+19}, 2, v{g1}'); A(f'v_xor_b32 v{T+19}, v{T+19}, v{l7}'); A(f'v_lshlrev_b32 v{T+19}, 4, v{T+19}')
        A(f'v_lshl_add_u32 v{vW2o[0]}, v{l3}, 10, v{T+19}')
        for a in range(1,4): A(f'v_add_u32 v{vW2o[a]}, {7168*a}, v{vW2o[0]}')
        A(f's_sub_u32 s12, 15, s{sRT}'); A('s_lshl_b32 s12, s12, 9')
        A(f'v_lshl_add_u32 v{T+20}, v{vM}, 4, s12')
        A(f'v_cmp_eq_u32 vcc, s{sW}, v{l3}')
        A(f'v_lshl_add_u32 v{vHEo}, v{vHH16}, 6, v{T+20}'); A(f's_lshl_b32 s12, s{sW}, 11'); A('s_add_u32 s12, s12, 512'); A(f'v_add_u32 v{vHEo}, s12, v{vHEo}')
        A(f'v_cndmask_b32 v{T+10}, v{T+23}, v{T+20}, vcc')
        A(f's_lshl_b32 s15, s{sRT}, 1'); A(f's_lshr_b32 s12, s{sW}, 1'); A('s_add_u32 s12, s12, s15'); A(f's_lshl_b32 s12, s12, {FS+5 if FS>2 else 8}')
        A(f's_and_b32 s13, s{sW}, 1'); A(f's_lshl_b32 s14, s{sCG}, 1'); A('s_add_u32 s13, s13, s14'); A(f's_lshl_b32 s13, s13, {FS}')
        A('s_add_u32 s12, s12, s13'); A(f's_add_u32 s12, s12, {FL_OFF}'); A(f'v_lshl_add_u32 v{T+20}, v{vL}, 2, s12')
        A(f'v_cmp_gt_u32 vcc, {32 if FS>2 else 1}, v{vL}'); A(f's_add_u32 s15, s15, s{sRH}')
        A(f's_lshl_b32 s15, s15, {FS+5 if FS>2 else 8}'); A(f's_add_u32 s15, s15, {FL_OFF}'); A(f'v_cndmask_b32 v{vFS}, v{T+23}, v{T+20}, vcc')
        A(f'v_lshl_add_u32 v{vFLo}, v{vM}, {FS}, s15')
        A(f'v_lshlrev_b32 v{vTW}, 6, v{vM}'); A(f'v_lshl_add_u32 v{vTW}, v{vHH16}, 1, v{vTW}'); A(f'v_add_u32 v{vTW}, s{sM0R}, v{vTW}')
        A(f'v_bfe_u32 v{vTRd}, v{vL}, 2, 2'); A(f'v_lshlrev_b32 v{vTRd}, 6, v{vTRd}')
        A(f'v_lshl_add_u32 v{vTRd}, v{vHH16}, 5, v{vTRd}'); A(f'v_and_b32 v{T+20}, 1, v{vL}')
        A(f'v_lshl_add_u32 v{vTRd}, v{T+20}, 5, v{vTRd}'); A(f'v_and_b32 v{T+20}, 16, v{vL}'); A(f'v_add_u32 v{vTRd}, v{T+20}, v{vTRd}')
        A(f'v_and_b32 v{T+20}, 2, v{vL}'); A(f'v_lshl_add_u32 v{vTRd}, v{T+20}, 2, v{vTRd}'); A(f'v_add_u32 v{vTRd}, s{sM0R}, v{vTRd}')
        A(f's_lshl_b32 s12, s{sW}, 2'); A(f's_sub_u32 s12, s{sRT}, s12'); A(f'v_lshrrev_b32 v{vEX}, 3, v{vHH16}'); A(f'v_sub_u32 v{vEX}, s12, v{vEX}')
        A(f'v_max_i32 v{vEX}, 0, v{vEX}'); A(f'v_min_i32 v{vEX}, 2, v{vEX}'); A(f'v_lshlrev_b32 v{vEX}, 1, v{vEX}')
        A(f's_lshl_b32 s{sT0}, s{sCG}, 12'); A(f's_add_u32 s{sT0}, s{sT0}, s{sA2S}')
        A(f's_mul_i32 s{sT1}, s{sCG}, {6*1024}'); A(f's_add_u32 s{sT1}, s{sT1}, s{sA2S}')
        A(f's_add_u32 s16, s{sT1}, {64*1024}'); A(f's_add_u32 s17, s16, 4096')
        A(f's_lshl_b32 s12, s{sW}, 14'); A(f's_add_u32 s26, s{sA2L0}, s12'); A(f's_add_u32 s27, s{sA2L1}, s12')
        A(f's_mul_i32 s12, s{sW}, {22*1024}'); A(f's_add_u32 s12, s12, {64*1024}'); A(f's_add_u32 s28, s{sA2L0}, s12'); A(f's_add_u32 s29, s{sA2L1}, s12')
        A(f's_lshl_b32 s12, s{sW}, 7'); A(f'v_lshl_add_u32 v{T+42}, v{vM}, 2, s12')
        A(f's_mul_i32 s{sNON}, s{sNON}, 1664525'); A(f's_add_u32 s{sNON}, s{sNON}, 1013904223')
        A(f's_cmp_eq_u32 s{sNON}, 0\ns_cselect_b32 s{sNON}, 1013904223, s{sNON}')
        return L
    Ls=side_setup()
    npre=O('setup_pre',90)
    Ls.append(f'v_mov_b32 v{vNON}, s{sNON}')
    print('setup list',len(Ls))
    for i,t in enumerate(Ls[:npre]):
        e(t)
        if i==29 and O('touch',0):
            e(f'v_mov_b32 v{T+19}, 0')
            for S_ in (SW1,SW3,SCRE,SCIM,SW2,SWS): g.vm(f'buffer_load_dword v{T+43}, v{T+19}, {srd(S_)}, 0 offen')
            e(f's_mul_i32 s12, s{sRT}, {640*1024}'); e(f's_add_u32 s12, s12, {A2_OFF}'); e(f's_add_u32 s13, s12, {639*1024}'); e(f's_lshl_b32 s14, s{sRT}, 18')
            g.vm(f'buffer_load_dword v{T+43}, v{T+19}, {srd(SWS)}, s12 offen'); g.vm(f'buffer_load_dword v{T+43}, v{T+19}, {srd(SWS)}, s13 offen')
            g.vm(f'buffer_load_dword v{T+43}, v{T+19}, {srd(SOUT)}, s14 offen')
    g.wait_all_lg()
    stamp('setup')
    pump(6*O('pre',2)-O('a0pre',6))
    if PF0&8: pfF()
    stamp('p1')
    def side_params():
        for i,t in enumerate(Ls[npre:]):
            e(t)
            if i%4==3: yield
        pl=[g.lg(f'ds_read_u16 v{T+16+i}, v{T+15} offset:{ROW0+1024*(i+1)}') for i in range(3)]
        if O('dwarm',1): g.vm(f'global_load_ushort v{T+43}, v{T+15}, s[32:33]')
        while g.lg_done<pl[2]: yield
        lre,lim,dt=T+16,T+17,T+18
        a_,b_,t0,t1=T,T+1,T+2,T+3
        L=[]; A=L.append
        for r in (lre,lim,dt): A(f'v_lshlrev_b32 v{r}, 16, v{r}')
        A(f'v_mul_f32 v{dt}, {LOG2E:#x}, v{dt}'); A(f'v_exp_f32 v{dt}, v{dt}')
        A(f'v_mul_f32 v{t0}, v{lre}, v{lre}')
        A(f'v_cvt_pk_bf16_f32 v{dt}, v{dt}, v{dt}'); A(f'v_lshlrev_b32 v{dt}, 16, v{dt}')
        A(f'v_mul_f32 v{a_}, v{dt}, v{lre}'); A(f'v_mul_f32 v{b_}, v{dt}, v{lim}')
        A(f'v_fma_f32 v{dt}, v{lim}, v{lim}, v{t0}'); A(f'v_rcp_f32 v{dt}, v{dt}')
        A(f'v_mul_f32 v{a_}, {LOG2E:#x}, v{a_}'); A(f'v_exp_f32 v{a_}, v{a_}')
        A(f'v_mul_f32 v{b_}, {INV2PI:#x}, v{b_}'); A(f'v_rndne_f32 v{t0}, v{b_}'); A(f'v_sub_f32 v{b_}, v{b_}, v{t0}')
        A(f'v_cos_f32 v{t0}, v{b_}'); A(f'v_sin_f32 v{t1}, v{b_}')
        A(f'v_add_f32 v{dt}, v{dt}, v{dt}')
        A(f'v_mul_f32 v{vLr}, v{a_}, v{t0}'); A(f'v_mul_f32 v{vLi}, v{a_}, v{t1}')
        A(f'v_add_f32 v{a_}, -1.0, v{vLr}')
        A(f'v_mul_f32 v{vNC2i}, v{vLi}, v{lre}'); A(f'v_mul_f32 v{vC2r}, v{a_}, v{lre}')
        A(f'v_fma_f32 v{vNC2i}, v{a_}, v{lim}, -v{vNC2i}'); A(f'v_fma_f32 v{vC2r}, v{vLi}, v{lim}, v{vC2r}')
        A(f'v_mul_f32 v{vNC2i}, v{vNC2i}, v{dt}'); A(f'v_mul_f32 v{vC2r}, v{vC2r}, v{dt}')
        def csq(dr,di,sr,si,n):
            for k in range(n):
                A(f'v_mul_f32 v{t0}, v{si}, v{si}'); A(f'v_mul_f32 v{t1}, v{sr}, v{si}')
                A(f'v_fma_f32 v{dr}, v{sr}, v{sr}, -v{t0}'); A(f'v_add_f32 v{di}, v{t1}, v{t1}')
                sr,si=dr,di
        csq(vL16r,vL16i,vLr,vLi,4); csq(vL128r,vL128i,vL16r,vL16i,3); csq(vL1kr,vL1ki,vL128r,vL128i,1)
        for i,t in enumerate(L):
            e(t)
            if i&1: yield
    NLi,NL16i,NL128i,NC2r=vXo
    def cfma_ip(ar_,ai_,lr,li,nli,sr,si):
        e(f'v_fmac_f32 v{ar_}, v{lr}, v{sr}'); e(f'v_fmac_f32 v{ai_}, v{lr}, v{si}')
        e(f'v_fmac_f32 v{ar_}, v{nli}, v{si}'); e(f'v_fmac_f32 v{ai_}, v{li}, v{sr}')
    def check(pid,reg,off,tag,lane,vP):
        e(f's_mov_b32 s{sCNT}, 0')
        g.wait(vm=pid)
        e(f'L_{tag}_chk:')
        e(f'v_cmp_ne_u32 vcc, s{sNON}, v{reg}')
        e('s_nop 1')
        e(f's_cbranch_vccz L_{tag}_ok')
        e(f's_add_u32 s{sCNT}, s{sCNT}, 1'); e(f's_cmp_gt_u32 s{sCNT}, {SPIN}'); e(f's_cbranch_scc1 L_{tag}_ok')
        e('s_sleep 1')
        e(f'buffer_load_dword v{reg}, v{vP}, {srd(SWS)}, 0 offen offset:{off} sc1')
        e('s_waitcnt vmcnt(0)'); e(f's_branch L_{tag}_chk')
        e(f'L_{tag}_ok:'); stamp(tag+'_ok')
        if O('stamps'): e(f'v_writelane_b32 v39, s{sCNT}, {lane}')
    vq=[]
    def cf(ar_,ai_,lr,li,nli,sr,si):
        e(f'v_fmac_f32 v{ar_}, v{lr}, v{sr}'); yield
        e(f'v_fmac_f32 v{ai_}, v{lr}, v{si}'); yield
        e(f'v_fmac_f32 v{ar_}, v{nli}, v{si}'); yield
        e(f'v_fmac_f32 v{ai_}, v{li}, v{sr}'); yield
    def seq(L):
        for t in L:
            e(t); yield
    def burst():
        for t in [f'v_xor_b32 v{NLi}, 0x80000000, v{vLi}',f'v_xor_b32 v{NL16i}, 0x80000000, v{vL16i}',f'v_mov_b32 v{T+13}, s{sNON}',f'v_mov_b32 v{T+15}, s{sNON}']: e(t)
        z=T+6; x0,x1=T+4,T+5
        fill=[f'v_and_b32 v{z+1}, 16, v{vL}',f'v_cmp_eq_u32 vcc, 0, v{z+1}',f'v_xor_b32 v{NL128i}, 0x80000000, v{vL1ki}',f'v_bfe_u32 v{x0}, v{vL}, 2, 2',
            f'v_cndmask_b32 v{z}, v{ZA+1}, v{ZA}, vcc',f'v_cvt_pk_bf16_f32 v{z}, v{z}, v{z}',f'v_lshlrev_b32 v{z}, 16, v{z}',
            f'v_mul_f32 v{z}, s{sNL2E}, v{z}',f'v_exp_f32 v{z}, v{z}',f'v_add_f32 v{z}, 1.0, v{z}',f'v_rcp_f32 v{z}, v{z}',
            f'v_cvt_pk_bf16_f32 v{z}, v{z}, v{z}',f'v_lshlrev_b32 v{z}, 16, v{z}',
            f'v_sub_f32 v{z+1}, 1.0, v{z}',f'v_cvt_pk_bf16_f32 v{z+1}, v{z+1}, v{z+1}',f'v_lshlrev_b32 v{z+1}, 16, v{z+1}',
            f'v_rcp_f32 v{vCinv}, v{z+1}',f'v_lshlrev_b32 v{x0}, 7, v{x0}',f'v_min_f32 v{vCinv}, 0x7e967699, v{vCinv}',f'v_mov_b32 v{vCinv+1}, v{vCinv}',
            f'v_lshl_add_u32 v{x0}, v{vHH16}, 5, v{x0}',
            f'v_and_b32 v{x1}, 8, v{vL}',f'v_lshl_add_u32 v{x0}, v{x1}, 3, v{x0}',f'v_and_b32 v{x1}, 16, v{vL}',f'v_lshl_add_u32 v{x0}, v{x1}, 1, v{x0}',
            f'v_and_b32 v{x1}, 3, v{vL}',f'v_lshl_add_u32 v{x0}, v{x1}, 3, v{x0}',f'v_add_u32 v{vTa[0]}, s{sM0R}, v{x0}',f'v_xor_b32 v{vTa[1]}, 64, v{vTa[0]}',
            f'v_mov_b32 v{T}, v{vC2r}',f'v_mov_b32 v{T+1}, v{vNC2i}']
        for t in range(1,16):
            e(f'v_fmac_f32 v{URE+t}, v{vLr}, v{URE+t-1}'); e(f'v_fmac_f32 v{UIM+t}, v{vLr}, v{UIM+t-1}'); e(fill.pop(0))
            e(f'v_fmac_f32 v{URE+t}, v{NLi}, v{UIM+t-1}'); e(f'v_fmac_f32 v{UIM+t}, v{vLi}, v{URE+t-1}'); e(fill.pop(0))
        e(f'v_mov_b32 v{T+2}, v{URE+15}'); e(f'v_mov_b32 v{T+3}, v{UIM+15}')
        for t in fill: e(t)
        g.lg(f'ds_write_b64 v{vT8}, {vr(T+2,2)} offset:{E_L}'); lw=g.lg(f'ds_write_b32 v{T+42}, v{z} offset:{G_L}')
        st['tra']=True
        def coef(u):
            o=T+32+2*((u>>1)&1)
            return [f'v_pk_mul_f32 {vr(o,2)}, {vr(UIM+u,2)}, {vr(T,2)} op_sel:[0,1] op_sel_hi:[1,1]',
                    f'v_pk_mul_f32 {vr(UIM+u,2)}, {vr(UIM+u,2)}, {vr(T,2)} op_sel_hi:[1,0] neg_lo:[0,1] neg_hi:[0,1]',
                    f'v_pk_fma_f32 {vr(UIM+u,2)}, {vr(URE+u,2)}, {vr(T,2)}, {vr(UIM+u,2)} op_sel:[0,1,0] op_sel_hi:[1,1,1]',
                    f'v_pk_fma_f32 {vr(URE+u,2)}, {vr(URE+u,2)}, {vr(T,2)}, {vr(o,2)} op_sel_hi:[1,0,1]']
        def coef2(u):
            a,b=coef(u),coef(u+2)
            for i in range(4): e(a[i]); e(b[i])
        coef2(0)
        g.wait(lg=lw); e('s_barrier')
        ids=[g.lg(f'ds_read_b64 {vr(T+16+2*s,2)}, v{vM8} offset:{E_L+256*s}') for s in range(8)]
        e(f's_lshl_b32 s12, s{sW}, 7'); e(f'v_add_u32 v{x0}, s12, v{vHH16}')
        for j in range(4): gi_=g.lg(f'ds_read_b128 {vr(WR+4*j,4)}, v{x0} offset:{G_L+32*j}')
        coef2(4); coef2(8); coef2(12)
        g.wait(lg=gi_)
        for u in range(0,16,2):
            e(f'v_pk_mul_f32 {vr(URE+u,2)}, {vr(URE+u,2)}, {vr(WR+u,2)}'); e(f'v_pk_mul_f32 {vr(UIM+u,2)}, {vr(UIM+u,2)}, {vr(WR+u,2)}')
        for s in range(1,8): cfma_ip(T+16+2*s,T+17+2*s,vL16r,vL16i,NL16i,T+14+2*s,T+15+2*s)
        e(f'v_mov_b32 v{T+12}, v{T+30}'); e(f'v_mov_b32 v{T+14}, v{T+31}')
        st['burst']=True
        pump(O('bpump',6))
        g.vm(f'buffer_store_dwordx4 {vr(T+12,4)}, v{T+10}, {srd(SHE)}, 0 offen sc1'); stamp('he_pub')
    def slot():
        if st.get('wantrow') and st.get('trow') is None:
            service()
            if st['free']: st['trow']=st['free'].pop(0)
        if vq:
            f=vq.pop(0)
            if f: f(); return None
        return pump(1)
    hel=lambda jj:f'buffer_load_dwordx4 {vr(T+16+4*jj,4)}, v{vHEo}, {srd(SHE)}, 0 offen offset:{512*jj} sc1'
    he={}
    def hecheck():
        cnt=T+8
        e(f's_mov_b32 s{sCNT}, 0')
        g.wait(vm=he[1])
        e('L_he_chk:')
        e(f'v_mov_b32 v{cnt}, 0')
        for jj in range(2):
            e(f'v_cmp_eq_u32 vcc, s{sNON}, v{T+16+4*jj+1}'); e(f'v_cmp_eq_u32 s[12:13], s{sNON}, v{T+16+4*jj+3}')
            e(f'v_addc_co_u32 v{cnt}, vcc, 0, v{cnt}, vcc'); e(f'v_addc_co_u32 v{cnt}, s[12:13], 0, v{cnt}, s[12:13]')
        e(f'v_cmp_ne_u32 vcc, v{cnt}, v{vEX}')
        e('s_nop 1')
        e('s_cbranch_vccz L_he_ok')
        e(f's_add_u32 s{sCNT}, s{sCNT}, 1'); e(f's_cmp_gt_u32 s{sCNT}, {SPIN}'); e('s_cbranch_scc1 L_he_ok')
        e('s_sleep 1')
        for jj in range(2): e(hel(jj))
        e('s_waitcnt vmcnt(0)'); e('s_branch L_he_chk')
        e('L_he_ok:'); stamp('he_ok')
        if O('stamps'): e(f'v_writelane_b32 v39, s{sCNT}, 60')
        for t in [f'v_fma_f32 v{T+8}, v{vL128r}, v{T+20}, v{T+16}',f'v_fma_f32 v{T+9}, v{vL128r}, v{T+22}, v{T+18}',
                  f'v_fma_f32 v{T+8}, -v{vL128i}, v{T+22}, v{T+8}',f'v_fmac_f32 v{T+9}, v{vL128i}, v{T+20}']: e(t)
        return g.lg(f'ds_write_b64 v{vT8}, {vr(T+8,2)} offset:{PQ_L}')
    GG=T+16; WRe,WIm,L2=T,T+4,T+8; vPF,vPS=vXo[3],vEX
    def side2():
        st['rate']=O('rate2',[4,4,3])
        while cur_n[0]<O('he_at',112): yield 'gap'
        for jj in range(2): vq.append(lambda jj=jj: he.__setitem__(jj,g.vm(hel(jj))))
        while cur_n[0]<O('he_chk',134): yield 'gap'
        st['elw']=hecheck(); b0=st['barr']; yield 'gap'
        y=T+32
        yield from seq([f's_mul_i32 s12, s{sW}, 11','s_mul_i32 s13, s12, 43691','s_lshr_b32 s13, s13, 17','s_lshl_b32 s13, s13, 1',
            's_add_u32 s12, s12, 10','s_mul_i32 s14, s12, 43691','s_lshr_b32 s14, s14, 17','s_lshl_b32 s14, s14, 1','s_add_u32 s14, s14, 1',
            f'v_max_u32 v{y}, s13, v{vM}',f'v_min_u32 v{y}, s14, v{y}',f'v_sub_u32 v{y}, v{y}, v{vM}',f'v_lshl_add_u32 v{vPF}, v{y}, {FS}, v{vFLo}',
            f's_lshl_b32 s13, s{sW}, 3',f'v_and_b32 v{y}, 7, v{vM}',f'v_add_u32 v{y}, s13, v{y}',f'v_sub_u32 v{y}, v{y}, v{vM}',f'v_lshl_add_u32 v{vPS}, v{y}, {FS}, v{vFLo}'])
        while st['barr']==b0: yield 'gap'
        ids=[]
        for s in range(8):
            ids.append(g.lg(f'ds_read_b64 {vr(T+16+2*s,2)}, v{vM8} offset:{PQ_L+256*(7-s)}')); yield
        while g.lg_done<ids[7]: yield 'gap'
        for s in range(1,8): yield from cf(T+16+2*s,T+17+2*s,vL1kr,vL1ki,NL128i,T+14+2*s,T+15+2*s)
        g.lg(f'ds_write_b64 v{vM8}, {vr(T+30,2)} offset:{HIN_L}'); yield
        ids=[]
        for k in range(8):
            ids.append(g.lg(f'ds_read_b64 {vr(T+2*k,2)}, v{vT8} offset:{XCH_L+256*k}')); yield
        e(f's_lshl_b32 s12, s{sW}, 7'); e(f'v_add_u32 v{y}, s12, v{vHH16}'); yield
        for j in range(4):
            g.lg(f'ds_read_b128 {vr(GG+4*j,4)}, v{y} offset:{G_L+32*j}'); yield
        while g.lg_done<ids[7]: yield 'gap'
        for k in range(1,8): yield from cf(T+2*k,T+2*k+1,vL16r,vL16i,NL16i,T+2*k-2,T+2*k-1)
        P=[(T,T+1),(T+2,T+3)]
        st['rate']=O('rate3',[4,4,3])
        yield from seq([f'v_mul_f32 v{T+2}, v{vC2r}, v{T+14}',f'v_mul_f32 v{T+3}, v{vNC2i}, v{T+14}',
                        f'v_fmac_f32 v{T+2}, v{vNC2i}, v{T+15}',f'v_fma_f32 v{T+3}, -v{vC2r}, v{T+15}, v{T+3}'])
        for t in range(17):
            d,c=P[t&1],P[1-(t&1)]; L=[]
            if t<16: L+=[f'v_mul_f32 v{d[0]}, v{vLr}, v{c[0]}',f'v_mul_f32 v{d[1]}, v{vLr}, v{c[1]}']
            if t>0: L+=[f'v_fmac_f32 v{URE+t-1}, v{GG+t-1}, v{c[0]}',f'v_fmac_f32 v{UIM+t-1}, v{GG+t-1}, v{c[1]}']
            if t<16: L+=[f'v_fmac_f32 v{d[0]}, v{vLi}, v{c[1]}',f'v_fmac_f32 v{d[1]}, v{NLi}, v{c[0]}']
            if t>0 and t%2==0:
                u=t-2; L+=[f'v_cvt_pk_bf16_f32 v{URE+(u>>1)}, v{URE+u}, v{URE+u+1}',f'v_cvt_pk_bf16_f32 v{UIM+(u>>1)}, v{UIM+u}, v{UIM+u+1}']
            if t==11: st['wantrow']=True
            yield from seq(L)
        while st.get('trow') is None: yield 'gap'
        row=st['trow']
        if row>=4:
            e(f'v_add_u32 v{vTW}, {row*16384}, v{vTW}'); e(f'v_add_u32 v{vTRd}, {row*16384}, v{vTRd}'); ro=0
        else: ro=row*16384
        for mt,b in enumerate((URE,UIM)):
            g.lg(f'ds_write_b128 v{vTW}, {vr(b,4)} offset:{ro+2048*mt}'); yield 'gap'
            g.lg(f'ds_write_b128 v{vTW}, {vr(b+4,4)} offset:{ro+2048*mt+16}'); yield 'gap'
        for mt in range(2):
            for ks in range(2):
                for rho in range(2):
                    tl=g.lg(f'ds_read_b64_tr_b16 {vr(T+8*mt+4*ks+2*rho,2)}, v{vTRd} offset:{ro+2048*mt+ks*1024+rho*256}'); yield
        st['pendRel'].append((row,tl))
        if O('quiet',1): st['quiet']=True
        while g.lg_done<tl: yield 'gap'
        for i in range(4):
            sst=g.vm(f'buffer_store_dwordx4 {vr(T+4*i,4)}, v{vL16}, {srd(SWS)}, s{sT0} offen offset:{i*1024} sc1'); yield 'gap'
            for _ in range(O('sgap',1)): yield 'gap'
        stamp('sst'); n0=cur_n[0]; print('S stores gap',n0)
        while cur_n[0]<n0+O('slag',22) and cur_n[0]<286:
            if cur_n[0]>=n0+O('qlen',10): st['quiet']=False
            yield 'gap'
        g.wait(vm=sst); g.vm(f'buffer_store_dword v{vNON}, v{vFS}, {srd(SWS)}, 0 offen sc1'); stamp('sflag'); st['quiet']=False; print('S flag gap',cur_n[0])
    GR=[]
    for p,(ty,q) in enumerate(POS):
        for i in range(4 if ty=='A' else 8): GR.append((p,ty,q,i))
    lastA=max(i for i,x in enumerate(GR) if x[1]=='A')
    rdone={}
    def greads(gi):
        p,ty,q,i=GR[gi]; sl=p%NS; L=[]
        if i==0:
            def b_():
                g.wait(vm=blk_last[p],lg=st.get('elw')); barrier(p); stamp(f'{ty}{q}')
            pre=b_
        else: pre=None
        if ty=='A':
            s=i; b=128+12*((4*q+s)%8)
            xa,xo=(vRAw[s],RING-ROW0+sl*SLOT) if sl<2 else (XA2[s],(sl-2)*SLOT)
            wa=WA[sl>>1][s]; wo=(sl&1)*SLOT
            L=[f'ds_read_b128 {ar(16*q+4*s,4)}, v{xa} offset:{xo}',f'ds_read_b128 {ar(b,4)}, v{wa} offset:{wo}',
               f'ds_read_b128 {ar(b+4,4)}, v{wa} offset:{wo+4096}',f'ds_read_b128 {ar(b+8,4)}, v{vGA} offset:{GW_L+q*128+s*32}']
        else:
            for j in range(3):
                n=24*q+3*i+j; s,f=(n%24)//6,n%6; pair,mt=f>>1,f&1
                off=(sl&1)*SLOT+mt*12288+s*3072+pair*64; b=WR+4*(n%8)
                L+=[f'ds_read_b64_tr_b16 {vr(b+2*h,2)}, v{vTR[sl>>1]} offset:{off+768*h}' for h in range(2)]
        return pre,L
    def doreads(gi,part):
        if gi>=len(GR): return
        pre,L=greads(gi); h=len(L)//2
        if part==0 and pre: pre()
        for t in (L[:h] if part==0 else L[h:]): rdone[gi]=g.lg(t)
    def gm(gi,j):
        p,ty,q,i=GR[gi]
        if ty=='A':
            n=4*q+i; b=128+12*(n%8); x=ar(4*n,4); z=(n==0)
            if j==0: e(f'v_mfma_f32_32x32x16_bf16 {vr(URE,16)}, {x}, {ar(b,4)}, {"0" if z else vr(URE,16)}')
            if j==1: e(f'v_mfma_f32_32x32x16_bf16 {vr(UIM,16)}, {x}, {ar(b+4,4)}, {"0" if z else vr(UIM,16)}')
            if j==2: e(f'v_mfma_f32_16x16x32_bf16 {vr(ZA,4)}, {ar(b+8,4)}, {x}, {"0" if z else vr(ZA,4)}')
        else:
            n=24*q+3*i+j; s,f=(n%24)//6,n%6; acc=vr(ACC+16*f,16)
            e(f'v_mfma_f32_32x32x16_bf16 {acc}, {vr(WR+4*(n%8),4)}, {ar(16*q+4*s,4)}, {"0" if n<6 else acc}')
    for gi in range(2): doreads(gi,0); doreads(gi,1)
    side=side_params(); mid=False
    for gi in range(len(GR)):
        p,ty,q,i=GR[gi]
        g.wait(lg=rdone[gi])
        for j in range(3):
            cur_n[0]=3*gi+j
            gm(gi,j)
            if j<2 and not (gi<=lastA<gi+2): doreads(gi+2,j)
            if p==15 and i==0 and j==1 and O('b16',1): barrier(16)
            if j==2 or (ty=='A' and j==0) or (j==0 and O('xs',2) and (gi%O('xs',2)==0 or gi>=O('xs1',50)) and gi>=O('xs0',0)): slot()
            if not mid: next(side,None)
            else:
                for _ in range(st.get('rate',[4,4,4])[j]):
                    if next(side,'gap')=='gap': break
        if gi==lastA:
            for _ in side: pass
            stamp('A_end'); burst(); side=side2(); mid=True
            for k_ in (1,2): doreads(gi+k_,0); doreads(gi+k_,1)
    for _ in side: raise Exception('side left')
    g.wait_all_lg(); barrier(17); stamp('1b_end'); print('w2n at 1b_end',st['w2n'])
    pump(O('t0pump',0))
    E0=WR
    vL16F=T+16
    pol=T+34
    aid={}
    def aload(k):
        base,kk=(26,k) if k<16 else (28,k-16)
        if kk%4==0: e(f's_add_u32 s20, s{base}, {kk*1024}'); e(f's_add_u32 s21, s{base+1}, {kk*1024}')
        for tb in range(2):
            aid[k]=g.vm(f'buffer_load_dwordx4 {ar(8*(k%16)+4*tb,4)}, v{vL16}, {srd(SWS)}, s{20+tb} offen offset:{(kk%4)*1024} sc1')
    ALA=O('ala',8); na=[0]
    fl={}
    e(f's_cmp_eq_u32 s{sCG}, 15'); e(f's_cselect_b32 s12, {OOB:#x}, 0'); e(f'v_or_b32 v{vL16F}, s12, v{vL16}')
    for pr in range(3):
        G=ACC+32*pr; Uu=G+16
        for h in range(2):
            k=2*pr+h
            R=range(8*h,8*h+8,2)
            for i in R: e(f'v_pk_mul_f32 {vr(E0+i%8,2)}, {vr(G+i,2)}, s[{sNL2E}:{sNL2E+1}] op_sel_hi:[1,0]')
            for i in range(8): e(f'v_exp_f32 v{E0+i}, v{E0+i}')
            for i in R: e(f'v_pk_mul_f32 {vr(G+i,2)}, {vr(G+i,2)}, {vr(Uu+i,2)}')
            for i in R: e(f'v_pk_fma_f32 {vr(E0+i%8,2)}, {vr(E0+i%8,2)}, {vr(vCinv,2)}, {vr(vCinv,2)}')
            for i in range(8): e(f'v_rcp_f32 v{E0+i}, v{E0+i}')
            for i in R: e(f'v_pk_mul_f32 {vr(G+i,2)}, {vr(G+i,2)}, {vr(E0+i%8,2)}')
            pk=E0+8+4*k
            for i in range(4): e(f'v_cvt_pk_bf16_f32 v{pk+i}, v{G+8*h+2*i}, v{G+8*h+2*i+1}')
            if k==O('poll_k',0): pid=g.vm(f'buffer_load_dword v{pol}, v{vPS}, {srd(SWS)}, 0 offen sc1')
            if k==O('chk_k',3):
                check(pid,pol,0,'fs',61,vPS)
                for _ in range(O('apre',4)): aload(na[0]); na[0]+=1
            fst=g.vm(f'buffer_store_dwordx4 {vr(pk,4)}, v{vL16F}, {srd(SWS)}, s{16 if k<4 else 17} offen offset:{(k%4)*1024} sc1')
    stamp('ffn_epi'); print('w2n at ffn_epi',st['w2n'])
    assert st['w2n']>=32
    while st['pendC']: service(force=True)
    if O('chk_k',3)>5: check(pid,pol,0,'fs',61,vPS)
    while na[0]<O('apre2',4): aload(na[0]); na[0]+=1
    def drain(n):
        for _ in range(n):
            r=pump(1)
            if r=='blocked' and (st['pendC'] or st['pendRel']):
                service(force=True); service(force=True); r=pump(1)
    vT0=[vTa[0],T+20,T+21]; vT1=[vTa[1],T+22,T+23]
    for k in (1,2):
        e(f'v_add_u32 v{vT0[k]}, {65536*k}, v{vT0[0]}'); e(f'v_add_u32 v{vT1[k]}, {65536*k}, v{vT1[0]}')
    x0,x1=URE+30,URE+31
    XS=URE+16; DS=URE+24; vXa=URE+26; vOa=URE+27; vGe=T+8; vZa=URE+28
    e(f's_lshl_b32 s13, s{sRT}, 7'); e(f's_lshl_b32 s12, s{sRH}, 6'); e('s_add_u32 s13, s13, s12')
    e(f's_lshr_b32 s12, s{sW}, 1'); e('s_lshl_b32 s12, s12, 5'); e('s_add_u32 s13, s13, s12')
    e(f's_and_b32 s12, s{sW}, 1'); e('s_lshl_b32 s12, s12, 3'); e('s_add_u32 s13, s13, s12')
    e(f'v_lshrrev_b32 v{x0}, 4, v{vL}'); e(f'v_add_u32 v{x0}, s13, v{x0}')
    e(f'v_and_b32 v{x1}, 15, v{vL}'); e(f's_lshl_b32 s12, s{sCT}, 7'); e(f'v_lshl_add_u32 v{x1}, v{x1}, 3, s12')
    e(f'v_lshl_add_u32 v{vXa}, v{x0}, 10, v{x1}'); e(f'v_lshlrev_b32 v{vOa}, 1, v{vXa}')
    e(f's_lshl_b32 s13, s{sCG}, 2'); e(f's_add_u32 s13, s13, s{sW}'); e(f's_xor_b32 s12, s{sRT}, 15'); e('s_or_b32 s13, s13, s12')
    e(f'v_or_b32 v{vZa}, s13, v{vL}'); e(f'v_cmp_eq_u32 vcc, 0, v{vZa}'); e(f'v_mov_b32 v{vZa}, {OOB:#x}'); e(f'v_cndmask_b32 v{vZa}, v{vZa}, 0, vcc')
    def small_loads():
        g.vm(f'global_load_dwordx2 {vr(DS,2)}, v{x1}, s[32:33]')
        for it in range(4):
            e(f's_movk_i32 s14, {(16*(it&1)+4*(it>>1))*1024}')
            st['xl']=g.vm(f'buffer_load_dwordx2 {vr(XS+2*it,2)}, v{vXa}, {srd(SX)}, s14 offen')
    stamp('p2s')
    def fflag():
        g.wait(vm=fst); g.vm(f'buffer_store_dword v{vNON}, v{vFS}, {srd(SWS)}, 0 offen offset:128 sc1'); stamp('fflag')
    if O('fflag_k',2)<0: fflag()
    g.wait_all_lg()
    wid={}
    def wread(k):
        u,ks=(k-16)>>1,k&1; gi=8+u
        assert st['w2n']>=4*gi+4,(k,st['w2n'])
        g.wait(vm=st['Flast'][gi]); row=st['Frow'][gi]
        for db in range(2):
            b=WR+8*(k%4)+4*db
            ad=(vT0,vT1)[db][row>>2]
            for rho in range(2):
                wid[k]=g.lg(f'ds_read_b64_tr_b16 {vr(b+2*rho,2)}, v{ad} offset:{(row&3)*16384+ks*2048+rho*1024}')
    wj=[T+4,T+5,T+6,T+7]; rd=[T+40,T+41]; SK=URE; dsk=[T+42+i for i in range(4)]
    def side_fin():
        y0,y1=T+16,T+17
        e(f'v_lshrrev_b32 v{y0}, 4, v{vM}'); e(f'v_lshlrev_b32 v{y0}, 14, v{y0}'); e(f'v_and_b32 v{y1}, 15, v{vM}'); yield
        e(f'v_lshl_add_u32 v{y0}, v{y1}, 8, v{y0}'); e(f'v_and_b32 v{y1}, 7, v{vM}'); e(f'v_lshlrev_b32 v{y1}, 4, v{y1}'); yield
        e(f'v_xor_b32 v{y1}, v{y1}, v{vHH16}'); e(f'v_add3_u32 v{wj[0]}, v{y0}, v{y1}, s{sM0R}'); yield
        for j in range(1,4): e(f'v_xor_b32 v{wj[j]}, {32*j}, v{wj[0]}')
        yield
        e(f'v_lshrrev_b32 v{y0}, 4, v{vL}'); e(f'v_and_b32 v{y1}, 15, v{vL}'); e(f'v_xor_b32 v{y1}, v{y1}, v{y0}'); yield
        e(f'v_lshlrev_b32 v{y1}, 4, v{y1}'); e(f'v_lshl_add_u32 v{y1}, v{y0}, 8, v{y1}'); yield
        e(f's_lshl_b32 s12, s{sW}, 14'); e(f's_add_u32 s12, s12, {ROW0}'); e(f'v_add_u32 v{rd[0]}, s12, v{y1}'); e(f'v_xor_b32 v{rd[1]}, 64, v{rd[0]}'); yield
        e(f's_lshl_b32 s13, s{sRH}, 8'); e(f's_lshl_b32 s12, s{sW}, 6'); e('s_add_u32 s12, s12, s13'); e(f'v_lshl_add_u32 v{y0}, v{y0}, 2, s12'); yield
        for it in range(4): gl=g.lg(f'ds_read_b32 v{vGe+it}, v{y0} offset:{G_L+16*it}')
        yield
        while 'xl' not in st or g.nvm-st['xl']<12: yield
        g.wait(vm=st['xl'])
        e(f'v_lshlrev_b32 v{dsk[0]}, 16, v{DS}'); e(f'v_and_b32 v{dsk[1]}, 0xffff0000, v{DS}'); yield
        e(f'v_lshlrev_b32 v{dsk[2]}, 16, v{DS+1}'); e(f'v_and_b32 v{dsk[3]}, 0xffff0000, v{DS+1}'); yield
        g.wait(lg=gl)
        for it in range(4):
            for h in range(2):
                a,b=SK+4*it+2*h,SK+4*it+2*h+1
                e(f'v_lshlrev_b32 v{a}, 16, v{XS+2*it+h}'); e(f'v_and_b32 v{b}, 0xffff0000, v{XS+2*it+h}')
                e(f'v_mul_f32 v{a}, v{a}, v{dsk[2*h]}'); yield
                e(f'v_mul_f32 v{b}, v{b}, v{dsk[2*h+1]}')
                e(f'v_cvt_pk_bf16_f32 v{b}, v{a}, v{b}')
                e(f'v_lshlrev_b32 v{a}, 16, v{b}'); yield
                e(f'v_and_b32 v{b}, 0xffff0000, v{b}')
                e(f'v_mul_f32 v{a}, v{a}, v{vGe+it}'); e(f'v_mul_f32 v{b}, v{b}, v{vGe+it}'); yield
    side=side_fin()
    pid2=None
    FK=O('fchk_k',12)
    for k in range(38):
        if 16<=k+2<38: wread(k+2)
        g.wait(vm=aid[k])
        if k>=16: g.wait(lg=wid[k])
        if k in (0,8,16,24,32): stamp(f'k{k}')
        for db in range(2):
            for tb in range(2):
                acc=vr(ACC+16*(2*db+tb),16)
                Wf=ar(128+(k*2+db)*4,4) if k<16 else vr(WR+8*(k%4)+4*db,4)
                e(f'v_mfma_f32_32x32x16_bf16 {acc}, {Wf}, {ar(8*(k%16)+4*tb,4)}, {"0" if k==0 else acc}')
                next(side,None)
            if db==0:
                if k==FK: check(pid2,pol+1,128,'ff',59,vPF)
                lim=min(38,k+ALA+1) if k>=FK else min(16,k+ALA+1)
                cnt_=0
                while na[0]<lim and cnt_<O('acatch',2): aload(na[0]); na[0]+=1; cnt_+=1
                if k==FK-O('poll2_lead',4): pid2=g.vm(f'buffer_load_dword v{pol+1}, v{vPF}, {srd(SWS)}, 0 offen offset:128 sc1')
        if k==O('fflag_k',2): fflag()
        if k in (17,19): st['free'].append(st['Frow'][8+((k-16)>>1)])
        cur_n[0]+=6
        if st['w2n']<76 and k>=O('mix0',4): drain(O('mix',3))
        if k==O('small_at',9): small_loads()
    for _ in side: raise Exception('side_fin left')
    stamp('p2_end')
    for db in range(2):
        for tb in range(2):
            for j in range(4):
                g.lg(f'ds_write_b128 v{wj[j]}, {vr(ACC+16*(2*db+tb)+4*j,4)} offset:{db*128+tb*32768}')
    g.wait_all_lg(); e('s_barrier'); stamp('red')
    g.vm(f'buffer_store_dword v{vNON}, v{vZa}, {srd(SWS)}, 0 offen offset:{Z_OFF} sc1')
    RB=ACC
    ids={}
    for it in range(4):
        for w2 in range(4):
            ids[it,w2]=g.lg(f'ds_read_b128 {vr(RB+16*it+4*w2,4)}, v{rd[it&1]} offset:{w2*4096+it*1024}')
    for it in range(4):
        g.wait(lg=ids[it,3])
        b=RB+16*it
        for i in (0,2): e(f'v_pk_add_f32 {vr(b+i,2)}, {vr(b+i,2)}, {vr(SK+4*it+i,2)}')
        for i in (0,2): e(f'v_pk_add_f32 {vr(b+4+i,2)}, {vr(b+4+i,2)}, {vr(b+8+i,2)}')
        for i in (0,2): e(f'v_pk_add_f32 {vr(b+i,2)}, {vr(b+i,2)}, {vr(b+12+i,2)}')
        for i in (0,2): e(f'v_pk_add_f32 {vr(b+i,2)}, {vr(b+i,2)}, {vr(b+4+i,2)}')
        e(f's_mov_b32 s12, {(16*(it&1)+4*(it>>1))*2048}')
        g.vm(f'buffer_store_dwordx4 {vr(b,4)}, v{vOa}, {srd(SOUT)}, s12 offen {O("outfl","sc1")}')
    if O('stamps'):
        stamp('st_iss')
        e('s_waitcnt vmcnt(0)'); stamp('end',True)
        e('s_memrealtime s[94:95]'); e('s_waitcnt lgkmcnt(0)'); e('v_writelane_b32 v39, s94, 63')
        e(f's_lshl_b32 s11, s2, 10'); e(f's_add_u32 s11, s11, {WS_SIZE}'); e(f's_add_u32 s{SWS+2}, s{SWS+2}, 0x40000')
        e(f'v_lshlrev_b32 v{T}, 2, v0')
        e(f'buffer_store_dword v39, v{T}, {srd(SWS)}, s11 offen')
        if O('dbg'):
            sel=['start','setup','B0','B4','B8','B12','1b_end','ssm_fin','ffn_epi','w2_issued','fs_ok','k16','p2_end','end']
            e('s_mov_b32 s60, s46'); e('s_mov_b32 s61, s47'); e('s_mov_b32 s62, 256'); e('s_mov_b32 s63, 0x20000')
            e('v_readlane_b32 s12, v39, 62'); e('v_readlane_b32 s13, v39, 0'); e('s_not_b32 s12, s12')
            e(f'v_mov_b32 v{T+1}, s94'); e(f'v_mov_b32 v{T+2}, s12'); e(f'v_mov_b32 v{T+3}, 0'); e(f'v_mov_b32 v{T+4}, {OOB:#x}')
            e(f'v_cmp_eq_u32 vcc, 0, v0'); e(f'v_cndmask_b32 v{T+3}, v{T+4}, v{T+3}, vcc')
            e(f'buffer_atomic_umax v{T+1}, v{T+3}, s[60:63], 0 offen'); e(f'buffer_atomic_umax v{T+2}, v{T+3}, s[60:63], 0 offen offset:4')
            e('s_cmp_eq_u32 s2, 100'); e('s_cbranch_scc0 L_end')
            for i,nm in enumerate(sel):
                e(f'v_readlane_b32 s12, v39, {stamps.index(nm)}'); e('s_sub_u32 s12, s12, s13'); e(f'v_mov_b32 v{T+1}, s12')
                e(f'buffer_store_dword v{T+1}, v{T+3}, s[60:63], 0 offen offset:{8+4*i}')
    if O('diag'):
        e('s_waitcnt vmcnt(0)')
        if O('diag')==2:
            e(f'v_mov_b32 v{T+31}, 0'); e(f'global_load_dword v{T+30}, v{T+31}, s[46:47] sc1'); e('s_waitcnt vmcnt(0)')
            e(f'v_readfirstlane_b32 s94, v{T+30}'); e('s_nop 3'); e('s_not_b32 s94, s94')
        if O('dpt'):
            e('s_waitcnt lgkmcnt(0)'); e('s_sub_u32 s12, s92, s94'); e('s_lshl_b32 s12, s12, 1')
            e('s_memrealtime s[92:93]'); e('s_waitcnt lgkmcnt(0)')
        else:
            e('s_memrealtime s[92:93]'); e('s_waitcnt lgkmcnt(0)'); e('s_sub_u32 s12, s92, s94')
        e('s_min_u32 s12, s12, 20000'); e('s_add_u32 s12, s12, s92')
        e('L_dg:'); e('s_memrealtime s[92:93]'); e('s_waitcnt lgkmcnt(0)'); e('s_sub_u32 s13, s92, s12'); e('s_cmp_lt_i32 s13, 0'); e('s_cbranch_scc1 L_dg')
    e('L_end:')
    e('s_endpgm')
    hdr=open('gated_mix__ssm_conv_s5__glu_gated_swiglu__prompt.s.ref').read().split('; Override')[0]
    out=hdr+'; @launch grid=(256,1,1) block=(256,1,1) lds=163840\n'
    out+=f'.amdgcn_target "amdgcn-amd-amdhsa--gfx950"\n.text\n.globl {NAME}\n.p2align 8\n.type {NAME},@function\n{NAME}:\n'
    out+=g.text()
    out+=f'.fill (32768+256-(.-{NAME}))/4, 4, 0xbf810000\n'
    out+=f'''.section .rodata,"a"
.p2align 6
.amdhsa_kernel {NAME}
  .amdhsa_next_free_vgpr 512
  .amdhsa_next_free_sgpr 102
  .amdhsa_accum_offset 256
  .amdhsa_group_segment_fixed_size 0
  .amdhsa_kernarg_size 136
  .amdhsa_user_sgpr_count 2
  .amdhsa_user_sgpr_kernarg_segment_ptr 1
  .amdhsa_system_sgpr_workgroup_id_x 1
.end_amdhsa_kernel
'''
    return out,g
if __name__=='__main__':
    import json
    opt=json.loads(sys.argv[2]) if len(sys.argv)>2 else {}
    out,g=gen(opt)
    open(sys.argv[1],'w').write(out)
    if g.stamps: json.dump(g.stamps,open(sys.argv[1]+'.names','w'))
    from collections import Counter
    print(len(g.ins),Counter(i.cls for i in g.ins), 'nops',sum(1 for i in g.ins if i.mn=='s_nop'))
```

```python
import re
REG=re.compile(r'\b([vas])(?:(\d+)|\[(\d+):(\d+)\])(?![\w])')
TRANS=('v_exp_f32','v_log_f32','v_rcp_f32','v_rsq_f32','v_sqrt_f32','v_sin_f32','v_cos_f32')
def regs_of(op):
    out=set()
    for m in REG.finditer(op):
        k=m.group(1)
        if m.group(2) is not None: out.add((k,int(m.group(2))))
        else:
            for i in range(int(m.group(3)),int(m.group(4))+1): out.add((k,i))
    for nm in ('vcc','exec','m0','scc'):
        if re.search(r'\b'+nm+r'\b',op): out.add((nm,0))
    return out
class Ins:
    __slots__=('text','mn','cls','wr','rd','ops','states')
    def __init__(s,text):
        s.text=text
        t=text.split(';')[0].strip()
        s.states=1
        if t.endswith(':') or t.startswith('.') or not t:
            s.mn='';s.cls='label';s.wr=set();s.rd=set();s.ops=[];s.states=0;return
        parts=t.split(None,1)
        mn=parts[0]; s.mn=mn
        rest=parts[1] if len(parts)>1 else ''
        ops=[o.strip() for o in rest.split(',')] if rest else []
        s.ops=ops
        R=[regs_of(o) for o in ops]
        U=lambda l:set().union(*l) if l else set()
        wr=set();rd=set()
        if mn.startswith('v_mfma'):
            s.cls='mfma'; wr=R[0]; rd=U(R[1:])
        elif mn.startswith('v_'):
            s.cls='valu'
            if mn.startswith('v_cmp'):
                wr=R[0]; rd=U(R[1:])
            elif mn.startswith(('v_add_co','v_addc_co','v_sub_co','v_subb_co')):
                wr=R[0]|R[1]; rd=U(R[2:])
            elif mn.startswith('v_permlane32_swap') or mn.startswith('v_permlane16_swap'):
                wr=R[0]|R[1]; rd=R[0]|R[1]
            elif mn.startswith(('v_fmac','v_pk_fmac')):
                wr=R[0]; rd=U(R)
            elif mn=='v_nop': pass
            else:
                wr=R[0]; rd=U(R[1:])
        elif mn.startswith('ds_'):
            s.cls='ds'
            if mn.startswith('ds_read'): wr=R[0]; rd=U(R[1:])
            else: rd=U(R)
        elif mn.startswith(('buffer_','global_')):
            s.cls='vmem'
            if ' lds' in t or '_lds_' in mn:
                rd=U(R)|{('m0',0)}; s.cls='dma'
            elif 'load' in mn: wr=R[0]; rd=U(R[1:])
            else: rd=U(R)
        elif mn.startswith('s_'):
            s.cls='salu'
            if mn=='s_nop': s.states=int(ops[0],0)+1
            elif mn.startswith(('s_cmp','s_waitcnt','s_barrier','s_branch','s_cbranch','s_endpgm','s_sleep','s_setprio','s_bitcmp')):
                rd=U(R)
            else:
                wr=R[0] if R else set(); rd=U(R[1:])
        else:
            raise ValueError('unknown instr '+text)
        s.wr=wr;s.rd=rd
def need_states(p,c):
    n=0
    isv=lambda S:{r for r in S if r[0] in 'va'}
    iss=lambda S:{r for r in S if r[0] in('s','vcc')}
    if p.cls=='valu':
        pv=isv(p.wr); ps=iss(p.wr)
        if c.cls=='mfma' and pv&c.rd: n=max(n,2)
        if p.mn in TRANS and c.cls in('valu','mfma') and pv&(c.rd): n=max(n,1)
        if c.cls=='valu' and c.mn.startswith(('v_readlane','v_readfirstlane')) and pv&c.rd: n=max(n,1)
        if c.cls=='valu' and c.mn.startswith('v_permlane') and pv&c.rd: n=max(n,2)
        if c.cls=='valu' and ('dpp' in c.text or 'row_' in c.text) and pv&c.rd: n=max(n,2)
        if ps:
            if c.cls=='valu' and ps&c.rd: n=max(n,4 if c.mn.startswith(('v_readlane','v_writelane')) else 2)
            if c.cls in('vmem','dma') and ps&c.rd: n=max(n,5)
            if c.cls=='salu' and ps&c.rd: n=max(n,1)
        if ('op_sel' in p.text or 'sdwa' in p.text) and c.cls=='valu' and pv&(c.rd|c.wr): n=max(n,1)
    if p.cls=='mfma':
        D=p.wr
        if c.cls=='mfma':
            C=regs_of(c.ops[3]); AB=regs_of(c.ops[1])|regs_of(c.ops[2])
            if D&AB: n=max(n,12)
            if D&C and D!=C: n=max(n,10)
            if D&c.wr and not (D&C): n=max(n,12)
        elif c.cls in('valu','ds','vmem','dma'):
            if D&(c.rd|c.wr): n=max(n,12)
        C=regs_of(p.ops[3])
        if c.cls=='valu' and C&c.wr: n=max(n,7)
    if p.cls=='salu' and ('m0',0) in p.wr and c.cls=='dma': n=max(n,1)
    if p.cls=='vmem' and 'store' in p.mn and ('x4' in p.mn or 'x3' in p.mn):
        data=regs_of(p.ops[0] if p.mn.startswith('buffer') else p.ops[1])
        if data&c.wr: n=max(n,2 if c.cls=='valu' else 1)
    return n
class Gen:
    def __init__(s):
        s.ins=[]; s.nvm=0; s.vm_done=0; s.nlg=0; s.lg_done=0; s.smem=False
    def e(s,text):
        for t in text.split('\n'):
            t=t.strip()
            if not t: continue
            i=Ins(t)
            need=0; dist=0; skip=None
            hist=s.ins[-120:]
            for idx in range(len(hist)-1,-1,-1):
                p=hist[idx]
                if p.cls=='label' and p.text.endswith(':') and skip is None:
                    lab=p.text[:-1]
                    src_=[k for k in range(idx) if hist[k].mn.startswith(('s_cbranch','s_branch')) and hist[k].ops and hist[k].ops[0]==lab]
                    if src_: skip=min(src_)
                k=need_states(p,i)-dist
                if k>need: need=k
                if skip is not None and idx<=skip: skip=None
                if skip is None: dist+=p.states
                if dist>=20: break
            while need>0:
                k=min(need,16)
                s.ins.append(Ins(f's_nop {k-1}')); need-=k
            s.ins.append(i)
    def vm(s,text):
        s.e(text); s.nvm+=1; return s.nvm
    def lg(s,text):
        s.e(text); s.nlg+=1; return s.nlg
    def wait(s,vm=None,lg=None):
        parts=[]
        if vm is not None and vm>s.vm_done:
            n=s.nvm-vm
            if n<=63: parts.append(f'vmcnt({n})')
            else: parts.append('vmcnt(63)')
            s.vm_done=vm
        if lg is not None and lg>s.lg_done:
            n=s.nlg-lg
            if s.smem: n=0; s.smem=False; lg=s.nlg
            parts.append(f'lgkmcnt({min(n,15)})')
            s.lg_done=lg
        if parts: s.e('s_waitcnt '+' '.join(parts))
    def wait_all_lg(s):
        s.e('s_waitcnt lgkmcnt(0)'); s.lg_done=s.nlg; s.smem=False
    def text(s):
        return '\n'.join(('' if i.cls=='label' else '    ')+i.text for i in s.ins)+'\n'
```

```python
import sys
from asmlib import *
NAME='gated_mix__ssm_conv_s5__glu_gated_swiglu__prompt_kernel'
ROW0=8192; RING=40960; SLOT=24576; NS=5
Z_OFF=0; FL_OFF=0x40000; HE_OFF=0x10000; A2_OFF=0x80000; WS_SIZE=A2_OFF+16*4*160*1024
OOB=0x80000000
GW_L=0; XCH_L=1024; HIN_L=2816; E_L=3072; G_L=5120; PQ_L=5632; TRB_L=155648
LOG2E=0x3fb8aa3b; NLOG2E=0xbfb8aa3b; INV2PI=0x3e22f983
SPIN=200000
sW,sRT,sCG,sCT,sRH,sROT,sNON=4,5,6,7,8,9,10
SX,SW0,SW1,SW3,SCRE,SCIM,SW2,SWS,SHE,SOUT=52,56,60,64,68,72,76,80,84,88
sXB,sW0B,sM0X,sM0W,sM0F,sSO,sSO2=96,97,98,99,100,101,3
sCB,sW2B,sA2S,sA2L0,sA2L1,sCNT,sT0,sT1=34,35,36,37,38,39,40,41
sM0R,sSO3,sFST,sNL2E,sROTF=50,51,22,24,23
srd=lambda b:f's[{b}:{b+3}]'
vr=lambda b,n:f'v[{b}:{b+n-1}]'
ar=lambda b,n:f'a[{b}:{b+n-1}]'
vL,vM,vHH16,vL16=1,2,3,4
vNat=[5,6,7,8]; vXo=[9,10,11,12]; vWF=[13,14,15]
vRA=[16,17,18,19]; vRAw=[20,21,22,23]; vTR=[24,25,26]
vLr,vLi,vL16r,vL16i,vL128r,vL128i,vL1kr,vL1ki,vC2r,vNC2i,vM8=27,28,29,30,31,32,33,34,35,36,37
vCinv=40
vW2o=[42,43,44,45]; vHEo=46; vFLo=47
URE=48; UIM=64; ACC=80; WR=176; T=208
ZA=T+44
vFS,vNON,vTW,vTRd=T+36,T+37,T+38,T+39; vEX=38; vT8=T+41
def gen(opt=None):
    opt=opt or {}
    O=opt.get
    g=Gen(); e=g.e
    FS=O('fs',8)
    SEQ=O('seq','AAAAAAAAFFFFFFFF'); assert SEQ.count('A')==8 and SEQ.count('F')==8 and SEQ[0]=='A'
    POS=[(c,SEQ[:i].count(c)) for i,c in enumerate(SEQ)]
    for i,(c,q) in enumerate(POS): assert c=='A' or SEQ[:i].count('A')>q
    stamps=[]
    def stamp(name,flush=False):
        if O('dpt')==name: e('s_memrealtime s[92:93]')
        if not O('stamps'): return
        k=len(stamps); stamps.append(name)
        if k>=2: e(f'v_writelane_b32 v39, s{92+2*(k%2)}, {k-2}')
        e(f's_memtime s[{92+2*(k%2)}:{93+2*(k%2)}]')
        if flush:
            e('s_waitcnt lgkmcnt(0)')
            e(f'v_writelane_b32 v39, s{92+2*((k-1)%2)}, {k-1}'); e(f'v_writelane_b32 v39, s{92+2*(k%2)}, {k}')
    g.stamps=stamps
    e('s_cmp_ge_u32 s2, 256'); e('s_cbranch_scc1 L_end')
    if O('stamps'):
        e('s_memrealtime s[94:95]'); e('v_mov_b32 v39, 0'); e('s_waitcnt lgkmcnt(0)'); e('v_writelane_b32 v39, s94, 62')
        stamp('start')
    if O('diag'): e('s_memrealtime s[94:95]')
    e('s_load_dwordx16 s[16:31], s[0:1], 0')
    e('s_load_dwordx16 s[32:47], s[0:1], 64')
    e('s_load_dwordx2 s[48:49], s[0:1], 128')
    e('s_getpc_b64 s[50:51]')
    e('s_lshr_b32 s13, s2, 3')
    e('s_and_b32 s14, s13, 7'); e('s_lshl_b32 s14, s14, 12')
    e(f'v_lshl_add_u32 v{T}, v0, 4, s14')
    g.vm(f'global_load_dwordx4 {vr(T+4,4)}, v{T}, s[50:51]')
    PF0=O('pf0',0)
    pX,pB,pW=T+40,T+41,T+42
    def pfA():
        g.vm(f'global_load_dword v{T+43}, v{pX}, s[16:17]'); g.vm(f'global_load_dword v{T+43}, v{pB}, s[22:23]'); g.vm(f'global_load_dword v{T+43}, v{pB}, s[24:25]')
    def pfF():
        g.vm(f'global_load_dword v{T+43}, v{pW}, s[36:37]'); g.vm(f'global_load_dword v{T+43}, v{pW}, s[38:39]')
    if PF0:
        e('s_lshl_b32 s12, s2, 6'); e(f'v_lshrrev_b32 v{pX}, 2, v0'); e(f'v_add_lshl_u32 v{pX}, v{pX}, s12, 7')
        e('s_lshl_b32 s12, s2, 4'); e(f'v_lshrrev_b32 v{pB}, 4, v0'); e(f'v_add_lshl_u32 v{pB}, v{pB}, s12, 7')
        e('s_mul_i32 s12, s2, 43'); e(f'v_mul_u32_u24 v{pW}, 43, v0'); e(f'v_lshrrev_b32 v{pW}, 8, v{pW}'); e(f'v_add_lshl_u32 v{pW}, v{pW}, s12, 7')
        e('s_waitcnt lgkmcnt(0)')
        if PF0&1: pfA()
        if PF0&2: pfF()
        e(f's_load_dword s{sNON}, s[48:49], {Z_OFF}'); g.smem=True
        stamp('pf')
    e(f'v_lshrrev_b32 v{T+1}, 6, v0')
    e(f'v_and_b32 v{vL}, 63, v0')
    e(f'v_readfirstlane_b32 s{sW}, v{T+1}')
    if O('map','B')=='A':
        e('s_and_b32 s12, s2, 7')
        e(f's_and_b32 s{sRH}, s12, 1'); e('s_lshr_b32 s14, s12, 1')
        e(f's_lshl_b32 s{sRT}, s14, 2'); e('s_lshr_b32 s15, s13, 3'); e(f's_add_u32 s{sRT}, s{sRT}, s15')
        e(f's_and_b32 s{sCT}, s13, 7')
        e(f's_lshl_b32 s{sCG}, s{sRH}, 3'); e(f's_add_u32 s{sCG}, s{sCG}, s{sCT}')
        e(f's_lshl_b32 s{sROT}, s14, 1'); e(f's_and_b32 s11, s{sCT}, {O("rotmask",4)}'); e(f's_add_u32 s{sROT}, s{sROT}, s11')
    else:
        e(f's_and_b32 s12, s2, 4'); e(f's_lshl_b32 s{sRT}, s12, 1'); e('s_lshr_b32 s15, s2, 5'); e(f's_add_u32 s{sRT}, s{sRT}, s15')
        e('s_and_b32 s14, s13, 3')
        e(f's_and_b32 s11, s2, 3'); e(f's_lshl_b32 s{sCG}, s11, 2'); e(f's_add_u32 s{sCG}, s{sCG}, s14')
        e(f's_and_b32 s{sRH}, s2, 1'); e(f's_and_b32 s{sCT}, s2, 2'); e(f's_lshl_b32 s{sCT}, s{sCT}, 1'); e(f's_add_u32 s{sCT}, s{sCT}, s14')
        if O('ctx',5): e(f's_xor_b32 s{sCT}, s{sCT}, {O("ctx",5)}')
        ra,rb,rc,rd_=O('rot',[2,1,0,0])
        e(f's_mul_i32 s{sROT}, s14, {ra}')
        if O('rtmask',7)!=7: e(f's_and_b32 s15, s15, {O("rtmask",7)}')
        if rb: e(f's_mul_i32 s15, s15, {rb}'); e(f's_add_u32 s{sROT}, s{sROT}, s15')
        if rc: e(f's_lshr_b32 s12, s12, 2'); e(f's_mul_i32 s12, s12, {rc}'); e(f's_add_u32 s{sROT}, s{sROT}, s12')
        if rd_: e(f's_mul_i32 s11, s11, {rd_}'); e(f's_add_u32 s{sROT}, s{sROT}, s11')
    l3,l7,l4,hh,sw0=T+8,T+9,T+10,T+11,T+12
    e(f'v_lshrrev_b32 v{l3}, 3, v{vL}'); e(f'v_and_b32 v{l7}, 7, v{vL}'); e(f'v_lshrrev_b32 v{l4}, 4, v{vL}'); e(f'v_lshrrev_b32 v{hh}, 5, v{vL}')
    e(f'v_xor_b32 v{sw0}, v{l7}, v{l4}'); e(f'v_lshlrev_b32 v{sw0}, 4, v{sw0}')
    e(f'v_lshl_add_u32 v{vNat[0]}, v{l3}, 10, v{sw0}')
    e(f'v_xor_b32 v{vNat[1]}, 64, v{vNat[0]}'); e(f'v_add_u32 v{vNat[1]}, 7168, v{vNat[1]}')
    e(f'v_and_b32 v{T+13}, 3, v{l3}'); e(f'v_lshl_add_u32 v{T+13}, v{hh}, 4, v{T+13}')
    e(f'v_lshl_add_u32 v{vXo[0]}, v{T+13}, 10, v{sw0}')
    e(f'v_xor_b32 v{vXo[1]}, 64, v{vXo[0]}'); e(f'v_add_u32 v{vXo[1]}, 3072, v{vXo[1]}')
    e(f'v_add_u32 v{vXo[2]}, 6144, v{vXo[0]}'); e(f'v_add_u32 v{vXo[3]}, 6144, v{vXo[1]}')
    e(f's_lshl_b32 s{sXB}, s{sRT}, 17'); e(f's_lshl_b32 s11, s{sW}, 15'); e(f's_add_u32 s{sXB}, s{sXB}, s11')
    e(f's_lshl_b32 s{sW0B}, s{sCG}, 15'); e(f's_and_b32 s11, s{sW}, 1'); e('s_lshl_b32 s11, s11, 14'); e(f's_add_u32 s{sW0B}, s{sW0B}, s11')
    e(f's_lshl_b32 s{sM0X}, s{sW}, 12'); e(f's_add_u32 s{sM0X}, s{sM0X}, {RING}')
    e(f's_lshl_b32 s{sM0W}, s{sW}, 11'); e(f's_add_u32 s{sM0W}, s{sM0W}, {RING+16384}')
    def mksrd(b,p): e(f's_mov_b32 s{b}, s{p}'); e(f's_mov_b32 s{b+1}, s{p+1}')
    def srdc(b,size): e(f's_mov_b32 s{b+2}, {size}'); e(f's_mov_b32 s{b+3}, 0x20000')
    srdc(SX,2048*1024); srdc(SW0,512*1024)
    e(f's_cmp_lt_u32 s{sW}, 2')
    if not PF0: e('s_waitcnt lgkmcnt(0)')
    stamp('karg')
    if O('stamps'): e(f's_cmp_lt_u32 s{sW}, 2')
    mksrd(SX,16)
    if O('diag')==2:
        e('s_not_b32 s92, s94'); e(f'v_mov_b32 v{T+30}, s92'); e(f'v_mov_b32 v{T+31}, 0')
        e('s_mov_b64 exec, 1'); g.vm(f'global_atomic_umax v{T+31}, v{T+30}, s[46:47]'); e('s_mov_b64 exec, -1')
        e(f's_cmp_lt_u32 s{sW}, 2')
    e(f's_cselect_b32 s{SW0}, s22, s24'); e(f's_cselect_b32 s{SW0+1}, s23, s25')
    blk_last={}
    st={'barr':-1,'free':[0,1],'pendC':[],'pendRel':[],'Frow':{},'Flast':{},'w2n':0,'m0':None,'w2on':False}
    D=O('D',3)
    cur_n=[0]
    def setm0(base,c):
        if st['m0']!=(base,c):
            e(f's_add_u32 m0, s{base}, {c}'); st['m0']=(base,c)
    def streamP():
        for p in range(16):
            while (p>=O('pre',2) and st['barr']<p-D) or (p>=O('hold',9) and not st.get('burst')): yield 'blocked'
            sl=p%NS; ty,q=POS[p]
            if ty=='A':
                e(f's_add_u32 s11, s{sROT}, {q}'); e('s_and_b32 s11, s11, 7'); e('s_lshl_b32 s11, s11, 7')
                e(f's_add_u32 s{sSO}, s{sXB}, s11'); e(f's_add_u32 s{sSO2}, s{sW0B}, s11')
                for a in range(4):
                    setm0(sM0X,sl*SLOT)
                    g.vm(f'buffer_load_dwordx4 v{vXo[a]}, {srd(SX)}, s{sSO} offen offset:{1024*a} lds'); yield
                for a in range(2):
                    setm0(sM0W,sl*SLOT)
                    blk_last[p]=g.vm(f'buffer_load_dwordx4 v{vNat[a]}, {srd(SW0)}, s{sSO2} offen offset:{1024*a} lds'); yield
            else:
                if q==3 and O('pf15',1):
                    e('\n'.join([f's_cmp_eq_u32 s{sCG}, 15','s_cbranch_scc0 L_no15b',
                      f's_mul_i32 s11, s{sRT}, {88*1024}', f's_add_u32 s{SW1}, s{SW2}, s11', f's_addc_u32 s{SW1+1}, s{SW2+1}, 0',
                      f's_add_u32 s{SW3}, s{SW1}, {44*1024}', f's_addc_u32 s{SW3+1}, s{SW1+1}, 0',
                      f's_mov_b32 s{SW1+2}, {44*1024}', f's_cmp_eq_u32 s{sRT}, 15', f's_cselect_b32 s{SW3+2}, {12*1024}, s{SW1+2}',
                      f's_mov_b32 s{sROTF}, 5', 'L_no15b:']))
                e(f's_add_u32 s11, s{sROTF}, {q}'); e('s_and_b32 s11, s11, 7'); e(f's_mul_i32 s{sSO}, s11, s{sFST}')
                for mt,S_ in enumerate((SW1,SW3)):
                    for a in range(3):
                        setm0(sM0F,sl*SLOT+mt*12288)
                        blk_last[p]=g.vm(f'buffer_load_dwordx4 v{vWF[a]}, {srd(S_)}, s{sSO} offen offset:{1024*a} lds'); yield
        while True: yield 'done'
    vTa=[vRA[0],vRA[1]]
    def moveC(gi,row,last):
        assert st.get('tra')
        mt,cb,db=gi>>2,(gi>>1)&1,gi&1
        g.wait(vm=last)
        for s in range(4):
            kap=4*(2*cb+(s>>1))+2*mt+(s&1)
            if row<4: ad=vRAw[s]; off=row*16384
            else:
                ad=T+44+s; off=0
                e(f'v_add_u32 v{ad}, {row*16384}, v{vRAw[s]}')
            i=g.lg(f'ds_read_b128 {ar(128+(kap*2+db)*4,4)}, v{ad} offset:{off}')
        st['pendRel'].append((row,i))
    def service(force=False):
        for it in list(st['pendRel']):
            if force: g.wait(lg=it[1])
            if g.lg_done>=it[1]: st['free'].append(it[0]); st['pendRel'].remove(it)
        if st['pendC'] and st.get('tra') and (force or cur_n[0]-st['pendC'][0][3]>=O('cagen',18) or g.vm_done>=st['pendC'][0][2]):
            moveC(*st['pendC'].pop(0)[:3])
    def gran(gi,row):
        st['Frow'][gi]=row
        if gi>=8:
            e(f's_add_u32 s{sSO3}, s{sW2B}, {32*1024*(gi-8)}'); S_,vo=SW2,vW2o
        else:
            c=gi; mt,cb,db=c>>2,(c>>1)&1,c&1
            e(f's_add_u32 s{sSO3}, s{sCB}, {db*32*1024+cb*128}'); S_,vo=(SCIM if mt else SCRE),vNat
        for a in range(4):
            setm0(sM0R,row*16384)
            st['Flast'][gi]=g.vm(f'buffer_load_dwordx4 v{vo[a]}, {srd(S_)}, s{sSO3} offen offset:{1024*a} lds'); st['w2n']+=1
            if a==3 and gi<8: st['pendC'].append((gi,row,st['Flast'][gi],cur_n[0]))
            yield
    def streamW():
        for gi in range(19):
            while not st['free'] or st.get('quiet') or (st.get('wantrow') and st.get('trow') is None): yield 'blocked'
            yield from gran(gi,st['free'].pop(0))
        while True: yield 'done'
    SP=streamP(); SWs=streamW()
    def pump(n=1):
        r=None
        for _ in range(n):
            r=next(SP)
            if r and st['w2on']:
                service(); r=next(SWs)
        return r
    def barrier(q):
        e('s_barrier'); st['barr']=q
        rel={13:[4],14:[5],15:[6,7],16:[8],17:[2,3]} if O('b16',1) else {13:[4],14:[5],15:[6,7],17:[8,2,3]}
        st['free']+=rel.get(q,[])
        if q>=O('w2from',9): st['w2on']=True
    if O('a0first',1): pump(6)
    e(f's_cmp_eq_u32 s{sW}, 0'); e(f's_cselect_b32 s11, s{sROT}, 0'); e('s_cselect_b32 s12, s42, s18'); e('s_cselect_b32 s13, s43, s19'); e(f's_cselect_b32 s14, 0, {ROW0}')
    e(f'v_add_u32 v{T+14}, s11, v{l3}'); e(f'v_and_b32 v{T+14}, 7, v{T+14}'); e(f'v_lshlrev_b32 v{T+14}, 7, v{T+14}')
    e(f's_cmp_eq_u32 s{sW}, 2'); e('s_cselect_b32 s12, s20, s12'); e('s_cselect_b32 s13, s21, s13')
    e(f's_cmp_eq_u32 s{sW}, 3'); e('s_cselect_b32 s12, s30, s12'); e('s_cselect_b32 s13, s31, s13')
    e(f'v_lshl_add_u32 v{T+14}, v{l7}, 4, v{T+14}')
    e(f's_lshl_b32 s11, s{sW}, 10'); e('s_add_u32 m0, s14, s11'); st['m0']=None
    e(f'v_and_b32 v{vM}, 31, v{vL}')
    gwid=g.vm(f'global_load_lds_dwordx4 v{T+14}, s[12:13]')
    if O('a0first',1): blk_last[0]=gwid
    e(f's_lshl_b32 s11, s{sCG}, 6')
    e(f'v_lshl_add_u32 v{T+15}, v{vM}, 1, s11')
    if not PF0: e(f's_load_dword s{sNON}, s[48:49], {Z_OFF}'); g.smem=True
    if not O('a0first',1): pump(O('a0pre',6))
    if PF0&4: pfF()
    stamp('p0')
    e(f'v_mov_b32 v{T+2}, 0'); e(f'v_mov_b32 v{T+3}, 0'); e(f'v_lshlrev_b32 v{vT8}, 3, v0')
    g.lg(f'ds_write_b64 v{vT8}, {vr(T+2,2)} offset:{XCH_L}')
    e(f'v_lshlrev_b32 v{vHH16}, 4, v{hh}')
    e(f's_lshl_b32 s{sM0R}, s{sW}, 12'); e(f's_add_u32 s{sM0R}, s{sM0R}, {ROW0}')
    e(f'v_bfe_u32 v{T+20}, v{vM}, 1, 3'); e(f'v_xor_b32 v{T+20}, v{T+20}, v{hh}'); e(f'v_lshlrev_b32 v{T+20}, 4, v{T+20}')
    e(f'v_lshl_add_u32 v{vRA[0]}, v{vM}, 7, v{T+20}')
    for s in range(1,4): e(f'v_xor_b32 v{vRA[s]}, {32*s}, v{vRA[0]}')
    XA2=[T+24+s for s in range(4)]; WA=[vRA,[T+28+s for s in range(4)],[T+32+s for s in range(4)]]
    for s in range(4):
        e(f'v_add_u32 v{vRAw[s]}, s{sM0R}, v{vRA[s]}')
        e(f'v_add_u32 v{XA2[s]}, {RING-ROW0+2*SLOT}, v{vRAw[s]}')
        e(f'v_add_u32 v{WA[1][s]}, {RING+16384+2*SLOT}, v{vRA[s]}'); e(f'v_add_u32 v{WA[2][s]}, {RING+16384+4*SLOT}, v{vRA[s]}')
        e(f'v_add_u32 v{vRA[s]}, {RING+16384}, v{vRA[s]}')
    vGA=T+40
    e(f'v_xor_b32 v{T+20}, v{vL}, v{l4}'); e(f'v_and_b32 v{T+20}, 1, v{T+20}'); e(f'v_lshl_add_u32 v{vGA}, v{T+20}, 10, v{vHH16}')
    def side_setup():
        L=[]; A=L.append
        def mk(b,p): A(f's_mov_b32 s{b}, s{p}'); A(f's_mov_b32 s{b+1}, s{p+1}')
        def sc(b,size): A(f's_mov_b32 s{b+2}, {size}'); A(f's_mov_b32 s{b+3}, 0x20000')
        for b,p,size in [(SW1,36,512*2752),(SW3,38,512*2752),(SCRE,26,512*1024),(SCIM,28,512*1024),(SW2,40,1376*1024),(SWS,48,WS_SIZE),(SOUT,44,2048*2048)]:
            mk(b,p); sc(b,size)
        sc(SHE,8192)
        A(f's_mul_i32 s{sM0F}, s{sW}, 3072'); A(f's_add_u32 s{sM0F}, s{sM0F}, {RING}')
        A(f's_mov_b32 s{sFST}, {64*2752}'); A(f's_mov_b32 s{sROTF}, s{sROT}')
        A(f'v_lshlrev_b32 v{vL16}, 4, v{vL}'); A(f'v_lshlrev_b32 v{vM8}, 3, v{vM}')
        A(f's_mul_i32 s15, s{sW}, {16*2752}'); A(f's_mul_i32 s12, s{sCG}, 192'); A('s_add_u32 s15, s15, s12')
        A(f's_mul_i32 s12, s{sCG}, 12'); A('s_movk_i32 s13, 2752'); A(f'v_mov_b32 v{T+23}, {OOB:#x}')
        for a in range(3):
            A(f'v_add_u32 v{T+20}, {64*a}, v{vL}')
            A(f'v_mul_u32_u24 v{T+21}, 43691, v{T+20}'); A(f'v_lshrrev_b32 v{T+21}, 19, v{T+21}')
            A(f'v_mul_u32_u24 v{T+22}, 12, v{T+21}'); A(f'v_sub_u32 v{T+22}, v{T+20}, v{T+22}')
            A(f'v_mul_u32_u24 v{T+21}, s13, v{T+21}')
            A(f'v_lshl_add_u32 v{T+21}, v{T+22}, 4, v{T+21}')
            A(f'v_add_u32 v{T+22}, s12, v{T+22}')
            A(f'v_cmp_gt_u32 vcc, 172, v{T+22}')
            A(f'v_add_u32 v{T+21}, s15, v{T+21}')
            if a: A(f'v_subrev_u32 v{T+21}, {1024*a}, v{T+21}')
            A(f'v_cndmask_b32 v{vWF[a]}, v{T+23}, v{T+21}, vcc')
        if O('pf15',1):
            A('\n'.join([f's_cmp_eq_u32 s{sCG}, 15','s_cbranch_scc0 L_no15',
              f's_lshl_b32 s12, s{sRT}, 15', f's_add_u32 s{SW1}, s26, s12', f's_addc_u32 s{SW1+1}, s27, 0',
              f's_add_u32 s{SW3}, s28, s12', f's_addc_u32 s{SW3+1}, s29, 0',
              f's_mov_b32 s{SW1+2}, 0x8000', f's_mov_b32 s{SW3+2}, 0x8000', f's_mov_b32 s{sROTF}, 0',
              f's_movk_i32 s{sFST}, 12288', f's_mul_i32 s12, s{sW}, 3072',
              f'v_lshl_add_u32 v{vWF[0]}, v{vL}, 4, s12', f'v_mov_b32 v{vWF[1]}, v{vWF[0]}', f'v_mov_b32 v{vWF[2]}, v{vWF[0]}',
              'L_no15:']))
        r_,c_,g1=T+20,T+21,T+22
        A(f'v_bfe_u32 v{r_}, v{vL}, 2, 2'); A(f'v_and_b32 v{c_}, 3, v{vL}'); A(f'v_and_b32 v{g1}, 1, v{l4}')
        A(f'v_lshl_add_u32 v{T+19}, v{hh}, 3, v{r_}'); A(f'v_mul_u32_u24 v{T+19}, 192, v{T+19}')
        A(f'v_lshl_add_u32 v{T+19}, v{g1}, 5, v{T+19}'); A(f'v_lshl_add_u32 v{T+19}, v{c_}, 3, v{T+19}')
        for k in range(3): A(f'v_add_u32 v{vTR[k]}, {RING+2*k*SLOT}, v{T+19}')
        A(f's_lshl_b32 s12, s{sCG}, 13'); A(f's_add_u32 s12, s12, {HE_OFF}')
        A(f's_add_u32 s{SHE}, s48, s12\ns_addc_u32 s{SHE+1}, s49, 0')
        A(f's_lshl_b32 s{sCB}, s{sCT}, 16'); A(f's_lshl_b32 s12, s{sW}, 8'); A(f's_add_u32 s{sCB}, s{sCB}, s12')
        A(f's_mul_i32 s{sW2B}, s{sW}, {352*1024}'); A(f's_lshl_b32 s12, s{sCT}, 7'); A(f's_add_u32 s{sW2B}, s{sW2B}, s12')
        A(f's_lshl_b32 s13, s{sRT}, 2'); A(f's_add_u32 s12, s13, s{sW}'); A(f's_mul_i32 s{sA2S}, s12, {160*1024}'); A(f's_add_u32 s{sA2S}, s{sA2S}, {A2_OFF}')
        A(f's_lshl_b32 s12, s{sRH}, 1'); A('s_add_u32 s12, s12, s13'); A(f's_mul_i32 s{sA2L0}, s12, {160*1024}'); A(f's_add_u32 s{sA2L0}, s{sA2L0}, {A2_OFF}')
        A(f's_add_u32 s{sA2L1}, s{sA2L0}, {160*1024}')
        A(f's_mov_b32 s{sNL2E}, {NLOG2E:#x}')
        A(f'v_add_u32 v{vNat[2]}, {2*7168}, v{vNat[0]}'); A(f'v_add_u32 v{vNat[3]}, {2*7168}, v{vNat[1]}')
        A(f'v_and_b32 v{g1}, 1, v{l4}')
        A(f'v_lshlrev_b32 v{T+19}, 2, v{g1}'); A(f'v_xor_b32 v{T+19}, v{T+19}, v{l7}'); A(f'v_lshlrev_b32 v{T+19}, 4, v{T+19}')
        A(f'v_lshl_add_u32 v{vW2o[0]}, v{l3}, 10, v{T+19}')
        for a in range(1,4): A(f'v_add_u32 v{vW2o[a]}, {7168*a}, v{vW2o[0]}')
        A(f's_sub_u32 s12, 15, s{sRT}'); A('s_lshl_b32 s12, s12, 9')
        A(f'v_lshl_add_u32 v{T+20}, v{vM}, 4, s12')
        A(f'v_cmp_eq_u32 vcc, s{sW}, v{l3}')
        A(f'v_lshl_add_u32 v{vHEo}, v{vHH16}, 6, v{T+20}'); A(f's_lshl_b32 s12, s{sW}, 11'); A('s_add_u32 s12, s12, 512'); A(f'v_add_u32 v{vHEo}, s12, v{vHEo}')
        A(f'v_cndmask_b32 v{T+10}, v{T+23}, v{T+20}, vcc')
        A(f's_lshl_b32 s15, s{sRT}, 1'); A(f's_lshr_b32 s12, s{sW}, 1'); A('s_add_u32 s12, s12, s15'); A(f's_lshl_b32 s12, s12, {FS+5 if FS>2 else 8}')
        A(f's_and_b32 s13, s{sW}, 1'); A(f's_lshl_b32 s14, s{sCG}, 1'); A('s_add_u32 s13, s13, s14'); A(f's_lshl_b32 s13, s13, {FS}')
        A('s_add_u32 s12, s12, s13'); A(f's_add_u32 s12, s12, {FL_OFF}'); A(f'v_lshl_add_u32 v{T+20}, v{vL}, 2, s12')
        A(f'v_cmp_gt_u32 vcc, {32 if FS>2 else 1}, v{vL}'); A(f's_add_u32 s15, s15, s{sRH}')
        A(f's_lshl_b32 s15, s15, {FS+5 if FS>2 else 8}'); A(f's_add_u32 s15, s15, {FL_OFF}'); A(f'v_cndmask_b32 v{vFS}, v{T+23}, v{T+20}, vcc')
        A(f'v_lshl_add_u32 v{vFLo}, v{vM}, {FS}, s15')
        A(f'v_lshlrev_b32 v{vTW}, 6, v{vM}'); A(f'v_lshl_add_u32 v{vTW}, v{vHH16}, 1, v{vTW}'); A(f'v_add_u32 v{vTW}, s{sM0R}, v{vTW}')
        A(f'v_bfe_u32 v{vTRd}, v{vL}, 2, 2'); A(f'v_lshlrev_b32 v{vTRd}, 6, v{vTRd}')
        A(f'v_lshl_add_u32 v{vTRd}, v{vHH16}, 5, v{vTRd}'); A(f'v_and_b32 v{T+20}, 1, v{vL}')
        A(f'v_lshl_add_u32 v{vTRd}, v{T+20}, 5, v{vTRd}'); A(f'v_and_b32 v{T+20}, 16, v{vL}'); A(f'v_add_u32 v{vTRd}, v{T+20}, v{vTRd}')
        A(f'v_and_b32 v{T+20}, 2, v{vL}'); A(f'v_lshl_add_u32 v{vTRd}, v{T+20}, 2, v{vTRd}'); A(f'v_add_u32 v{vTRd}, s{sM0R}, v{vTRd}')
        A(f's_lshl_b32 s12, s{sW}, 2'); A(f's_sub_u32 s12, s{sRT}, s12'); A(f'v_lshrrev_b32 v{vEX}, 3, v{vHH16}'); A(f'v_sub_u32 v{vEX}, s12, v{vEX}')
        A(f'v_max_i32 v{vEX}, 0, v{vEX}'); A(f'v_min_i32 v{vEX}, 2, v{vEX}'); A(f'v_lshlrev_b32 v{vEX}, 1, v{vEX}')
        A(f's_lshl_b32 s{sT0}, s{sCG}, 12'); A(f's_add_u32 s{sT0}, s{sT0}, s{sA2S}')
        A(f's_mul_i32 s{sT1}, s{sCG}, {6*1024}'); A(f's_add_u32 s{sT1}, s{sT1}, s{sA2S}')
        A(f's_add_u32 s16, s{sT1}, {64*1024}'); A(f's_add_u32 s17, s16, 4096')
        A(f's_lshl_b32 s12, s{sW}, 14'); A(f's_add_u32 s26, s{sA2L0}, s12'); A(f's_add_u32 s27, s{sA2L1}, s12')
        A(f's_mul_i32 s12, s{sW}, {22*1024}'); A(f's_add_u32 s12, s12, {64*1024}'); A(f's_add_u32 s28, s{sA2L0}, s12'); A(f's_add_u32 s29, s{sA2L1}, s12')
        A(f's_lshl_b32 s12, s{sW}, 7'); A(f'v_lshl_add_u32 v{T+42}, v{vM}, 2, s12')
        A(f's_mul_i32 s{sNON}, s{sNON}, 1664525'); A(f's_add_u32 s{sNON}, s{sNON}, 1013904223')
        A(f's_cmp_eq_u32 s{sNON}, 0\ns_cselect_b32 s{sNON}, 1013904223, s{sNON}')
        return L
    Ls=side_setup()
    npre=O('setup_pre',90)
    Ls.append(f'v_mov_b32 v{vNON}, s{sNON}')
    print('setup list',len(Ls))
    for i,t in enumerate(Ls[:npre]):
        e(t)
        if i==29 and O('touch',0):
            e(f'v_mov_b32 v{T+19}, 0')
            for S_ in (SW1,SW3,SCRE,SCIM,SW2,SWS): g.vm(f'buffer_load_dword v{T+43}, v{T+19}, {srd(S_)}, 0 offen')
            e(f's_mul_i32 s12, s{sRT}, {640*1024}'); e(f's_add_u32 s12, s12, {A2_OFF}'); e(f's_add_u32 s13, s12, {639*1024}'); e(f's_lshl_b32 s14, s{sRT}, 18')
            g.vm(f'buffer_load_dword v{T+43}, v{T+19}, {srd(SWS)}, s12 offen'); g.vm(f'buffer_load_dword v{T+43}, v{T+19}, {srd(SWS)}, s13 offen')
            g.vm(f'buffer_load_dword v{T+43}, v{T+19}, {srd(SOUT)}, s14 offen')
    g.wait_all_lg()
    stamp('setup')
    pump(6*O('pre',2)-O('a0pre',6))
    if PF0&8: pfF()
    stamp('p1')
    def side_params():
        for i,t in enumerate(Ls[npre:]):
            e(t)
            if i%4==3: yield
        pl=[g.lg(f'ds_read_u16 v{T+16+i}, v{T+15} offset:{ROW0+1024*(i+1)}') for i in range(3)]
        if O('dwarm',1): g.vm(f'global_load_ushort v{T+43}, v{T+15}, s[32:33]')
        while g.lg_done<pl[2]: yield
        lre,lim,dt=T+16,T+17,T+18
        a_,b_,t0,t1=T,T+1,T+2,T+3
        L=[]; A=L.append
        for r in (lre,lim,dt): A(f'v_lshlrev_b32 v{r}, 16, v{r}')
        A(f'v_mul_f32 v{dt}, {LOG2E:#x}, v{dt}'); A(f'v_exp_f32 v{dt}, v{dt}')
        A(f'v_mul_f32 v{t0}, v{lre}, v{lre}')
        A(f'v_cvt_pk_bf16_f32 v{dt}, v{dt}, v{dt}'); A(f'v_lshlrev_b32 v{dt}, 16, v{dt}')
        A(f'v_mul_f32 v{a_}, v{dt}, v{lre}'); A(f'v_mul_f32 v{b_}, v{dt}, v{lim}')
        A(f'v_fma_f32 v{dt}, v{lim}, v{lim}, v{t0}'); A(f'v_rcp_f32 v{dt}, v{dt}')
        A(f'v_mul_f32 v{a_}, {LOG2E:#x}, v{a_}'); A(f'v_exp_f32 v{a_}, v{a_}')
        A(f'v_mul_f32 v{b_}, {INV2PI:#x}, v{b_}'); A(f'v_rndne_f32 v{t0}, v{b_}'); A(f'v_sub_f32 v{b_}, v{b_}, v{t0}')
        A(f'v_cos_f32 v{t0}, v{b_}'); A(f'v_sin_f32 v{t1}, v{b_}')
        A(f'v_add_f32 v{dt}, v{dt}, v{dt}')
        A(f'v_mul_f32 v{vLr}, v{a_}, v{t0}'); A(f'v_mul_f32 v{vLi}, v{a_}, v{t1}')
        A(f'v_add_f32 v{a_}, -1.0, v{vLr}')
        A(f'v_mul_f32 v{vNC2i}, v{vLi}, v{lre}'); A(f'v_mul_f32 v{vC2r}, v{a_}, v{lre}')
        A(f'v_fma_f32 v{vNC2i}, v{a_}, v{lim}, -v{vNC2i}'); A(f'v_fma_f32 v{vC2r}, v{vLi}, v{lim}, v{vC2r}')
        A(f'v_mul_f32 v{vNC2i}, v{vNC2i}, v{dt}'); A(f'v_mul_f32 v{vC2r}, v{vC2r}, v{dt}')
        def csq(dr,di,sr,si,n):
            for k in range(n):
                A(f'v_mul_f32 v{t0}, v{si}, v{si}'); A(f'v_mul_f32 v{t1}, v{sr}, v{si}')
                A(f'v_fma_f32 v{dr}, v{sr}, v{sr}, -v{t0}'); A(f'v_add_f32 v{di}, v{t1}, v{t1}')
                sr,si=dr,di
        csq(vL16r,vL16i,vLr,vLi,4); csq(vL128r,vL128i,vL16r,vL16i,3); csq(vL1kr,vL1ki,vL128r,vL128i,1)
        for i,t in enumerate(L):
            e(t)
            if i&1: yield
    NLi,NL16i,NL128i,NC2r=vXo
    def cfma_ip(ar_,ai_,lr,li,nli,sr,si):
        e(f'v_fmac_f32 v{ar_}, v{lr}, v{sr}'); e(f'v_fmac_f32 v{ai_}, v{lr}, v{si}')
        e(f'v_fmac_f32 v{ar_}, v{nli}, v{si}'); e(f'v_fmac_f32 v{ai_}, v{li}, v{sr}')
    def check(pid,reg,off,tag,lane,vP):
        e(f's_mov_b32 s{sCNT}, 0')
        g.wait(vm=pid)
        e(f'L_{tag}_chk:')
        e(f'v_cmp_ne_u32 vcc, s{sNON}, v{reg}')
        e('s_nop 1')
        e(f's_cbranch_vccz L_{tag}_ok')
        e(f's_add_u32 s{sCNT}, s{sCNT}, 1'); e(f's_cmp_gt_u32 s{sCNT}, {SPIN}'); e(f's_cbranch_scc1 L_{tag}_ok')
        e('s_sleep 1')
        e(f'buffer_load_dword v{reg}, v{vP}, {srd(SWS)}, 0 offen offset:{off} sc1')
        e('s_waitcnt vmcnt(0)'); e(f's_branch L_{tag}_chk')
        e(f'L_{tag}_ok:'); stamp(tag+'_ok')
        if O('stamps'): e(f'v_writelane_b32 v39, s{sCNT}, {lane}')
    vq=[]
    def cf(ar_,ai_,lr,li,nli,sr,si):
        e(f'v_fmac_f32 v{ar_}, v{lr}, v{sr}'); yield
        e(f'v_fmac_f32 v{ai_}, v{lr}, v{si}'); yield
        e(f'v_fmac_f32 v{ar_}, v{nli}, v{si}'); yield
        e(f'v_fmac_f32 v{ai_}, v{li}, v{sr}'); yield
    def seq(L):
        for t in L:
            e(t); yield
    def burst():
        for t in [f'v_xor_b32 v{NLi}, 0x80000000, v{vLi}',f'v_xor_b32 v{NL16i}, 0x80000000, v{vL16i}',f'v_mov_b32 v{T+13}, s{sNON}',f'v_mov_b32 v{T+15}, s{sNON}']: e(t)
        z=T+6; x0,x1=T+4,T+5
        fill=[f'v_and_b32 v{z+1}, 16, v{vL}',f'v_cmp_eq_u32 vcc, 0, v{z+1}',f'v_xor_b32 v{NL128i}, 0x80000000, v{vL1ki}',f'v_bfe_u32 v{x0}, v{vL}, 2, 2',
            f'v_cndmask_b32 v{z}, v{ZA+1}, v{ZA}, vcc',f'v_cvt_pk_bf16_f32 v{z}, v{z}, v{z}',f'v_lshlrev_b32 v{z}, 16, v{z}',
            f'v_mul_f32 v{z}, s{sNL2E}, v{z}',f'v_exp_f32 v{z}, v{z}',f'v_add_f32 v{z}, 1.0, v{z}',f'v_rcp_f32 v{z}, v{z}',
            f'v_cvt_pk_bf16_f32 v{z}, v{z}, v{z}',f'v_lshlrev_b32 v{z}, 16, v{z}',
            f'v_sub_f32 v{z+1}, 1.0, v{z}',f'v_cvt_pk_bf16_f32 v{z+1}, v{z+1}, v{z+1}',f'v_lshlrev_b32 v{z+1}, 16, v{z+1}',
            f'v_rcp_f32 v{vCinv}, v{z+1}',f'v_lshlrev_b32 v{x0}, 7, v{x0}',f'v_min_f32 v{vCinv}, 0x7e967699, v{vCinv}',f'v_mov_b32 v{vCinv+1}, v{vCinv}',
            f'v_lshl_add_u32 v{x0}, v{vHH16}, 5, v{x0}',
            f'v_and_b32 v{x1}, 8, v{vL}',f'v_lshl_add_u32 v{x0}, v{x1}, 3, v{x0}',f'v_and_b32 v{x1}, 16, v{vL}',f'v_lshl_add_u32 v{x0}, v{x1}, 1, v{x0}',
            f'v_and_b32 v{x1}, 3, v{vL}',f'v_lshl_add_u32 v{x0}, v{x1}, 3, v{x0}',f'v_add_u32 v{vTa[0]}, s{sM0R}, v{x0}',f'v_xor_b32 v{vTa[1]}, 64, v{vTa[0]}',
            f'v_mov_b32 v{T}, v{vC2r}',f'v_mov_b32 v{T+1}, v{vNC2i}']
        for t in range(1,16):
            e(f'v_fmac_f32 v{URE+t}, v{vLr}, v{URE+t-1}'); e(f'v_fmac_f32 v{UIM+t}, v{vLr}, v{UIM+t-1}'); e(fill.pop(0))
            e(f'v_fmac_f32 v{URE+t}, v{NLi}, v{UIM+t-1}'); e(f'v_fmac_f32 v{UIM+t}, v{vLi}, v{URE+t-1}'); e(fill.pop(0))
        e(f'v_mov_b32 v{T+2}, v{URE+15}'); e(f'v_mov_b32 v{T+3}, v{UIM+15}')
        for t in fill: e(t)
        g.lg(f'ds_write_b64 v{vT8}, {vr(T+2,2)} offset:{E_L}'); lw=g.lg(f'ds_write_b32 v{T+42}, v{z} offset:{G_L}')
        st['tra']=True
        def coef(u):
            o=T+32+2*((u>>1)&1)
            return [f'v_pk_mul_f32 {vr(o,2)}, {vr(UIM+u,2)}, {vr(T,2)} op_sel:[0,1] op_sel_hi:[1,1]',
                    f'v_pk_mul_f32 {vr(UIM+u,2)}, {vr(UIM+u,2)}, {vr(T,2)} op_sel_hi:[1,0] neg_lo:[0,1] neg_hi:[0,1]',
                    f'v_pk_fma_f32 {vr(UIM+u,2)}, {vr(URE+u,2)}, {vr(T,2)}, {vr(UIM+u,2)} op_sel:[0,1,0] op_sel_hi:[1,1,1]',
                    f'v_pk_fma_f32 {vr(URE+u,2)}, {vr(URE+u,2)}, {vr(T,2)}, {vr(o,2)} op_sel_hi:[1,0,1]']
        def coef2(u):
            a,b=coef(u),coef(u+2)
            for i in range(4): e(a[i]); e(b[i])
        coef2(0)
        g.wait(lg=lw); e('s_barrier')
        ids=[g.lg(f'ds_read_b64 {vr(T+16+2*s,2)}, v{vM8} offset:{E_L+256*s}') for s in range(8)]
        e(f's_lshl_b32 s12, s{sW}, 7'); e(f'v_add_u32 v{x0}, s12, v{vHH16}')
        for j in range(4): gi_=g.lg(f'ds_read_b128 {vr(WR+4*j,4)}, v{x0} offset:{G_L+32*j}')
        coef2(4); coef2(8); coef2(12)
        g.wait(lg=gi_)
        for u in range(0,16,2):
            e(f'v_pk_mul_f32 {vr(URE+u,2)}, {vr(URE+u,2)}, {vr(WR+u,2)}'); e(f'v_pk_mul_f32 {vr(UIM+u,2)}, {vr(UIM+u,2)}, {vr(WR+u,2)}')
        for s in range(1,8): cfma_ip(T+16+2*s,T+17+2*s,vL16r,vL16i,NL16i,T+14+2*s,T+15+2*s)
        e(f'v_mov_b32 v{T+12}, v{T+30}'); e(f'v_mov_b32 v{T+14}, v{T+31}')
        st['burst']=True
        pump(O('bpump',6))
        g.vm(f'buffer_store_dwordx4 {vr(T+12,4)}, v{T+10}, {srd(SHE)}, 0 offen sc1'); stamp('he_pub')
    def slot():
        if st.get('wantrow') and st.get('trow') is None:
            service()
            if st['free']: st['trow']=st['free'].pop(0)
        if vq:
            f=vq.pop(0)
            if f: f(); return None
        return pump(1)
    hel=lambda jj:f'buffer_load_dwordx4 {vr(T+16+4*jj,4)}, v{vHEo}, {srd(SHE)}, 0 offen offset:{512*jj} sc1'
    he={}
    def hecheck():
        cnt=T+8
        e(f's_mov_b32 s{sCNT}, 0')
        g.wait(vm=he[1])
        e('L_he_chk:')
        e(f'v_mov_b32 v{cnt}, 0')
        for jj in range(2):
            e(f'v_cmp_eq_u32 vcc, s{sNON}, v{T+16+4*jj+1}'); e(f'v_cmp_eq_u32 s[12:13], s{sNON}, v{T+16+4*jj+3}')
            e(f'v_addc_co_u32 v{cnt}, vcc, 0, v{cnt}, vcc'); e(f'v_addc_co_u32 v{cnt}, s[12:13], 0, v{cnt}, s[12:13]')
        e(f'v_cmp_ne_u32 vcc, v{cnt}, v{vEX}')
        e('s_nop 1')
        e('s_cbranch_vccz L_he_ok')
        e(f's_add_u32 s{sCNT}, s{sCNT}, 1'); e(f's_cmp_gt_u32 s{sCNT}, {SPIN}'); e('s_cbranch_scc1 L_he_ok')
        e('s_sleep 1')
        for jj in range(2): e(hel(jj))
        e('s_waitcnt vmcnt(0)'); e('s_branch L_he_chk')
        e('L_he_ok:'); stamp('he_ok')
        if O('stamps'): e(f'v_writelane_b32 v39, s{sCNT}, 60')
        for t in [f'v_fma_f32 v{T+8}, v{vL128r}, v{T+20}, v{T+16}',f'v_fma_f32 v{T+9}, v{vL128r}, v{T+22}, v{T+18}',
                  f'v_fma_f32 v{T+8}, -v{vL128i}, v{T+22}, v{T+8}',f'v_fmac_f32 v{T+9}, v{vL128i}, v{T+20}']: e(t)
        return g.lg(f'ds_write_b64 v{vT8}, {vr(T+8,2)} offset:{PQ_L}')
    GG=T+16; WRe,WIm,L2=T,T+4,T+8; vPF,vPS=vXo[3],vEX
    def side2():
        st['rate']=O('rate2',[4,4,3])
        while cur_n[0]<O('he_at',112): yield 'gap'
        for jj in range(2): vq.append(lambda jj=jj: he.__setitem__(jj,g.vm(hel(jj))))
        while cur_n[0]<O('he_chk',134): yield 'gap'
        st['elw']=hecheck(); b0=st['barr']; yield 'gap'
        y=T+32
        yield from seq([f's_mul_i32 s12, s{sW}, 11','s_mul_i32 s13, s12, 43691','s_lshr_b32 s13, s13, 17','s_lshl_b32 s13, s13, 1',
            's_add_u32 s12, s12, 10','s_mul_i32 s14, s12, 43691','s_lshr_b32 s14, s14, 17','s_lshl_b32 s14, s14, 1','s_add_u32 s14, s14, 1',
            f'v_max_u32 v{y}, s13, v{vM}',f'v_min_u32 v{y}, s14, v{y}',f'v_sub_u32 v{y}, v{y}, v{vM}',f'v_lshl_add_u32 v{vPF}, v{y}, {FS}, v{vFLo}',
            f's_lshl_b32 s13, s{sW}, 3',f'v_and_b32 v{y}, 7, v{vM}',f'v_add_u32 v{y}, s13, v{y}',f'v_sub_u32 v{y}, v{y}, v{vM}',f'v_lshl_add_u32 v{vPS}, v{y}, {FS}, v{vFLo}'])
        while st['barr']==b0: yield 'gap'
        ids=[]
        for s in range(8):
            ids.append(g.lg(f'ds_read_b64 {vr(T+16+2*s,2)}, v{vM8} offset:{PQ_L+256*(7-s)}')); yield
        while g.lg_done<ids[7]: yield 'gap'
        for s in range(1,8): yield from cf(T+16+2*s,T+17+2*s,vL1kr,vL1ki,NL128i,T+14+2*s,T+15+2*s)
        g.lg(f'ds_write_b64 v{vM8}, {vr(T+30,2)} offset:{HIN_L}'); yield
        ids=[]
        for k in range(8):
            ids.append(g.lg(f'ds_read_b64 {vr(T+2*k,2)}, v{vT8} offset:{XCH_L+256*k}')); yield
        e(f's_lshl_b32 s12, s{sW}, 7'); e(f'v_add_u32 v{y}, s12, v{vHH16}'); yield
        for j in range(4):
            g.lg(f'ds_read_b128 {vr(GG+4*j,4)}, v{y} offset:{G_L+32*j}'); yield
        while g.lg_done<ids[7]: yield 'gap'
        for k in range(1,8): yield from cf(T+2*k,T+2*k+1,vL16r,vL16i,NL16i,T+2*k-2,T+2*k-1)
        P=[(T,T+1),(T+2,T+3)]
        st['rate']=O('rate3',[4,4,3])
        yield from seq([f'v_mul_f32 v{T+2}, v{vC2r}, v{T+14}',f'v_mul_f32 v{T+3}, v{vNC2i}, v{T+14}',
                        f'v_fmac_f32 v{T+2}, v{vNC2i}, v{T+15}',f'v_fma_f32 v{T+3}, -v{vC2r}, v{T+15}, v{T+3}'])
        for t in range(17):
            d,c=P[t&1],P[1-(t&1)]; L=[]
            if t<16: L+=[f'v_mul_f32 v{d[0]}, v{vLr}, v{c[0]}',f'v_mul_f32 v{d[1]}, v{vLr}, v{c[1]}']
            if t>0: L+=[f'v_fmac_f32 v{URE+t-1}, v{GG+t-1}, v{c[0]}',f'v_fmac_f32 v{UIM+t-1}, v{GG+t-1}, v{c[1]}']
            if t<16: L+=[f'v_fmac_f32 v{d[0]}, v{vLi}, v{c[1]}',f'v_fmac_f32 v{d[1]}, v{NLi}, v{c[0]}']
            if t>0 and t%2==0:
                u=t-2; L+=[f'v_cvt_pk_bf16_f32 v{URE+(u>>1)}, v{URE+u}, v{URE+u+1}',f'v_cvt_pk_bf16_f32 v{UIM+(u>>1)}, v{UIM+u}, v{UIM+u+1}']
            if t==11: st['wantrow']=True
            yield from seq(L)
        while st.get('trow') is None: yield 'gap'
        row=st['trow']
        if row>=4:
            e(f'v_add_u32 v{vTW}, {row*16384}, v{vTW}'); e(f'v_add_u32 v{vTRd}, {row*16384}, v{vTRd}'); ro=0
        else: ro=row*16384
        for mt,b in enumerate((URE,UIM)):
            g.lg(f'ds_write_b128 v{vTW}, {vr(b,4)} offset:{ro+2048*mt}'); yield 'gap'
            g.lg(f'ds_write_b128 v{vTW}, {vr(b+4,4)} offset:{ro+2048*mt+16}'); yield 'gap'
        for mt in range(2):
            for ks in range(2):
                for rho in range(2):
                    tl=g.lg(f'ds_read_b64_tr_b16 {vr(T+8*mt+4*ks+2*rho,2)}, v{vTRd} offset:{ro+2048*mt+ks*1024+rho*256}'); yield
        st['pendRel'].append((row,tl))
        if O('quiet',1): st['quiet']=True
        while g.lg_done<tl: yield 'gap'
        for i in range(4):
            sst=g.vm(f'buffer_store_dwordx4 {vr(T+4*i,4)}, v{vL16}, {srd(SWS)}, s{sT0} offen offset:{i*1024} sc1'); yield 'gap'
            for _ in range(O('sgap',1)): yield 'gap'
        stamp('sst'); n0=cur_n[0]; print('S stores gap',n0)
        while cur_n[0]<n0+O('slag',22) and cur_n[0]<286:
            if cur_n[0]>=n0+O('qlen',10): st['quiet']=False
            yield 'gap'
        g.wait(vm=sst); g.vm(f'buffer_store_dword v{vNON}, v{vFS}, {srd(SWS)}, 0 offen sc1'); stamp('sflag'); st['quiet']=False; print('S flag gap',cur_n[0])
        if O('poll_k',0)<0:
            while cur_n[0]<O('poll_gap',278): yield 'gap'
            st['pid']=g.vm(f'buffer_load_dword v{T+34}, v{vPS}, {srd(SWS)}, 0 offen sc1')
    GR=[]
    for p,(ty,q) in enumerate(POS):
        for i in range(4 if ty=='A' else 8): GR.append((p,ty,q,i))
    lastA=max(i for i,x in enumerate(GR) if x[1]=='A')
    rdone={}
    def greads(gi):
        p,ty,q,i=GR[gi]; sl=p%NS; L=[]
        if i==0:
            def b_():
                g.wait(vm=blk_last[p],lg=st.get('elw')); barrier(p); stamp(f'{ty}{q}')
            pre=b_
        else: pre=None
        if ty=='A':
            s=i; b=128+12*((4*q+s)%8)
            xa,xo=(vRAw[s],RING-ROW0+sl*SLOT) if sl<2 else (XA2[s],(sl-2)*SLOT)
            wa=WA[sl>>1][s]; wo=(sl&1)*SLOT
            L=[f'ds_read_b128 {ar(16*q+4*s,4)}, v{xa} offset:{xo}',f'ds_read_b128 {ar(b,4)}, v{wa} offset:{wo}',
               f'ds_read_b128 {ar(b+4,4)}, v{wa} offset:{wo+4096}',f'ds_read_b128 {ar(b+8,4)}, v{vGA} offset:{GW_L+q*128+s*32}']
        else:
            for j in range(3):
                n=24*q+3*i+j; s,f=(n%24)//6,n%6; pair,mt=f>>1,f&1
                off=(sl&1)*SLOT+mt*12288+s*3072+pair*64; b=WR+4*(n%8)
                L+=[f'ds_read_b64_tr_b16 {vr(b+2*h,2)}, v{vTR[sl>>1]} offset:{off+768*h}' for h in range(2)]
        return pre,L
    def doreads(gi,part):
        if gi>=len(GR): return
        pre,L=greads(gi); h=len(L)//2
        if part==0 and pre: pre()
        for t in (L[:h] if part==0 else L[h:]): rdone[gi]=g.lg(t)
    def gm(gi,j):
        p,ty,q,i=GR[gi]
        if ty=='A':
            n=4*q+i; b=128+12*(n%8); x=ar(4*n,4); z=(n==0)
            if j==0: e(f'v_mfma_f32_32x32x16_bf16 {vr(URE,16)}, {x}, {ar(b,4)}, {"0" if z else vr(URE,16)}')
            if j==1: e(f'v_mfma_f32_32x32x16_bf16 {vr(UIM,16)}, {x}, {ar(b+4,4)}, {"0" if z else vr(UIM,16)}')
            if j==2: e(f'v_mfma_f32_16x16x32_bf16 {vr(ZA,4)}, {ar(b+8,4)}, {x}, {"0" if z else vr(ZA,4)}')
        else:
            n=24*q+3*i+j; s,f=(n%24)//6,n%6; acc=vr(ACC+16*f,16)
            e(f'v_mfma_f32_32x32x16_bf16 {acc}, {vr(WR+4*(n%8),4)}, {ar(16*q+4*s,4)}, {"0" if n<6 else acc}')
    LAA=O('laa',3)
    for gi in range(LAA): doreads(gi,0); doreads(gi,1)
    side=side_params(); mid=False
    for gi in range(len(GR)):
        p,ty,q,i=GR[gi]
        g.wait(lg=rdone[gi])
        for j in range(3):
            cur_n[0]=3*gi+j
            gm(gi,j)
            la=LAA if gi<=lastA else 2
            if j<2 and not (gi<=lastA<gi+la): doreads(gi+la,j)
            if p==15 and i==0 and j==1 and O('b16',1): barrier(16)
            if j==2 or (ty=='A' and j==0) or (j==0 and O('xs',2) and (gi%O('xs',2)==0 or gi>=O('xs1',50)) and gi>=O('xs0',0)): slot()
            if not mid: next(side,None)
            else:
                for _ in range(st.get('rate',[4,4,4])[j]):
                    if next(side,'gap')=='gap': break
        if gi==lastA:
            for _ in side: pass
            stamp('A_end'); burst(); side=side2(); mid=True
            for k_ in (1,2): doreads(gi+k_,0); doreads(gi+k_,1)
    for _ in side: raise Exception('side left')
    g.wait_all_lg(); barrier(17); stamp('1b_end'); print('w2n at 1b_end',st['w2n'])
    pump(O('t0pump',0))
    E0=WR
    vL16F=T+16
    pol=T+34
    aid={}
    def aload(k):
        base,kk=(26,k) if k<16 else (28,k-16)
        if kk%4==0: e(f's_add_u32 s20, s{base}, {kk*1024}'); e(f's_add_u32 s21, s{base+1}, {kk*1024}')
        for tb in range(2):
            aid[k]=g.vm(f'buffer_load_dwordx4 {ar(8*(k%16)+4*tb,4)}, v{vL16}, {srd(SWS)}, s{20+tb} offen offset:{(kk%4)*1024} sc1')
    ALA=O('ala',8); na=[0]
    fl={}
    e(f's_cmp_eq_u32 s{sCG}, 15'); e(f's_cselect_b32 s12, {OOB:#x}, 0'); e(f'v_or_b32 v{vL16F}, s12, v{vL16}')
    if O('poll_k',0)<0: pid=st['pid']
    if O('chk_k',3)<0:
        check(pid,pol,0,'fs',61,vPS)
        for _ in range(O('apre',4)): aload(na[0]); na[0]+=1
    for pr in range(3):
        G=ACC+32*pr; Uu=G+16
        for h in range(2):
            k=2*pr+h
            R=range(8*h,8*h+8,2)
            for i in R: e(f'v_pk_mul_f32 {vr(E0+i%8,2)}, {vr(G+i,2)}, s[{sNL2E}:{sNL2E+1}] op_sel_hi:[1,0]')
            for i in range(8): e(f'v_exp_f32 v{E0+i}, v{E0+i}')
            for i in R: e(f'v_pk_mul_f32 {vr(G+i,2)}, {vr(G+i,2)}, {vr(Uu+i,2)}')
            for i in R: e(f'v_pk_fma_f32 {vr(E0+i%8,2)}, {vr(E0+i%8,2)}, {vr(vCinv,2)}, {vr(vCinv,2)}')
            for i in range(8): e(f'v_rcp_f32 v{E0+i}, v{E0+i}')
            for i in R: e(f'v_pk_mul_f32 {vr(G+i,2)}, {vr(G+i,2)}, {vr(E0+i%8,2)}')
            pk=E0+8+4*k
            for i in range(4): e(f'v_cvt_pk_bf16_f32 v{pk+i}, v{G+8*h+2*i}, v{G+8*h+2*i+1}')
            if k==O('poll_k',0): pid=g.vm(f'buffer_load_dword v{pol}, v{vPS}, {srd(SWS)}, 0 offen sc1')
            if k==O('chk_k',3):
                check(pid,pol,0,'fs',61,vPS)
                for _ in range(O('apre',4)): aload(na[0]); na[0]+=1
            if k>O('chk_k',3) and k<O('amid_stop',5):
                for _ in range(O('amid',0)): aload(na[0]); na[0]+=1
            fst=g.vm(f'buffer_store_dwordx4 {vr(pk,4)}, v{vL16F}, {srd(SWS)}, s{16 if k<4 else 17} offen offset:{(k%4)*1024} sc1')
    stamp('ffn_epi'); print('w2n at ffn_epi',st['w2n'])
    assert st['w2n']>=32
    while st['pendC']: service(force=True)
    if O('chk_k',3)>5: check(pid,pol,0,'fs',61,vPS)
    while na[0]<O('apre2',4): aload(na[0]); na[0]+=1
    def drain(n):
        for _ in range(n):
            r=pump(1)
            if r=='blocked' and (st['pendC'] or st['pendRel']):
                service(force=True); service(force=True); r=pump(1)
    vT0=[vTa[0],T+20,T+21]; vT1=[vTa[1],T+22,T+23]
    for k in (1,2):
        e(f'v_add_u32 v{vT0[k]}, {65536*k}, v{vT0[0]}'); e(f'v_add_u32 v{vT1[k]}, {65536*k}, v{vT1[0]}')
    x0,x1=URE+30,URE+31
    XS=URE+16; DS=URE+24; vXa=URE+26; vOa=URE+27; vGe=T+8; vZa=URE+28
    e(f's_lshl_b32 s13, s{sRT}, 7'); e(f's_lshl_b32 s12, s{sRH}, 6'); e('s_add_u32 s13, s13, s12')
    e(f's_lshr_b32 s12, s{sW}, 1'); e('s_lshl_b32 s12, s12, 5'); e('s_add_u32 s13, s13, s12')
    e(f's_and_b32 s12, s{sW}, 1'); e('s_lshl_b32 s12, s12, 3'); e('s_add_u32 s13, s13, s12')
    e(f'v_lshrrev_b32 v{x0}, 4, v{vL}'); e(f'v_add_u32 v{x0}, s13, v{x0}')
    e(f'v_and_b32 v{x1}, 15, v{vL}'); e(f's_lshl_b32 s12, s{sCT}, 7'); e(f'v_lshl_add_u32 v{x1}, v{x1}, 3, s12')
    e(f'v_lshl_add_u32 v{vXa}, v{x0}, 10, v{x1}'); e(f'v_lshlrev_b32 v{vOa}, 1, v{vXa}')
    e(f's_lshl_b32 s13, s{sCG}, 2'); e(f's_add_u32 s13, s13, s{sW}'); e(f's_xor_b32 s12, s{sRT}, 15'); e('s_or_b32 s13, s13, s12')
    e(f'v_or_b32 v{vZa}, s13, v{vL}'); e(f'v_cmp_eq_u32 vcc, 0, v{vZa}'); e(f'v_mov_b32 v{vZa}, {OOB:#x}'); e(f'v_cndmask_b32 v{vZa}, v{vZa}, 0, vcc')
    def small_loads():
        g.vm(f'global_load_dwordx2 {vr(DS,2)}, v{x1}, s[32:33]')
        for it in range(4):
            e(f's_movk_i32 s14, {(16*(it&1)+4*(it>>1))*1024}')
            st['xl']=g.vm(f'buffer_load_dwordx2 {vr(XS+2*it,2)}, v{vXa}, {srd(SX)}, s14 offen')
    stamp('p2s')
    def fflag():
        g.wait(vm=fst); g.vm(f'buffer_store_dword v{vNON}, v{vFS}, {srd(SWS)}, 0 offen offset:128 sc1'); stamp('fflag')
    if O('fflag_k',2)<0: fflag()
    g.wait_all_lg()
    wid={}
    def wread(k):
        u,ks=(k-16)>>1,k&1; gi=8+u
        assert st['w2n']>=4*gi+4,(k,st['w2n'])
        g.wait(vm=st['Flast'][gi]); row=st['Frow'][gi]
        for db in range(2):
            b=WR+8*(k%4)+4*db
            ad=(vT0,vT1)[db][row>>2]
            for rho in range(2):
                wid[k]=g.lg(f'ds_read_b64_tr_b16 {vr(b+2*rho,2)}, v{ad} offset:{(row&3)*16384+ks*2048+rho*1024}')
    wj=[T+4,T+5,T+6,T+7]; rd=[T+40,T+41]; SK=URE; dsk=[T+42+i for i in range(4)]
    def side_fin():
        y0,y1=T+16,T+17
        e(f'v_lshrrev_b32 v{y0}, 4, v{vM}'); e(f'v_lshlrev_b32 v{y0}, 14, v{y0}'); e(f'v_and_b32 v{y1}, 15, v{vM}'); yield
        e(f'v_lshl_add_u32 v{y0}, v{y1}, 8, v{y0}'); e(f'v_and_b32 v{y1}, 7, v{vM}'); e(f'v_lshlrev_b32 v{y1}, 4, v{y1}'); yield
        e(f'v_xor_b32 v{y1}, v{y1}, v{vHH16}'); e(f'v_add3_u32 v{wj[0]}, v{y0}, v{y1}, s{sM0R}'); yield
        for j in range(1,4): e(f'v_xor_b32 v{wj[j]}, {32*j}, v{wj[0]}')
        yield
        e(f'v_lshrrev_b32 v{y0}, 4, v{vL}'); e(f'v_and_b32 v{y1}, 15, v{vL}'); e(f'v_xor_b32 v{y1}, v{y1}, v{y0}'); yield
        e(f'v_lshlrev_b32 v{y1}, 4, v{y1}'); e(f'v_lshl_add_u32 v{y1}, v{y0}, 8, v{y1}'); yield
        e(f's_lshl_b32 s12, s{sW}, 14'); e(f's_add_u32 s12, s12, {ROW0}'); e(f'v_add_u32 v{rd[0]}, s12, v{y1}'); e(f'v_xor_b32 v{rd[1]}, 64, v{rd[0]}'); yield
        e(f's_lshl_b32 s13, s{sRH}, 8'); e(f's_lshl_b32 s12, s{sW}, 6'); e('s_add_u32 s12, s12, s13'); e(f'v_lshl_add_u32 v{y0}, v{y0}, 2, s12'); yield
        for it in range(4): gl=g.lg(f'ds_read_b32 v{vGe+it}, v{y0} offset:{G_L+16*it}')
        yield
        while 'xl' not in st or g.nvm-st['xl']<12: yield
        g.wait(vm=st['xl'])
        e(f'v_lshlrev_b32 v{dsk[0]}, 16, v{DS}'); e(f'v_and_b32 v{dsk[1]}, 0xffff0000, v{DS}'); yield
        e(f'v_lshlrev_b32 v{dsk[2]}, 16, v{DS+1}'); e(f'v_and_b32 v{dsk[3]}, 0xffff0000, v{DS+1}'); yield
        g.wait(lg=gl)
        for it in range(4):
            for h in range(2):
                a,b=SK+4*it+2*h,SK+4*it+2*h+1
                e(f'v_lshlrev_b32 v{a}, 16, v{XS+2*it+h}'); e(f'v_and_b32 v{b}, 0xffff0000, v{XS+2*it+h}')
                e(f'v_mul_f32 v{a}, v{a}, v{dsk[2*h]}'); yield
                e(f'v_mul_f32 v{b}, v{b}, v{dsk[2*h+1]}')
                e(f'v_cvt_pk_bf16_f32 v{b}, v{a}, v{b}')
                e(f'v_lshlrev_b32 v{a}, 16, v{b}'); yield
                e(f'v_and_b32 v{b}, 0xffff0000, v{b}')
                e(f'v_mul_f32 v{a}, v{a}, v{vGe+it}'); e(f'v_mul_f32 v{b}, v{b}, v{vGe+it}'); yield
    side=side_fin()
    pid2=None
    FK=O('fchk_k',12)
    KT=34 if O('amaj',1) else 38
    for k in range(KT):
        if 16<=k+2<38: wread(k+2)
        g.wait(vm=aid[k])
        if k>=16: g.wait(lg=wid[k])
        if k in (0,8,16,24,32): stamp(f'k{k}')
        for db in range(2):
            for tb in range(2):
                acc=vr(ACC+16*(2*db+tb),16)
                Wf=ar(128+(k*2+db)*4,4) if k<16 else vr(WR+8*(k%4)+4*db,4)
                e(f'v_mfma_f32_32x32x16_bf16 {acc}, {Wf}, {ar(8*(k%16)+4*tb,4)}, {"0" if k==0 else acc}')
                next(side,None)
            if db==0:
                if k==FK: check(pid2,pol+1,128,'ff',59,vPF)
                lim=min(38,k+ALA+1) if k>=FK else min(16,k+ALA+1)
                cnt_=0
                while na[0]<lim and cnt_<O('acatch',2): aload(na[0]); na[0]+=1; cnt_+=1
                if k==FK-O('poll2_lead',4): pid2=g.vm(f'buffer_load_dword v{pol+1}, v{vPF}, {srd(SWS)}, 0 offen offset:128 sc1')
        if k==O('fflag_k',2): fflag()
        if k in (17,19): st['free'].append(st['Frow'][8+((k-16)>>1)])
        cur_n[0]+=6
        if st['w2n']<76 and k>=O('mix0',4): drain(O('mix',3))
        if k==O('small_at',9): small_loads()
        if KT==34 and k in (32,33): wread(k+4)
    for _ in side: raise Exception('side_fin left')
    wq=[]
    if KT==34:
        for db in range(2):
            for tb in range(2):
                acc=vr(ACC+16*(2*db+tb),16)
                for k in range(34,38):
                    g.wait(vm=aid[k],lg=wid[k])
                    e(f'v_mfma_f32_32x32x16_bf16 {acc}, {vr(WR+8*(k%4)+4*db,4)}, {ar(8*(k%16)+4*tb,4)}, {acc}')
                    if k>=36:
                        for _ in range(2):
                            if wq: g.lg(wq.pop(0))
                wq+=[f'ds_write_b128 v{wj[j]}, {vr(ACC+16*(2*db+tb)+4*j,4)} offset:{db*128+tb*32768}' for j in range(4)]
    else:
        wq=[f'ds_write_b128 v{wj[j]}, {vr(ACC+16*(2*db+tb)+4*j,4)} offset:{db*128+tb*32768}' for db in range(2) for tb in range(2) for j in range(4)]
    stamp('p2_end')
    for t in wq: g.lg(t)
    g.wait_all_lg(); e('s_barrier'); stamp('red')
    g.vm(f'buffer_store_dword v{vNON}, v{vZa}, {srd(SWS)}, 0 offen offset:{Z_OFF} sc1')
    RB=ACC
    ids={}
    for it in range(4):
        for w2 in range(4):
            ids[it,w2]=g.lg(f'ds_read_b128 {vr(RB+16*it+4*w2,4)}, v{rd[it&1]} offset:{w2*4096+it*1024}')
    for it in range(4):
        g.wait(lg=ids[it,3])
        b=RB+16*it
        for i in (0,2): e(f'v_pk_add_f32 {vr(b+i,2)}, {vr(b+i,2)}, {vr(SK+4*it+i,2)}')
        for i in (0,2): e(f'v_pk_add_f32 {vr(b+4+i,2)}, {vr(b+4+i,2)}, {vr(b+8+i,2)}')
        for i in (0,2): e(f'v_pk_add_f32 {vr(b+i,2)}, {vr(b+i,2)}, {vr(b+12+i,2)}')
        for i in (0,2): e(f'v_pk_add_f32 {vr(b+i,2)}, {vr(b+i,2)}, {vr(b+4+i,2)}')
        e(f's_mov_b32 s12, {(16*(it&1)+4*(it>>1))*2048}')
        g.vm(f'buffer_store_dwordx4 {vr(b,4)}, v{vOa}, {srd(SOUT)}, s12 offen {O("outfl","sc1")}')
    if O('stamps'):
        stamp('st_iss')
        e('s_waitcnt vmcnt(0)'); stamp('end',True)
        e('s_memrealtime s[94:95]'); e('s_waitcnt lgkmcnt(0)'); e('v_writelane_b32 v39, s94, 63')
        e(f's_lshl_b32 s11, s2, 10'); e(f's_add_u32 s11, s11, {WS_SIZE}'); e(f's_add_u32 s{SWS+2}, s{SWS+2}, 0x40000')
        e(f'v_lshlrev_b32 v{T}, 2, v0')
        e(f'buffer_store_dword v39, v{T}, {srd(SWS)}, s11 offen')
        if O('dbg'):
            sel=['start','setup','B0','B4','B8','B12','1b_end','ssm_fin','ffn_epi','w2_issued','fs_ok','k16','p2_end','end']
            e('s_mov_b32 s60, s46'); e('s_mov_b32 s61, s47'); e('s_mov_b32 s62, 256'); e('s_mov_b32 s63, 0x20000')
            e('v_readlane_b32 s12, v39, 62'); e('v_readlane_b32 s13, v39, 0'); e('s_not_b32 s12, s12')
            e(f'v_mov_b32 v{T+1}, s94'); e(f'v_mov_b32 v{T+2}, s12'); e(f'v_mov_b32 v{T+3}, 0'); e(f'v_mov_b32 v{T+4}, {OOB:#x}')
            e(f'v_cmp_eq_u32 vcc, 0, v0'); e(f'v_cndmask_b32 v{T+3}, v{T+4}, v{T+3}, vcc')
            e(f'buffer_atomic_umax v{T+1}, v{T+3}, s[60:63], 0 offen'); e(f'buffer_atomic_umax v{T+2}, v{T+3}, s[60:63], 0 offen offset:4')
            e('s_cmp_eq_u32 s2, 100'); e('s_cbranch_scc0 L_end')
            for i,nm in enumerate(sel):
                e(f'v_readlane_b32 s12, v39, {stamps.index(nm)}'); e('s_sub_u32 s12, s12, s13'); e(f'v_mov_b32 v{T+1}, s12')
                e(f'buffer_store_dword v{T+1}, v{T+3}, s[60:63], 0 offen offset:{8+4*i}')
    if O('diag'):
        e('s_waitcnt vmcnt(0)')
        if O('diag')==2:
            e(f'v_mov_b32 v{T+31}, 0'); e(f'global_load_dword v{T+30}, v{T+31}, s[46:47] sc1'); e('s_waitcnt vmcnt(0)')
            e(f'v_readfirstlane_b32 s94, v{T+30}'); e('s_nop 3'); e('s_not_b32 s94, s94')
        if O('dpt'):
            e('s_waitcnt lgkmcnt(0)'); e('s_sub_u32 s12, s92, s94'); e('s_lshl_b32 s12, s12, 1')
            e('s_memrealtime s[92:93]'); e('s_waitcnt lgkmcnt(0)')
        else:
            e('s_memrealtime s[92:93]'); e('s_waitcnt lgkmcnt(0)'); e('s_sub_u32 s12, s92, s94')
        e('s_min_u32 s12, s12, 20000'); e('s_add_u32 s12, s12, s92')
        e('L_dg:'); e('s_memrealtime s[92:93]'); e('s_waitcnt lgkmcnt(0)'); e('s_sub_u32 s13, s92, s12'); e('s_cmp_lt_i32 s13, 0'); e('s_cbranch_scc1 L_dg')
    e('L_end:')
    e('s_endpgm')
    hdr=open('gated_mix__ssm_conv_s5__glu_gated_swiglu__prompt.s.ref').read().split('; Override')[0]
    out=hdr+'; @launch grid=(256,1,1) block=(256,1,1) lds=163840\n'
    out+=f'.amdgcn_target "amdgcn-amd-amdhsa--gfx950"\n.text\n.globl {NAME}\n.p2align 8\n.type {NAME},@function\n{NAME}:\n'
    out+=g.text()
    out+=f'.fill (32768+256-(.-{NAME}))/4, 4, 0xbf810000\n'
    out+=f'''.section .rodata,"a"
.p2align 6
.amdhsa_kernel {NAME}
  .amdhsa_next_free_vgpr 512
  .amdhsa_next_free_sgpr 102
  .amdhsa_accum_offset 256
  .amdhsa_group_segment_fixed_size 0
  .amdhsa_kernarg_size 136
  .amdhsa_user_sgpr_count 2
  .amdhsa_user_sgpr_kernarg_segment_ptr 1
  .amdhsa_system_sgpr_workgroup_id_x 1
.end_amdhsa_kernel
'''
    return out,g
if __name__=='__main__':
    import json
    opt=json.loads(sys.argv[2]) if len(sys.argv)>2 else {}
    out,g=gen(opt)
    open(sys.argv[1],'w').write(out)
    if g.stamps: json.dump(g.stamps,open(sys.argv[1]+'.names','w'))
    from collections import Counter
    print(len(g.ins),Counter(i.cls for i in g.ins), 'nops',sum(1 for i in g.ins if i.mn=='s_nop'))
```

```python
import sys
from asmlib import *
NAME='gated_mix__ssm_conv_s5__glu_gated_swiglu__prompt_kernel'
ROW0=8192; RING=40960; SLOT=24576; NS=5
Z_OFF=0; FL_OFF=0x40000; HE_OFF=0x10000; A2_OFF=0x80000; WS_SIZE=A2_OFF+16*4*160*1024
OOB=0x80000000
GW_L=0; XCH_L=1024; HIN_L=2816; E_L=3072; G_L=5120; PQ_L=5632; TRB_L=155648
LOG2E=0x3fb8aa3b; NLOG2E=0xbfb8aa3b; INV2PI=0x3e22f983
SPIN=200000
sW,sRT,sCG,sCT,sRH,sROT,sNON=4,5,6,7,8,9,10
SX,SW0,SW1,SW3,SCRE,SCIM,SW2,SWS,SHE,SOUT=52,56,60,64,68,72,76,80,84,88
sXB,sW0B,sM0X,sM0W,sM0F,sSO,sSO2=96,97,98,99,100,101,3
sCB,sW2B,sA2S,sA2L0,sA2L1,sCNT,sT0,sT1=34,35,36,37,38,39,40,41
sM0R,sSO3,sFST,sNL2E,sROTF=50,51,22,24,23
srd=lambda b:f's[{b}:{b+3}]'
vr=lambda b,n:f'v[{b}:{b+n-1}]'
ar=lambda b,n:f'a[{b}:{b+n-1}]'
vL,vM,vHH16,vL16=1,2,3,4
vNat=[5,6,7,8]; vXo=[9,10,11,12]; vWF=[13,14,15]
vRA=[16,17,18,19]; vRAw=[20,21,22,23]; vTR=[24,25,26]
vLr,vLi,vL16r,vL16i,vL128r,vL128i,vL1kr,vL1ki,vC2r,vNC2i,vM8=27,28,29,30,31,32,33,34,35,36,37
vCinv=40
vW2o=[42,43,44,45]; vHEo=46; vFLo=47
URE=48; UIM=64; ACC=80; WR=176; T=208
ZA=T+44
vFS,vNON,vTW,vTRd=T+36,T+37,T+38,T+39; vEX=38; vT8=T+41
def gen(opt=None):
    opt=opt or {}
    O=opt.get
    g=Gen(); e=g.e
    FS=O('fs',8)
    SEQ=O('seq','AAAAAAAAFFFFFFFF'); assert SEQ.count('A')==8 and SEQ.count('F')==8 and SEQ[0]=='A'
    POS=[(c,SEQ[:i].count(c)) for i,c in enumerate(SEQ)]
    for i,(c,q) in enumerate(POS): assert c=='A' or SEQ[:i].count('A')>q
    stamps=[]
    def stamp(name,flush=False):
        if O('dpt')==name: e('s_memrealtime s[92:93]')
        if not O('stamps'): return
        k=len(stamps); stamps.append(name)
        if k>=2: e(f'v_writelane_b32 v39, s{92+2*(k%2)}, {k-2}')
        e(f's_memtime s[{92+2*(k%2)}:{93+2*(k%2)}]')
        if flush:
            e('s_waitcnt lgkmcnt(0)')
            e(f'v_writelane_b32 v39, s{92+2*((k-1)%2)}, {k-1}'); e(f'v_writelane_b32 v39, s{92+2*(k%2)}, {k}')
    g.stamps=stamps
    e('s_cmp_ge_u32 s2, 256'); e('s_cbranch_scc1 L_end')
    if O('stamps'):
        e('s_memrealtime s[94:95]'); e('v_mov_b32 v39, 0'); e('s_waitcnt lgkmcnt(0)'); e('v_writelane_b32 v39, s94, 62')
        stamp('start')
    if O('diag'): e('s_memrealtime s[94:95]')
    e('s_load_dwordx16 s[16:31], s[0:1], 0')
    e('s_load_dwordx16 s[32:47], s[0:1], 64')
    e('s_load_dwordx2 s[48:49], s[0:1], 128')
    e('s_getpc_b64 s[50:51]')
    e('s_lshr_b32 s13, s2, 3')
    e('s_and_b32 s14, s13, 7'); e('s_lshl_b32 s14, s14, 12')
    e(f'v_lshl_add_u32 v{T}, v0, 4, s14')
    g.vm(f'global_load_dwordx4 {vr(T+4,4)}, v{T}, s[50:51]')
    PF0=O('pf0',0)
    pX,pB,pW=T+40,T+41,T+42
    def pfA():
        g.vm(f'global_load_dword v{T+43}, v{pX}, s[16:17]'); g.vm(f'global_load_dword v{T+43}, v{pB}, s[22:23]'); g.vm(f'global_load_dword v{T+43}, v{pB}, s[24:25]')
    def pfF():
        g.vm(f'global_load_dword v{T+43}, v{pW}, s[36:37]'); g.vm(f'global_load_dword v{T+43}, v{pW}, s[38:39]')
    if PF0:
        e('s_lshl_b32 s12, s2, 6'); e(f'v_lshrrev_b32 v{pX}, 2, v0'); e(f'v_add_lshl_u32 v{pX}, v{pX}, s12, 7')
        e('s_lshl_b32 s12, s2, 4'); e(f'v_lshrrev_b32 v{pB}, 4, v0'); e(f'v_add_lshl_u32 v{pB}, v{pB}, s12, 7')
        e('s_mul_i32 s12, s2, 43'); e(f'v_mul_u32_u24 v{pW}, 43, v0'); e(f'v_lshrrev_b32 v{pW}, 8, v{pW}'); e(f'v_add_lshl_u32 v{pW}, v{pW}, s12, 7')
        e('s_waitcnt lgkmcnt(0)')
        if PF0&1: pfA()
        if PF0&2: pfF()
        e(f's_load_dword s{sNON}, s[48:49], {Z_OFF}'); g.smem=True
        stamp('pf')
    e(f'v_lshrrev_b32 v{T+1}, 6, v0')
    e(f'v_and_b32 v{vL}, 63, v0')
    e(f'v_readfirstlane_b32 s{sW}, v{T+1}')
    if O('map','B')=='A':
        e('s_and_b32 s12, s2, 7')
        e(f's_and_b32 s{sRH}, s12, 1'); e('s_lshr_b32 s14, s12, 1')
        e(f's_lshl_b32 s{sRT}, s14, 2'); e('s_lshr_b32 s15, s13, 3'); e(f's_add_u32 s{sRT}, s{sRT}, s15')
        e(f's_and_b32 s{sCT}, s13, 7')
        e(f's_lshl_b32 s{sCG}, s{sRH}, 3'); e(f's_add_u32 s{sCG}, s{sCG}, s{sCT}')
        e(f's_lshl_b32 s{sROT}, s14, 1'); e(f's_and_b32 s11, s{sCT}, {O("rotmask",4)}'); e(f's_add_u32 s{sROT}, s{sROT}, s11')
    else:
        e(f's_and_b32 s12, s2, 4'); e(f's_lshl_b32 s{sRT}, s12, 1'); e('s_lshr_b32 s15, s2, 5'); e(f's_add_u32 s{sRT}, s{sRT}, s15')
        e('s_and_b32 s14, s13, 3')
        e(f's_and_b32 s11, s2, 3'); e(f's_lshl_b32 s{sCG}, s11, 2'); e(f's_add_u32 s{sCG}, s{sCG}, s14')
        e(f's_and_b32 s{sRH}, s2, 1'); e(f's_and_b32 s{sCT}, s2, 2'); e(f's_lshl_b32 s{sCT}, s{sCT}, 1'); e(f's_add_u32 s{sCT}, s{sCT}, s14')
        if O('ctx',5): e(f's_xor_b32 s{sCT}, s{sCT}, {O("ctx",5)}')
        ra,rb,rc,rd_=O('rot',[2,1,0,0])
        e(f's_mul_i32 s{sROT}, s14, {ra}')
        if O('rtmask',7)!=7: e(f's_and_b32 s15, s15, {O("rtmask",7)}')
        if rb: e(f's_mul_i32 s15, s15, {rb}'); e(f's_add_u32 s{sROT}, s{sROT}, s15')
        if rc: e(f's_lshr_b32 s12, s12, 2'); e(f's_mul_i32 s12, s12, {rc}'); e(f's_add_u32 s{sROT}, s{sROT}, s12')
        if rd_: e(f's_mul_i32 s11, s11, {rd_}'); e(f's_add_u32 s{sROT}, s{sROT}, s11')
    l3,l7,l4,hh,sw0=T+8,T+9,T+10,T+11,T+12
    e(f'v_lshrrev_b32 v{l3}, 3, v{vL}'); e(f'v_and_b32 v{l7}, 7, v{vL}'); e(f'v_lshrrev_b32 v{l4}, 4, v{vL}'); e(f'v_lshrrev_b32 v{hh}, 5, v{vL}')
    e(f'v_xor_b32 v{sw0}, v{l7}, v{l4}'); e(f'v_lshlrev_b32 v{sw0}, 4, v{sw0}')
    e(f'v_lshl_add_u32 v{vNat[0]}, v{l3}, 10, v{sw0}')
    e(f'v_xor_b32 v{vNat[1]}, 64, v{vNat[0]}'); e(f'v_add_u32 v{vNat[1]}, 7168, v{vNat[1]}')
    e(f'v_and_b32 v{T+13}, 3, v{l3}'); e(f'v_lshl_add_u32 v{T+13}, v{hh}, 4, v{T+13}')
    e(f'v_lshl_add_u32 v{vXo[0]}, v{T+13}, 10, v{sw0}')
    e(f'v_xor_b32 v{vXo[1]}, 64, v{vXo[0]}'); e(f'v_add_u32 v{vXo[1]}, 3072, v{vXo[1]}')
    e(f'v_add_u32 v{vXo[2]}, 6144, v{vXo[0]}'); e(f'v_add_u32 v{vXo[3]}, 6144, v{vXo[1]}')
    e(f's_lshl_b32 s{sXB}, s{sRT}, 17'); e(f's_lshl_b32 s11, s{sW}, 15'); e(f's_add_u32 s{sXB}, s{sXB}, s11')
    e(f's_lshl_b32 s{sW0B}, s{sCG}, 15'); e(f's_and_b32 s11, s{sW}, 1'); e('s_lshl_b32 s11, s11, 14'); e(f's_add_u32 s{sW0B}, s{sW0B}, s11')
    e(f's_lshl_b32 s{sM0X}, s{sW}, 12'); e(f's_add_u32 s{sM0X}, s{sM0X}, {RING}')
    e(f's_lshl_b32 s{sM0W}, s{sW}, 11'); e(f's_add_u32 s{sM0W}, s{sM0W}, {RING+16384}')
    def mksrd(b,p): e(f's_mov_b32 s{b}, s{p}'); e(f's_mov_b32 s{b+1}, s{p+1}')
    def srdc(b,size): e(f's_mov_b32 s{b+2}, {size}'); e(f's_mov_b32 s{b+3}, 0x20000')
    srdc(SX,2048*1024); srdc(SW0,512*1024)
    e(f's_cmp_lt_u32 s{sW}, 2')
    if not PF0: e('s_waitcnt lgkmcnt(0)')
    stamp('karg')
    if O('stamps'): e(f's_cmp_lt_u32 s{sW}, 2')
    mksrd(SX,16)
    if O('diag')==2:
        e('s_not_b32 s92, s94'); e(f'v_mov_b32 v{T+30}, s92'); e(f'v_mov_b32 v{T+31}, 0')
        e('s_mov_b64 exec, 1'); g.vm(f'global_atomic_umax v{T+31}, v{T+30}, s[46:47]'); e('s_mov_b64 exec, -1')
        e(f's_cmp_lt_u32 s{sW}, 2')
    e(f's_cselect_b32 s{SW0}, s22, s24'); e(f's_cselect_b32 s{SW0+1}, s23, s25')
    blk_last={}
    st={'barr':-1,'free':[0,1],'pendC':[],'pendRel':[],'Frow':{},'Flast':{},'w2n':0,'m0':None,'w2on':False}
    D=O('D',3)
    cur_n=[0]
    def setm0(base,c):
        if st['m0']!=(base,c):
            e(f's_add_u32 m0, s{base}, {c}'); st['m0']=(base,c)
    def streamP():
        for p in range(16):
            while (p>=O('pre',2) and st['barr']<p-D) or (p>=O('hold',9) and not st.get('burst')): yield 'blocked'
            sl=p%NS; ty,q=POS[p]
            if ty=='A':
                e(f's_add_u32 s11, s{sROT}, {q}'); e('s_and_b32 s11, s11, 7'); e('s_lshl_b32 s11, s11, 7')
                e(f's_add_u32 s{sSO}, s{sXB}, s11'); e(f's_add_u32 s{sSO2}, s{sW0B}, s11')
                for a in range(4):
                    setm0(sM0X,sl*SLOT)
                    g.vm(f'buffer_load_dwordx4 v{vXo[a]}, {srd(SX)}, s{sSO} offen offset:{1024*a} lds'); yield
                for a in range(2):
                    setm0(sM0W,sl*SLOT)
                    blk_last[p]=g.vm(f'buffer_load_dwordx4 v{vNat[a]}, {srd(SW0)}, s{sSO2} offen offset:{1024*a} lds'); yield
            else:
                if q==3 and O('pf15',1):
                    e('\n'.join([f's_cmp_eq_u32 s{sCG}, 15','s_cbranch_scc0 L_no15b',
                      f's_mul_i32 s11, s{sRT}, {88*1024}', f's_add_u32 s{SW1}, s{SW2}, s11', f's_addc_u32 s{SW1+1}, s{SW2+1}, 0',
                      f's_add_u32 s{SW3}, s{SW1}, {44*1024}', f's_addc_u32 s{SW3+1}, s{SW1+1}, 0',
                      f's_mov_b32 s{SW1+2}, {44*1024}', f's_cmp_eq_u32 s{sRT}, 15', f's_cselect_b32 s{SW3+2}, {12*1024}, s{SW1+2}',
                      f's_mov_b32 s{sROTF}, 5', 'L_no15b:']))
                e(f's_add_u32 s11, s{sROTF}, {q}'); e('s_and_b32 s11, s11, 7'); e(f's_mul_i32 s{sSO}, s11, s{sFST}')
                for mt,S_ in enumerate((SW1,SW3)):
                    for a in range(3):
                        setm0(sM0F,sl*SLOT+mt*12288)
                        blk_last[p]=g.vm(f'buffer_load_dwordx4 v{vWF[a]}, {srd(S_)}, s{sSO} offen offset:{1024*a} lds'); yield
        while True: yield 'done'
    vTa=[vRA[0],vRA[1]]
    def moveC(gi,row,last):
        assert st.get('tra')
        mt,cb,db=gi>>2,(gi>>1)&1,gi&1
        g.wait(vm=last)
        for s in range(4):
            kap=4*(2*cb+(s>>1))+2*mt+(s&1)
            if row<4: ad=vRAw[s]; off=row*16384
            else:
                ad=T+44+s; off=0
                e(f'v_add_u32 v{ad}, {row*16384}, v{vRAw[s]}')
            i=g.lg(f'ds_read_b128 {ar(128+(kap*2+db)*4,4)}, v{ad} offset:{off}')
        st['pendRel'].append((row,i))
    def service(force=False):
        for it in list(st['pendRel']):
            if force: g.wait(lg=it[1])
            if g.lg_done>=it[1]: st['free'].append(it[0]); st['pendRel'].remove(it)
        if st['pendC'] and st.get('tra') and (force or cur_n[0]-st['pendC'][0][3]>=O('cagen',18) or g.vm_done>=st['pendC'][0][2]):
            moveC(*st['pendC'].pop(0)[:3])
    def gran(gi,row):
        st['Frow'][gi]=row
        if gi>=8:
            e(f's_add_u32 s{sSO3}, s{sW2B}, {32*1024*(gi-8)}'); S_,vo=SW2,vW2o
        else:
            c=gi; mt,cb,db=c>>2,(c>>1)&1,c&1
            e(f's_add_u32 s{sSO3}, s{sCB}, {db*32*1024+cb*128}'); S_,vo=(SCIM if mt else SCRE),vNat
        for a in range(4):
            setm0(sM0R,row*16384)
            st['Flast'][gi]=g.vm(f'buffer_load_dwordx4 v{vo[a]}, {srd(S_)}, s{sSO3} offen offset:{1024*a} lds'); st['w2n']+=1
            if a==3 and gi<8: st['pendC'].append((gi,row,st['Flast'][gi],cur_n[0]))
            yield
    def streamW():
        for gi in range(19):
            while not st['free'] or st.get('quiet') or (st.get('wantrow') and st.get('trow') is None): yield 'blocked'
            yield from gran(gi,st['free'].pop(0))
        while True: yield 'done'
    SP=streamP(); SWs=streamW()
    def pump(n=1):
        r=None
        for _ in range(n):
            r=next(SP)
            if r and st['w2on']:
                service(); r=next(SWs)
        return r
    def barrier(q):
        e('s_barrier'); st['barr']=q
        rel={13:[4],14:[5],15:[6,7],16:[8],17:[2,3]} if O('b16',1) else {13:[4],14:[5],15:[6,7],17:[8,2,3]}
        st['free']+=rel.get(q,[])
        if q>=O('w2from',9): st['w2on']=True
    if O('a0first',1): pump(6)
    e(f's_cmp_eq_u32 s{sW}, 0'); e(f's_cselect_b32 s11, s{sROT}, 0'); e('s_cselect_b32 s12, s42, s18'); e('s_cselect_b32 s13, s43, s19'); e(f's_cselect_b32 s14, 0, {ROW0}')
    e(f'v_add_u32 v{T+14}, s11, v{l3}'); e(f'v_and_b32 v{T+14}, 7, v{T+14}'); e(f'v_lshlrev_b32 v{T+14}, 7, v{T+14}')
    e(f's_cmp_eq_u32 s{sW}, 2'); e('s_cselect_b32 s12, s20, s12'); e('s_cselect_b32 s13, s21, s13')
    e(f's_cmp_eq_u32 s{sW}, 3'); e('s_cselect_b32 s12, s30, s12'); e('s_cselect_b32 s13, s31, s13')
    e(f'v_lshl_add_u32 v{T+14}, v{l7}, 4, v{T+14}')
    e(f's_lshl_b32 s11, s{sW}, 10'); e('s_add_u32 m0, s14, s11'); st['m0']=None
    e(f'v_and_b32 v{vM}, 31, v{vL}')
    gwid=g.vm(f'global_load_lds_dwordx4 v{T+14}, s[12:13]')
    if O('a0first',1): blk_last[0]=gwid
    e(f's_lshl_b32 s11, s{sCG}, 6')
    e(f'v_lshl_add_u32 v{T+15}, v{vM}, 1, s11')
    if not PF0: e(f's_load_dword s{sNON}, s[48:49], {Z_OFF}'); g.smem=True
    if not O('a0first',1): pump(O('a0pre',6))
    if PF0&4: pfF()
    stamp('p0')
    e(f'v_mov_b32 v{T+2}, 0'); e(f'v_mov_b32 v{T+3}, 0'); e(f'v_lshlrev_b32 v{vT8}, 3, v0')
    g.lg(f'ds_write_b64 v{vT8}, {vr(T+2,2)} offset:{XCH_L}')
    e(f'v_lshlrev_b32 v{vHH16}, 4, v{hh}')
    e(f's_lshl_b32 s{sM0R}, s{sW}, 12'); e(f's_add_u32 s{sM0R}, s{sM0R}, {ROW0}')
    e(f'v_bfe_u32 v{T+20}, v{vM}, 1, 3'); e(f'v_xor_b32 v{T+20}, v{T+20}, v{hh}'); e(f'v_lshlrev_b32 v{T+20}, 4, v{T+20}')
    e(f'v_lshl_add_u32 v{vRA[0]}, v{vM}, 7, v{T+20}')
    for s in range(1,4): e(f'v_xor_b32 v{vRA[s]}, {32*s}, v{vRA[0]}')
    XA2=[T+24+s for s in range(4)]; WA=[vRA,[T+28+s for s in range(4)],[T+32+s for s in range(4)]]
    for s in range(4):
        e(f'v_add_u32 v{vRAw[s]}, s{sM0R}, v{vRA[s]}')
        e(f'v_add_u32 v{XA2[s]}, {RING-ROW0+2*SLOT}, v{vRAw[s]}')
        e(f'v_add_u32 v{WA[1][s]}, {RING+16384+2*SLOT}, v{vRA[s]}'); e(f'v_add_u32 v{WA[2][s]}, {RING+16384+4*SLOT}, v{vRA[s]}')
        e(f'v_add_u32 v{vRA[s]}, {RING+16384}, v{vRA[s]}')
    vGA=T+40
    e(f'v_xor_b32 v{T+20}, v{vL}, v{l4}'); e(f'v_and_b32 v{T+20}, 1, v{T+20}'); e(f'v_mul_u32_u24 v{T+20}, 1056, v{T+20}'); e(f'v_add_u32 v{vGA}, v{T+20}, v{vHH16}')
    def side_setup():
        L=[]; A=L.append
        def mk(b,p): A(f's_mov_b32 s{b}, s{p}'); A(f's_mov_b32 s{b+1}, s{p+1}')
        def sc(b,size): A(f's_mov_b32 s{b+2}, {size}'); A(f's_mov_b32 s{b+3}, 0x20000')
        for b,p,size in [(SW1,36,512*2752),(SW3,38,512*2752),(SCRE,26,512*1024),(SCIM,28,512*1024),(SW2,40,1376*1024),(SWS,48,WS_SIZE),(SOUT,44,2048*2048)]:
            mk(b,p); sc(b,size)
        sc(SHE,8192)
        A(f's_mul_i32 s{sM0F}, s{sW}, 3072'); A(f's_add_u32 s{sM0F}, s{sM0F}, {RING}')
        A(f's_mov_b32 s{sFST}, {64*2752}'); A(f's_mov_b32 s{sROTF}, s{sROT}')
        A(f'v_lshlrev_b32 v{vL16}, 4, v{vL}'); A(f'v_lshlrev_b32 v{vM8}, 3, v{vM}')
        A(f's_mul_i32 s15, s{sW}, {16*2752}'); A(f's_mul_i32 s12, s{sCG}, 192'); A('s_add_u32 s15, s15, s12')
        A(f's_mul_i32 s12, s{sCG}, 12'); A('s_movk_i32 s13, 2752'); A(f'v_mov_b32 v{T+23}, {OOB:#x}')
        for a in range(3):
            A(f'v_add_u32 v{T+20}, {64*a}, v{vL}')
            A(f'v_mul_u32_u24 v{T+21}, 43691, v{T+20}'); A(f'v_lshrrev_b32 v{T+21}, 19, v{T+21}')
            A(f'v_mul_u32_u24 v{T+22}, 12, v{T+21}'); A(f'v_sub_u32 v{T+22}, v{T+20}, v{T+22}')
            A(f'v_mul_u32_u24 v{T+21}, s13, v{T+21}')
            A(f'v_lshl_add_u32 v{T+21}, v{T+22}, 4, v{T+21}')
            A(f'v_add_u32 v{T+22}, s12, v{T+22}')
            A(f'v_cmp_gt_u32 vcc, 172, v{T+22}')
            A(f'v_add_u32 v{T+21}, s15, v{T+21}')
            if a: A(f'v_subrev_u32 v{T+21}, {1024*a}, v{T+21}')
            A(f'v_cndmask_b32 v{vWF[a]}, v{T+23}, v{T+21}, vcc')
        if O('pf15',1):
            A('\n'.join([f's_cmp_eq_u32 s{sCG}, 15','s_cbranch_scc0 L_no15',
              f's_lshl_b32 s12, s{sRT}, 15', f's_add_u32 s{SW1}, s26, s12', f's_addc_u32 s{SW1+1}, s27, 0',
              f's_add_u32 s{SW3}, s28, s12', f's_addc_u32 s{SW3+1}, s29, 0',
              f's_mov_b32 s{SW1+2}, 0x8000', f's_mov_b32 s{SW3+2}, 0x8000', f's_mov_b32 s{sROTF}, 0',
              f's_movk_i32 s{sFST}, 12288', f's_mul_i32 s12, s{sW}, 3072',
              f'v_lshl_add_u32 v{vWF[0]}, v{vL}, 4, s12', f'v_mov_b32 v{vWF[1]}, v{vWF[0]}', f'v_mov_b32 v{vWF[2]}, v{vWF[0]}',
              'L_no15:']))
        r_,c_,g1=T+20,T+21,T+22
        A(f'v_bfe_u32 v{r_}, v{vL}, 2, 2'); A(f'v_and_b32 v{c_}, 3, v{vL}'); A(f'v_and_b32 v{g1}, 1, v{l4}')
        A(f'v_lshl_add_u32 v{T+19}, v{hh}, 3, v{r_}'); A(f'v_mul_u32_u24 v{T+19}, 192, v{T+19}')
        A(f'v_lshl_add_u32 v{T+19}, v{g1}, 5, v{T+19}'); A(f'v_lshl_add_u32 v{T+19}, v{c_}, 3, v{T+19}')
        for k in range(3): A(f'v_add_u32 v{vTR[k]}, {RING+2*k*SLOT}, v{T+19}')
        A(f's_lshl_b32 s12, s{sCG}, 13'); A(f's_add_u32 s12, s12, {HE_OFF}')
        A(f's_add_u32 s{SHE}, s48, s12\ns_addc_u32 s{SHE+1}, s49, 0')
        A(f's_lshl_b32 s{sCB}, s{sCT}, 16'); A(f's_lshl_b32 s12, s{sW}, 8'); A(f's_add_u32 s{sCB}, s{sCB}, s12')
        A(f's_mul_i32 s{sW2B}, s{sW}, {352*1024}'); A(f's_lshl_b32 s12, s{sCT}, 7'); A(f's_add_u32 s{sW2B}, s{sW2B}, s12')
        A(f's_lshl_b32 s13, s{sRT}, 2'); A(f's_add_u32 s12, s13, s{sW}'); A(f's_mul_i32 s{sA2S}, s12, {160*1024}'); A(f's_add_u32 s{sA2S}, s{sA2S}, {A2_OFF}')
        A(f's_lshl_b32 s12, s{sRH}, 1'); A('s_add_u32 s12, s12, s13'); A(f's_mul_i32 s{sA2L0}, s12, {160*1024}'); A(f's_add_u32 s{sA2L0}, s{sA2L0}, {A2_OFF}')
        A(f's_add_u32 s{sA2L1}, s{sA2L0}, {160*1024}')
        A(f's_mov_b32 s{sNL2E}, {NLOG2E:#x}')
        A(f'v_add_u32 v{vNat[2]}, {2*7168}, v{vNat[0]}'); A(f'v_add_u32 v{vNat[3]}, {2*7168}, v{vNat[1]}')
        A(f'v_and_b32 v{g1}, 1, v{l4}')
        A(f'v_lshlrev_b32 v{T+19}, 2, v{g1}'); A(f'v_xor_b32 v{T+19}, v{T+19}, v{l7}'); A(f'v_lshlrev_b32 v{T+19}, 4, v{T+19}')
        A(f'v_lshl_add_u32 v{vW2o[0]}, v{l3}, 10, v{T+19}')
        for a in range(1,4): A(f'v_add_u32 v{vW2o[a]}, {7168*a}, v{vW2o[0]}')
        A(f's_sub_u32 s12, 15, s{sRT}'); A('s_lshl_b32 s12, s12, 9')
        A(f'v_lshl_add_u32 v{T+20}, v{vM}, 4, s12')
        A(f'v_cmp_eq_u32 vcc, s{sW}, v{l3}')
        A(f'v_lshl_add_u32 v{vHEo}, v{vHH16}, 6, v{T+20}'); A(f's_lshl_b32 s12, s{sW}, 11'); A('s_add_u32 s12, s12, 512'); A(f'v_add_u32 v{vHEo}, s12, v{vHEo}')
        A(f'v_cndmask_b32 v{T+10}, v{T+23}, v{T+20}, vcc')
        A(f's_lshl_b32 s15, s{sRT}, 1'); A(f's_lshr_b32 s12, s{sW}, 1'); A('s_add_u32 s12, s12, s15'); A(f's_lshl_b32 s12, s12, {FS+5 if FS>2 else 8}')
        A(f's_and_b32 s13, s{sW}, 1'); A(f's_lshl_b32 s14, s{sCG}, 1'); A('s_add_u32 s13, s13, s14'); A(f's_lshl_b32 s13, s13, {FS}')
        A('s_add_u32 s12, s12, s13'); A(f's_add_u32 s12, s12, {FL_OFF}'); A(f'v_lshl_add_u32 v{T+20}, v{vL}, 2, s12')
        A(f'v_cmp_gt_u32 vcc, {32 if FS>2 else 1}, v{vL}'); A(f's_add_u32 s15, s15, s{sRH}')
        A(f's_lshl_b32 s15, s15, {FS+5 if FS>2 else 8}'); A(f's_add_u32 s15, s15, {FL_OFF}'); A(f'v_cndmask_b32 v{vFS}, v{T+23}, v{T+20}, vcc')
        A(f'v_lshl_add_u32 v{vFLo}, v{vM}, {FS}, s15')
        A(f'v_lshlrev_b32 v{vTW}, 6, v{vM}'); A(f'v_lshl_add_u32 v{vTW}, v{vHH16}, 1, v{vTW}'); A(f'v_add_u32 v{vTW}, s{sM0R}, v{vTW}')
        A(f'v_bfe_u32 v{vTRd}, v{vL}, 2, 2'); A(f'v_lshlrev_b32 v{vTRd}, 6, v{vTRd}')
        A(f'v_lshl_add_u32 v{vTRd}, v{vHH16}, 5, v{vTRd}'); A(f'v_and_b32 v{T+20}, 1, v{vL}')
        A(f'v_lshl_add_u32 v{vTRd}, v{T+20}, 5, v{vTRd}'); A(f'v_and_b32 v{T+20}, 16, v{vL}'); A(f'v_add_u32 v{vTRd}, v{T+20}, v{vTRd}')
        A(f'v_and_b32 v{T+20}, 2, v{vL}'); A(f'v_lshl_add_u32 v{vTRd}, v{T+20}, 2, v{vTRd}'); A(f'v_add_u32 v{vTRd}, s{sM0R}, v{vTRd}')
        A(f's_lshl_b32 s12, s{sW}, 2'); A(f's_sub_u32 s12, s{sRT}, s12'); A(f'v_lshrrev_b32 v{vEX}, 3, v{vHH16}'); A(f'v_sub_u32 v{vEX}, s12, v{vEX}')
        A(f'v_max_i32 v{vEX}, 0, v{vEX}'); A(f'v_min_i32 v{vEX}, 2, v{vEX}'); A(f'v_lshlrev_b32 v{vEX}, 1, v{vEX}')
        A(f's_lshl_b32 s{sT0}, s{sCG}, 12'); A(f's_add_u32 s{sT0}, s{sT0}, s{sA2S}')
        A(f's_mul_i32 s{sT1}, s{sCG}, {6*1024}'); A(f's_add_u32 s{sT1}, s{sT1}, s{sA2S}')
        A(f's_add_u32 s16, s{sT1}, {64*1024}'); A(f's_add_u32 s17, s16, 4096')
        A(f's_lshl_b32 s12, s{sW}, 14'); A(f's_add_u32 s26, s{sA2L0}, s12'); A(f's_add_u32 s27, s{sA2L1}, s12')
        A(f's_mul_i32 s12, s{sW}, {22*1024}'); A(f's_add_u32 s12, s12, {64*1024}'); A(f's_add_u32 s28, s{sA2L0}, s12'); A(f's_add_u32 s29, s{sA2L1}, s12')
        A(f's_lshl_b32 s12, s{sW}, 7'); A(f'v_lshl_add_u32 v{T+42}, v{vM}, 2, s12')
        A(f's_mul_i32 s{sNON}, s{sNON}, 1664525'); A(f's_add_u32 s{sNON}, s{sNON}, 1013904223')
        A(f's_cmp_eq_u32 s{sNON}, 0\ns_cselect_b32 s{sNON}, 1013904223, s{sNON}')
        return L
    Ls=side_setup()
    npre=O('setup_pre',90)
    Ls.append(f'v_mov_b32 v{vNON}, s{sNON}')
    print('setup list',len(Ls))
    for i,t in enumerate(Ls[:npre]):
        e(t)
        if i==29 and O('touch',0):
            e(f'v_mov_b32 v{T+19}, 0')
            for S_ in (SW1,SW3,SCRE,SCIM,SW2,SWS): g.vm(f'buffer_load_dword v{T+43}, v{T+19}, {srd(S_)}, 0 offen')
            e(f's_mul_i32 s12, s{sRT}, {640*1024}'); e(f's_add_u32 s12, s12, {A2_OFF}'); e(f's_add_u32 s13, s12, {639*1024}'); e(f's_lshl_b32 s14, s{sRT}, 18')
            g.vm(f'buffer_load_dword v{T+43}, v{T+19}, {srd(SWS)}, s12 offen'); g.vm(f'buffer_load_dword v{T+43}, v{T+19}, {srd(SWS)}, s13 offen')
            g.vm(f'buffer_load_dword v{T+43}, v{T+19}, {srd(SOUT)}, s14 offen')
    g.wait_all_lg()
    stamp('setup')
    pump(6*O('pre',2)-O('a0pre',6))
    if PF0&8: pfF()
    stamp('p1')
    def side_params():
        for i,t in enumerate(Ls[npre:]):
            e(t)
            if i%4==3: yield
        pl=[g.lg(f'ds_read_u16 v{T+16+i}, v{T+15} offset:{ROW0+1024*(i+1)}') for i in range(3)]
        if O('dwarm',1): g.vm(f'global_load_ushort v{T+43}, v{T+15}, s[32:33]')
        while g.lg_done<pl[2]: yield
        lre,lim,dt=T+16,T+17,T+18
        a_,b_,t0,t1=T,T+1,T+2,T+3
        L=[]; A=L.append
        for r in (lre,lim,dt): A(f'v_lshlrev_b32 v{r}, 16, v{r}')
        A(f'v_mul_f32 v{dt}, {LOG2E:#x}, v{dt}'); A(f'v_exp_f32 v{dt}, v{dt}')
        A(f'v_mul_f32 v{t0}, v{lre}, v{lre}')
        A(f'v_cvt_pk_bf16_f32 v{dt}, v{dt}, v{dt}'); A(f'v_lshlrev_b32 v{dt}, 16, v{dt}')
        A(f'v_mul_f32 v{a_}, v{dt}, v{lre}'); A(f'v_mul_f32 v{b_}, v{dt}, v{lim}')
        A(f'v_fma_f32 v{dt}, v{lim}, v{lim}, v{t0}'); A(f'v_rcp_f32 v{dt}, v{dt}')
        A(f'v_mul_f32 v{a_}, {LOG2E:#x}, v{a_}'); A(f'v_exp_f32 v{a_}, v{a_}')
        A(f'v_mul_f32 v{b_}, {INV2PI:#x}, v{b_}'); A(f'v_rndne_f32 v{t0}, v{b_}'); A(f'v_sub_f32 v{b_}, v{b_}, v{t0}')
        A(f'v_cos_f32 v{t0}, v{b_}'); A(f'v_sin_f32 v{t1}, v{b_}')
        A(f'v_add_f32 v{dt}, v{dt}, v{dt}')
        A(f'v_mul_f32 v{vLr}, v{a_}, v{t0}'); A(f'v_mul_f32 v{vLi}, v{a_}, v{t1}')
        A(f'v_add_f32 v{a_}, -1.0, v{vLr}')
        A(f'v_mul_f32 v{vNC2i}, v{vLi}, v{lre}'); A(f'v_mul_f32 v{vC2r}, v{a_}, v{lre}')
        A(f'v_fma_f32 v{vNC2i}, v{a_}, v{lim}, -v{vNC2i}'); A(f'v_fma_f32 v{vC2r}, v{vLi}, v{lim}, v{vC2r}')
        A(f'v_mul_f32 v{vNC2i}, v{vNC2i}, v{dt}'); A(f'v_mul_f32 v{vC2r}, v{vC2r}, v{dt}')
        def csq(dr,di,sr,si,n):
            for k in range(n):
                A(f'v_mul_f32 v{t0}, v{si}, v{si}'); A(f'v_mul_f32 v{t1}, v{sr}, v{si}')
                A(f'v_fma_f32 v{dr}, v{sr}, v{sr}, -v{t0}'); A(f'v_add_f32 v{di}, v{t1}, v{t1}')
                sr,si=dr,di
        csq(vL16r,vL16i,vLr,vLi,4); csq(vL128r,vL128i,vL16r,vL16i,3); csq(vL1kr,vL1ki,vL128r,vL128i,1)
        for i,t in enumerate(L):
            e(t)
            if i&1: yield
    NLi,NL16i,NL128i,NC2r=vXo
    def cfma_ip(ar_,ai_,lr,li,nli,sr,si):
        e(f'v_fmac_f32 v{ar_}, v{lr}, v{sr}'); e(f'v_fmac_f32 v{ai_}, v{lr}, v{si}')
        e(f'v_fmac_f32 v{ar_}, v{nli}, v{si}'); e(f'v_fmac_f32 v{ai_}, v{li}, v{sr}')
    def check(pid,reg,off,tag,lane,vP):
        e(f's_mov_b32 s{sCNT}, 0')
        g.wait(vm=pid)
        e(f'L_{tag}_chk:')
        e(f'v_cmp_ne_u32 vcc, s{sNON}, v{reg}')
        e('s_nop 1')
        e(f's_cbranch_vccz L_{tag}_ok')
        e(f's_add_u32 s{sCNT}, s{sCNT}, 1'); e(f's_cmp_gt_u32 s{sCNT}, {SPIN}'); e(f's_cbranch_scc1 L_{tag}_ok')
        e('s_sleep 1')
        e(f'buffer_load_dword v{reg}, v{vP}, {srd(SWS)}, 0 offen offset:{off} sc1')
        e('s_waitcnt vmcnt(0)'); e(f's_branch L_{tag}_chk')
        e(f'L_{tag}_ok:'); stamp(tag+'_ok')
        if O('stamps'): e(f'v_writelane_b32 v39, s{sCNT}, {lane}')
    vq=[]
    def cf(ar_,ai_,lr,li,nli,sr,si):
        e(f'v_fmac_f32 v{ar_}, v{lr}, v{sr}'); yield
        e(f'v_fmac_f32 v{ai_}, v{lr}, v{si}'); yield
        e(f'v_fmac_f32 v{ar_}, v{nli}, v{si}'); yield
        e(f'v_fmac_f32 v{ai_}, v{li}, v{sr}'); yield
    def seq(L):
        for t in L:
            e(t); yield
    def burst():
        for t in [f'v_xor_b32 v{NLi}, 0x80000000, v{vLi}',f'v_xor_b32 v{NL16i}, 0x80000000, v{vL16i}',f'v_mov_b32 v{T+13}, s{sNON}',f'v_mov_b32 v{T+15}, s{sNON}']: e(t)
        z=T+6; x0,x1=T+4,T+5
        fill=[f'v_and_b32 v{z+1}, 16, v{vL}',f'v_cmp_eq_u32 vcc, 0, v{z+1}',f'v_xor_b32 v{NL128i}, 0x80000000, v{vL1ki}',f'v_bfe_u32 v{x0}, v{vL}, 2, 2',
            f'v_cndmask_b32 v{z}, v{ZA+1}, v{ZA}, vcc',f'v_cvt_pk_bf16_f32 v{z}, v{z}, v{z}',f'v_lshlrev_b32 v{z}, 16, v{z}',
            f'v_mul_f32 v{z}, s{sNL2E}, v{z}',f'v_exp_f32 v{z}, v{z}',f'v_add_f32 v{z}, 1.0, v{z}',f'v_rcp_f32 v{z}, v{z}',
            f'v_cvt_pk_bf16_f32 v{z}, v{z}, v{z}',f'v_lshlrev_b32 v{z}, 16, v{z}',
            f'v_sub_f32 v{z+1}, 1.0, v{z}',f'v_cvt_pk_bf16_f32 v{z+1}, v{z+1}, v{z+1}',f'v_lshlrev_b32 v{z+1}, 16, v{z+1}',
            f'v_rcp_f32 v{vCinv}, v{z+1}',f'v_lshlrev_b32 v{x0}, 7, v{x0}',f'v_min_f32 v{vCinv}, 0x7e967699, v{vCinv}',f'v_mov_b32 v{vCinv+1}, v{vCinv}',
            f'v_lshl_add_u32 v{x0}, v{vHH16}, 5, v{x0}',
            f'v_and_b32 v{x1}, 8, v{vL}',f'v_lshl_add_u32 v{x0}, v{x1}, 3, v{x0}',f'v_and_b32 v{x1}, 16, v{vL}',f'v_lshl_add_u32 v{x0}, v{x1}, 1, v{x0}',
            f'v_and_b32 v{x1}, 3, v{vL}',f'v_lshl_add_u32 v{x0}, v{x1}, 3, v{x0}',f'v_add_u32 v{vTa[0]}, s{sM0R}, v{x0}',f'v_xor_b32 v{vTa[1]}, 64, v{vTa[0]}',
            f'v_mov_b32 v{T}, v{vC2r}',f'v_mov_b32 v{T+1}, v{vNC2i}']
        for t in range(1,16):
            e(f'v_fmac_f32 v{URE+t}, v{vLr}, v{URE+t-1}'); e(f'v_fmac_f32 v{UIM+t}, v{vLr}, v{UIM+t-1}'); e(fill.pop(0))
            e(f'v_fmac_f32 v{URE+t}, v{NLi}, v{UIM+t-1}'); e(f'v_fmac_f32 v{UIM+t}, v{vLi}, v{URE+t-1}'); e(fill.pop(0))
        e(f'v_mov_b32 v{T+2}, v{URE+15}'); e(f'v_mov_b32 v{T+3}, v{UIM+15}')
        for t in fill: e(t)
        g.lg(f'ds_write_b64 v{vT8}, {vr(T+2,2)} offset:{E_L}'); lw=g.lg(f'ds_write_b32 v{T+42}, v{z} offset:{G_L}')
        st['tra']=True
        def coef(u):
            o=T+32+2*((u>>1)&1)
            return [f'v_pk_mul_f32 {vr(o,2)}, {vr(UIM+u,2)}, {vr(T,2)} op_sel:[0,1] op_sel_hi:[1,1]',
                    f'v_pk_mul_f32 {vr(UIM+u,2)}, {vr(UIM+u,2)}, {vr(T,2)} op_sel_hi:[1,0] neg_lo:[0,1] neg_hi:[0,1]',
                    f'v_pk_fma_f32 {vr(UIM+u,2)}, {vr(URE+u,2)}, {vr(T,2)}, {vr(UIM+u,2)} op_sel:[0,1,0] op_sel_hi:[1,1,1]',
                    f'v_pk_fma_f32 {vr(URE+u,2)}, {vr(URE+u,2)}, {vr(T,2)}, {vr(o,2)} op_sel_hi:[1,0,1]']
        def coef2(u):
            a,b=coef(u),coef(u+2)
            for i in range(4): e(a[i]); e(b[i])
        coef2(0)
        g.wait(lg=lw); e('s_barrier')
        ids=[g.lg(f'ds_read_b64 {vr(T+16+2*s,2)}, v{vM8} offset:{E_L+256*s}') for s in range(8)]
        e(f's_lshl_b32 s12, s{sW}, 7'); e(f'v_add_u32 v{x0}, s12, v{vHH16}')
        for j in range(4): gi_=g.lg(f'ds_read_b128 {vr(WR+4*j,4)}, v{x0} offset:{G_L+32*j}')
        coef2(4); coef2(8); coef2(12)
        g.wait(lg=gi_)
        for u in range(0,16,2):
            e(f'v_pk_mul_f32 {vr(URE+u,2)}, {vr(URE+u,2)}, {vr(WR+u,2)}'); e(f'v_pk_mul_f32 {vr(UIM+u,2)}, {vr(UIM+u,2)}, {vr(WR+u,2)}')
        for s in range(1,8): cfma_ip(T+16+2*s,T+17+2*s,vL16r,vL16i,NL16i,T+14+2*s,T+15+2*s)
        e(f'v_mov_b32 v{T+12}, v{T+30}'); e(f'v_mov_b32 v{T+14}, v{T+31}')
        st['burst']=True
        pump(O('bpump',6))
        g.vm(f'buffer_store_dwordx4 {vr(T+12,4)}, v{T+10}, {srd(SHE)}, 0 offen sc1'); stamp('he_pub')
    def slot():
        if st.get('wantrow') and st.get('trow') is None:
            service()
            if st['free']: st['trow']=st['free'].pop(0)
        if vq:
            f=vq.pop(0)
            if f: f(); return None
        return pump(1)
    hel=lambda jj:f'buffer_load_dwordx4 {vr(T+16+4*jj,4)}, v{vHEo}, {srd(SHE)}, 0 offen offset:{512*jj} sc1'
    he={}
    def hecheck():
        cnt=T+8
        e(f's_mov_b32 s{sCNT}, 0')
        g.wait(vm=he[1])
        e('L_he_chk:')
        e(f'v_mov_b32 v{cnt}, 0')
        for jj in range(2):
            e(f'v_cmp_eq_u32 vcc, s{sNON}, v{T+16+4*jj+1}'); e(f'v_cmp_eq_u32 s[12:13], s{sNON}, v{T+16+4*jj+3}')
            e(f'v_addc_co_u32 v{cnt}, vcc, 0, v{cnt}, vcc'); e(f'v_addc_co_u32 v{cnt}, s[12:13], 0, v{cnt}, s[12:13]')
        e(f'v_cmp_ne_u32 vcc, v{cnt}, v{vEX}')
        e('s_nop 1')
        e('s_cbranch_vccz L_he_ok')
        e(f's_add_u32 s{sCNT}, s{sCNT}, 1'); e(f's_cmp_gt_u32 s{sCNT}, {SPIN}'); e('s_cbranch_scc1 L_he_ok')
        e('s_sleep 1')
        for jj in range(2): e(hel(jj))
        e('s_waitcnt vmcnt(0)'); e('s_branch L_he_chk')
        e('L_he_ok:'); stamp('he_ok')
        if O('stamps'): e(f'v_writelane_b32 v39, s{sCNT}, 60')
        for t in [f'v_fma_f32 v{T+8}, v{vL128r}, v{T+20}, v{T+16}',f'v_fma_f32 v{T+9}, v{vL128r}, v{T+22}, v{T+18}',
                  f'v_fma_f32 v{T+8}, -v{vL128i}, v{T+22}, v{T+8}',f'v_fmac_f32 v{T+9}, v{vL128i}, v{T+20}']: e(t)
        return g.lg(f'ds_write_b64 v{vT8}, {vr(T+8,2)} offset:{PQ_L}')
    GG=T+16; WRe,WIm,L2=T,T+4,T+8; vPF,vPS=vXo[3],vEX
    def side2():
        st['rate']=O('rate2',[4,4,3])
        while cur_n[0]<O('he_at',112): yield 'gap'
        for jj in range(2): vq.append(lambda jj=jj: he.__setitem__(jj,g.vm(hel(jj))))
        while cur_n[0]<O('he_chk',134): yield 'gap'
        st['elw']=hecheck(); b0=st['barr']; yield 'gap'
        y=T+32
        yield from seq([f's_mul_i32 s12, s{sW}, 11','s_mul_i32 s13, s12, 43691','s_lshr_b32 s13, s13, 17','s_lshl_b32 s13, s13, 1',
            's_add_u32 s12, s12, 10','s_mul_i32 s14, s12, 43691','s_lshr_b32 s14, s14, 17','s_lshl_b32 s14, s14, 1','s_add_u32 s14, s14, 1',
            f'v_max_u32 v{y}, s13, v{vM}',f'v_min_u32 v{y}, s14, v{y}',f'v_sub_u32 v{y}, v{y}, v{vM}',f'v_lshl_add_u32 v{vPF}, v{y}, {FS}, v{vFLo}',
            f's_lshl_b32 s13, s{sW}, 3',f'v_and_b32 v{y}, 7, v{vM}',f'v_add_u32 v{y}, s13, v{y}',f'v_sub_u32 v{y}, v{y}, v{vM}',f'v_lshl_add_u32 v{vPS}, v{y}, {FS}, v{vFLo}'])
        while st['barr']==b0: yield 'gap'
        ids=[]
        for s in range(8):
            ids.append(g.lg(f'ds_read_b64 {vr(T+16+2*s,2)}, v{vM8} offset:{PQ_L+256*(7-s)}')); yield
        while g.lg_done<ids[7]: yield 'gap'
        for s in range(1,8): yield from cf(T+16+2*s,T+17+2*s,vL1kr,vL1ki,NL128i,T+14+2*s,T+15+2*s)
        g.lg(f'ds_write_b64 v{vM8}, {vr(T+30,2)} offset:{HIN_L}'); yield
        ids=[]
        for k in range(8):
            ids.append(g.lg(f'ds_read_b64 {vr(T+2*k,2)}, v{vT8} offset:{XCH_L+256*k}')); yield
        e(f's_lshl_b32 s12, s{sW}, 7'); e(f'v_add_u32 v{y}, s12, v{vHH16}'); yield
        for j in range(4):
            g.lg(f'ds_read_b128 {vr(GG+4*j,4)}, v{y} offset:{G_L+32*j}'); yield
        while g.lg_done<ids[7]: yield 'gap'
        for k in range(1,8): yield from cf(T+2*k,T+2*k+1,vL16r,vL16i,NL16i,T+2*k-2,T+2*k-1)
        P=[(T,T+1),(T+2,T+3)]
        st['rate']=O('rate3',[4,4,3])
        yield from seq([f'v_mul_f32 v{T+2}, v{vC2r}, v{T+14}',f'v_mul_f32 v{T+3}, v{vNC2i}, v{T+14}',
                        f'v_fmac_f32 v{T+2}, v{vNC2i}, v{T+15}',f'v_fma_f32 v{T+3}, -v{vC2r}, v{T+15}, v{T+3}'])
        for t in range(17):
            d,c=P[t&1],P[1-(t&1)]; L=[]
            if t<16: L+=[f'v_mul_f32 v{d[0]}, v{vLr}, v{c[0]}',f'v_mul_f32 v{d[1]}, v{vLr}, v{c[1]}']
            if t>0: L+=[f'v_fmac_f32 v{URE+t-1}, v{GG+t-1}, v{c[0]}',f'v_fmac_f32 v{UIM+t-1}, v{GG+t-1}, v{c[1]}']
            if t<16: L+=[f'v_fmac_f32 v{d[0]}, v{vLi}, v{c[1]}',f'v_fmac_f32 v{d[1]}, v{NLi}, v{c[0]}']
            if t>0 and t%2==0:
                u=t-2; L+=[f'v_cvt_pk_bf16_f32 v{URE+(u>>1)}, v{URE+u}, v{URE+u+1}',f'v_cvt_pk_bf16_f32 v{UIM+(u>>1)}, v{UIM+u}, v{UIM+u+1}']
            if t==11: st['wantrow']=True
            yield from seq(L)
        while st.get('trow') is None: yield 'gap'
        row=st['trow']
        if row>=4:
            e(f'v_add_u32 v{vTW}, {row*16384}, v{vTW}'); e(f'v_add_u32 v{vTRd}, {row*16384}, v{vTRd}'); ro=0
        else: ro=row*16384
        for mt,b in enumerate((URE,UIM)):
            g.lg(f'ds_write_b128 v{vTW}, {vr(b,4)} offset:{ro+2048*mt}'); yield 'gap'
            g.lg(f'ds_write_b128 v{vTW}, {vr(b+4,4)} offset:{ro+2048*mt+16}'); yield 'gap'
        for mt in range(2):
            for ks in range(2):
                for rho in range(2):
                    tl=g.lg(f'ds_read_b64_tr_b16 {vr(T+8*mt+4*ks+2*rho,2)}, v{vTRd} offset:{ro+2048*mt+ks*1024+rho*256}'); yield
        st['pendRel'].append((row,tl))
        if O('quiet',1): st['quiet']=True
        while g.lg_done<tl: yield 'gap'
        for i in range(4):
            sst=g.vm(f'buffer_store_dwordx4 {vr(T+4*i,4)}, v{vL16}, {srd(SWS)}, s{sT0} offen offset:{i*1024} sc1'); yield 'gap'
            for _ in range(O('sgap',1)): yield 'gap'
        stamp('sst'); n0=cur_n[0]; print('S stores gap',n0)
        while cur_n[0]<n0+O('slag',22) and cur_n[0]<286:
            if cur_n[0]>=n0+O('qlen',10): st['quiet']=False
            yield 'gap'
        g.wait(vm=sst); g.vm(f'buffer_store_dword v{vNON}, v{vFS}, {srd(SWS)}, 0 offen sc1'); stamp('sflag'); st['quiet']=False; print('S flag gap',cur_n[0])
        if O('poll_k',0)<0:
            while cur_n[0]<O('poll_gap',278): yield 'gap'
            st['pid']=g.vm(f'buffer_load_dword v{T+34}, v{vPS}, {srd(SWS)}, 0 offen sc1')
    GR=[]
    for p,(ty,q) in enumerate(POS):
        for i in range(4 if ty=='A' else 8): GR.append((p,ty,q,i))
    lastA=max(i for i,x in enumerate(GR) if x[1]=='A')
    rdone={}
    def greads(gi):
        p,ty,q,i=GR[gi]; sl=p%NS; L=[]
        if i==0:
            def b_():
                g.wait(vm=blk_last[p],lg=st.get('elw')); barrier(p); stamp(f'{ty}{q}')
            pre=b_
        else: pre=None
        if ty=='A':
            s=i; b=128+12*((4*q+s)%8)
            xa,xo=(vRAw[s],RING-ROW0+sl*SLOT) if sl<2 else (XA2[s],(sl-2)*SLOT)
            wa=WA[sl>>1][s]; wo=(sl&1)*SLOT
            L=[f'ds_read_b128 {ar(16*q+4*s,4)}, v{xa} offset:{xo}',f'ds_read_b128 {ar(b,4)}, v{wa} offset:{wo}',
               f'ds_read_b128 {ar(b+4,4)}, v{wa} offset:{wo+4096}',f'ds_read_b128 {ar(b+8,4)}, v{vGA} offset:{GW_L+q*128+s*32}']
        else:
            for j in range(3):
                n=24*q+3*i+j; s,f=(n%24)//6,n%6; pair,mt=f>>1,f&1
                off=(sl&1)*SLOT+mt*12288+s*3072+pair*64; b=WR+4*(n%8)
                L+=[f'ds_read_b64_tr_b16 {vr(b+2*h,2)}, v{vTR[sl>>1]} offset:{off+768*h}' for h in range(2)]
        return pre,L
    def doreads(gi,part):
        if gi>=len(GR): return
        pre,L=greads(gi); h=len(L)//2
        if part==0 and pre: pre()
        for t in (L[:h] if part==0 else L[h:]): rdone[gi]=g.lg(t)
    def gm(gi,j):
        p,ty,q,i=GR[gi]
        if ty=='A':
            n=4*q+i; b=128+12*(n%8); x=ar(4*n,4); z=(n==0)
            if j==0: e(f'v_mfma_f32_32x32x16_bf16 {vr(URE,16)}, {x}, {ar(b,4)}, {"0" if z else vr(URE,16)}')
            if j==1: e(f'v_mfma_f32_32x32x16_bf16 {vr(UIM,16)}, {x}, {ar(b+4,4)}, {"0" if z else vr(UIM,16)}')
            if j==2: e(f'v_mfma_f32_16x16x32_bf16 {vr(ZA,4)}, {ar(b+8,4)}, {x}, {"0" if z else vr(ZA,4)}')
        else:
            n=24*q+3*i+j; s,f=(n%24)//6,n%6; acc=vr(ACC+16*f,16)
            e(f'v_mfma_f32_32x32x16_bf16 {acc}, {vr(WR+4*(n%8),4)}, {ar(16*q+4*s,4)}, {"0" if n<6 else acc}')
    LAA=O('laa',3)
    for gi in range(LAA): doreads(gi,0); doreads(gi,1)
    side=side_params(); mid=False
    for gi in range(len(GR)):
        p,ty,q,i=GR[gi]
        g.wait(lg=rdone[gi])
        for j in range(3):
            cur_n[0]=3*gi+j
            gm(gi,j)
            la=LAA if gi<=lastA else 2
            if j<2 and not (gi<=lastA<gi+la): doreads(gi+la,j)
            if p==15 and i==0 and j==1 and O('b16',1): barrier(16)
            if j==2 or (ty=='A' and j==0) or (j==0 and O('xs',2) and (gi%O('xs',2)==0 or gi>=O('xs1',50)) and gi>=O('xs0',0)): slot()
            if not mid: next(side,None)
            else:
                for _ in range(st.get('rate',[4,4,4])[j]):
                    if next(side,'gap')=='gap': break
        if gi==lastA:
            for _ in side: pass
            stamp('A_end'); burst(); side=side2(); mid=True
            for k_ in (1,2): doreads(gi+k_,0); doreads(gi+k_,1)
    for _ in side: raise Exception('side left')
    g.wait_all_lg(); barrier(17); stamp('1b_end'); print('w2n at 1b_end',st['w2n'])
    x0,x1=URE+30,URE+31
    XS=URE+16; DS=URE+24; vXa=URE+26; vOa=URE+27; vGe=T+8; vZa=URE+28
    def addr2():
        e(f's_lshl_b32 s13, s{sRT}, 7'); e(f's_lshl_b32 s12, s{sRH}, 6'); e('s_add_u32 s13, s13, s12')
        e(f's_lshr_b32 s12, s{sW}, 1'); e('s_lshl_b32 s12, s12, 5'); e('s_add_u32 s13, s13, s12')
        e(f's_and_b32 s12, s{sW}, 1'); e('s_lshl_b32 s12, s12, 3'); e('s_add_u32 s13, s13, s12')
        e(f'v_lshrrev_b32 v{x0}, 4, v{vL}'); e(f'v_add_u32 v{x0}, s13, v{x0}')
        e(f'v_and_b32 v{x1}, 15, v{vL}'); e(f's_lshl_b32 s12, s{sCT}, 7'); e(f'v_lshl_add_u32 v{x1}, v{x1}, 3, s12')
        e(f'v_lshl_add_u32 v{vXa}, v{x0}, 10, v{x1}'); e(f'v_lshlrev_b32 v{vOa}, 1, v{vXa}')
        e(f's_lshl_b32 s13, s{sCG}, 2'); e(f's_add_u32 s13, s13, s{sW}'); e(f's_xor_b32 s12, s{sRT}, 15'); e('s_or_b32 s13, s13, s12')
        e(f'v_or_b32 v{vZa}, s13, v{vL}'); e(f'v_cmp_eq_u32 vcc, 0, v{vZa}'); e(f'v_mov_b32 v{vZa}, {OOB:#x}'); e(f'v_cndmask_b32 v{vZa}, v{vZa}, 0, vcc')
    def small_loads():
        g.vm(f'global_load_dwordx2 {vr(DS,2)}, v{x1}, s[32:33]')
        for it in range(4):
            e(f's_movk_i32 s14, {(16*(it&1)+4*(it>>1))*1024}')
            st['xl']=g.vm(f'buffer_load_dwordx2 {vr(XS+2*it,2)}, v{vXa}, {srd(SX)}, s14 offen')
    if O('small0',0): addr2(); small_loads()
    pump(O('t0pump',0))
    E0=WR
    vL16F=T+16
    pol=T+34
    aid={}
    def aload(k):
        base,kk=(26,k) if k<16 else (28,k-16)
        if kk%4==0: e(f's_add_u32 s20, s{base}, {kk*1024}'); e(f's_add_u32 s21, s{base+1}, {kk*1024}')
        for tb in range(2):
            aid[k]=g.vm(f'buffer_load_dwordx4 {ar(8*(k%16)+4*tb,4)}, v{vL16}, {srd(SWS)}, s{20+tb} offen offset:{(kk%4)*1024} sc1')
    ALA=O('ala',8); na=[0]
    fl={}
    e(f's_cmp_eq_u32 s{sCG}, 15'); e(f's_cselect_b32 s12, {OOB:#x}, 0'); e(f'v_or_b32 v{vL16F}, s12, v{vL16}')
    if O('poll_k',0)<0: pid=st['pid']
    if O('chk_k',3)<0:
        check(pid,pol,0,'fs',61,vPS)
        for _ in range(O('apre',4)): aload(na[0]); na[0]+=1
    for pr in range(3):
        G=ACC+32*pr; Uu=G+16
        for h in range(2):
            k=2*pr+h
            R=range(8*h,8*h+8,2)
            for i in R: e(f'v_pk_mul_f32 {vr(E0+i%8,2)}, {vr(G+i,2)}, s[{sNL2E}:{sNL2E+1}] op_sel_hi:[1,0]')
            for i in range(8): e(f'v_exp_f32 v{E0+i}, v{E0+i}')
            for i in R: e(f'v_pk_mul_f32 {vr(G+i,2)}, {vr(G+i,2)}, {vr(Uu+i,2)}')
            for i in R: e(f'v_pk_fma_f32 {vr(E0+i%8,2)}, {vr(E0+i%8,2)}, {vr(vCinv,2)}, {vr(vCinv,2)}')
            for i in range(8): e(f'v_rcp_f32 v{E0+i}, v{E0+i}')
            for i in R: e(f'v_pk_mul_f32 {vr(G+i,2)}, {vr(G+i,2)}, {vr(E0+i%8,2)}')
            pk=E0+8+4*k
            for i in range(4): e(f'v_cvt_pk_bf16_f32 v{pk+i}, v{G+8*h+2*i}, v{G+8*h+2*i+1}')
            if k==O('poll_k',0): pid=g.vm(f'buffer_load_dword v{pol}, v{vPS}, {srd(SWS)}, 0 offen sc1')
            if k==O('chk_k',3):
                check(pid,pol,0,'fs',61,vPS)
                for _ in range(O('apre',4)): aload(na[0]); na[0]+=1
            if k>O('chk_k',3) and k<O('amid_stop',5):
                for _ in range(O('amid',0)): aload(na[0]); na[0]+=1
            fst=g.vm(f'buffer_store_dwordx4 {vr(pk,4)}, v{vL16F}, {srd(SWS)}, s{16 if k<4 else 17} offen offset:{(k%4)*1024} sc1')
    stamp('ffn_epi'); print('w2n at ffn_epi',st['w2n'])
    assert st['w2n']>=32
    while st['pendC']: service(force=True)
    if O('chk_k',3)>5: check(pid,pol,0,'fs',61,vPS)
    while na[0]<O('apre2',4): aload(na[0]); na[0]+=1
    def drain(n):
        for _ in range(n):
            r=pump(1)
            if r=='blocked' and (st['pendC'] or st['pendRel']):
                service(force=True); service(force=True); r=pump(1)
    vT0=[vTa[0],T+20,T+21]; vT1=[vTa[1],T+22,T+23]
    for k in (1,2):
        e(f'v_add_u32 v{vT0[k]}, {65536*k}, v{vT0[0]}'); e(f'v_add_u32 v{vT1[k]}, {65536*k}, v{vT1[0]}')
    if not O('small0',0): addr2()
    stamp('p2s')
    def fflag():
        g.wait(vm=fst); g.vm(f'buffer_store_dword v{vNON}, v{vFS}, {srd(SWS)}, 0 offen offset:128 sc1'); stamp('fflag')
    if O('fflag_k',2)<0: fflag()
    g.wait_all_lg()
    wid={}
    def wread(k):
        u,ks=(k-16)>>1,k&1; gi=8+u
        assert st['w2n']>=4*gi+4,(k,st['w2n'])
        g.wait(vm=st['Flast'][gi]); row=st['Frow'][gi]
        for db in range(2):
            b=WR+8*(k%4)+4*db
            ad=(vT0,vT1)[db][row>>2]
            for rho in range(2):
                wid[k]=g.lg(f'ds_read_b64_tr_b16 {vr(b+2*rho,2)}, v{ad} offset:{(row&3)*16384+ks*2048+rho*1024}')
    wj=[T+4,T+5,T+6,T+7]; rd=[T+40,T+41]; SK=URE; dsk=[T+42+i for i in range(4)]
    def side_fin():
        y0,y1=T+16,T+17
        e(f'v_lshrrev_b32 v{y0}, 4, v{vM}'); e(f'v_lshlrev_b32 v{y0}, 14, v{y0}'); e(f'v_and_b32 v{y1}, 15, v{vM}'); yield
        e(f'v_lshl_add_u32 v{y0}, v{y1}, 8, v{y0}'); e(f'v_and_b32 v{y1}, 7, v{vM}'); e(f'v_lshlrev_b32 v{y1}, 4, v{y1}'); yield
        e(f'v_xor_b32 v{y1}, v{y1}, v{vHH16}'); e(f'v_add3_u32 v{wj[0]}, v{y0}, v{y1}, s{sM0R}'); yield
        for j in range(1,4): e(f'v_xor_b32 v{wj[j]}, {32*j}, v{wj[0]}')
        yield
        e(f'v_lshrrev_b32 v{y0}, 4, v{vL}'); e(f'v_and_b32 v{y1}, 15, v{vL}'); e(f'v_xor_b32 v{y1}, v{y1}, v{y0}'); yield
        e(f'v_lshlrev_b32 v{y1}, 4, v{y1}'); e(f'v_lshl_add_u32 v{y1}, v{y0}, 8, v{y1}'); yield
        e(f's_lshl_b32 s12, s{sW}, 14'); e(f's_add_u32 s12, s12, {ROW0}'); e(f'v_add_u32 v{rd[0]}, s12, v{y1}'); e(f'v_xor_b32 v{rd[1]}, 64, v{rd[0]}'); yield
        e(f's_lshl_b32 s13, s{sRH}, 8'); e(f's_lshl_b32 s12, s{sW}, 6'); e('s_add_u32 s12, s12, s13'); e(f'v_lshl_add_u32 v{y0}, v{y0}, 2, s12'); yield
        for it in range(4): gl=g.lg(f'ds_read_b32 v{vGe+it}, v{y0} offset:{G_L+16*it}')
        yield
        while 'xl' not in st or g.nvm-st['xl']<12: yield
        g.wait(vm=st['xl'])
        e(f'v_lshlrev_b32 v{dsk[0]}, 16, v{DS}'); e(f'v_and_b32 v{dsk[1]}, 0xffff0000, v{DS}'); yield
        e(f'v_lshlrev_b32 v{dsk[2]}, 16, v{DS+1}'); e(f'v_and_b32 v{dsk[3]}, 0xffff0000, v{DS+1}'); yield
        g.wait(lg=gl)
        for it in range(4):
            for h in range(2):
                a,b=SK+4*it+2*h,SK+4*it+2*h+1
                e(f'v_lshlrev_b32 v{a}, 16, v{XS+2*it+h}'); e(f'v_and_b32 v{b}, 0xffff0000, v{XS+2*it+h}')
                e(f'v_mul_f32 v{a}, v{a}, v{dsk[2*h]}'); yield
                e(f'v_mul_f32 v{b}, v{b}, v{dsk[2*h+1]}')
                e(f'v_cvt_pk_bf16_f32 v{b}, v{a}, v{b}')
                e(f'v_lshlrev_b32 v{a}, 16, v{b}'); yield
                e(f'v_and_b32 v{b}, 0xffff0000, v{b}')
                e(f'v_mul_f32 v{a}, v{a}, v{vGe+it}'); e(f'v_mul_f32 v{b}, v{b}, v{vGe+it}'); yield
    side=side_fin()
    pid2=None
    FK=O('fchk_k',12)
    KT=34 if O('amaj',1) else 38
    for k in range(KT):
        if 16<=k+2<38: wread(k+2)
        g.wait(vm=aid[k])
        if k>=16: g.wait(lg=wid[k])
        if k in (0,8,16,24,32): stamp(f'k{k}')
        for db in range(2):
            for tb in range(2):
                acc=vr(ACC+16*(2*db+tb),16)
                Wf=ar(128+(k*2+db)*4,4) if k<16 else vr(WR+8*(k%4)+4*db,4)
                e(f'v_mfma_f32_32x32x16_bf16 {acc}, {Wf}, {ar(8*(k%16)+4*tb,4)}, {"0" if k==0 else acc}')
                next(side,None)
            if db==0:
                if k==FK: check(pid2,pol+1,128,'ff',59,vPF)
                lim=min(38,k+ALA+1) if k>=FK else min(16,k+ALA+1)
                cnt_=0
                while na[0]<lim and cnt_<O('acatch',2): aload(na[0]); na[0]+=1; cnt_+=1
                if k==FK-O('poll2_lead',4): pid2=g.vm(f'buffer_load_dword v{pol+1}, v{vPF}, {srd(SWS)}, 0 offen offset:128 sc1')
        if k==O('fflag_k',2): fflag()
        if k in (17,19): st['free'].append(st['Frow'][8+((k-16)>>1)])
        cur_n[0]+=6
        if st['w2n']<76 and k>=O('mix0',4): drain(O('mix',3))
        if k==O('small_at',9) and not O('small0',0): small_loads()
        if KT==34 and k in (32,33): wread(k+4)
    for _ in side: raise Exception('side_fin left')
    wq=[]
    if KT==34:
        for db in range(2):
            for tb in range(2):
                acc=vr(ACC+16*(2*db+tb),16)
                for k in range(34,38):
                    g.wait(vm=aid[k],lg=wid[k])
                    e(f'v_mfma_f32_32x32x16_bf16 {acc}, {vr(WR+8*(k%4)+4*db,4)}, {ar(8*(k%16)+4*tb,4)}, {acc}')
                    if k>=36:
                        for _ in range(2):
                            if wq: g.lg(wq.pop(0))
                wq+=[f'ds_write_b128 v{wj[j]}, {vr(ACC+16*(2*db+tb)+4*j,4)} offset:{db*128+tb*32768}' for j in range(4)]
    else:
        wq=[f'ds_write_b128 v{wj[j]}, {vr(ACC+16*(2*db+tb)+4*j,4)} offset:{db*128+tb*32768}' for db in range(2) for tb in range(2) for j in range(4)]
    stamp('p2_end')
    for t in wq: g.lg(t)
    g.wait_all_lg(); e('s_barrier'); stamp('red')
    g.vm(f'buffer_store_dword v{vNON}, v{vZa}, {srd(SWS)}, 0 offen offset:{Z_OFF} sc1')
    RB=ACC
    ids={}
    for it in range(4):
        for w2 in range(4):
            ids[it,w2]=g.lg(f'ds_read_b128 {vr(RB+16*it+4*w2,4)}, v{rd[it&1]} offset:{w2*4096+it*1024}')
    for it in range(4):
        g.wait(lg=ids[it,3])
        b=RB+16*it
        for i in (0,2): e(f'v_pk_add_f32 {vr(b+i,2)}, {vr(b+i,2)}, {vr(SK+4*it+i,2)}')
        for i in (0,2): e(f'v_pk_add_f32 {vr(b+4+i,2)}, {vr(b+4+i,2)}, {vr(b+8+i,2)}')
        for i in (0,2): e(f'v_pk_add_f32 {vr(b+i,2)}, {vr(b+i,2)}, {vr(b+12+i,2)}')
        for i in (0,2): e(f'v_pk_add_f32 {vr(b+i,2)}, {vr(b+i,2)}, {vr(b+4+i,2)}')
        e(f's_mov_b32 s12, {(16*(it&1)+4*(it>>1))*2048}')
        g.vm(f'buffer_store_dwordx4 {vr(b,4)}, v{vOa}, {srd(SOUT)}, s12 offen {O("outfl","sc1")}')
    if O('stamps'):
        stamp('st_iss')
        e('s_waitcnt vmcnt(0)'); stamp('end',True)
        e('s_memrealtime s[94:95]'); e('s_waitcnt lgkmcnt(0)'); e('v_writelane_b32 v39, s94, 63')
        e(f's_lshl_b32 s11, s2, 10'); e(f's_add_u32 s11, s11, {WS_SIZE}'); e(f's_add_u32 s{SWS+2}, s{SWS+2}, 0x40000')
        e(f'v_lshlrev_b32 v{T}, 2, v0')
        e(f'buffer_store_dword v39, v{T}, {srd(SWS)}, s11 offen')
        if O('dbg'):
            sel=['start','setup','B0','B4','B8','B12','1b_end','ssm_fin','ffn_epi','w2_issued','fs_ok','k16','p2_end','end']
            e('s_mov_b32 s60, s46'); e('s_mov_b32 s61, s47'); e('s_mov_b32 s62, 256'); e('s_mov_b32 s63, 0x20000')
            e('v_readlane_b32 s12, v39, 62'); e('v_readlane_b32 s13, v39, 0'); e('s_not_b32 s12, s12')
            e(f'v_mov_b32 v{T+1}, s94'); e(f'v_mov_b32 v{T+2}, s12'); e(f'v_mov_b32 v{T+3}, 0'); e(f'v_mov_b32 v{T+4}, {OOB:#x}')
            e(f'v_cmp_eq_u32 vcc, 0, v0'); e(f'v_cndmask_b32 v{T+3}, v{T+4}, v{T+3}, vcc')
            e(f'buffer_atomic_umax v{T+1}, v{T+3}, s[60:63], 0 offen'); e(f'buffer_atomic_umax v{T+2}, v{T+3}, s[60:63], 0 offen offset:4')
            e('s_cmp_eq_u32 s2, 100'); e('s_cbranch_scc0 L_end')
            for i,nm in enumerate(sel):
                e(f'v_readlane_b32 s12, v39, {stamps.index(nm)}'); e('s_sub_u32 s12, s12, s13'); e(f'v_mov_b32 v{T+1}, s12')
                e(f'buffer_store_dword v{T+1}, v{T+3}, s[60:63], 0 offen offset:{8+4*i}')
    if O('diag'):
        e('s_waitcnt vmcnt(0)')
        if O('diag')==2:
            e(f'v_mov_b32 v{T+31}, 0'); e(f'global_load_dword v{T+30}, v{T+31}, s[46:47] sc1'); e('s_waitcnt vmcnt(0)')
            e(f'v_readfirstlane_b32 s94, v{T+30}'); e('s_nop 3'); e('s_not_b32 s94, s94')
        if O('dpt'):
            e('s_waitcnt lgkmcnt(0)'); e('s_sub_u32 s12, s92, s94'); e('s_lshl_b32 s12, s12, 1')
            e('s_memrealtime s[92:93]'); e('s_waitcnt lgkmcnt(0)')
        else:
            e('s_memrealtime s[92:93]'); e('s_waitcnt lgkmcnt(0)'); e('s_sub_u32 s12, s92, s94')
        e('s_min_u32 s12, s12, 20000'); e('s_add_u32 s12, s12, s92')
        e('L_dg:'); e('s_memrealtime s[92:93]'); e('s_waitcnt lgkmcnt(0)'); e('s_sub_u32 s13, s92, s12'); e('s_cmp_lt_i32 s13, 0'); e('s_cbranch_scc1 L_dg')
    e('L_end:')
    e('s_endpgm')
    hdr=open('gated_mix__ssm_conv_s5__glu_gated_swiglu__prompt.s.ref').read().split('; Override')[0]
    out=hdr+'; @launch grid=(256,1,1) block=(256,1,1) lds=163840\n'
    out+="""; One fused launch, 256 workgroups (one per CU) x 4 waves, written by a generator script (own code):
"""
    out+=f'.amdgcn_target "amdgcn-amd-amdhsa--gfx950"\n.text\n.globl {NAME}\n.p2align 8\n.type {NAME},@function\n{NAME}:\n'
    out+=g.text()
    out+=f'.fill (32768+256-(.-{NAME}))/4, 4, 0xbf810000\n'
    out+=f'''.section .rodata,"a"
.p2align 6
.amdhsa_kernel {NAME}
  .amdhsa_next_free_vgpr 512
  .amdhsa_next_free_sgpr 102
  .amdhsa_accum_offset 256
  .amdhsa_group_segment_fixed_size 0
  .amdhsa_kernarg_size 136
  .amdhsa_user_sgpr_count 2
  .amdhsa_user_sgpr_kernarg_segment_ptr 1
  .amdhsa_system_sgpr_workgroup_id_x 1
.end_amdhsa_kernel
'''
    return out,g
if __name__=='__main__':
    import json
    opt=json.loads(sys.argv[2]) if len(sys.argv)>2 else {}
    out,g=gen(opt)
    open(sys.argv[1],'w').write(out)
    if g.stamps: json.dump(g.stamps,open(sys.argv[1]+'.names','w'))
    from collections import Counter
    print(len(g.ins),Counter(i.cls for i in g.ins), 'nops',sum(1 for i in g.ins if i.mn=='s_nop'))
```

```python
import sys
from asmlib import *
NAME='gated_mix__ssm_conv_s5__glu_gated_swiglu__prompt_kernel'
ROW0=8192; RING=40960; SLOT=24576; NS=5
Z_OFF=0; FL_OFF=0x40000; HE_OFF=0x10000; A2_OFF=0x80000; WS_SIZE=A2_OFF+16*4*160*1024
OOB=0x80000000
GW_L=0; XCH_L=1024; HIN_L=2816; E_L=3072; G_L=5120; PQ_L=5632; TRB_L=155648
LOG2E=0x3fb8aa3b; NLOG2E=0xbfb8aa3b; INV2PI=0x3e22f983
SPIN=200000
sW,sRT,sCG,sCT,sRH,sROT,sNON=4,5,6,7,8,9,10
SX,SW0,SW1,SW3,SCRE,SCIM,SW2,SWS,SHE,SOUT=52,56,60,64,68,72,76,80,84,88
sXB,sW0B,sM0X,sM0W,sM0F,sSO,sSO2=96,97,98,99,100,101,3
sCB,sW2B,sA2S,sA2L0,sA2L1,sCNT,sT0,sT1=34,35,36,37,38,39,40,41
sM0R,sSO3,sFST,sNL2E,sROTF=50,51,22,24,23
srd=lambda b:f's[{b}:{b+3}]'
vr=lambda b,n:f'v[{b}:{b+n-1}]'
ar=lambda b,n:f'a[{b}:{b+n-1}]'
vL,vM,vHH16,vL16=1,2,3,4
vNat=[5,6,7,8]; vXo=[9,10,11,12]; vWF=[13,14,15]
vRA=[16,17,18,19]; vRAw=[20,21,22,23]; vTR=[24,25,26]
vLr,vLi,vL16r,vL16i,vL128r,vL128i,vL1kr,vL1ki,vC2r,vNC2i,vM8=27,28,29,30,31,32,33,34,35,36,37
vCinv=40
vW2o=[42,43,44,45]; vHEo=46; vFLo=47
URE=48; UIM=64; ACC=80; WR=176; T=208
ZA=T+44
vFS,vNON,vTW,vTRd=T+36,T+37,T+38,T+39; vEX=38; vT8=T+41
def gen(opt=None):
    opt=opt or {}
    O=opt.get
    g=Gen(); e=g.e
    FS=O('fs',8)
    SEQ=O('seq','AAAAAAAAFFFFFFFF'); assert SEQ.count('A')==8 and SEQ.count('F')==8 and SEQ[0]=='A'
    POS=[(c,SEQ[:i].count(c)) for i,c in enumerate(SEQ)]
    for i,(c,q) in enumerate(POS): assert c=='A' or SEQ[:i].count('A')>q
    stamps=[]
    def stamp(name,flush=False):
        if O('dpt')==name: e('s_memrealtime s[92:93]')
        if not O('stamps'): return
        k=len(stamps); stamps.append(name)
        if k>=2: e(f'v_writelane_b32 v39, s{92+2*(k%2)}, {k-2}')
        e(f's_memtime s[{92+2*(k%2)}:{93+2*(k%2)}]')
        if flush:
            e('s_waitcnt lgkmcnt(0)')
            e(f'v_writelane_b32 v39, s{92+2*((k-1)%2)}, {k-1}'); e(f'v_writelane_b32 v39, s{92+2*(k%2)}, {k}')
    g.stamps=stamps
    e('s_cmp_ge_u32 s2, 256'); e('s_cbranch_scc1 L_end')
    if O('stamps'):
        e('s_memrealtime s[94:95]'); e('v_mov_b32 v39, 0'); e('s_waitcnt lgkmcnt(0)'); e('v_writelane_b32 v39, s94, 62')
        stamp('start')
    if O('diag'): e('s_memrealtime s[94:95]')
    e('s_load_dwordx16 s[16:31], s[0:1], 0')
    e('s_load_dwordx16 s[32:47], s[0:1], 64')
    e('s_load_dwordx2 s[48:49], s[0:1], 128')
    e('s_getpc_b64 s[50:51]')
    e('s_lshr_b32 s13, s2, 3')
    e('s_and_b32 s14, s13, 7'); e('s_lshl_b32 s14, s14, 12')
    e(f'v_lshl_add_u32 v{T}, v0, 4, s14')
    g.vm(f'global_load_dwordx4 {vr(T+4,4)}, v{T}, s[50:51]')
    PF0=O('pf0',0)
    pX,pB,pW=T+40,T+41,T+42
    def pfA():
        g.vm(f'global_load_dword v{T+43}, v{pX}, s[16:17]'); g.vm(f'global_load_dword v{T+43}, v{pB}, s[22:23]'); g.vm(f'global_load_dword v{T+43}, v{pB}, s[24:25]')
    def pfF():
        g.vm(f'global_load_dword v{T+43}, v{pW}, s[36:37]'); g.vm(f'global_load_dword v{T+43}, v{pW}, s[38:39]')
    if PF0:
        e('s_lshl_b32 s12, s2, 6'); e(f'v_lshrrev_b32 v{pX}, 2, v0'); e(f'v_add_lshl_u32 v{pX}, v{pX}, s12, 7')
        e('s_lshl_b32 s12, s2, 4'); e(f'v_lshrrev_b32 v{pB}, 4, v0'); e(f'v_add_lshl_u32 v{pB}, v{pB}, s12, 7')
        e('s_mul_i32 s12, s2, 43'); e(f'v_mul_u32_u24 v{pW}, 43, v0'); e(f'v_lshrrev_b32 v{pW}, 8, v{pW}'); e(f'v_add_lshl_u32 v{pW}, v{pW}, s12, 7')
        e('s_waitcnt lgkmcnt(0)')
        if PF0&1: pfA()
        if PF0&2: pfF()
        e(f's_load_dword s{sNON}, s[48:49], {Z_OFF}'); g.smem=True
        stamp('pf')
    e(f'v_lshrrev_b32 v{T+1}, 6, v0')
    e(f'v_and_b32 v{vL}, 63, v0')
    e(f'v_readfirstlane_b32 s{sW}, v{T+1}')
    if O('map','B')=='A':
        e('s_and_b32 s12, s2, 7')
        e(f's_and_b32 s{sRH}, s12, 1'); e('s_lshr_b32 s14, s12, 1')
        e(f's_lshl_b32 s{sRT}, s14, 2'); e('s_lshr_b32 s15, s13, 3'); e(f's_add_u32 s{sRT}, s{sRT}, s15')
        e(f's_and_b32 s{sCT}, s13, 7')
        e(f's_lshl_b32 s{sCG}, s{sRH}, 3'); e(f's_add_u32 s{sCG}, s{sCG}, s{sCT}')
        e(f's_lshl_b32 s{sROT}, s14, 1'); e(f's_and_b32 s11, s{sCT}, {O("rotmask",4)}'); e(f's_add_u32 s{sROT}, s{sROT}, s11')
    else:
        e(f's_and_b32 s12, s2, 4'); e(f's_lshl_b32 s{sRT}, s12, 1'); e('s_lshr_b32 s15, s2, 5'); e(f's_add_u32 s{sRT}, s{sRT}, s15')
        e('s_and_b32 s14, s13, 3')
        e(f's_and_b32 s11, s2, 3'); e(f's_lshl_b32 s{sCG}, s11, 2'); e(f's_add_u32 s{sCG}, s{sCG}, s14')
        e(f's_and_b32 s{sRH}, s2, 1'); e(f's_and_b32 s{sCT}, s2, 2'); e(f's_lshl_b32 s{sCT}, s{sCT}, 1'); e(f's_add_u32 s{sCT}, s{sCT}, s14')
        if O('ctx',5): e(f's_xor_b32 s{sCT}, s{sCT}, {O("ctx",5)}')
        ra,rb,rc,rd_=O('rot',[2,1,0,0])
        e(f's_mul_i32 s{sROT}, s14, {ra}')
        if O('rtmask',7)!=7: e(f's_and_b32 s15, s15, {O("rtmask",7)}')
        if rb: e(f's_mul_i32 s15, s15, {rb}'); e(f's_add_u32 s{sROT}, s{sROT}, s15')
        if rc: e(f's_lshr_b32 s12, s12, 2'); e(f's_mul_i32 s12, s12, {rc}'); e(f's_add_u32 s{sROT}, s{sROT}, s12')
        if rd_: e(f's_mul_i32 s11, s11, {rd_}'); e(f's_add_u32 s{sROT}, s{sROT}, s11')
    l3,l7,l4,hh,sw0=T+8,T+9,T+10,T+11,T+12
    e(f'v_lshrrev_b32 v{l3}, 3, v{vL}'); e(f'v_and_b32 v{l7}, 7, v{vL}'); e(f'v_lshrrev_b32 v{l4}, 4, v{vL}'); e(f'v_lshrrev_b32 v{hh}, 5, v{vL}')
    e(f'v_xor_b32 v{sw0}, v{l7}, v{l4}'); e(f'v_lshlrev_b32 v{sw0}, 4, v{sw0}')
    e(f'v_lshl_add_u32 v{vNat[0]}, v{l3}, 10, v{sw0}')
    e(f'v_xor_b32 v{vNat[1]}, 64, v{vNat[0]}'); e(f'v_add_u32 v{vNat[1]}, 7168, v{vNat[1]}')
    e(f'v_and_b32 v{T+13}, 3, v{l3}'); e(f'v_lshl_add_u32 v{T+13}, v{hh}, 4, v{T+13}')
    e(f'v_lshl_add_u32 v{vXo[0]}, v{T+13}, 10, v{sw0}')
    e(f'v_xor_b32 v{vXo[1]}, 64, v{vXo[0]}'); e(f'v_add_u32 v{vXo[1]}, 3072, v{vXo[1]}')
    e(f'v_add_u32 v{vXo[2]}, 6144, v{vXo[0]}'); e(f'v_add_u32 v{vXo[3]}, 6144, v{vXo[1]}')
    e(f's_lshl_b32 s{sXB}, s{sRT}, 17'); e(f's_lshl_b32 s11, s{sW}, 15'); e(f's_add_u32 s{sXB}, s{sXB}, s11')
    e(f's_lshl_b32 s{sW0B}, s{sCG}, 15'); e(f's_and_b32 s11, s{sW}, 1'); e('s_lshl_b32 s11, s11, 14'); e(f's_add_u32 s{sW0B}, s{sW0B}, s11')
    e(f's_lshl_b32 s{sM0X}, s{sW}, 12'); e(f's_add_u32 s{sM0X}, s{sM0X}, {RING}')
    e(f's_lshl_b32 s{sM0W}, s{sW}, 11'); e(f's_add_u32 s{sM0W}, s{sM0W}, {RING+16384}')
    def mksrd(b,p): e(f's_mov_b32 s{b}, s{p}'); e(f's_mov_b32 s{b+1}, s{p+1}')
    def srdc(b,size): e(f's_mov_b32 s{b+2}, {size}'); e(f's_mov_b32 s{b+3}, 0x20000')
    srdc(SX,2048*1024); srdc(SW0,512*1024)
    e(f's_cmp_lt_u32 s{sW}, 2')
    if not PF0: e('s_waitcnt lgkmcnt(0)')
    stamp('karg')
    if O('stamps'): e(f's_cmp_lt_u32 s{sW}, 2')
    mksrd(SX,16)
    if O('diag')==2:
        e('s_not_b32 s92, s94'); e(f'v_mov_b32 v{T+30}, s92'); e(f'v_mov_b32 v{T+31}, 0')
        e('s_mov_b64 exec, 1'); g.vm(f'global_atomic_umax v{T+31}, v{T+30}, s[46:47]'); e('s_mov_b64 exec, -1')
        e(f's_cmp_lt_u32 s{sW}, 2')
    e(f's_cselect_b32 s{SW0}, s22, s24'); e(f's_cselect_b32 s{SW0+1}, s23, s25')
    blk_last={}
    st={'barr':-1,'free':[0,1],'pendC':[],'pendRel':[],'Frow':{},'Flast':{},'w2n':0,'m0':None,'w2on':False}
    D=O('D',3)
    cur_n=[0]
    def setm0(base,c):
        if st['m0']!=(base,c):
            e(f's_add_u32 m0, s{base}, {c}'); st['m0']=(base,c)
    def streamP():
        for p in range(16):
            while (p>=O('pre',2) and st['barr']<p-D) or (p>=O('hold',9) and not st.get('burst')): yield 'blocked'
            sl=p%NS; ty,q=POS[p]
            if ty=='A':
                e(f's_add_u32 s11, s{sROT}, {q}'); e('s_and_b32 s11, s11, 7'); e('s_lshl_b32 s11, s11, 7')
                e(f's_add_u32 s{sSO}, s{sXB}, s11'); e(f's_add_u32 s{sSO2}, s{sW0B}, s11')
                for a in range(4):
                    setm0(sM0X,sl*SLOT)
                    g.vm(f'buffer_load_dwordx4 v{vXo[a]}, {srd(SX)}, s{sSO} offen offset:{1024*a} lds'); yield
                for a in range(2):
                    setm0(sM0W,sl*SLOT)
                    blk_last[p]=g.vm(f'buffer_load_dwordx4 v{vNat[a]}, {srd(SW0)}, s{sSO2} offen offset:{1024*a} lds'); yield
            else:
                if q==3 and O('pf15',1):
                    e('\n'.join([f's_cmp_eq_u32 s{sCG}, 15','s_cbranch_scc0 L_no15b',
                      f's_mul_i32 s11, s{sRT}, {88*1024}', f's_add_u32 s{SW1}, s{SW2}, s11', f's_addc_u32 s{SW1+1}, s{SW2+1}, 0',
                      f's_add_u32 s{SW3}, s{SW1}, {44*1024}', f's_addc_u32 s{SW3+1}, s{SW1+1}, 0',
                      f's_mov_b32 s{SW1+2}, {44*1024}', f's_cmp_eq_u32 s{sRT}, 15', f's_cselect_b32 s{SW3+2}, {12*1024}, s{SW1+2}',
                      f's_mov_b32 s{sROTF}, 5', 'L_no15b:']))
                e(f's_add_u32 s11, s{sROTF}, {q}'); e('s_and_b32 s11, s11, 7'); e(f's_mul_i32 s{sSO}, s11, s{sFST}')
                for mt,S_ in enumerate((SW1,SW3)):
                    for a in range(3):
                        setm0(sM0F,sl*SLOT+mt*12288)
                        blk_last[p]=g.vm(f'buffer_load_dwordx4 v{vWF[a]}, {srd(S_)}, s{sSO} offen offset:{1024*a} lds'); yield
        while True: yield 'done'
    vTa=[vRA[0],vRA[1]]
    def moveC(gi,row,last):
        assert st.get('tra')
        mt,cb,db=gi>>2,(gi>>1)&1,gi&1
        g.wait(vm=last)
        for s in range(4):
            kap=4*(2*cb+(s>>1))+2*mt+(s&1)
            if row<4: ad=vRAw[s]; off=row*16384
            else:
                ad=T+44+s; off=0
                e(f'v_add_u32 v{ad}, {row*16384}, v{vRAw[s]}')
            i=g.lg(f'ds_read_b128 {ar(128+(kap*2+db)*4,4)}, v{ad} offset:{off}')
        st['pendRel'].append((row,i))
    def service(force=False):
        for it in list(st['pendRel']):
            if force: g.wait(lg=it[1])
            if g.lg_done>=it[1]: st['free'].append(it[0]); st['pendRel'].remove(it)
        if st['pendC'] and st.get('tra') and (force or cur_n[0]-st['pendC'][0][3]>=O('cagen',18) or g.vm_done>=st['pendC'][0][2]):
            moveC(*st['pendC'].pop(0)[:3])
    def gran(gi,row):
        st['Frow'][gi]=row
        if gi>=8:
            e(f's_add_u32 s{sSO3}, s{sW2B}, {32*1024*(gi-8)}'); S_,vo=SW2,vW2o
        else:
            c=gi; mt,cb,db=c>>2,(c>>1)&1,c&1
            e(f's_add_u32 s{sSO3}, s{sCB}, {db*32*1024+cb*128}'); S_,vo=(SCIM if mt else SCRE),vNat
        for a in range(4):
            setm0(sM0R,row*16384)
            st['Flast'][gi]=g.vm(f'buffer_load_dwordx4 v{vo[a]}, {srd(S_)}, s{sSO3} offen offset:{1024*a} lds'); st['w2n']+=1
            if a==3 and gi<8: st['pendC'].append((gi,row,st['Flast'][gi],cur_n[0]))
            yield
    def streamW():
        for gi in range(19):
            while not st['free'] or st.get('quiet') or (st.get('wantrow') and st.get('trow') is None): yield 'blocked'
            yield from gran(gi,st['free'].pop(0))
        while True: yield 'done'
    SP=streamP(); SWs=streamW()
    def pump(n=1):
        r=None
        for _ in range(n):
            r=next(SP)
            if r and st['w2on']:
                service(); r=next(SWs)
        return r
    def barrier(q):
        e('s_barrier'); st['barr']=q
        rel={13:[4],14:[5],15:[6,7],16:[8],17:[2,3]} if O('b16',1) else {13:[4],14:[5],15:[6,7],17:[8,2,3]}
        st['free']+=rel.get(q,[])
        if q>=O('w2from',9): st['w2on']=True
    if O('a0first',1): pump(6)
    e(f's_cmp_eq_u32 s{sW}, 0'); e(f's_cselect_b32 s11, s{sROT}, 0'); e('s_cselect_b32 s12, s42, s18'); e('s_cselect_b32 s13, s43, s19'); e(f's_cselect_b32 s14, 0, {ROW0}')
    e(f'v_add_u32 v{T+14}, s11, v{l3}'); e(f'v_and_b32 v{T+14}, 7, v{T+14}'); e(f'v_lshlrev_b32 v{T+14}, 7, v{T+14}')
    e(f's_cmp_eq_u32 s{sW}, 2'); e('s_cselect_b32 s12, s20, s12'); e('s_cselect_b32 s13, s21, s13')
    e(f's_cmp_eq_u32 s{sW}, 3'); e('s_cselect_b32 s12, s30, s12'); e('s_cselect_b32 s13, s31, s13')
    e(f'v_lshl_add_u32 v{T+14}, v{l7}, 4, v{T+14}')
    e(f's_lshl_b32 s11, s{sW}, 10'); e('s_add_u32 m0, s14, s11'); st['m0']=None
    e(f'v_and_b32 v{vM}, 31, v{vL}')
    gwid=g.vm(f'global_load_lds_dwordx4 v{T+14}, s[12:13]')
    if O('a0first',1): blk_last[0]=gwid
    e(f's_lshl_b32 s11, s{sCG}, 6')
    e(f'v_lshl_add_u32 v{T+15}, v{vM}, 1, s11')
    if not PF0: e(f's_load_dword s{sNON}, s[48:49], {Z_OFF}'); g.smem=True
    if not O('a0first',1): pump(O('a0pre',6))
    if PF0&4: pfF()
    stamp('p0')
    e(f'v_mov_b32 v{T+2}, 0'); e(f'v_mov_b32 v{T+3}, 0'); e(f'v_lshlrev_b32 v{vT8}, 3, v0')
    g.lg(f'ds_write_b64 v{vT8}, {vr(T+2,2)} offset:{XCH_L}')
    e(f'v_lshlrev_b32 v{vHH16}, 4, v{hh}')
    e(f's_lshl_b32 s{sM0R}, s{sW}, 12'); e(f's_add_u32 s{sM0R}, s{sM0R}, {ROW0}')
    e(f'v_bfe_u32 v{T+20}, v{vM}, 1, 3'); e(f'v_xor_b32 v{T+20}, v{T+20}, v{hh}'); e(f'v_lshlrev_b32 v{T+20}, 4, v{T+20}')
    e(f'v_lshl_add_u32 v{vRA[0]}, v{vM}, 7, v{T+20}')
    for s in range(1,4): e(f'v_xor_b32 v{vRA[s]}, {32*s}, v{vRA[0]}')
    XA2=[T+24+s for s in range(4)]; WA=[vRA,[T+28+s for s in range(4)],[T+32+s for s in range(4)]]
    for s in range(4):
        e(f'v_add_u32 v{vRAw[s]}, s{sM0R}, v{vRA[s]}')
        e(f'v_add_u32 v{XA2[s]}, {RING-ROW0+2*SLOT}, v{vRAw[s]}')
        e(f'v_add_u32 v{WA[1][s]}, {RING+16384+2*SLOT}, v{vRA[s]}'); e(f'v_add_u32 v{WA[2][s]}, {RING+16384+4*SLOT}, v{vRA[s]}')
        e(f'v_add_u32 v{vRA[s]}, {RING+16384}, v{vRA[s]}')
    vGA=T+40
    e(f'v_xor_b32 v{T+20}, v{vL}, v{l4}'); e(f'v_and_b32 v{T+20}, 1, v{T+20}'); e(f'v_mul_u32_u24 v{T+20}, 1056, v{T+20}'); e(f'v_add_u32 v{vGA}, v{T+20}, v{vHH16}')
    def side_setup():
        L=[]; A=L.append
        def mk(b,p): A(f's_mov_b32 s{b}, s{p}'); A(f's_mov_b32 s{b+1}, s{p+1}')
        def sc(b,size): A(f's_mov_b32 s{b+2}, {size}'); A(f's_mov_b32 s{b+3}, 0x20000')
        for b,p,size in [(SW1,36,512*2752),(SW3,38,512*2752),(SCRE,26,512*1024),(SCIM,28,512*1024),(SW2,40,1376*1024),(SWS,48,WS_SIZE),(SOUT,44,2048*2048)]:
            mk(b,p); sc(b,size)
        sc(SHE,8192)
        A(f's_mul_i32 s{sM0F}, s{sW}, 3072'); A(f's_add_u32 s{sM0F}, s{sM0F}, {RING}')
        A(f's_mov_b32 s{sFST}, {64*2752}'); A(f's_mov_b32 s{sROTF}, s{sROT}')
        A(f'v_lshlrev_b32 v{vL16}, 4, v{vL}'); A(f'v_lshlrev_b32 v{vM8}, 3, v{vM}')
        A(f's_mul_i32 s15, s{sW}, {16*2752}'); A(f's_mul_i32 s12, s{sCG}, 192'); A('s_add_u32 s15, s15, s12')
        A(f's_mul_i32 s12, s{sCG}, 12'); A('s_movk_i32 s13, 2752'); A(f'v_mov_b32 v{T+23}, {OOB:#x}')
        for a in range(3):
            A(f'v_add_u32 v{T+20}, {64*a}, v{vL}')
            A(f'v_mul_u32_u24 v{T+21}, 43691, v{T+20}'); A(f'v_lshrrev_b32 v{T+21}, 19, v{T+21}')
            A(f'v_mul_u32_u24 v{T+22}, 12, v{T+21}'); A(f'v_sub_u32 v{T+22}, v{T+20}, v{T+22}')
            A(f'v_mul_u32_u24 v{T+21}, s13, v{T+21}')
            A(f'v_lshl_add_u32 v{T+21}, v{T+22}, 4, v{T+21}')
            A(f'v_add_u32 v{T+22}, s12, v{T+22}')
            A(f'v_cmp_gt_u32 vcc, 172, v{T+22}')
            A(f'v_add_u32 v{T+21}, s15, v{T+21}')
            if a: A(f'v_subrev_u32 v{T+21}, {1024*a}, v{T+21}')
            A(f'v_cndmask_b32 v{vWF[a]}, v{T+23}, v{T+21}, vcc')
        if O('pf15',1):
            A('\n'.join([f's_cmp_eq_u32 s{sCG}, 15','s_cbranch_scc0 L_no15',
              f's_lshl_b32 s12, s{sRT}, 15', f's_add_u32 s{SW1}, s26, s12', f's_addc_u32 s{SW1+1}, s27, 0',
              f's_add_u32 s{SW3}, s28, s12', f's_addc_u32 s{SW3+1}, s29, 0',
              f's_mov_b32 s{SW1+2}, 0x8000', f's_mov_b32 s{SW3+2}, 0x8000', f's_mov_b32 s{sROTF}, 0',
              f's_movk_i32 s{sFST}, 12288', f's_mul_i32 s12, s{sW}, 3072',
              f'v_lshl_add_u32 v{vWF[0]}, v{vL}, 4, s12', f'v_mov_b32 v{vWF[1]}, v{vWF[0]}', f'v_mov_b32 v{vWF[2]}, v{vWF[0]}',
              'L_no15:']))
        r_,c_,g1=T+20,T+21,T+22
        A(f'v_bfe_u32 v{r_}, v{vL}, 2, 2'); A(f'v_and_b32 v{c_}, 3, v{vL}'); A(f'v_and_b32 v{g1}, 1, v{l4}')
        A(f'v_lshl_add_u32 v{T+19}, v{hh}, 3, v{r_}'); A(f'v_mul_u32_u24 v{T+19}, 192, v{T+19}')
        A(f'v_lshl_add_u32 v{T+19}, v{g1}, 5, v{T+19}'); A(f'v_lshl_add_u32 v{T+19}, v{c_}, 3, v{T+19}')
        for k in range(3): A(f'v_add_u32 v{vTR[k]}, {RING+2*k*SLOT}, v{T+19}')
        A(f's_lshl_b32 s12, s{sCG}, 13'); A(f's_add_u32 s12, s12, {HE_OFF}')
        A(f's_add_u32 s{SHE}, s48, s12\ns_addc_u32 s{SHE+1}, s49, 0')
        A(f's_lshl_b32 s{sCB}, s{sCT}, 16'); A(f's_lshl_b32 s12, s{sW}, 8'); A(f's_add_u32 s{sCB}, s{sCB}, s12')
        A(f's_mul_i32 s{sW2B}, s{sW}, {352*1024}'); A(f's_lshl_b32 s12, s{sCT}, 7'); A(f's_add_u32 s{sW2B}, s{sW2B}, s12')
        A(f's_lshl_b32 s13, s{sRT}, 2'); A(f's_add_u32 s12, s13, s{sW}'); A(f's_mul_i32 s{sA2S}, s12, {160*1024}'); A(f's_add_u32 s{sA2S}, s{sA2S}, {A2_OFF}')
        A(f's_lshl_b32 s12, s{sRH}, 1'); A('s_add_u32 s12, s12, s13'); A(f's_mul_i32 s{sA2L0}, s12, {160*1024}'); A(f's_add_u32 s{sA2L0}, s{sA2L0}, {A2_OFF}')
        A(f's_add_u32 s{sA2L1}, s{sA2L0}, {160*1024}')
        A(f's_mov_b32 s{sNL2E}, {NLOG2E:#x}')
        A(f'v_add_u32 v{vNat[2]}, {2*7168}, v{vNat[0]}'); A(f'v_add_u32 v{vNat[3]}, {2*7168}, v{vNat[1]}')
        A(f'v_and_b32 v{g1}, 1, v{l4}')
        A(f'v_lshlrev_b32 v{T+19}, 2, v{g1}'); A(f'v_xor_b32 v{T+19}, v{T+19}, v{l7}'); A(f'v_lshlrev_b32 v{T+19}, 4, v{T+19}')
        A(f'v_lshl_add_u32 v{vW2o[0]}, v{l3}, 10, v{T+19}')
        for a in range(1,4): A(f'v_add_u32 v{vW2o[a]}, {7168*a}, v{vW2o[0]}')
        A(f's_sub_u32 s12, 15, s{sRT}'); A('s_lshl_b32 s12, s12, 9')
        A(f'v_lshl_add_u32 v{T+20}, v{vM}, 4, s12')
        A(f'v_cmp_eq_u32 vcc, s{sW}, v{l3}')
        A(f'v_lshl_add_u32 v{vHEo}, v{vHH16}, 6, v{T+20}'); A(f's_lshl_b32 s12, s{sW}, 11'); A('s_add_u32 s12, s12, 512'); A(f'v_add_u32 v{vHEo}, s12, v{vHEo}')
        A(f'v_cndmask_b32 v{T+10}, v{T+23}, v{T+20}, vcc')
        A(f's_lshl_b32 s15, s{sRT}, 1'); A(f's_lshr_b32 s12, s{sW}, 1'); A('s_add_u32 s12, s12, s15'); A(f's_lshl_b32 s12, s12, {FS+5 if FS>2 else 8}')
        A(f's_and_b32 s13, s{sW}, 1'); A(f's_lshl_b32 s14, s{sCG}, 1'); A('s_add_u32 s13, s13, s14'); A(f's_lshl_b32 s13, s13, {FS}')
        A('s_add_u32 s12, s12, s13'); A(f's_add_u32 s12, s12, {FL_OFF}'); A(f'v_lshl_add_u32 v{T+20}, v{vL}, 2, s12')
        A(f'v_cmp_gt_u32 vcc, {32 if FS>2 else 1}, v{vL}'); A(f's_add_u32 s15, s15, s{sRH}')
        A(f's_lshl_b32 s15, s15, {FS+5 if FS>2 else 8}'); A(f's_add_u32 s15, s15, {FL_OFF}'); A(f'v_cndmask_b32 v{vFS}, v{T+23}, v{T+20}, vcc')
        A(f'v_lshl_add_u32 v{vFLo}, v{vM}, {FS}, s15')
        A(f'v_lshlrev_b32 v{vTW}, 6, v{vM}'); A(f'v_lshl_add_u32 v{vTW}, v{vHH16}, 1, v{vTW}'); A(f'v_bfe_u32 v{T+20}, v{vM}, 1, 2'); A(f'v_lshlrev_b32 v{T+20}, 4, v{T+20}'); A(f'v_xor_b32 v{vTW}, v{T+20}, v{vTW}'); A(f'v_add_u32 v{vTW}, s{sM0R}, v{vTW}')
        A(f'v_bfe_u32 v{vTRd}, v{vL}, 2, 2'); A(f'v_lshlrev_b32 v{vTRd}, 6, v{vTRd}')
        A(f'v_lshl_add_u32 v{vTRd}, v{vHH16}, 5, v{vTRd}'); A(f'v_and_b32 v{T+20}, 1, v{vL}')
        A(f'v_lshl_add_u32 v{vTRd}, v{T+20}, 5, v{vTRd}'); A(f'v_and_b32 v{T+20}, 16, v{vL}'); A(f'v_add_u32 v{vTRd}, v{T+20}, v{vTRd}')
        A(f'v_and_b32 v{T+20}, 2, v{vL}'); A(f'v_lshl_add_u32 v{vTRd}, v{T+20}, 2, v{vTRd}'); A(f'v_and_b32 v{T+20}, 8, v{vL}'); A(f'v_lshlrev_b32 v{T+20}, 1, v{T+20}'); A(f'v_xor_b32 v{vTRd}, v{T+20}, v{vTRd}'); A(f'v_add_u32 v{vTRd}, s{sM0R}, v{vTRd}')
        A(f's_lshl_b32 s12, s{sW}, 2'); A(f's_sub_u32 s12, s{sRT}, s12'); A(f'v_lshrrev_b32 v{vEX}, 3, v{vHH16}'); A(f'v_sub_u32 v{vEX}, s12, v{vEX}')
        A(f'v_max_i32 v{vEX}, 0, v{vEX}'); A(f'v_min_i32 v{vEX}, 2, v{vEX}'); A(f'v_lshlrev_b32 v{vEX}, 1, v{vEX}')
        A(f's_lshl_b32 s{sT0}, s{sCG}, 12'); A(f's_add_u32 s{sT0}, s{sT0}, s{sA2S}')
        A(f's_mul_i32 s{sT1}, s{sCG}, {6*1024}'); A(f's_add_u32 s{sT1}, s{sT1}, s{sA2S}')
        A(f's_add_u32 s16, s{sT1}, {64*1024}'); A(f's_add_u32 s17, s16, 4096')
        A(f's_lshl_b32 s12, s{sW}, 14'); A(f's_add_u32 s26, s{sA2L0}, s12'); A(f's_add_u32 s27, s{sA2L1}, s12')
        A(f's_mul_i32 s12, s{sW}, {22*1024}'); A(f's_add_u32 s12, s12, {64*1024}'); A(f's_add_u32 s28, s{sA2L0}, s12'); A(f's_add_u32 s29, s{sA2L1}, s12')
        A(f's_lshl_b32 s12, s{sW}, 7'); A(f'v_lshl_add_u32 v{T+42}, v{vM}, 2, s12')
        A(f's_mul_i32 s{sNON}, s{sNON}, 1664525'); A(f's_add_u32 s{sNON}, s{sNON}, 1013904223')
        A(f's_cmp_eq_u32 s{sNON}, 0\ns_cselect_b32 s{sNON}, 1013904223, s{sNON}')
        return L
    Ls=side_setup()
    npre=O('setup_pre',90)
    Ls.append(f'v_mov_b32 v{vNON}, s{sNON}')
    print('setup list',len(Ls))
    for i,t in enumerate(Ls[:npre]):
        e(t)
        if i==29 and O('touch',0):
            e(f'v_mov_b32 v{T+19}, 0')
            for S_ in (SW1,SW3,SCRE,SCIM,SW2,SWS): g.vm(f'buffer_load_dword v{T+43}, v{T+19}, {srd(S_)}, 0 offen')
            e(f's_mul_i32 s12, s{sRT}, {640*1024}'); e(f's_add_u32 s12, s12, {A2_OFF}'); e(f's_add_u32 s13, s12, {639*1024}'); e(f's_lshl_b32 s14, s{sRT}, 18')
            g.vm(f'buffer_load_dword v{T+43}, v{T+19}, {srd(SWS)}, s12 offen'); g.vm(f'buffer_load_dword v{T+43}, v{T+19}, {srd(SWS)}, s13 offen')
            g.vm(f'buffer_load_dword v{T+43}, v{T+19}, {srd(SOUT)}, s14 offen')
    g.wait_all_lg()
    stamp('setup')
    pump(6*O('pre',2)-O('a0pre',6))
    if PF0&8: pfF()
    stamp('p1')
    def side_params():
        for i,t in enumerate(Ls[npre:]):
            e(t)
            if i%4==3: yield
        pl=[g.lg(f'ds_read_u16 v{T+16+i}, v{T+15} offset:{ROW0+1024*(i+1)}') for i in range(3)]
        if O('dwarm',1): g.vm(f'global_load_ushort v{T+43}, v{T+15}, s[32:33]')
        while g.lg_done<pl[2]: yield
        lre,lim,dt=T+16,T+17,T+18
        a_,b_,t0,t1=T,T+1,T+2,T+3
        L=[]; A=L.append
        for r in (lre,lim,dt): A(f'v_lshlrev_b32 v{r}, 16, v{r}')
        A(f'v_mul_f32 v{dt}, {LOG2E:#x}, v{dt}'); A(f'v_exp_f32 v{dt}, v{dt}')
        A(f'v_mul_f32 v{t0}, v{lre}, v{lre}')
        A(f'v_cvt_pk_bf16_f32 v{dt}, v{dt}, v{dt}'); A(f'v_lshlrev_b32 v{dt}, 16, v{dt}')
        A(f'v_mul_f32 v{a_}, v{dt}, v{lre}'); A(f'v_mul_f32 v{b_}, v{dt}, v{lim}')
        A(f'v_fma_f32 v{dt}, v{lim}, v{lim}, v{t0}'); A(f'v_rcp_f32 v{dt}, v{dt}')
        A(f'v_mul_f32 v{a_}, {LOG2E:#x}, v{a_}'); A(f'v_exp_f32 v{a_}, v{a_}')
        A(f'v_mul_f32 v{b_}, {INV2PI:#x}, v{b_}'); A(f'v_rndne_f32 v{t0}, v{b_}'); A(f'v_sub_f32 v{b_}, v{b_}, v{t0}')
        A(f'v_cos_f32 v{t0}, v{b_}'); A(f'v_sin_f32 v{t1}, v{b_}')
        A(f'v_add_f32 v{dt}, v{dt}, v{dt}')
        A(f'v_mul_f32 v{vLr}, v{a_}, v{t0}'); A(f'v_mul_f32 v{vLi}, v{a_}, v{t1}')
        A(f'v_add_f32 v{a_}, -1.0, v{vLr}')
        A(f'v_mul_f32 v{vNC2i}, v{vLi}, v{lre}'); A(f'v_mul_f32 v{vC2r}, v{a_}, v{lre}')
        A(f'v_fma_f32 v{vNC2i}, v{a_}, v{lim}, -v{vNC2i}'); A(f'v_fma_f32 v{vC2r}, v{vLi}, v{lim}, v{vC2r}')
        A(f'v_mul_f32 v{vNC2i}, v{vNC2i}, v{dt}'); A(f'v_mul_f32 v{vC2r}, v{vC2r}, v{dt}')
        def csq(dr,di,sr,si,n):
            for k in range(n):
                A(f'v_mul_f32 v{t0}, v{si}, v{si}'); A(f'v_mul_f32 v{t1}, v{sr}, v{si}')
                A(f'v_fma_f32 v{dr}, v{sr}, v{sr}, -v{t0}'); A(f'v_add_f32 v{di}, v{t1}, v{t1}')
                sr,si=dr,di
        csq(vL16r,vL16i,vLr,vLi,4); csq(vL128r,vL128i,vL16r,vL16i,3); csq(vL1kr,vL1ki,vL128r,vL128i,1)
        for i,t in enumerate(L):
            e(t)
            if i&1: yield
    NLi,NL16i,NL128i,NC2r=vXo
    def cfma_ip(ar_,ai_,lr,li,nli,sr,si):
        e(f'v_fmac_f32 v{ar_}, v{lr}, v{sr}'); e(f'v_fmac_f32 v{ai_}, v{lr}, v{si}')
        e(f'v_fmac_f32 v{ar_}, v{nli}, v{si}'); e(f'v_fmac_f32 v{ai_}, v{li}, v{sr}')
    def check(pid,reg,off,tag,lane,vP):
        e(f's_mov_b32 s{sCNT}, 0')
        g.wait(vm=pid)
        e(f'L_{tag}_chk:')
        e(f'v_cmp_ne_u32 vcc, s{sNON}, v{reg}')
        e('s_nop 1')
        e(f's_cbranch_vccz L_{tag}_ok')
        e(f's_add_u32 s{sCNT}, s{sCNT}, 1'); e(f's_cmp_gt_u32 s{sCNT}, {SPIN}'); e(f's_cbranch_scc1 L_{tag}_ok')
        e('s_sleep 1')
        e(f'buffer_load_dword v{reg}, v{vP}, {srd(SWS)}, 0 offen offset:{off} sc1')
        e('s_waitcnt vmcnt(0)'); e(f's_branch L_{tag}_chk')
        e(f'L_{tag}_ok:'); stamp(tag+'_ok')
        if O('stamps'): e(f'v_writelane_b32 v39, s{sCNT}, {lane}')
    vq=[]
    def cf(ar_,ai_,lr,li,nli,sr,si):
        e(f'v_fmac_f32 v{ar_}, v{lr}, v{sr}'); yield
        e(f'v_fmac_f32 v{ai_}, v{lr}, v{si}'); yield
        e(f'v_fmac_f32 v{ar_}, v{nli}, v{si}'); yield
        e(f'v_fmac_f32 v{ai_}, v{li}, v{sr}'); yield
    def seq(L):
        for t in L:
            e(t); yield
    def burst():
        for t in [f'v_xor_b32 v{NLi}, 0x80000000, v{vLi}',f'v_xor_b32 v{NL16i}, 0x80000000, v{vL16i}',f'v_mov_b32 v{T+13}, s{sNON}',f'v_mov_b32 v{T+15}, s{sNON}']: e(t)
        z=T+6; x0,x1=T+4,T+5
        fill=[f'v_and_b32 v{z+1}, 16, v{vL}',f'v_cmp_eq_u32 vcc, 0, v{z+1}',f'v_xor_b32 v{NL128i}, 0x80000000, v{vL1ki}',f'v_bfe_u32 v{x0}, v{vL}, 2, 2',
            f'v_cndmask_b32 v{z}, v{ZA+1}, v{ZA}, vcc',f'v_cvt_pk_bf16_f32 v{z}, v{z}, v{z}',f'v_lshlrev_b32 v{z}, 16, v{z}',
            f'v_mul_f32 v{z}, s{sNL2E}, v{z}',f'v_exp_f32 v{z}, v{z}',f'v_add_f32 v{z}, 1.0, v{z}',f'v_rcp_f32 v{z}, v{z}',
            f'v_cvt_pk_bf16_f32 v{z}, v{z}, v{z}',f'v_lshlrev_b32 v{z}, 16, v{z}',
            f'v_sub_f32 v{z+1}, 1.0, v{z}',f'v_cvt_pk_bf16_f32 v{z+1}, v{z+1}, v{z+1}',f'v_lshlrev_b32 v{z+1}, 16, v{z+1}',
            f'v_rcp_f32 v{vCinv}, v{z+1}',f'v_lshlrev_b32 v{x0}, 7, v{x0}',f'v_min_f32 v{vCinv}, 0x7e967699, v{vCinv}',f'v_mov_b32 v{vCinv+1}, v{vCinv}',
            f'v_lshl_add_u32 v{x0}, v{vHH16}, 5, v{x0}',
            f'v_and_b32 v{x1}, 8, v{vL}',f'v_lshl_add_u32 v{x0}, v{x1}, 3, v{x0}',f'v_and_b32 v{x1}, 16, v{vL}',f'v_lshl_add_u32 v{x0}, v{x1}, 1, v{x0}',
            f'v_and_b32 v{x1}, 3, v{vL}',f'v_lshl_add_u32 v{x0}, v{x1}, 3, v{x0}',f'v_add_u32 v{vTa[0]}, s{sM0R}, v{x0}',f'v_xor_b32 v{vTa[1]}, 64, v{vTa[0]}',
            f'v_mov_b32 v{T}, v{vC2r}',f'v_mov_b32 v{T+1}, v{vNC2i}']
        for t in range(1,16):
            e(f'v_fmac_f32 v{URE+t}, v{vLr}, v{URE+t-1}'); e(f'v_fmac_f32 v{UIM+t}, v{vLr}, v{UIM+t-1}'); e(fill.pop(0))
            e(f'v_fmac_f32 v{URE+t}, v{NLi}, v{UIM+t-1}'); e(f'v_fmac_f32 v{UIM+t}, v{vLi}, v{URE+t-1}'); e(fill.pop(0))
        e(f'v_mov_b32 v{T+2}, v{URE+15}'); e(f'v_mov_b32 v{T+3}, v{UIM+15}')
        for t in fill: e(t)
        g.lg(f'ds_write_b64 v{vT8}, {vr(T+2,2)} offset:{E_L}'); lw=g.lg(f'ds_write_b32 v{T+42}, v{z} offset:{G_L}')
        st['tra']=True
        def coef(u):
            o=T+32+2*((u>>1)&1)
            return [f'v_pk_mul_f32 {vr(o,2)}, {vr(UIM+u,2)}, {vr(T,2)} op_sel:[0,1] op_sel_hi:[1,1]',
                    f'v_pk_mul_f32 {vr(UIM+u,2)}, {vr(UIM+u,2)}, {vr(T,2)} op_sel_hi:[1,0] neg_lo:[0,1] neg_hi:[0,1]',
                    f'v_pk_fma_f32 {vr(UIM+u,2)}, {vr(URE+u,2)}, {vr(T,2)}, {vr(UIM+u,2)} op_sel:[0,1,0] op_sel_hi:[1,1,1]',
                    f'v_pk_fma_f32 {vr(URE+u,2)}, {vr(URE+u,2)}, {vr(T,2)}, {vr(o,2)} op_sel_hi:[1,0,1]']
        def coef2(u):
            a,b=coef(u),coef(u+2)
            for i in range(4): e(a[i]); e(b[i])
        coef2(0)
        g.wait(lg=lw); e('s_barrier')
        ids=[g.lg(f'ds_read_b64 {vr(T+16+2*s,2)}, v{vM8} offset:{E_L+256*s}') for s in range(8)]
        e(f's_lshl_b32 s12, s{sW}, 7'); e(f'v_add_u32 v{x0}, s12, v{vHH16}')
        for j in range(4): gi_=g.lg(f'ds_read_b128 {vr(WR+4*j,4)}, v{x0} offset:{G_L+32*j}')
        coef2(4); coef2(8); coef2(12)
        g.wait(lg=gi_)
        for u in range(0,16,2):
            e(f'v_pk_mul_f32 {vr(URE+u,2)}, {vr(URE+u,2)}, {vr(WR+u,2)}'); e(f'v_pk_mul_f32 {vr(UIM+u,2)}, {vr(UIM+u,2)}, {vr(WR+u,2)}')
        for s in range(1,8): cfma_ip(T+16+2*s,T+17+2*s,vL16r,vL16i,NL16i,T+14+2*s,T+15+2*s)
        e(f'v_mov_b32 v{T+12}, v{T+30}'); e(f'v_mov_b32 v{T+14}, v{T+31}')
        st['burst']=True
        pump(O('bpump',6))
        g.vm(f'buffer_store_dwordx4 {vr(T+12,4)}, v{T+10}, {srd(SHE)}, 0 offen sc1'); stamp('he_pub')
    def slot():
        if st.get('wantrow') and st.get('trow') is None:
            service()
            if st['free']: st['trow']=st['free'].pop(0)
        if vq:
            f=vq.pop(0)
            if f: f(); return None
        return pump(1)
    hel=lambda jj:f'buffer_load_dwordx4 {vr(T+16+4*jj,4)}, v{vHEo}, {srd(SHE)}, 0 offen offset:{512*jj} sc1'
    he={}
    def hecheck():
        cnt=T+8
        e(f's_mov_b32 s{sCNT}, 0')
        g.wait(vm=he[1])
        e('L_he_chk:')
        e(f'v_mov_b32 v{cnt}, 0')
        for jj in range(2):
            e(f'v_cmp_eq_u32 vcc, s{sNON}, v{T+16+4*jj+1}'); e(f'v_cmp_eq_u32 s[12:13], s{sNON}, v{T+16+4*jj+3}')
            e(f'v_addc_co_u32 v{cnt}, vcc, 0, v{cnt}, vcc'); e(f'v_addc_co_u32 v{cnt}, s[12:13], 0, v{cnt}, s[12:13]')
        e(f'v_cmp_ne_u32 vcc, v{cnt}, v{vEX}')
        e('s_nop 1')
        e('s_cbranch_vccz L_he_ok')
        e(f's_add_u32 s{sCNT}, s{sCNT}, 1'); e(f's_cmp_gt_u32 s{sCNT}, {SPIN}'); e('s_cbranch_scc1 L_he_ok')
        e('s_sleep 1')
        for jj in range(2): e(hel(jj))
        e('s_waitcnt vmcnt(0)'); e('s_branch L_he_chk')
        e('L_he_ok:'); stamp('he_ok')
        if O('stamps'): e(f'v_writelane_b32 v39, s{sCNT}, 60')
        for t in [f'v_fma_f32 v{T+8}, v{vL128r}, v{T+20}, v{T+16}',f'v_fma_f32 v{T+9}, v{vL128r}, v{T+22}, v{T+18}',
                  f'v_fma_f32 v{T+8}, -v{vL128i}, v{T+22}, v{T+8}',f'v_fmac_f32 v{T+9}, v{vL128i}, v{T+20}']: e(t)
        return g.lg(f'ds_write_b64 v{vT8}, {vr(T+8,2)} offset:{PQ_L}')
    GG=T+16; WRe,WIm,L2=T,T+4,T+8; vPF,vPS=vXo[3],vEX
    def side2():
        st['rate']=O('rate2',[4,4,3])
        while cur_n[0]<O('he_at',112): yield 'gap'
        for jj in range(2): vq.append(lambda jj=jj: he.__setitem__(jj,g.vm(hel(jj))))
        while cur_n[0]<O('he_chk',134): yield 'gap'
        st['elw']=hecheck(); b0=st['barr']; yield 'gap'
        y=T+32
        yield from seq([f's_mul_i32 s12, s{sW}, 11','s_mul_i32 s13, s12, 43691','s_lshr_b32 s13, s13, 17','s_lshl_b32 s13, s13, 1',
            's_add_u32 s12, s12, 10','s_mul_i32 s14, s12, 43691','s_lshr_b32 s14, s14, 17','s_lshl_b32 s14, s14, 1','s_add_u32 s14, s14, 1',
            f'v_max_u32 v{y}, s13, v{vM}',f'v_min_u32 v{y}, s14, v{y}',f'v_sub_u32 v{y}, v{y}, v{vM}',f'v_lshl_add_u32 v{vPF}, v{y}, {FS}, v{vFLo}',
            f's_lshl_b32 s13, s{sW}, 3',f'v_and_b32 v{y}, 7, v{vM}',f'v_add_u32 v{y}, s13, v{y}',f'v_sub_u32 v{y}, v{y}, v{vM}',f'v_lshl_add_u32 v{vPS}, v{y}, {FS}, v{vFLo}'])
        while st['barr']==b0: yield 'gap'
        ids=[]
        for s in range(8):
            ids.append(g.lg(f'ds_read_b64 {vr(T+16+2*s,2)}, v{vM8} offset:{PQ_L+256*(7-s)}')); yield
        while g.lg_done<ids[7]: yield 'gap'
        for s in range(1,8): yield from cf(T+16+2*s,T+17+2*s,vL1kr,vL1ki,NL128i,T+14+2*s,T+15+2*s)
        g.lg(f'ds_write_b64 v{vM8}, {vr(T+30,2)} offset:{HIN_L}'); yield
        ids=[]
        for k in range(8):
            ids.append(g.lg(f'ds_read_b64 {vr(T+2*k,2)}, v{vT8} offset:{XCH_L+256*k}')); yield
        e(f's_lshl_b32 s12, s{sW}, 7'); e(f'v_add_u32 v{y}, s12, v{vHH16}'); yield
        for j in range(4):
            g.lg(f'ds_read_b128 {vr(GG+4*j,4)}, v{y} offset:{G_L+32*j}'); yield
        while g.lg_done<ids[7]: yield 'gap'
        for k in range(1,8): yield from cf(T+2*k,T+2*k+1,vL16r,vL16i,NL16i,T+2*k-2,T+2*k-1)
        P=[(T,T+1),(T+2,T+3)]
        st['rate']=O('rate3',[4,4,3])
        yield from seq([f'v_mul_f32 v{T+2}, v{vC2r}, v{T+14}',f'v_mul_f32 v{T+3}, v{vNC2i}, v{T+14}',
                        f'v_fmac_f32 v{T+2}, v{vNC2i}, v{T+15}',f'v_fma_f32 v{T+3}, -v{vC2r}, v{T+15}, v{T+3}'])
        for t in range(17):
            d,c=P[t&1],P[1-(t&1)]; L=[]
            if t<16: L+=[f'v_mul_f32 v{d[0]}, v{vLr}, v{c[0]}',f'v_mul_f32 v{d[1]}, v{vLr}, v{c[1]}']
            if t>0: L+=[f'v_fmac_f32 v{URE+t-1}, v{GG+t-1}, v{c[0]}',f'v_fmac_f32 v{UIM+t-1}, v{GG+t-1}, v{c[1]}']
            if t<16: L+=[f'v_fmac_f32 v{d[0]}, v{vLi}, v{c[1]}',f'v_fmac_f32 v{d[1]}, v{NLi}, v{c[0]}']
            if t>0 and t%2==0:
                u=t-2; L+=[f'v_cvt_pk_bf16_f32 v{URE+(u>>1)}, v{URE+u}, v{URE+u+1}',f'v_cvt_pk_bf16_f32 v{UIM+(u>>1)}, v{UIM+u}, v{UIM+u+1}']
            if t==11: st['wantrow']=True
            yield from seq(L)
        while st.get('trow') is None: yield 'gap'
        row=st['trow']
        if row>=4:
            e(f'v_add_u32 v{vTW}, {row*16384}, v{vTW}'); e(f'v_add_u32 v{vTRd}, {row*16384}, v{vTRd}'); ro=0
        else: ro=row*16384
        e(f'v_xor_b32 v{T+32}, 16, v{vTW}'); e(f'v_xor_b32 v{T+33}, 32, v{vTRd}')
        for mt,b in enumerate((URE,UIM)):
            g.lg(f'ds_write_b128 v{vTW}, {vr(b,4)} offset:{ro+2048*mt}'); yield 'gap'
            g.lg(f'ds_write_b128 v{T+32}, {vr(b+4,4)} offset:{ro+2048*mt}'); yield 'gap'
        for mt in range(2):
            for ks in range(2):
                for rho in range(2):
                    tl=g.lg(f'ds_read_b64_tr_b16 {vr(T+8*mt+4*ks+2*rho,2)}, v{T+33 if rho else vTRd} offset:{ro+2048*mt+ks*1024+rho*256}'); yield
        st['pendRel'].append((row,tl))
        if O('quiet',1): st['quiet']=True
        while g.lg_done<tl: yield 'gap'
        for i in range(4):
            sst=g.vm(f'buffer_store_dwordx4 {vr(T+4*i,4)}, v{vL16}, {srd(SWS)}, s{sT0} offen offset:{i*1024} sc1'); yield 'gap'
            for _ in range(O('sgap',1)): yield 'gap'
        stamp('sst'); n0=cur_n[0]; print('S stores gap',n0)
        while cur_n[0]<n0+O('slag',22) and cur_n[0]<286:
            if cur_n[0]>=n0+O('qlen',10): st['quiet']=False
            yield 'gap'
        g.wait(vm=sst); g.vm(f'buffer_store_dword v{vNON}, v{vFS}, {srd(SWS)}, 0 offen sc1'); stamp('sflag'); st['quiet']=False; print('S flag gap',cur_n[0])
        if O('poll_k',0)<0:
            while cur_n[0]<O('poll_gap',278): yield 'gap'
            st['pid']=g.vm(f'buffer_load_dword v{T+34}, v{vPS}, {srd(SWS)}, 0 offen sc1')
    GR=[]
    for p,(ty,q) in enumerate(POS):
        for i in range(4 if ty=='A' else 8): GR.append((p,ty,q,i))
    lastA=max(i for i,x in enumerate(GR) if x[1]=='A')
    rdone={}
    def greads(gi):
        p,ty,q,i=GR[gi]; sl=p%NS; L=[]
        if i==0:
            def b_():
                g.wait(vm=blk_last[p],lg=st.get('elw')); barrier(p); stamp(f'{ty}{q}')
            pre=b_
        else: pre=None
        if ty=='A':
            s=i; b=128+12*((4*q+s)%8)
            xa,xo=(vRAw[s],RING-ROW0+sl*SLOT) if sl<2 else (XA2[s],(sl-2)*SLOT)
            wa=WA[sl>>1][s]; wo=(sl&1)*SLOT
            L=[f'ds_read_b128 {ar(16*q+4*s,4)}, v{xa} offset:{xo}',f'ds_read_b128 {ar(b,4)}, v{wa} offset:{wo}',
               f'ds_read_b128 {ar(b+4,4)}, v{wa} offset:{wo+4096}',f'ds_read_b128 {ar(b+8,4)}, v{vGA} offset:{GW_L+q*128+s*32}']
        else:
            for j in range(3):
                n=24*q+3*i+j; s,f=(n%24)//6,n%6; pair,mt=f>>1,f&1
                off=(sl&1)*SLOT+mt*12288+s*3072+pair*64; b=WR+4*(n%8)
                L+=[f'ds_read_b64_tr_b16 {vr(b+2*h,2)}, v{vTR[sl>>1]} offset:{off+768*h}' for h in range(2)]
        return pre,L
    def doreads(gi,part):
        if gi>=len(GR): return
        pre,L=greads(gi); h=len(L)//2
        if part==0 and pre: pre()
        for t in (L[:h] if part==0 else L[h:]): rdone[gi]=g.lg(t)
    def gm(gi,j):
        p,ty,q,i=GR[gi]
        if ty=='A':
            n=4*q+i; b=128+12*(n%8); x=ar(4*n,4); z=(n==0)
            if j==0: e(f'v_mfma_f32_32x32x16_bf16 {vr(URE,16)}, {x}, {ar(b,4)}, {"0" if z else vr(URE,16)}')
            if j==1: e(f'v_mfma_f32_32x32x16_bf16 {vr(UIM,16)}, {x}, {ar(b+4,4)}, {"0" if z else vr(UIM,16)}')
            if j==2: e(f'v_mfma_f32_16x16x32_bf16 {vr(ZA,4)}, {ar(b+8,4)}, {x}, {"0" if z else vr(ZA,4)}')
        else:
            n=24*q+3*i+j; s,f=(n%24)//6,n%6; acc=vr(ACC+16*f,16)
            e(f'v_mfma_f32_32x32x16_bf16 {acc}, {vr(WR+4*(n%8),4)}, {ar(16*q+4*s,4)}, {"0" if n<6 else acc}')
    LAA=O('laa',3)
    for gi in range(LAA): doreads(gi,0); doreads(gi,1)
    side=side_params(); mid=False
    for gi in range(len(GR)):
        p,ty,q,i=GR[gi]
        g.wait(lg=rdone[gi])
        for j in range(3):
            cur_n[0]=3*gi+j
            gm(gi,j)
            la=LAA if gi<=lastA else 2
            if j<2 and not (gi<=lastA<gi+la): doreads(gi+la,j)
            if p==15 and i==0 and j==1 and O('b16',1): barrier(16)
            if j==2 or (ty=='A' and j==0) or (j==0 and O('xs',2) and (gi%O('xs',2)==0 or gi>=O('xs1',50)) and gi>=O('xs0',0)): slot()
            if not mid: next(side,None)
            else:
                for _ in range(st.get('rate',[4,4,4])[j]):
                    if next(side,'gap')=='gap': break
        if gi==lastA:
            for _ in side: pass
            stamp('A_end'); burst(); side=side2(); mid=True
            for k_ in (1,2): doreads(gi+k_,0); doreads(gi+k_,1)
    for _ in side: raise Exception('side left')
    g.wait_all_lg(); barrier(17); stamp('1b_end'); print('w2n at 1b_end',st['w2n'])
    x0,x1=URE+30,URE+31
    XS=URE+16; DS=URE+24; vXa=URE+26; vOa=URE+27; vGe=T+8; vZa=URE+28
    def addr2():
        e(f's_lshl_b32 s13, s{sRT}, 7'); e(f's_lshl_b32 s12, s{sRH}, 6'); e('s_add_u32 s13, s13, s12')
        e(f's_lshr_b32 s12, s{sW}, 1'); e('s_lshl_b32 s12, s12, 5'); e('s_add_u32 s13, s13, s12')
        e(f's_and_b32 s12, s{sW}, 1'); e('s_lshl_b32 s12, s12, 3'); e('s_add_u32 s13, s13, s12')
        e(f'v_lshrrev_b32 v{x0}, 4, v{vL}'); e(f'v_add_u32 v{x0}, s13, v{x0}')
        e(f'v_and_b32 v{x1}, 15, v{vL}'); e(f's_lshl_b32 s12, s{sCT}, 7'); e(f'v_lshl_add_u32 v{x1}, v{x1}, 3, s12')
        e(f'v_lshl_add_u32 v{vXa}, v{x0}, 10, v{x1}'); e(f'v_lshlrev_b32 v{vOa}, 1, v{vXa}')
        e(f's_lshl_b32 s13, s{sCG}, 2'); e(f's_add_u32 s13, s13, s{sW}'); e(f's_xor_b32 s12, s{sRT}, 15'); e('s_or_b32 s13, s13, s12')
        e(f'v_or_b32 v{vZa}, s13, v{vL}'); e(f'v_cmp_eq_u32 vcc, 0, v{vZa}'); e(f'v_mov_b32 v{vZa}, {OOB:#x}'); e(f'v_cndmask_b32 v{vZa}, v{vZa}, 0, vcc')
    def small_loads():
        g.vm(f'global_load_dwordx2 {vr(DS,2)}, v{x1}, s[32:33]')
        for it in range(4):
            e(f's_movk_i32 s14, {(16*(it&1)+4*(it>>1))*1024}')
            st['xl']=g.vm(f'buffer_load_dwordx2 {vr(XS+2*it,2)}, v{vXa}, {srd(SX)}, s14 offen')
    if O('small0',0): addr2(); small_loads()
    pump(O('t0pump',0))
    E0=WR
    vL16F=T+16
    pol=T+34
    aid={}
    def aload(k):
        base,kk=(26,k) if k<16 else (28,k-16)
        if kk%4==0: e(f's_add_u32 s20, s{base}, {kk*1024}'); e(f's_add_u32 s21, s{base+1}, {kk*1024}')
        for tb in range(2):
            aid[k]=g.vm(f'buffer_load_dwordx4 {ar(8*(k%16)+4*tb,4)}, v{vL16}, {srd(SWS)}, s{20+tb} offen offset:{(kk%4)*1024} sc1')
    ALA=O('ala',8); na=[0]
    fl={}
    e(f's_cmp_eq_u32 s{sCG}, 15'); e(f's_cselect_b32 s12, {OOB:#x}, 0'); e(f'v_or_b32 v{vL16F}, s12, v{vL16}')
    if O('poll_k',0)<0: pid=st['pid']
    if O('chk_k',3)<0:
        check(pid,pol,0,'fs',61,vPS)
        for _ in range(O('apre',4)): aload(na[0]); na[0]+=1
    for pr in range(3):
        G=ACC+32*pr; Uu=G+16
        for h in range(2):
            k=2*pr+h
            R=range(8*h,8*h+8,2)
            for i in R: e(f'v_pk_mul_f32 {vr(E0+i%8,2)}, {vr(G+i,2)}, s[{sNL2E}:{sNL2E+1}] op_sel_hi:[1,0]')
            for i in range(8): e(f'v_exp_f32 v{E0+i}, v{E0+i}')
            for i in R: e(f'v_pk_mul_f32 {vr(G+i,2)}, {vr(G+i,2)}, {vr(Uu+i,2)}')
            for i in R: e(f'v_pk_fma_f32 {vr(E0+i%8,2)}, {vr(E0+i%8,2)}, {vr(vCinv,2)}, {vr(vCinv,2)}')
            for i in range(8): e(f'v_rcp_f32 v{E0+i}, v{E0+i}')
            for i in R: e(f'v_pk_mul_f32 {vr(G+i,2)}, {vr(G+i,2)}, {vr(E0+i%8,2)}')
            pk=E0+8+4*k
            for i in range(4): e(f'v_cvt_pk_bf16_f32 v{pk+i}, v{G+8*h+2*i}, v{G+8*h+2*i+1}')
            if k==O('poll_k',0): pid=g.vm(f'buffer_load_dword v{pol}, v{vPS}, {srd(SWS)}, 0 offen sc1')
            if k==O('chk_k',3):
                check(pid,pol,0,'fs',61,vPS)
                for _ in range(O('apre',4)): aload(na[0]); na[0]+=1
            if k>O('chk_k',3) and k<O('amid_stop',5):
                for _ in range(O('amid',0)): aload(na[0]); na[0]+=1
            fst=g.vm(f'buffer_store_dwordx4 {vr(pk,4)}, v{vL16F}, {srd(SWS)}, s{16 if k<4 else 17} offen offset:{(k%4)*1024} sc1')
    stamp('ffn_epi'); print('w2n at ffn_epi',st['w2n'])
    assert st['w2n']>=32
    while st['pendC']: service(force=True)
    if O('chk_k',3)>5: check(pid,pol,0,'fs',61,vPS)
    while na[0]<O('apre2',4): aload(na[0]); na[0]+=1
    def drain(n):
        for _ in range(n):
            r=pump(1)
            if r=='blocked' and (st['pendC'] or st['pendRel']):
                service(force=True); service(force=True); r=pump(1)
    vT0=[vTa[0],T+20,T+21]; vT1=[vTa[1],T+22,T+23]
    for k in (1,2):
        e(f'v_add_u32 v{vT0[k]}, {65536*k}, v{vT0[0]}'); e(f'v_add_u32 v{vT1[k]}, {65536*k}, v{vT1[0]}')
    if not O('small0',0): addr2()
    stamp('p2s')
    def fflag():
        g.wait(vm=fst); g.vm(f'buffer_store_dword v{vNON}, v{vFS}, {srd(SWS)}, 0 offen offset:128 sc1'); stamp('fflag')
    if O('fflag_k',2)<0: fflag()
    g.wait_all_lg()
    wid={}
    def wread(k):
        u,ks=(k-16)>>1,k&1; gi=8+u
        assert st['w2n']>=4*gi+4,(k,st['w2n'])
        g.wait(vm=st['Flast'][gi]); row=st['Frow'][gi]
        for db in range(2):
            b=WR+8*(k%4)+4*db
            ad=(vT0,vT1)[db][row>>2]
            for rho in range(2):
                wid[k]=g.lg(f'ds_read_b64_tr_b16 {vr(b+2*rho,2)}, v{ad} offset:{(row&3)*16384+ks*2048+rho*1024}')
    wj=[T+4,T+5,T+6,T+7]; rd=[T+40,T+41]; SK=URE; dsk=[T+42+i for i in range(4)]
    def side_fin():
        y0,y1=T+16,T+17
        e(f'v_lshrrev_b32 v{y0}, 4, v{vM}'); e(f'v_lshlrev_b32 v{y0}, 14, v{y0}'); e(f'v_and_b32 v{y1}, 15, v{vM}'); yield
        e(f'v_lshl_add_u32 v{y0}, v{y1}, 8, v{y0}'); e(f'v_and_b32 v{y1}, 7, v{vM}'); e(f'v_lshlrev_b32 v{y1}, 4, v{y1}'); yield
        e(f'v_xor_b32 v{y1}, v{y1}, v{vHH16}'); e(f'v_add3_u32 v{wj[0]}, v{y0}, v{y1}, s{sM0R}'); yield
        for j in range(1,4): e(f'v_xor_b32 v{wj[j]}, {32*j}, v{wj[0]}')
        yield
        e(f'v_lshrrev_b32 v{y0}, 4, v{vL}'); e(f'v_and_b32 v{y1}, 15, v{vL}'); e(f'v_xor_b32 v{y1}, v{y1}, v{y0}'); yield
        e(f'v_lshlrev_b32 v{y1}, 4, v{y1}'); e(f'v_lshl_add_u32 v{y1}, v{y0}, 8, v{y1}'); yield
        e(f's_lshl_b32 s12, s{sW}, 14'); e(f's_add_u32 s12, s12, {ROW0}'); e(f'v_add_u32 v{rd[0]}, s12, v{y1}'); e(f'v_xor_b32 v{rd[1]}, 64, v{rd[0]}'); yield
        e(f's_lshl_b32 s13, s{sRH}, 8'); e(f's_lshl_b32 s12, s{sW}, 6'); e('s_add_u32 s12, s12, s13'); e(f'v_lshl_add_u32 v{y0}, v{y0}, 2, s12'); yield
        for it in range(4): gl=g.lg(f'ds_read_b32 v{vGe+it}, v{y0} offset:{G_L+16*it}')
        yield
        while 'xl' not in st or g.nvm-st['xl']<12: yield
        g.wait(vm=st['xl'])
        e(f'v_lshlrev_b32 v{dsk[0]}, 16, v{DS}'); e(f'v_and_b32 v{dsk[1]}, 0xffff0000, v{DS}'); yield
        e(f'v_lshlrev_b32 v{dsk[2]}, 16, v{DS+1}'); e(f'v_and_b32 v{dsk[3]}, 0xffff0000, v{DS+1}'); yield
        g.wait(lg=gl)
        for it in range(4):
            for h in range(2):
                a,b=SK+4*it+2*h,SK+4*it+2*h+1
                e(f'v_lshlrev_b32 v{a}, 16, v{XS+2*it+h}'); e(f'v_and_b32 v{b}, 0xffff0000, v{XS+2*it+h}')
                e(f'v_mul_f32 v{a}, v{a}, v{dsk[2*h]}'); yield
                e(f'v_mul_f32 v{b}, v{b}, v{dsk[2*h+1]}')
                e(f'v_cvt_pk_bf16_f32 v{b}, v{a}, v{b}')
                e(f'v_lshlrev_b32 v{a}, 16, v{b}'); yield
                e(f'v_and_b32 v{b}, 0xffff0000, v{b}')
                e(f'v_mul_f32 v{a}, v{a}, v{vGe+it}'); e(f'v_mul_f32 v{b}, v{b}, v{vGe+it}'); yield
    side=side_fin()
    pid2=None
    FK=O('fchk_k',12)
    KT=34 if O('amaj',1) else 38
    for k in range(KT):
        if 16<=k+2<38: wread(k+2)
        g.wait(vm=aid[k])
        if k>=16: g.wait(lg=wid[k])
        if k in (0,8,16,24,32): stamp(f'k{k}')
        for db in range(2):
            for tb in range(2):
                acc=vr(ACC+16*(2*db+tb),16)
                Wf=ar(128+(k*2+db)*4,4) if k<16 else vr(WR+8*(k%4)+4*db,4)
                e(f'v_mfma_f32_32x32x16_bf16 {acc}, {Wf}, {ar(8*(k%16)+4*tb,4)}, {"0" if k==0 else acc}')
                next(side,None)
            if db==0:
                if k==FK: check(pid2,pol+1,128,'ff',59,vPF)
                lim=min(38,k+ALA+1) if k>=FK else min(16,k+ALA+1)
                cnt_=0
                while na[0]<lim and cnt_<O('acatch',2): aload(na[0]); na[0]+=1; cnt_+=1
                if k==FK-O('poll2_lead',4): pid2=g.vm(f'buffer_load_dword v{pol+1}, v{vPF}, {srd(SWS)}, 0 offen offset:128 sc1')
        if k==O('fflag_k',2): fflag()
        if k in (17,19): st['free'].append(st['Frow'][8+((k-16)>>1)])
        cur_n[0]+=6
        if st['w2n']<76 and k>=O('mix0',4): drain(O('mix',3))
        if k==O('small_at',9) and not O('small0',0): small_loads()
        if KT==34 and k in (32,33): wread(k+4)
    for _ in side: raise Exception('side_fin left')
    wq=[]
    if KT==34:
        for db in range(2):
            for tb in range(2):
                acc=vr(ACC+16*(2*db+tb),16)
                for k in range(34,38):
                    g.wait(vm=aid[k],lg=wid[k])
                    e(f'v_mfma_f32_32x32x16_bf16 {acc}, {vr(WR+8*(k%4)+4*db,4)}, {ar(8*(k%16)+4*tb,4)}, {acc}')
                    if k>=36:
                        for _ in range(2):
                            if wq: g.lg(wq.pop(0))
                wq+=[f'ds_write_b128 v{wj[j]}, {vr(ACC+16*(2*db+tb)+4*j,4)} offset:{db*128+tb*32768}' for j in range(4)]
    else:
        wq=[f'ds_write_b128 v{wj[j]}, {vr(ACC+16*(2*db+tb)+4*j,4)} offset:{db*128+tb*32768}' for db in range(2) for tb in range(2) for j in range(4)]
    stamp('p2_end')
    for t in wq: g.lg(t)
    g.wait_all_lg(); e('s_barrier'); stamp('red')
    g.vm(f'buffer_store_dword v{vNON}, v{vZa}, {srd(SWS)}, 0 offen offset:{Z_OFF} sc1')
    RB=ACC
    ids={}
    for it in range(4):
        for w2 in range(4):
            ids[it,w2]=g.lg(f'ds_read_b128 {vr(RB+16*it+4*w2,4)}, v{rd[it&1]} offset:{w2*4096+it*1024}')
    for it in range(4):
        g.wait(lg=ids[it,3])
        b=RB+16*it
        for i in (0,2): e(f'v_pk_add_f32 {vr(b+i,2)}, {vr(b+i,2)}, {vr(SK+4*it+i,2)}')
        for i in (0,2): e(f'v_pk_add_f32 {vr(b+4+i,2)}, {vr(b+4+i,2)}, {vr(b+8+i,2)}')
        for i in (0,2): e(f'v_pk_add_f32 {vr(b+i,2)}, {vr(b+i,2)}, {vr(b+12+i,2)}')
        for i in (0,2): e(f'v_pk_add_f32 {vr(b+i,2)}, {vr(b+i,2)}, {vr(b+4+i,2)}')
        e(f's_mov_b32 s12, {(16*(it&1)+4*(it>>1))*2048}')
        g.vm(f'buffer_store_dwordx4 {vr(b,4)}, v{vOa}, {srd(SOUT)}, s12 offen {O("outfl","sc1")}')
    if O('stamps'):
        stamp('st_iss')
        e('s_waitcnt vmcnt(0)'); stamp('end',True)
        e('s_memrealtime s[94:95]'); e('s_waitcnt lgkmcnt(0)'); e('v_writelane_b32 v39, s94, 63')
        e(f's_lshl_b32 s11, s2, 10'); e(f's_add_u32 s11, s11, {WS_SIZE}'); e(f's_add_u32 s{SWS+2}, s{SWS+2}, 0x40000')
        e(f'v_lshlrev_b32 v{T}, 2, v0')
        e(f'buffer_store_dword v39, v{T}, {srd(SWS)}, s11 offen')
        if O('dbg'):
            sel=['start','setup','B0','B4','B8','B12','1b_end','ssm_fin','ffn_epi','w2_issued','fs_ok','k16','p2_end','end']
            e('s_mov_b32 s60, s46'); e('s_mov_b32 s61, s47'); e('s_mov_b32 s62, 256'); e('s_mov_b32 s63, 0x20000')
            e('v_readlane_b32 s12, v39, 62'); e('v_readlane_b32 s13, v39, 0'); e('s_not_b32 s12, s12')
            e(f'v_mov_b32 v{T+1}, s94'); e(f'v_mov_b32 v{T+2}, s12'); e(f'v_mov_b32 v{T+3}, 0'); e(f'v_mov_b32 v{T+4}, {OOB:#x}')
            e(f'v_cmp_eq_u32 vcc, 0, v0'); e(f'v_cndmask_b32 v{T+3}, v{T+4}, v{T+3}, vcc')
            e(f'buffer_atomic_umax v{T+1}, v{T+3}, s[60:63], 0 offen'); e(f'buffer_atomic_umax v{T+2}, v{T+3}, s[60:63], 0 offen offset:4')
            e('s_cmp_eq_u32 s2, 100'); e('s_cbranch_scc0 L_end')
            for i,nm in enumerate(sel):
                e(f'v_readlane_b32 s12, v39, {stamps.index(nm)}'); e('s_sub_u32 s12, s12, s13'); e(f'v_mov_b32 v{T+1}, s12')
                e(f'buffer_store_dword v{T+1}, v{T+3}, s[60:63], 0 offen offset:{8+4*i}')
    if O('diag'):
        e('s_waitcnt vmcnt(0)')
        if O('diag')==2:
            e(f'v_mov_b32 v{T+31}, 0'); e(f'global_load_dword v{T+30}, v{T+31}, s[46:47] sc1'); e('s_waitcnt vmcnt(0)')
            e(f'v_readfirstlane_b32 s94, v{T+30}'); e('s_nop 3'); e('s_not_b32 s94, s94')
        if O('dpt'):
            e('s_waitcnt lgkmcnt(0)'); e('s_sub_u32 s12, s92, s94'); e('s_lshl_b32 s12, s12, 1')
            e('s_memrealtime s[92:93]'); e('s_waitcnt lgkmcnt(0)')
        else:
            e('s_memrealtime s[92:93]'); e('s_waitcnt lgkmcnt(0)'); e('s_sub_u32 s12, s92, s94')
        e('s_min_u32 s12, s12, 20000'); e('s_add_u32 s12, s12, s92')
        e('L_dg:'); e('s_memrealtime s[92:93]'); e('s_waitcnt lgkmcnt(0)'); e('s_sub_u32 s13, s92, s12'); e('s_cmp_lt_i32 s13, 0'); e('s_cbranch_scc1 L_dg')
    e('L_end:')
    e('s_endpgm')
    hdr=open('gated_mix__ssm_conv_s5__glu_gated_swiglu__prompt.s.ref').read().split('; Override')[0]
    out=hdr+'; @launch grid=(256,1,1) block=(256,1,1) lds=163840\n'
    out+="""; One fused launch, 256 workgroups (one per CU) x 4 waves, written by a generator script (own code):
"""
    out+=f'.amdgcn_target "amdgcn-amd-amdhsa--gfx950"\n.text\n.globl {NAME}\n.p2align 8\n.type {NAME},@function\n{NAME}:\n'
    out+=g.text()
    out+=f'.fill (32768+256-(.-{NAME}))/4, 4, 0xbf810000\n'
    out+=f'''.section .rodata,"a"
.p2align 6
.amdhsa_kernel {NAME}
  .amdhsa_next_free_vgpr 512
  .amdhsa_next_free_sgpr 102
  .amdhsa_accum_offset 256
  .amdhsa_group_segment_fixed_size 0
  .amdhsa_kernarg_size 136
  .amdhsa_user_sgpr_count 2
  .amdhsa_user_sgpr_kernarg_segment_ptr 1
  .amdhsa_system_sgpr_workgroup_id_x 1
.end_amdhsa_kernel
'''
    return out,g
if __name__=='__main__':
    import json
    opt=json.loads(sys.argv[2]) if len(sys.argv)>2 else {}
    out,g=gen(opt)
    open(sys.argv[1],'w').write(out)
    if g.stamps: json.dump(g.stamps,open(sys.argv[1]+'.names','w'))
    from collections import Counter
    print(len(g.ins),Counter(i.cls for i in g.ins), 'nops',sum(1 for i in g.ins if i.mn=='s_nop'))
```

```python
import sys
from asmlib import *
NAME='gated_mix__ssm_conv_s5__glu_gated_swiglu__prompt_kernel'
ROW0=8192; RING=40960; SLOT=24576; NS=5
Z_OFF=0; FL_OFF=0x40000; HE_OFF=0x10000; A2_OFF=0x80000; WS_SIZE=A2_OFF+16*4*160*1024
OOB=0x80000000
GW_L=0; XCH_L=1024; HIN_L=2816; E_L=3072; G_L=5120; PQ_L=5632; TRB_L=155648
LOG2E=0x3fb8aa3b; NLOG2E=0xbfb8aa3b; INV2PI=0x3e22f983
SPIN=200000
sW,sRT,sCG,sCT,sRH,sROT,sNON=4,5,6,7,8,9,10
SX,SW0,SW1,SW3,SCRE,SCIM,SW2,SWS,SHE,SOUT=52,56,60,64,68,72,76,80,84,88
sXB,sW0B,sM0X,sM0W,sM0F,sSO,sSO2=96,97,98,99,100,101,3
sCB,sW2B,sA2S,sA2L0,sA2L1,sCNT,sT0,sT1=34,35,36,37,38,39,40,41
sM0R,sSO3,sFST,sNL2E,sROTF=50,51,22,24,23
srd=lambda b:f's[{b}:{b+3}]'
vr=lambda b,n:f'v[{b}:{b+n-1}]'
ar=lambda b,n:f'a[{b}:{b+n-1}]'
vL,vM,vHH16,vL16=1,2,3,4
vNat=[5,6,7,8]; vXo=[9,10,11,12]; vWF=[13,14,15]
vRA=[16,17,18,19]; vRAw=[20,21,22,23]; vTR=[24,25,26]
vLr,vLi,vL16r,vL16i,vL128r,vL128i,vL1kr,vL1ki,vC2r,vNC2i,vM8=27,28,29,30,31,32,33,34,35,36,37
vCinv=40
vW2o=[42,43,44,45]; vHEo=46; vFLo=47
URE=48; UIM=64; ACC=80; WR=176; T=208
ZA=T+44
vFS,vNON,vTW,vTRd=T+36,T+37,T+38,T+39; vEX=38; vT8=T+41
def gen(opt=None):
    opt=opt or {}
    O=opt.get
    g=Gen(); e=g.e
    FS=O('fs',8)
    SEQ=O('seq','AAAAAAAAFFFFFFFF'); assert SEQ.count('A')==8 and SEQ.count('F')==8 and SEQ[0]=='A'
    POS=[(c,SEQ[:i].count(c)) for i,c in enumerate(SEQ)]
    for i,(c,q) in enumerate(POS): assert c=='A' or SEQ[:i].count('A')>q
    stamps=[]
    def stamp(name,flush=False):
        if O('dpt')==name: e('s_memrealtime s[92:93]')
        if not O('stamps'): return
        k=len(stamps); stamps.append(name)
        if k>=2: e(f'v_writelane_b32 v39, s{92+2*(k%2)}, {k-2}')
        e(f's_memtime s[{92+2*(k%2)}:{93+2*(k%2)}]')
        if flush:
            e('s_waitcnt lgkmcnt(0)')
            e(f'v_writelane_b32 v39, s{92+2*((k-1)%2)}, {k-1}'); e(f'v_writelane_b32 v39, s{92+2*(k%2)}, {k}')
    g.stamps=stamps
    e('s_cmp_ge_u32 s2, 256'); e('s_cbranch_scc1 L_end')
    if O('stamps'):
        e('s_memrealtime s[94:95]'); e('v_mov_b32 v39, 0'); e('s_waitcnt lgkmcnt(0)'); e('v_writelane_b32 v39, s94, 62')
        stamp('start')
    if O('diag'): e('s_memrealtime s[94:95]')
    e('s_load_dwordx16 s[16:31], s[0:1], 0')
    e('s_load_dwordx16 s[32:47], s[0:1], 64')
    e('s_load_dwordx2 s[48:49], s[0:1], 128')
    e('s_getpc_b64 s[50:51]')
    e('s_lshr_b32 s13, s2, 3')
    e('s_and_b32 s14, s13, 7'); e('s_lshl_b32 s14, s14, 12')
    e(f'v_lshl_add_u32 v{T}, v0, 4, s14')
    g.vm(f'global_load_dwordx4 {vr(T+4,4)}, v{T}, s[50:51]')
    PF0=O('pf0',0)
    pX,pB,pW=T+40,T+41,T+42
    def pfA():
        g.vm(f'global_load_dword v{T+43}, v{pX}, s[16:17]'); g.vm(f'global_load_dword v{T+43}, v{pB}, s[22:23]'); g.vm(f'global_load_dword v{T+43}, v{pB}, s[24:25]')
    def pfF():
        g.vm(f'global_load_dword v{T+43}, v{pW}, s[36:37]'); g.vm(f'global_load_dword v{T+43}, v{pW}, s[38:39]')
    if PF0:
        e('s_lshl_b32 s12, s2, 6'); e(f'v_lshrrev_b32 v{pX}, 2, v0'); e(f'v_add_lshl_u32 v{pX}, v{pX}, s12, 7')
        e('s_lshl_b32 s12, s2, 4'); e(f'v_lshrrev_b32 v{pB}, 4, v0'); e(f'v_add_lshl_u32 v{pB}, v{pB}, s12, 7')
        e('s_mul_i32 s12, s2, 43'); e(f'v_mul_u32_u24 v{pW}, 43, v0'); e(f'v_lshrrev_b32 v{pW}, 8, v{pW}'); e(f'v_add_lshl_u32 v{pW}, v{pW}, s12, 7')
        e('s_waitcnt lgkmcnt(0)')
        if PF0&1: pfA()
        if PF0&2: pfF()
        e(f's_load_dword s{sNON}, s[48:49], {Z_OFF}'); g.smem=True
        stamp('pf')
    e(f'v_lshrrev_b32 v{T+1}, 6, v0')
    e(f'v_and_b32 v{vL}, 63, v0')
    e(f'v_readfirstlane_b32 s{sW}, v{T+1}')
    if O('map','B')=='A':
        e('s_and_b32 s12, s2, 7')
        e(f's_and_b32 s{sRH}, s12, 1'); e('s_lshr_b32 s14, s12, 1')
        e(f's_lshl_b32 s{sRT}, s14, 2'); e('s_lshr_b32 s15, s13, 3'); e(f's_add_u32 s{sRT}, s{sRT}, s15')
        e(f's_and_b32 s{sCT}, s13, 7')
        e(f's_lshl_b32 s{sCG}, s{sRH}, 3'); e(f's_add_u32 s{sCG}, s{sCG}, s{sCT}')
        e(f's_lshl_b32 s{sROT}, s14, 1'); e(f's_and_b32 s11, s{sCT}, {O("rotmask",4)}'); e(f's_add_u32 s{sROT}, s{sROT}, s11')
    else:
        e(f's_and_b32 s12, s2, 4'); e(f's_lshl_b32 s{sRT}, s12, 1'); e('s_lshr_b32 s15, s2, 5'); e(f's_add_u32 s{sRT}, s{sRT}, s15')
        e('s_and_b32 s14, s13, 3')
        e(f's_and_b32 s11, s2, 3'); e(f's_lshl_b32 s{sCG}, s11, 2'); e(f's_add_u32 s{sCG}, s{sCG}, s14')
        e(f's_and_b32 s{sRH}, s2, 1'); e(f's_and_b32 s{sCT}, s2, 2'); e(f's_lshl_b32 s{sCT}, s{sCT}, 1'); e(f's_add_u32 s{sCT}, s{sCT}, s14')
        if O('ctx',5): e(f's_xor_b32 s{sCT}, s{sCT}, {O("ctx",5)}')
        ra,rb,rc,rd_=O('rot',[2,1,0,0])
        e(f's_mul_i32 s{sROT}, s14, {ra}')
        if O('rtmask',7)!=7: e(f's_and_b32 s15, s15, {O("rtmask",7)}')
        if rb: e(f's_mul_i32 s15, s15, {rb}'); e(f's_add_u32 s{sROT}, s{sROT}, s15')
        if rc: e(f's_lshr_b32 s12, s12, 2'); e(f's_mul_i32 s12, s12, {rc}'); e(f's_add_u32 s{sROT}, s{sROT}, s12')
        if rd_: e(f's_mul_i32 s11, s11, {rd_}'); e(f's_add_u32 s{sROT}, s{sROT}, s11')
    l3,l7,l4,hh,sw0=T+8,T+9,T+10,T+11,T+12
    e(f'v_lshrrev_b32 v{l3}, 3, v{vL}'); e(f'v_and_b32 v{l7}, 7, v{vL}'); e(f'v_lshrrev_b32 v{l4}, 4, v{vL}'); e(f'v_lshrrev_b32 v{hh}, 5, v{vL}')
    e(f'v_xor_b32 v{sw0}, v{l7}, v{l4}'); e(f'v_lshlrev_b32 v{sw0}, 4, v{sw0}')
    e(f'v_lshl_add_u32 v{vNat[0]}, v{l3}, 10, v{sw0}')
    e(f'v_xor_b32 v{vNat[1]}, 64, v{vNat[0]}'); e(f'v_add_u32 v{vNat[1]}, 7168, v{vNat[1]}')
    e(f'v_and_b32 v{T+13}, 3, v{l3}'); e(f'v_lshl_add_u32 v{T+13}, v{hh}, 4, v{T+13}')
    e(f'v_lshl_add_u32 v{vXo[0]}, v{T+13}, 10, v{sw0}')
    e(f'v_xor_b32 v{vXo[1]}, 64, v{vXo[0]}'); e(f'v_add_u32 v{vXo[1]}, 3072, v{vXo[1]}')
    e(f'v_add_u32 v{vXo[2]}, 6144, v{vXo[0]}'); e(f'v_add_u32 v{vXo[3]}, 6144, v{vXo[1]}')
    e(f's_lshl_b32 s{sXB}, s{sRT}, 17'); e(f's_lshl_b32 s11, s{sW}, 15'); e(f's_add_u32 s{sXB}, s{sXB}, s11')
    e(f's_lshl_b32 s{sW0B}, s{sCG}, 15'); e(f's_and_b32 s11, s{sW}, 1'); e('s_lshl_b32 s11, s11, 14'); e(f's_add_u32 s{sW0B}, s{sW0B}, s11')
    e(f's_lshl_b32 s{sM0X}, s{sW}, 12'); e(f's_add_u32 s{sM0X}, s{sM0X}, {RING}')
    e(f's_lshl_b32 s{sM0W}, s{sW}, 11'); e(f's_add_u32 s{sM0W}, s{sM0W}, {RING+16384}')
    def mksrd(b,p): e(f's_mov_b32 s{b}, s{p}'); e(f's_mov_b32 s{b+1}, s{p+1}')
    def srdc(b,size): e(f's_mov_b32 s{b+2}, {size}'); e(f's_mov_b32 s{b+3}, 0x20000')
    srdc(SX,2048*1024); srdc(SW0,512*1024)
    e(f's_cmp_lt_u32 s{sW}, 2')
    if not PF0: e('s_waitcnt lgkmcnt(0)')
    stamp('karg')
    if O('stamps'): e(f's_cmp_lt_u32 s{sW}, 2')
    mksrd(SX,16)
    if O('diag')==2:
        e('s_not_b32 s92, s94'); e(f'v_mov_b32 v{T+30}, s92'); e(f'v_mov_b32 v{T+31}, 0')
        e('s_mov_b64 exec, 1'); g.vm(f'global_atomic_umax v{T+31}, v{T+30}, s[46:47]'); e('s_mov_b64 exec, -1')
        e(f's_cmp_lt_u32 s{sW}, 2')
    e(f's_cselect_b32 s{SW0}, s22, s24'); e(f's_cselect_b32 s{SW0+1}, s23, s25')
    blk_last={}
    st={'barr':-1,'free':[0,1],'pendC':[],'pendRel':[],'Frow':{},'Flast':{},'w2n':0,'m0':None,'w2on':False}
    D=O('D',3)
    cur_n=[0]
    def setm0(base,c):
        if st['m0']!=(base,c):
            e(f's_add_u32 m0, s{base}, {c}'); st['m0']=(base,c)
    R4=O('r4',1)
    slotof=lambda p: p%NS if (p<8 or not R4) else [3,4,1,2][(p-8)%4]
    def streamP():
        for p in range(16):
            while (p>=O('pre',2) and st['barr']<p-(2 if (R4 and p>=12) else D)) or (p>=O('hold',9) and not st.get('burst')): yield 'blocked'
            sl=slotof(p); ty,q=POS[p]
            if p==8 and O('dwarm',1): g.vm(f'global_load_ushort v{T+43}, v{T+15}, s[32:33]')
            if ty=='A':
                e(f's_add_u32 s11, s{sROT}, {q}'); e('s_and_b32 s11, s11, 7'); e('s_lshl_b32 s11, s11, 7')
                e(f's_add_u32 s{sSO}, s{sXB}, s11'); e(f's_add_u32 s{sSO2}, s{sW0B}, s11')
                for a in range(4):
                    setm0(sM0X,sl*SLOT)
                    g.vm(f'buffer_load_dwordx4 v{vXo[a]}, {srd(SX)}, s{sSO} offen offset:{1024*a} lds'); yield
                for a in range(2):
                    setm0(sM0W,sl*SLOT)
                    blk_last[p]=g.vm(f'buffer_load_dwordx4 v{vNat[a]}, {srd(SW0)}, s{sSO2} offen offset:{1024*a} lds'); yield
            else:
                if p==O('pfw2',11):
                    e('s_mul_i32 s11, s2, 43'); e(f'v_mul_u32_u24 v{vTR[2]}, 43, v0'); e(f'v_lshrrev_b32 v{vTR[2]}, 8, v{vTR[2]}'); e(f'v_add_lshl_u32 v{vTR[2]}, v{vTR[2]}, s11, 7')
                    g.vm(f'buffer_load_dword v{T+43}, v{vTR[2]}, {srd(SW2)}, 0 offen')
                if q==3 and O('pf15',1) and O('pfw2',11)<0:
                    e('\n'.join([f's_cmp_eq_u32 s{sCG}, 15','s_cbranch_scc0 L_no15b',
                      f's_mul_i32 s11, s{sRT}, {88*1024}', f's_add_u32 s{SW1}, s{SW2}, s11', f's_addc_u32 s{SW1+1}, s{SW2+1}, 0',
                      f's_add_u32 s{SW3}, s{SW1}, {44*1024}', f's_addc_u32 s{SW3+1}, s{SW1+1}, 0',
                      f's_mov_b32 s{SW1+2}, {44*1024}', f's_cmp_eq_u32 s{sRT}, 15', f's_cselect_b32 s{SW3+2}, {12*1024}, s{SW1+2}',
                      f's_mov_b32 s{sROTF}, 5', 'L_no15b:']))
                e(f's_add_u32 s11, s{sROTF}, {q}'); e('s_and_b32 s11, s11, 7'); e(f's_mul_i32 s{sSO}, s11, s{sFST}')
                for mt,S_ in enumerate((SW1,SW3)):
                    for a in range(3):
                        setm0(sM0F,sl*SLOT+mt*12288)
                        if mt: e(f'v_xor_b32 v{vTR[2]}, 32, v{vWF[a]}')
                        blk_last[p]=g.vm(f'buffer_load_dwordx4 v{vTR[2] if mt else vWF[a]}, {srd(S_)}, s{sSO} offen offset:{1024*a} lds'); yield
        while True: yield 'done'
    vTa=[vRA[0],vRA[1]]
    NMV=O('nmv',12); loc={}; st['space']=[]
    def moveC(gi,row,last):
        sp=st['space'].pop(0)
        g.wait(vm=last)
        if gi<8:
            mt,cb,db=gi>>2,(gi>>1)&1,gi&1
            for s in range(4):
                kap=4*(2*cb+(s>>1))+2*mt+(s&1)
                if row<4: ad=vRAw[s]; off=row*16384
                else:
                    ad=T+44+s; off=0
                    e(f'v_add_u32 v{ad}, {row*16384}, v{vRAw[s]}')
                loc[kap,db]=sp+4*s
                i=g.lg(f'ds_read_b128 {ar(sp+4*s,4)}, v{ad} offset:{off}')
        else:
            u=gi-8
            for db in range(2):
                if row<4: ad=vTa[db]; off=row*16384
                else:
                    ad=T+44+db; off=0
                    e(f'v_add_u32 v{ad}, {row*16384}, v{vTa[db]}')
                for ks in range(2):
                    loc[16+2*u+ks,db]=sp+8*ks+4*db
                    for rho in range(2):
                        i=g.lg(f'ds_read_b64_tr_b16 {ar(sp+8*ks+4*db+2*rho,2)}, v{ad} offset:{off+ks*2048+rho*1024}')
        st['pendRel'].append((row,i))
    def service(force=False):
        for it in list(st['pendRel']):
            if force: g.wait(lg=it[1])
            if g.lg_done>=it[1]: st['free'].append(it[0]); st['pendRel'].remove(it)
        if st['pendC'] and st['space'] and (force or cur_n[0]-st['pendC'][0][3]>=O('cagen',20) or g.vm_done>=st['pendC'][0][2]):
            moveC(*st['pendC'].pop(0)[:3])
    def gran(gi,row):
        st['Frow'][gi]=row
        if gi>=8:
            e(f's_add_u32 s{sSO3}, s{sW2B}, {32*1024*(gi-8)}'); S_,vo=SW2,vW2o
        else:
            c=gi; mt,cb,db=c>>2,(c>>1)&1,c&1
            e(f's_add_u32 s{sSO3}, s{sCB}, {db*32*1024+cb*128}'); S_,vo=(SCIM if mt else SCRE),vNat
        for a in range(4):
            setm0(sM0R,row*16384)
            st['Flast'][gi]=g.vm(f'buffer_load_dwordx4 v{vo[a]}, {srd(S_)}, s{sSO3} offen offset:{1024*a} lds'); st['w2n']+=1
            if a==3 and gi<NMV: st['pendC'].append((gi,row,st['Flast'][gi],cur_n[0]))
            yield
    def streamW():
        for gi in range(19):
            while not st['free'] or st.get('quiet') or (st.get('wantrow') and st.get('trow') is None): yield 'blocked'
            yield from gran(gi,st['free'].pop(0))
        while True: yield 'done'
    SP=streamP(); SWs=streamW()
    def pump(n=1):
        r=None
        for _ in range(n):
            r=next(SP)
            if r and st['w2on']:
                service(); r=next(SWs)
        return r
    def barrier(q):
        e('s_barrier'); st['barr']=q
        rel={13:[4],14:[5],15:[6,7],16:[8],17:[2,3]} if O('b16',1) else {13:[4],14:[5],15:[6,7],17:[8,2,3]}
        if R4: rel={8:[2],14:[7],15:[8],16:[3,4],17:[5,6]}
        st['free']+=rel.get(q,[])
        if q>=O('w2from',9): st['w2on']=True
    if O('a0first',1): pump(6)
    e(f's_cmp_eq_u32 s{sW}, 0'); e(f's_cselect_b32 s11, s{sROT}, 0'); e('s_cselect_b32 s12, s42, s18'); e('s_cselect_b32 s13, s43, s19'); e(f's_cselect_b32 s14, 0, {ROW0}')
    e(f'v_add_u32 v{T+14}, s11, v{l3}'); e(f'v_and_b32 v{T+14}, 7, v{T+14}'); e(f'v_lshlrev_b32 v{T+14}, 7, v{T+14}')
    e(f's_cmp_eq_u32 s{sW}, 2'); e('s_cselect_b32 s12, s20, s12'); e('s_cselect_b32 s13, s21, s13')
    e(f's_cmp_eq_u32 s{sW}, 3'); e('s_cselect_b32 s12, s30, s12'); e('s_cselect_b32 s13, s31, s13')
    e(f'v_lshl_add_u32 v{T+14}, v{l7}, 4, v{T+14}')
    e(f's_lshl_b32 s11, s{sW}, 10'); e('s_add_u32 m0, s14, s11'); st['m0']=None
    e(f'v_and_b32 v{vM}, 31, v{vL}')
    gwid=g.vm(f'global_load_lds_dwordx4 v{T+14}, s[12:13]')
    if O('a0first',1): blk_last[0]=gwid
    e(f's_lshl_b32 s11, s{sCG}, 6')
    e(f'v_lshl_add_u32 v{T+15}, v{vM}, 1, s11')
    if not PF0: e(f's_load_dword s{sNON}, s[48:49], {Z_OFF}'); g.smem=True
    if not O('a0first',1): pump(O('a0pre',6))
    if PF0&4: pfF()
    stamp('p0')
    e(f'v_mov_b32 v{T+2}, 0'); e(f'v_mov_b32 v{T+3}, 0'); e(f'v_lshlrev_b32 v{vT8}, 3, v0')
    g.lg(f'ds_write_b64 v{vT8}, {vr(T+2,2)} offset:{XCH_L}')
    e(f'v_lshlrev_b32 v{vHH16}, 4, v{hh}')
    e(f's_lshl_b32 s{sM0R}, s{sW}, 12'); e(f's_add_u32 s{sM0R}, s{sM0R}, {ROW0}')
    e(f'v_bfe_u32 v{T+20}, v{vM}, 1, 3'); e(f'v_xor_b32 v{T+20}, v{T+20}, v{hh}'); e(f'v_lshlrev_b32 v{T+20}, 4, v{T+20}')
    e(f'v_lshl_add_u32 v{vRA[0]}, v{vM}, 7, v{T+20}')
    for s in range(1,4): e(f'v_xor_b32 v{vRA[s]}, {32*s}, v{vRA[0]}')
    XA2=[T+24+s for s in range(4)]; WA=[vRA,[T+28+s for s in range(4)],[T+32+s for s in range(4)]]
    for s in range(4):
        e(f'v_add_u32 v{vRAw[s]}, s{sM0R}, v{vRA[s]}')
        e(f'v_add_u32 v{XA2[s]}, {RING-ROW0+2*SLOT}, v{vRAw[s]}')
        e(f'v_add_u32 v{WA[1][s]}, {RING+16384+2*SLOT}, v{vRA[s]}'); e(f'v_add_u32 v{WA[2][s]}, {RING+16384+4*SLOT}, v{vRA[s]}')
        e(f'v_add_u32 v{vRA[s]}, {RING+16384}, v{vRA[s]}')
    PX=[[WR+s for s in range(4)],[WR+4+s for s in range(4)]]
    for s in range(4): e(f'v_xor_b32 v{PX[0][s]}, 0x1000, v{vRAw[s]}'); e(f'v_xor_b32 v{PX[1][s]}, 0x1000, v{XA2[s]}')
    vGA=T+40
    e(f'v_xor_b32 v{T+20}, v{vL}, v{l4}'); e(f'v_and_b32 v{T+20}, 1, v{T+20}'); e(f'v_mul_u32_u24 v{T+20}, 1056, v{T+20}'); e(f'v_add_u32 v{vGA}, v{T+20}, v{vHH16}')
    def side_setup():
        L=[]; A=L.append
        def mk(b,p): A(f's_mov_b32 s{b}, s{p}'); A(f's_mov_b32 s{b+1}, s{p+1}')
        def sc(b,size): A(f's_mov_b32 s{b+2}, {size}'); A(f's_mov_b32 s{b+3}, 0x20000')
        for b,p,size in [(SW1,36,512*2752),(SW3,38,512*2752),(SCRE,26,512*1024),(SCIM,28,512*1024),(SW2,40,1376*1024),(SWS,48,WS_SIZE),(SOUT,44,2048*2048)]:
            mk(b,p); sc(b,size)
        sc(SHE,8192)
        A(f's_mul_i32 s{sM0F}, s{sW}, 3072'); A(f's_add_u32 s{sM0F}, s{sM0F}, {RING}')
        A(f's_mov_b32 s{sFST}, {64*2752}'); A(f's_mov_b32 s{sROTF}, s{sROT}')
        A(f'v_lshlrev_b32 v{vL16}, 4, v{vL}'); A(f'v_lshlrev_b32 v{vM8}, 3, v{vM}')
        A(f's_mul_i32 s15, s{sW}, {16*2752}'); A(f's_mul_i32 s12, s{sCG}, 192'); A('s_add_u32 s15, s15, s12')
        A(f's_mul_i32 s12, s{sCG}, 12'); A('s_movk_i32 s13, 2752'); A(f'v_mov_b32 v{T+23}, {OOB:#x}')
        for a in range(3):
            A(f'v_add_u32 v{T+20}, {64*a}, v{vL}')
            A(f'v_mul_u32_u24 v{T+21}, 43691, v{T+20}'); A(f'v_lshrrev_b32 v{T+21}, 19, v{T+21}')
            A(f'v_mul_u32_u24 v{T+22}, 12, v{T+21}'); A(f'v_sub_u32 v{T+22}, v{T+20}, v{T+22}')
            A(f'v_mul_u32_u24 v{T+21}, s13, v{T+21}')
            A(f'v_lshl_add_u32 v{T+21}, v{T+22}, 4, v{T+21}')
            A(f'v_add_u32 v{T+22}, s12, v{T+22}')
            A(f'v_cmp_gt_u32 vcc, 172, v{T+22}')
            A(f'v_add_u32 v{T+21}, s15, v{T+21}')
            if a: A(f'v_subrev_u32 v{T+21}, {1024*a}, v{T+21}')
            A(f'v_cndmask_b32 v{vWF[a]}, v{T+23}, v{T+21}, vcc')
        if O('pf15',1):
            A('\n'.join([f's_cmp_eq_u32 s{sCG}, 15','s_cbranch_scc0 L_no15',
              f's_lshl_b32 s12, s{sRT}, 15', f's_add_u32 s{SW1}, s26, s12', f's_addc_u32 s{SW1+1}, s27, 0',
              f's_add_u32 s{SW3}, s28, s12', f's_addc_u32 s{SW3+1}, s29, 0',
              f's_mov_b32 s{SW1+2}, 0x8000', f's_mov_b32 s{SW3+2}, 0x8000', f's_mov_b32 s{sROTF}, 0',
              f's_movk_i32 s{sFST}, 12288', f's_mul_i32 s12, s{sW}, 3072',
              f'v_lshl_add_u32 v{vWF[0]}, v{vL}, 4, s12', f'v_mov_b32 v{vWF[1]}, v{vWF[0]}', f'v_mov_b32 v{vWF[2]}, v{vWF[0]}',
              'L_no15:']))
        r_,c_,g1=T+20,T+21,T+22
        A(f'v_bfe_u32 v{r_}, v{vL}, 2, 2'); A(f'v_and_b32 v{c_}, 3, v{vL}'); A(f'v_and_b32 v{g1}, 1, v{l4}')
        A(f'v_lshl_add_u32 v{T+19}, v{hh}, 3, v{r_}'); A(f'v_mul_u32_u24 v{T+19}, 192, v{T+19}')
        A(f'v_lshl_add_u32 v{T+19}, v{c_}, 3, v{T+19}')
        A(f's_and_b32 s12, s{sW}, 1'); A('s_mul_i32 s13, s12, 96'); A(f's_add_u32 s13, s13, {RING}'); A(f'v_add_u32 v{T+19}, s13, v{T+19}')
        A('s_lshl_b32 s12, s12, 6'); A(f's_sub_u32 s13, {12288+32}, s12'); A(f's_add_u32 s12, s12, {12288-32}')
        A(f'v_mad_u32_u24 v{vTR[0]}, v{g1}, s13, v{T+19}'); A(f'v_mad_u32_u24 v{vTR[1]}, v{g1}, s12, v{T+19}')
        A(f's_lshl_b32 s12, s{sCG}, 13'); A(f's_add_u32 s12, s12, {HE_OFF}')
        A(f's_add_u32 s{SHE}, s48, s12\ns_addc_u32 s{SHE+1}, s49, 0')
        A(f's_lshl_b32 s{sCB}, s{sCT}, 16'); A(f's_lshl_b32 s12, s{sW}, 8'); A(f's_add_u32 s{sCB}, s{sCB}, s12')
        A(f's_mul_i32 s{sW2B}, s{sW}, {352*1024}'); A(f's_lshl_b32 s12, s{sCT}, 7'); A(f's_add_u32 s{sW2B}, s{sW2B}, s12')
        A(f's_lshl_b32 s13, s{sRT}, 2'); A(f's_add_u32 s12, s13, s{sW}'); A(f's_mul_i32 s{sA2S}, s12, {160*1024}'); A(f's_add_u32 s{sA2S}, s{sA2S}, {A2_OFF}')
        A(f's_lshl_b32 s12, s{sRH}, 1'); A('s_add_u32 s12, s12, s13'); A(f's_mul_i32 s{sA2L0}, s12, {160*1024}'); A(f's_add_u32 s{sA2L0}, s{sA2L0}, {A2_OFF}')
        A(f's_add_u32 s{sA2L1}, s{sA2L0}, {160*1024}')
        A(f's_mov_b32 s{sNL2E}, {NLOG2E:#x}')
        A(f'v_add_u32 v{vNat[2]}, {2*7168}, v{vNat[0]}'); A(f'v_add_u32 v{vNat[3]}, {2*7168}, v{vNat[1]}')
        A(f'v_and_b32 v{g1}, 1, v{l4}')
        A(f'v_lshlrev_b32 v{T+19}, 2, v{g1}'); A(f'v_xor_b32 v{T+19}, v{T+19}, v{l7}'); A(f'v_lshlrev_b32 v{T+19}, 4, v{T+19}')
        A(f'v_lshl_add_u32 v{vW2o[0]}, v{l3}, 10, v{T+19}')
        for a in range(1,4): A(f'v_add_u32 v{vW2o[a]}, {7168*a}, v{vW2o[0]}')
        A(f's_sub_u32 s12, 15, s{sRT}'); A('s_lshl_b32 s12, s12, 9')
        A(f'v_lshl_add_u32 v{T+20}, v{vM}, 4, s12')
        A(f'v_cmp_eq_u32 vcc, s{sW}, v{l3}')
        A(f'v_lshl_add_u32 v{vHEo}, v{vHH16}, 6, v{T+20}'); A(f's_lshl_b32 s12, s{sW}, 11'); A('s_add_u32 s12, s12, 512'); A(f'v_add_u32 v{vHEo}, s12, v{vHEo}')
        A(f'v_cndmask_b32 v{T+10}, v{T+23}, v{T+20}, vcc')
        A(f's_lshl_b32 s15, s{sRT}, 1'); A(f's_lshr_b32 s12, s{sW}, 1'); A('s_add_u32 s12, s12, s15'); A(f's_lshl_b32 s12, s12, {FS+5 if FS>2 else 8}')
        A(f's_and_b32 s13, s{sW}, 1'); A(f's_lshl_b32 s14, s{sCG}, 1'); A('s_add_u32 s13, s13, s14'); A(f's_lshl_b32 s13, s13, {FS}')
        A('s_add_u32 s12, s12, s13'); A(f's_add_u32 s12, s12, {FL_OFF}'); A(f'v_lshl_add_u32 v{T+20}, v{vL}, 2, s12')
        A(f'v_cmp_gt_u32 vcc, {32 if FS>2 else 1}, v{vL}'); A(f's_add_u32 s15, s15, s{sRH}')
        A(f's_lshl_b32 s15, s15, {FS+5 if FS>2 else 8}'); A(f's_add_u32 s15, s15, {FL_OFF}'); A(f'v_cndmask_b32 v{vFS}, v{T+23}, v{T+20}, vcc')
        A(f'v_lshl_add_u32 v{vFLo}, v{vM}, {FS}, s15')
        A(f'v_lshlrev_b32 v{vTW}, 6, v{vM}'); A(f'v_lshl_add_u32 v{vTW}, v{vHH16}, 1, v{vTW}'); A(f'v_bfe_u32 v{T+20}, v{vM}, 1, 2'); A(f'v_lshlrev_b32 v{T+20}, 4, v{T+20}'); A(f'v_xor_b32 v{vTW}, v{T+20}, v{vTW}'); A(f'v_add_u32 v{vTW}, s{sM0R}, v{vTW}')
        A(f'v_bfe_u32 v{vTRd}, v{vL}, 2, 2'); A(f'v_lshlrev_b32 v{vTRd}, 6, v{vTRd}')
        A(f'v_lshl_add_u32 v{vTRd}, v{vHH16}, 5, v{vTRd}'); A(f'v_and_b32 v{T+20}, 1, v{vL}')
        A(f'v_lshl_add_u32 v{vTRd}, v{T+20}, 5, v{vTRd}'); A(f'v_and_b32 v{T+20}, 16, v{vL}'); A(f'v_add_u32 v{vTRd}, v{T+20}, v{vTRd}')
        A(f'v_and_b32 v{T+20}, 2, v{vL}'); A(f'v_lshl_add_u32 v{vTRd}, v{T+20}, 2, v{vTRd}'); A(f'v_and_b32 v{T+20}, 8, v{vL}'); A(f'v_lshlrev_b32 v{T+20}, 1, v{T+20}'); A(f'v_xor_b32 v{vTRd}, v{T+20}, v{vTRd}'); A(f'v_add_u32 v{vTRd}, s{sM0R}, v{vTRd}')
        A(f's_lshl_b32 s12, s{sW}, 2'); A(f's_sub_u32 s12, s{sRT}, s12'); A(f'v_lshrrev_b32 v{vEX}, 3, v{vHH16}'); A(f'v_sub_u32 v{vEX}, s12, v{vEX}')
        A(f'v_max_i32 v{vEX}, 0, v{vEX}'); A(f'v_min_i32 v{vEX}, 2, v{vEX}'); A(f'v_lshlrev_b32 v{vEX}, 1, v{vEX}')
        A(f's_lshl_b32 s{sT0}, s{sCG}, 12'); A(f's_add_u32 s{sT0}, s{sT0}, s{sA2S}')
        A(f's_mul_i32 s{sT1}, s{sCG}, {6*1024}'); A(f's_add_u32 s{sT1}, s{sT1}, s{sA2S}')
        A(f's_and_b32 s12, s{sW}, 1'); A('s_mul_i32 s13, s12, 3072'); A(f's_add_u32 s16, s{sT1}, s13'); A(f's_add_u32 s16, s16, {64*1024}'); A(f's_mul_i32 s12, s12, {2*160*1024}'); A(f's_add_u32 s17, s16, {160*1024}'); A('s_sub_u32 s17, s17, s12')
        A(f's_lshl_b32 s12, s{sW}, 14'); A(f's_add_u32 s26, s{sA2L0}, s12'); A(f's_add_u32 s27, s{sA2L1}, s12')
        A(f's_mul_i32 s12, s{sW}, {22*1024}'); A(f's_add_u32 s12, s12, {64*1024}'); A(f's_add_u32 s28, s{sA2L0}, s12'); A(f's_add_u32 s29, s{sA2L1}, s12')
        A(f's_lshl_b32 s12, s{sW}, 7'); A(f'v_lshl_add_u32 v{T+42}, v{vM}, 2, s12')
        A(f's_mul_i32 s{sNON}, s{sNON}, 1664525'); A(f's_add_u32 s{sNON}, s{sNON}, 1013904223')
        A(f's_cmp_eq_u32 s{sNON}, 0\ns_cselect_b32 s{sNON}, 1013904223, s{sNON}')
        return L
    Ls=side_setup()
    npre=O('setup_pre',95)
    Ls.append(f'v_mov_b32 v{vNON}, s{sNON}')
    print('setup list',len(Ls))
    for i,t in enumerate(Ls[:npre]):
        e(t)
        if i==29 and O('touch',0):
            e(f'v_mov_b32 v{T+19}, 0')
            for S_ in (SW1,SW3,SCRE,SCIM,SW2,SWS): g.vm(f'buffer_load_dword v{T+43}, v{T+19}, {srd(S_)}, 0 offen')
            e(f's_mul_i32 s12, s{sRT}, {640*1024}'); e(f's_add_u32 s12, s12, {A2_OFF}'); e(f's_add_u32 s13, s12, {639*1024}'); e(f's_lshl_b32 s14, s{sRT}, 18')
            g.vm(f'buffer_load_dword v{T+43}, v{T+19}, {srd(SWS)}, s12 offen'); g.vm(f'buffer_load_dword v{T+43}, v{T+19}, {srd(SWS)}, s13 offen')
            g.vm(f'buffer_load_dword v{T+43}, v{T+19}, {srd(SOUT)}, s14 offen')
    g.wait_all_lg()
    stamp('setup')
    pump(6*O('pre',2)-O('a0pre',6))
    if PF0&8: pfF()
    stamp('p1')
    def side_params():
        for i,t in enumerate(Ls[npre:]):
            e(t)
            if i%4==3: yield
        pl=[g.lg(f'ds_read_u16 v{T+16+i}, v{T+15} offset:{ROW0+1024*(i+1)}') for i in range(3)]
        while g.lg_done<pl[2]: yield
        lre,lim,dt=T+16,T+17,T+18
        a_,b_,t0,t1=T,T+1,T+2,T+3
        L=[]; A=L.append
        for r in (lre,lim,dt): A(f'v_lshlrev_b32 v{r}, 16, v{r}')
        A(f'v_mul_f32 v{dt}, {LOG2E:#x}, v{dt}'); A(f'v_exp_f32 v{dt}, v{dt}')
        A(f'v_mul_f32 v{t0}, v{lre}, v{lre}')
        A(f'v_cvt_pk_bf16_f32 v{dt}, v{dt}, v{dt}'); A(f'v_lshlrev_b32 v{dt}, 16, v{dt}')
        A(f'v_mul_f32 v{a_}, v{dt}, v{lre}'); A(f'v_mul_f32 v{b_}, v{dt}, v{lim}')
        A(f'v_fma_f32 v{dt}, v{lim}, v{lim}, v{t0}'); A(f'v_rcp_f32 v{dt}, v{dt}')
        A(f'v_mul_f32 v{a_}, {LOG2E:#x}, v{a_}'); A(f'v_exp_f32 v{a_}, v{a_}')
        A(f'v_mul_f32 v{b_}, {INV2PI:#x}, v{b_}'); A(f'v_rndne_f32 v{t0}, v{b_}'); A(f'v_sub_f32 v{b_}, v{b_}, v{t0}')
        A(f'v_cos_f32 v{t0}, v{b_}'); A(f'v_sin_f32 v{t1}, v{b_}')
        A(f'v_add_f32 v{dt}, v{dt}, v{dt}')
        A(f'v_mul_f32 v{vLr}, v{a_}, v{t0}'); A(f'v_mul_f32 v{vLi}, v{a_}, v{t1}')
        A(f'v_add_f32 v{a_}, -1.0, v{vLr}')
        A(f'v_mul_f32 v{vNC2i}, v{vLi}, v{lre}'); A(f'v_mul_f32 v{vC2r}, v{a_}, v{lre}')
        A(f'v_fma_f32 v{vNC2i}, v{a_}, v{lim}, -v{vNC2i}'); A(f'v_fma_f32 v{vC2r}, v{vLi}, v{lim}, v{vC2r}')
        A(f'v_mul_f32 v{vNC2i}, v{vNC2i}, v{dt}'); A(f'v_mul_f32 v{vC2r}, v{vC2r}, v{dt}')
        def csq(dr,di,sr,si,n):
            for k in range(n):
                A(f'v_mul_f32 v{t0}, v{si}, v{si}'); A(f'v_mul_f32 v{t1}, v{sr}, v{si}')
                A(f'v_fma_f32 v{dr}, v{sr}, v{sr}, -v{t0}'); A(f'v_add_f32 v{di}, v{t1}, v{t1}')
                sr,si=dr,di
        csq(vL16r,vL16i,vLr,vLi,4); csq(vL128r,vL128i,vL16r,vL16i,3); csq(vL1kr,vL1ki,vL128r,vL128i,1)
        for i,t in enumerate(L):
            e(t)
            if i&1: yield
    NLi,NL16i,NL128i,NC2r=vXo
    def cfma_ip(ar_,ai_,lr,li,nli,sr,si):
        e(f'v_fmac_f32 v{ar_}, v{lr}, v{sr}'); e(f'v_fmac_f32 v{ai_}, v{lr}, v{si}')
        e(f'v_fmac_f32 v{ar_}, v{nli}, v{si}'); e(f'v_fmac_f32 v{ai_}, v{li}, v{sr}')
    def check(pid,reg,off,tag,lane,vP):
        e(f's_mov_b32 s{sCNT}, 0')
        g.wait(vm=pid)
        e(f'L_{tag}_chk:')
        e(f'v_cmp_ne_u32 vcc, s{sNON}, v{reg}')
        e('s_nop 1')
        e(f's_cbranch_vccz L_{tag}_ok')
        e(f's_add_u32 s{sCNT}, s{sCNT}, 1'); e(f's_cmp_gt_u32 s{sCNT}, {SPIN}'); e(f's_cbranch_scc1 L_{tag}_ok')
        e('s_sleep 1')
        e(f'buffer_load_dword v{reg}, v{vP}, {srd(SWS)}, 0 offen offset:{off} sc1')
        e('s_waitcnt vmcnt(0)'); e(f's_branch L_{tag}_chk')
        e(f'L_{tag}_ok:'); stamp(tag+'_ok')
        if O('stamps'): e(f'v_writelane_b32 v39, s{sCNT}, {lane}')
    vq=[]
    def cf(ar_,ai_,lr,li,nli,sr,si):
        e(f'v_fmac_f32 v{ar_}, v{lr}, v{sr}'); yield
        e(f'v_fmac_f32 v{ai_}, v{lr}, v{si}'); yield
        e(f'v_fmac_f32 v{ar_}, v{nli}, v{si}'); yield
        e(f'v_fmac_f32 v{ai_}, v{li}, v{sr}'); yield
    def seq(L):
        for t in L:
            e(t); yield
    def burst():
        for t in [f'v_xor_b32 v{NLi}, 0x80000000, v{vLi}',f'v_xor_b32 v{NL16i}, 0x80000000, v{vL16i}',f'v_mov_b32 v{T+13}, s{sNON}',f'v_mov_b32 v{T+15}, s{sNON}']: e(t)
        z=T+6; x0,x1=T+4,T+5
        fill=[f'v_and_b32 v{z+1}, 16, v{vL}',f'v_cmp_eq_u32 vcc, 0, v{z+1}',f'v_xor_b32 v{NL128i}, 0x80000000, v{vL1ki}',f'v_bfe_u32 v{x0}, v{vL}, 2, 2',
            f'v_cndmask_b32 v{z}, v{ZA+1}, v{ZA}, vcc',f'v_cvt_pk_bf16_f32 v{z}, v{z}, v{z}',f'v_lshlrev_b32 v{z}, 16, v{z}',
            f'v_mul_f32 v{z}, s{sNL2E}, v{z}',f'v_exp_f32 v{z}, v{z}',f'v_add_f32 v{z}, 1.0, v{z}',f'v_rcp_f32 v{z}, v{z}',
            f'v_cvt_pk_bf16_f32 v{z}, v{z}, v{z}',f'v_lshlrev_b32 v{z}, 16, v{z}',
            f'v_sub_f32 v{z+1}, 1.0, v{z}',f'v_cvt_pk_bf16_f32 v{z+1}, v{z+1}, v{z+1}',f'v_lshlrev_b32 v{z+1}, 16, v{z+1}',
            f'v_rcp_f32 v{vCinv}, v{z+1}',f'v_lshlrev_b32 v{x0}, 7, v{x0}',f'v_min_f32 v{vCinv}, 0x7e967699, v{vCinv}',f'v_xor_b32 v{T+8}, 128, v{T+42}',
            f'v_lshl_add_u32 v{x0}, v{vHH16}, 5, v{x0}',
            f'v_and_b32 v{x1}, 8, v{vL}',f'v_lshl_add_u32 v{x0}, v{x1}, 3, v{x0}',f'v_and_b32 v{x1}, 16, v{vL}',f'v_lshl_add_u32 v{x0}, v{x1}, 1, v{x0}',
            f'v_and_b32 v{x1}, 3, v{vL}',f'v_lshl_add_u32 v{x0}, v{x1}, 3, v{x0}',f'v_add_u32 v{vTa[0]}, s{sM0R}, v{x0}',f'v_xor_b32 v{vTa[1]}, 64, v{vTa[0]}',
            f'v_mov_b32 v{T}, v{vC2r}',f'v_mov_b32 v{T+1}, v{vNC2i}']
        for t in range(1,16):
            e(f'v_fmac_f32 v{URE+t}, v{vLr}, v{URE+t-1}'); e(f'v_fmac_f32 v{UIM+t}, v{vLr}, v{UIM+t-1}'); e(fill.pop(0))
            e(f'v_fmac_f32 v{URE+t}, v{NLi}, v{UIM+t-1}'); e(f'v_fmac_f32 v{UIM+t}, v{vLi}, v{URE+t-1}'); e(fill.pop(0))
        e(f'v_mov_b32 v{T+2}, v{URE+15}'); e(f'v_mov_b32 v{T+3}, v{UIM+15}')
        for t in fill: e(t)
        g.lg(f'ds_write_b64 v{vT8}, {vr(T+2,2)} offset:{E_L}'); lw=g.lg(f'ds_write_b32 v{T+42}, v{z} offset:{G_L}')
        st['tra']=True
        def coef(u):
            o=T+32+2*((u>>1)&1)
            return [f'v_pk_mul_f32 {vr(o,2)}, {vr(UIM+u,2)}, {vr(T,2)} op_sel:[0,1] op_sel_hi:[1,1]',
                    f'v_pk_mul_f32 {vr(UIM+u,2)}, {vr(UIM+u,2)}, {vr(T,2)} op_sel_hi:[1,0] neg_lo:[0,1] neg_hi:[0,1]',
                    f'v_pk_fma_f32 {vr(UIM+u,2)}, {vr(URE+u,2)}, {vr(T,2)}, {vr(UIM+u,2)} op_sel:[0,1,0] op_sel_hi:[1,1,1]',
                    f'v_pk_fma_f32 {vr(URE+u,2)}, {vr(URE+u,2)}, {vr(T,2)}, {vr(o,2)} op_sel_hi:[1,0,1]']
        def coef2(u):
            a,b=coef(u),coef(u+2)
            for i in range(4): e(a[i]); e(b[i])
        coef2(0)
        g.wait(lg=lw); e('s_barrier')
        ids=[g.lg(f'ds_read_b64 {vr(T+16+2*s,2)}, v{vM8} offset:{E_L+256*s}') for s in range(8)]
        e(f's_lshl_b32 s12, s{sW}, 7'); e(f'v_add_u32 v{x0}, s12, v{vHH16}')
        for j in range(4): gi_=g.lg(f'ds_read_b128 {vr(WR+4*j,4)}, v{x0} offset:{G_L+32*j}')
        gi_=g.lg(f'ds_read_b32 v{vCinv+1}, v{T+8} offset:{G_L}')
        coef2(4); coef2(8); coef2(12)
        g.wait(lg=gi_)
        c1=vCinv+1
        for t in [f'v_sub_f32 v{c1}, 1.0, v{c1}',f'v_cvt_pk_bf16_f32 v{c1}, v{c1}, v{c1}',f'v_lshlrev_b32 v{c1}, 16, v{c1}',f'v_rcp_f32 v{c1}, v{c1}',f'v_min_f32 v{c1}, 0x7e967699, v{c1}']: e(t)
        for u in range(0,16,2):
            e(f'v_pk_mul_f32 {vr(URE+u,2)}, {vr(URE+u,2)}, {vr(WR+u,2)}'); e(f'v_pk_mul_f32 {vr(UIM+u,2)}, {vr(UIM+u,2)}, {vr(WR+u,2)}')
        for s in range(1,8): cfma_ip(T+16+2*s,T+17+2*s,vL16r,vL16i,NL16i,T+14+2*s,T+15+2*s)
        e(f'v_mov_b32 v{T+12}, v{T+30}'); e(f'v_mov_b32 v{T+14}, v{T+31}')
        st['burst']=True
        pump(O('bpump',6))
        g.vm(f'buffer_store_dwordx4 {vr(T+12,4)}, v{T+10}, {srd(SHE)}, 0 offen sc1'); stamp('he_pub')
    def slot():
        if st.get('wantrow') and st.get('trow') is None:
            service()
            if st['free']: st['trow']=st['free'].pop(0)
        if vq:
            f=vq.pop(0)
            if f: f(); return None
        return pump(1)
    hel=lambda jj:f'buffer_load_dwordx4 {vr(T+16+4*jj,4)}, v{vHEo}, {srd(SHE)}, 0 offen offset:{512*jj} sc1'
    he={}
    def hecheck():
        cnt=T+8
        e(f's_mov_b32 s{sCNT}, 0')
        g.wait(vm=he[1])
        e('L_he_chk:')
        e(f'v_mov_b32 v{cnt}, 0')
        for jj in range(2):
            e(f'v_cmp_eq_u32 vcc, s{sNON}, v{T+16+4*jj+1}'); e(f'v_cmp_eq_u32 s[12:13], s{sNON}, v{T+16+4*jj+3}')
            e(f'v_addc_co_u32 v{cnt}, vcc, 0, v{cnt}, vcc'); e(f'v_addc_co_u32 v{cnt}, s[12:13], 0, v{cnt}, s[12:13]')
        e(f'v_cmp_ne_u32 vcc, v{cnt}, v{vEX}')
        e('s_nop 1')
        e('s_cbranch_vccz L_he_ok')
        e(f's_add_u32 s{sCNT}, s{sCNT}, 1'); e(f's_cmp_gt_u32 s{sCNT}, {SPIN}'); e('s_cbranch_scc1 L_he_ok')
        e('s_sleep 1')
        for jj in range(2): e(hel(jj))
        e('s_waitcnt vmcnt(0)'); e('s_branch L_he_chk')
        e('L_he_ok:'); stamp('he_ok')
        if O('stamps'): e(f'v_writelane_b32 v39, s{sCNT}, 60')
        for t in [f'v_fma_f32 v{T+8}, v{vL128r}, v{T+20}, v{T+16}',f'v_fma_f32 v{T+9}, v{vL128r}, v{T+22}, v{T+18}',
                  f'v_fma_f32 v{T+8}, -v{vL128i}, v{T+22}, v{T+8}',f'v_fmac_f32 v{T+9}, v{vL128i}, v{T+20}']: e(t)
        return g.lg(f'ds_write_b64 v{vT8}, {vr(T+8,2)} offset:{PQ_L}')
    GG=T+16; WRe,WIm,L2=T,T+4,T+8; vPF,vPS=vXo[3],vEX
    def side2():
        st['rate']=O('rate2',[5,5,2])
        while cur_n[0]<O('he_at',110): yield 'gap'
        for jj in range(2): vq.append(lambda jj=jj: he.__setitem__(jj,g.vm(hel(jj))))
        while cur_n[0]<O('he_chk',132): yield 'gap'
        st['elw']=hecheck(); b0=st['barr']; yield 'gap'
        y=T+32
        yield from seq([f's_mul_i32 s12, s{sW}, 11','s_mul_i32 s13, s12, 43691','s_lshr_b32 s13, s13, 17','s_lshl_b32 s13, s13, 1',
            's_add_u32 s12, s12, 10','s_mul_i32 s14, s12, 43691','s_lshr_b32 s14, s14, 17','s_lshl_b32 s14, s14, 1','s_add_u32 s14, s14, 1',
            f'v_max_u32 v{y}, s13, v{vM}',f'v_min_u32 v{y}, s14, v{y}',f'v_sub_u32 v{y}, v{y}, v{vM}',f'v_lshl_add_u32 v{vPF}, v{y}, {FS}, v{vFLo}',
            f's_lshl_b32 s13, s{sW}, 3',f'v_and_b32 v{y}, 7, v{vM}',f'v_add_u32 v{y}, s13, v{y}',f'v_sub_u32 v{y}, v{y}, v{vM}',f'v_lshl_add_u32 v{vPS}, v{y}, {FS}, v{vFLo}'])
        while st['barr']==b0: yield 'gap'
        ids=[]
        for s in range(8):
            ids.append(g.lg(f'ds_read_b64 {vr(T+16+2*s,2)}, v{vM8} offset:{PQ_L+256*(7-s)}')); yield
        while g.lg_done<ids[7]: yield 'gap'
        for s in range(1,8): yield from cf(T+16+2*s,T+17+2*s,vL1kr,vL1ki,NL128i,T+14+2*s,T+15+2*s)
        g.lg(f'ds_write_b64 v{vM8}, {vr(T+30,2)} offset:{HIN_L}'); yield
        ids=[]
        for k in range(8):
            ids.append(g.lg(f'ds_read_b64 {vr(T+2*k,2)}, v{vT8} offset:{XCH_L+256*k}')); yield
        e(f's_lshl_b32 s12, s{sW}, 7'); e(f'v_add_u32 v{y}, s12, v{vHH16}'); yield
        for j in range(4):
            g.lg(f'ds_read_b128 {vr(GG+4*j,4)}, v{y} offset:{G_L+32*j}'); yield
        while g.lg_done<ids[7]: yield 'gap'
        for k in range(1,8): yield from cf(T+2*k,T+2*k+1,vL16r,vL16i,NL16i,T+2*k-2,T+2*k-1)
        P=[(T,T+1),(T+2,T+3)]
        st['rate']=O('rate3',[5,5,2])
        yield from seq([f'v_mul_f32 v{T+2}, v{vC2r}, v{T+14}',f'v_mul_f32 v{T+3}, v{vNC2i}, v{T+14}',
                        f'v_fmac_f32 v{T+2}, v{vNC2i}, v{T+15}',f'v_fma_f32 v{T+3}, -v{vC2r}, v{T+15}, v{T+3}'])
        for t in range(17):
            d,c=P[t&1],P[1-(t&1)]; L=[]
            if t<16: L+=[f'v_mul_f32 v{d[0]}, v{vLr}, v{c[0]}',f'v_mul_f32 v{d[1]}, v{vLr}, v{c[1]}']
            if t>0: L+=[f'v_fmac_f32 v{URE+t-1}, v{GG+t-1}, v{c[0]}',f'v_fmac_f32 v{UIM+t-1}, v{GG+t-1}, v{c[1]}']
            if t<16: L+=[f'v_fmac_f32 v{d[0]}, v{vLi}, v{c[1]}',f'v_fmac_f32 v{d[1]}, v{NLi}, v{c[0]}']
            if t>0 and t%2==0:
                u=t-2; L+=[f'v_cvt_pk_bf16_f32 v{URE+(u>>1)}, v{URE+u}, v{URE+u+1}',f'v_cvt_pk_bf16_f32 v{UIM+(u>>1)}, v{UIM+u}, v{UIM+u+1}']
            if t==11: st['wantrow']=True
            yield from seq(L)
        while st.get('trow') is None: yield 'gap'
        row=st['trow']
        if row>=4:
            e(f'v_add_u32 v{vTW}, {row*16384}, v{vTW}'); e(f'v_add_u32 v{vTRd}, {row*16384}, v{vTRd}'); ro=0
        else: ro=row*16384
        e(f'v_xor_b32 v{T+32}, 16, v{vTW}'); e(f'v_xor_b32 v{T+33}, 32, v{vTRd}')
        for mt,b in enumerate((URE,UIM)):
            g.lg(f'ds_write_b128 v{vTW}, {vr(b,4)} offset:{ro+2048*mt}'); yield 'gap'
            g.lg(f'ds_write_b128 v{T+32}, {vr(b+4,4)} offset:{ro+2048*mt}'); yield 'gap'
        for mt in range(2):
            for ks in range(2):
                for rho in range(2):
                    tl=g.lg(f'ds_read_b64_tr_b16 {vr(T+8*mt+4*ks+2*rho,2)}, v{T+33 if rho else vTRd} offset:{ro+2048*mt+ks*1024+rho*256}'); yield
        st['pendRel'].append((row,tl))
        if O('quiet',1): st['quiet']=True
        while g.lg_done<tl: yield 'gap'
        for i in range(4):
            sst=g.vm(f'buffer_store_dwordx4 {vr(T+4*i,4)}, v{vL16}, {srd(SWS)}, s{sT0} offen offset:{i*1024} sc1'); yield 'gap'
            for _ in range(O('sgap',1)): yield 'gap'
        stamp('sst'); n0=cur_n[0]; print('S stores gap',n0)
        while cur_n[0]<n0+O('slag',22) and cur_n[0]<286:
            if cur_n[0]>=n0+O('qlen',10): st['quiet']=False
            yield 'gap'
        g.wait(vm=sst); g.vm(f'buffer_store_dword v{vNON}, v{vFS}, {srd(SWS)}, 0 offen sc1'); stamp('sflag'); st['quiet']=False; print('S flag gap',cur_n[0])
        if O('poll_k',0)<0:
            while cur_n[0]<O('poll_gap',278): yield 'gap'
            st['pid']=g.vm(f'buffer_load_dword v{T+34}, v{vPS}, {srd(SWS)}, 0 offen sc1')
    assert SEQ=='AAAAAAAAFFFFFFFF'
    rdone={}
    def areads(n,part):
        if n>=32: return
        q,s=n>>2,n&3; sl=q%NS
        if s==0 and part==0:
            g.wait(vm=blk_last[q]); barrier(q); stamp(f'A{q}')
        b=ACC+12*(n%8)
        xa,xp,xo=(vRAw[s],PX[0][s],RING-ROW0+sl*SLOT) if sl<2 else (XA2[s],PX[1][s],(sl-2)*SLOT)
        wa=WA[sl>>1][s]; wo=(sl&1)*SLOT
        L=[f'ds_read_b128 {ar(32*q+16+4*s,4)}, v{xp} offset:{xo}',f'ds_read_b128 {ar(32*q+4*s,4)}, v{xa} offset:{xo}',f'ds_read_b128 {vr(b,4)}, v{wa} offset:{wo}',
           f'ds_read_b128 {vr(b+4,4)}, v{wa} offset:{wo+4096}',f'ds_read_b128 {vr(b+8,4)}, v{vGA} offset:{GW_L+q*128+s*32}']
        for t in (L[:2] if part==0 else L[2:]): rdone[n]=g.lg(t)
    LAA=O('laa',2)
    for n in range(LAA): areads(n,0); areads(n,1)
    side=side_params()
    for n in range(32):
        q,s=n>>2,n&3; b=ACC+12*(n%8); x=ar(32*q+4*s,4); z=(n==0)
        g.wait(lg=rdone[n])
        for j in range(3):
            cur_n[0]=3*n+j
            if j==0: e(f'v_mfma_f32_32x32x16_bf16 {vr(URE,16)}, {x}, {vr(b,4)}, {"0" if z else vr(URE,16)}')
            if j==1: e(f'v_mfma_f32_32x32x16_bf16 {vr(UIM,16)}, {x}, {vr(b+4,4)}, {"0" if z else vr(UIM,16)}')
            if j==2: e(f'v_mfma_f32_16x16x32_bf16 {vr(ZA,4)}, {vr(b+8,4)}, {x}, {"0" if z else vr(ZA,4)}')
            if j<2: areads(n+LAA,j)
            if j!=1: slot()
            next(side,None)
    for _ in side: pass
    stamp('A_end'); burst(); side=side2()
    trb=[RING]; rid={}
    def fread(n,h):
        if n>=96: return
        q,s,i=n//12,(n%12)//3,n%3; p=8+q
        if n%12==0 and h==0:
            g.wait(vm=blk_last[p],lg=st.get('elw')); barrier(p); stamp(f'F{q}')
            want=RING+slotof(p)*SLOT
            if not 0<=want-trb[0]<=49152:
                for k_ in range(2): e(f'v_add_u32 v{vTR[k_]}, {(want-trb[0])&0xffffffff:#x}, v{vTR[k_]}')
                trb[0]=want
        off=RING+slotof(p)*SLOT-trb[0]+s*3072+32*i+768*h
        rid[n]=g.lg(f'ds_read_b64_tr_b16 {vr(WR+4*(n%8)+2*h,2)}, v{vTR[i&1]} offset:{off}')
    LF=O('lf',4)
    for n in range(LF): fread(n,0); fread(n,1)
    for gp in range(192):
        cur_n[0]=96+gp
        n,rb=gp>>1,gp&1; q,s,i=n//12,(n%12)//3,n%3
        if rb==0: g.wait(lg=rid[n])
        acc=vr(ACC+16*(2*i+rb),16)
        e(f'v_mfma_f32_32x32x16_bf16 {acc}, {vr(WR+4*(n%8),4)}, {ar(32*q+16*rb+4*s,4)}, {"0" if n<3 else acc}')
        fread(n+LF,rb)
        if gp%24==23 and q<=O('qsp',5): st['space']+=[32*q,32*q+16]
        if gp==169 and O('b16',1): barrier(16)
        dma=(gp%O('dper',2)==O('dper',2)-1) if gp<O('dd',999) else (gp%3!=0)
        if dma: slot()
        elif st['w2on']: service()
        for _ in range(st.get('rate',[4,4,4])[2 if dma else 0]):
            if next(side,'gap')=='gap': break
    for _ in side: raise Exception('side left')
    g.wait_all_lg(); barrier(17); stamp('1b_end'); print('w2n at 1b_end',st['w2n'])
    x0,x1=URE+30,URE+31
    XS=URE+16; DS=URE+24; vXa=URE+26; vOa=URE+27; vGe=T+8; vZa=URE+28
    def addr2():
        e(f's_lshl_b32 s13, s{sRT}, 7'); e(f's_lshl_b32 s12, s{sRH}, 6'); e('s_add_u32 s13, s13, s12')
        e(f's_lshr_b32 s12, s{sW}, 1'); e('s_lshl_b32 s12, s12, 5'); e('s_add_u32 s13, s13, s12')
        e(f's_and_b32 s12, s{sW}, 1'); e('s_lshl_b32 s12, s12, 3'); e('s_add_u32 s13, s13, s12')
        e(f'v_lshrrev_b32 v{x0}, 4, v{vL}'); e(f'v_add_u32 v{x0}, s13, v{x0}')
        e(f'v_and_b32 v{x1}, 15, v{vL}'); e(f's_lshl_b32 s12, s{sCT}, 7'); e(f'v_lshl_add_u32 v{x1}, v{x1}, 3, s12')
        e(f'v_lshl_add_u32 v{vXa}, v{x0}, 10, v{x1}'); e(f'v_lshlrev_b32 v{vOa}, 1, v{vXa}')
        e(f's_lshl_b32 s13, s{sCG}, 2'); e(f's_add_u32 s13, s13, s{sW}'); e(f's_xor_b32 s12, s{sRT}, 15'); e('s_or_b32 s13, s13, s12')
        e(f'v_or_b32 v{vZa}, s13, v{vL}'); e(f'v_cmp_eq_u32 vcc, 0, v{vZa}'); e(f'v_mov_b32 v{vZa}, {OOB:#x}'); e(f'v_cndmask_b32 v{vZa}, v{vZa}, 0, vcc')
    def small_loads():
        g.vm(f'global_load_dwordx2 {vr(DS,2)}, v{x1}, s[32:33]')
        for it in range(4):
            e(f's_movk_i32 s14, {(16*(it&1)+4*(it>>1))*1024}')
            st['xl']=g.vm(f'buffer_load_dwordx2 {vr(XS+2*it,2)}, v{vXa}, {srd(SX)}, s14 offen')
    if O('small0',0): addr2(); small_loads()
    pump(O('t0pump',0))
    E0=WR
    vL16F=T+16
    pol=T+34
    aid={}
    def aload(k):
        base,kk=(26,k) if k<16 else (28,k-16)
        if kk%4==0: e(f's_add_u32 s20, s{base}, {kk*1024}'); e(f's_add_u32 s21, s{base+1}, {kk*1024}')
        for tb in range(2):
            aid[k]=g.vm(f'buffer_load_dwordx4 {ar(192+8*(k%8)+4*tb,4)}, v{vL16}, {srd(SWS)}, s{20+tb} offen offset:{(kk%4)*1024} sc1')
    ALA=O('ala',7); na=[0]
    fl={}
    e(f's_cmp_eq_u32 s{sCG}, 15'); e(f's_cselect_b32 s12, {OOB:#x}, 0'); e(f'v_or_b32 v{vL16F}, s12, v{vL16}')
    if O('poll_k',0)<0: pid=st['pid']
    if O('chk_k',3)<0:
        check(pid,pol,0,'fs',61,vPS)
        for _ in range(O('apre',4)): aload(na[0]); na[0]+=1
    for pr in range(3):
        for h in range(2):
            k=2*pr+h
            G=ACC+16*k; Uu=G+8
            R=range(0,8,2)
            for i in R: e(f'v_pk_mul_f32 {vr(E0+i%8,2)}, {vr(G+i,2)}, s[{sNL2E}:{sNL2E+1}] op_sel_hi:[1,0]')
            for i in range(8): e(f'v_exp_f32 v{E0+i}, v{E0+i}')
            for i in R: e(f'v_pk_mul_f32 {vr(G+i,2)}, {vr(G+i,2)}, {vr(Uu+i,2)}')
            for i in R: e(f'v_pk_fma_f32 {vr(E0+i%8,2)}, {vr(E0+i%8,2)}, {vr(vCinv,2)}, {vr(vCinv,2)} '+('op_sel:[0,1,1] op_sel_hi:[1,1,1]' if h else 'op_sel_hi:[1,0,0]'))
            for i in range(8): e(f'v_rcp_f32 v{E0+i}, v{E0+i}')
            for i in R: e(f'v_pk_mul_f32 {vr(G+i,2)}, {vr(G+i,2)}, {vr(E0+i%8,2)}')
            pk=E0+8+4*k
            for i in range(4): e(f'v_cvt_pk_bf16_f32 v{pk+i}, v{G+2*i}, v{G+2*i+1}')
            if k==O('poll_k',0): pid=g.vm(f'buffer_load_dword v{pol}, v{vPS}, {srd(SWS)}, 0 offen sc1')
            if k==O('chk_k',3):
                check(pid,pol,0,'fs',61,vPS)
                for _ in range(O('apre',4)): aload(na[0]); na[0]+=1
            if k>O('chk_k',3) and k<O('amid_stop',5):
                for _ in range(O('amid',0)): aload(na[0]); na[0]+=1
            fst=g.vm(f'buffer_store_dwordx4 {vr(pk,4)}, v{vL16F}, {srd(SWS)}, s{16+h} offen offset:{pr*1024} sc1')
    stamp('ffn_epi'); print('w2n at ffn_epi',st['w2n'])
    assert st['w2n']>=4*NMV
    while st['pendC']: service(force=True)
    if O('chk_k',3)>5: check(pid,pol,0,'fs',61,vPS)
    while na[0]<O('apre2',4): aload(na[0]); na[0]+=1
    def drain(n):
        for _ in range(n):
            r=pump(1)
            if r=='blocked' and (st['pendC'] or st['pendRel']):
                service(force=True); service(force=True); r=pump(1)
    vT0=[vTa[0],T+20,T+21]; vT1=[vTa[1],T+22,T+23]
    for k in (1,2):
        e(f'v_add_u32 v{vT0[k]}, {65536*k}, v{vT0[0]}'); e(f'v_add_u32 v{vT1[k]}, {65536*k}, v{vT1[0]}')
    if not O('small0',0): addr2()
    stamp('p2s')
    def fflag():
        g.wait(vm=fst); g.vm(f'buffer_store_dword v{vNON}, v{vFS}, {srd(SWS)}, 0 offen offset:128 sc1'); stamp('fflag')
    if O('fflag_k',2)<0: fflag()
    g.wait_all_lg()
    wid={}
    def wread(k):
        u,ks=(k-16)>>1,k&1; gi=8+u
        assert st['w2n']>=4*gi+4,(k,st['w2n'])
        g.wait(vm=st['Flast'][gi]); row=st['Frow'][gi]
        for db in range(2):
            b=WR+8*(k%4)+4*db
            ad=(vT0,vT1)[db][row>>2]
            for rho in range(2):
                wid[k]=g.lg(f'ds_read_b64_tr_b16 {vr(b+2*rho,2)}, v{ad} offset:{(row&3)*16384+ks*2048+rho*1024}')
    wj=[T+4,T+5,T+6,T+7]; rd=[T+40,T+41]; SK=URE; dsk=[T+42+i for i in range(4)]
    def side_fin():
        y0,y1=T+16,T+17
        e(f'v_lshrrev_b32 v{y0}, 4, v{vM}'); e(f'v_lshlrev_b32 v{y0}, 14, v{y0}'); e(f'v_and_b32 v{y1}, 15, v{vM}'); yield
        e(f'v_lshl_add_u32 v{y0}, v{y1}, 8, v{y0}'); e(f'v_and_b32 v{y1}, 7, v{vM}'); e(f'v_lshlrev_b32 v{y1}, 4, v{y1}'); yield
        e(f'v_xor_b32 v{y1}, v{y1}, v{vHH16}'); e(f'v_add3_u32 v{wj[0]}, v{y0}, v{y1}, s{sM0R}'); yield
        for j in range(1,4): e(f'v_xor_b32 v{wj[j]}, {32*j}, v{wj[0]}')
        yield
        e(f'v_lshrrev_b32 v{y0}, 4, v{vL}'); e(f'v_and_b32 v{y1}, 15, v{vL}'); e(f'v_xor_b32 v{y1}, v{y1}, v{y0}'); yield
        e(f'v_lshlrev_b32 v{y1}, 4, v{y1}'); e(f'v_lshl_add_u32 v{y1}, v{y0}, 8, v{y1}'); yield
        e(f's_lshl_b32 s12, s{sW}, 14'); e(f's_add_u32 s12, s12, {ROW0}'); e(f'v_add_u32 v{rd[0]}, s12, v{y1}'); e(f'v_xor_b32 v{rd[1]}, 64, v{rd[0]}'); yield
        e(f's_lshl_b32 s13, s{sRH}, 8'); e(f's_lshl_b32 s12, s{sW}, 6'); e('s_add_u32 s12, s12, s13'); e(f'v_lshl_add_u32 v{y0}, v{y0}, 2, s12'); yield
        for it in range(4): gl=g.lg(f'ds_read_b32 v{vGe+it}, v{y0} offset:{G_L+16*it}')
        yield
        while 'xl' not in st or g.nvm-st['xl']<12: yield
        g.wait(vm=st['xl'])
        e(f'v_lshlrev_b32 v{dsk[0]}, 16, v{DS}'); e(f'v_and_b32 v{dsk[1]}, 0xffff0000, v{DS}'); yield
        e(f'v_lshlrev_b32 v{dsk[2]}, 16, v{DS+1}'); e(f'v_and_b32 v{dsk[3]}, 0xffff0000, v{DS+1}'); yield
        g.wait(lg=gl)
        for it in range(4):
            for h in range(2):
                a,b=SK+4*it+2*h,SK+4*it+2*h+1
                e(f'v_lshlrev_b32 v{a}, 16, v{XS+2*it+h}'); e(f'v_and_b32 v{b}, 0xffff0000, v{XS+2*it+h}')
                e(f'v_mul_f32 v{a}, v{a}, v{dsk[2*h]}'); yield
                e(f'v_mul_f32 v{b}, v{b}, v{dsk[2*h+1]}')
                e(f'v_cvt_pk_bf16_f32 v{b}, v{a}, v{b}')
                e(f'v_lshlrev_b32 v{a}, 16, v{b}'); yield
                e(f'v_and_b32 v{b}, 0xffff0000, v{b}')
                e(f'v_mul_f32 v{a}, v{a}, v{vGe+it}'); e(f'v_mul_f32 v{b}, v{b}, v{vGe+it}'); yield
    side=side_fin()
    pid2=None
    FK=O('fchk_k',12)
    KT=34 if O('amaj',1) else 38
    for k in range(KT):
        if (16+2*(NMV-8))<=k+2<38: wread(k+2)
        g.wait(vm=aid[k])
        if k>=(16+2*(NMV-8)): g.wait(lg=wid[k])
        if k in (0,8,16,24,32): stamp(f'k{k}')
        for db in range(2):
            for tb in range(2):
                acc=vr(ACC+16*(2*db+tb),16)
                Wf=ar(loc[k,db],4) if k<(16+2*(NMV-8)) else vr(WR+8*(k%4)+4*db,4)
                e(f'v_mfma_f32_32x32x16_bf16 {acc}, {Wf}, {ar(192+8*(k%8)+4*tb,4)}, {"0" if k==0 else acc}')
                next(side,None)
            if db==0:
                if k==FK: check(pid2,pol+1,128,'ff',59,vPF)
                lim=min(38,k+ALA+1) if k>=FK else min(16,k+ALA+1)
                cnt_=0
                while na[0]<lim and cnt_<O('acatch',2): aload(na[0]); na[0]+=1; cnt_+=1
                if k==FK-O('poll2_lead',4): pid2=g.vm(f'buffer_load_dword v{pol+1}, v{vPF}, {srd(SWS)}, 0 offen offset:128 sc1')
        if k==O('fflag_k',2): fflag()
        cur_n[0]+=6
        if st['w2n']<76 and k>=O('mix0',4): drain(O('mix',3))
        if k==O('small_at',9) and not O('small0',0): small_loads()
        if KT==34 and k in (32,33): wread(k+4)
    for _ in side: raise Exception('side_fin left')
    wq=[]
    if KT==34:
        for db in range(2):
            for tb in range(2):
                acc=vr(ACC+16*(2*db+tb),16)
                for k in range(34,38):
                    g.wait(vm=aid[k],lg=wid[k])
                    e(f'v_mfma_f32_32x32x16_bf16 {acc}, {vr(WR+8*(k%4)+4*db,4)}, {ar(192+8*(k%8)+4*tb,4)}, {acc}')
                    if k>=36:
                        for _ in range(2):
                            if wq: g.lg(wq.pop(0))
                wq+=[f'ds_write_b128 v{wj[j]}, {vr(ACC+16*(2*db+tb)+4*j,4)} offset:{db*128+tb*32768}' for j in range(4)]
    else:
        wq=[f'ds_write_b128 v{wj[j]}, {vr(ACC+16*(2*db+tb)+4*j,4)} offset:{db*128+tb*32768}' for db in range(2) for tb in range(2) for j in range(4)]
    stamp('p2_end')
    for t in wq: g.lg(t)
    g.wait_all_lg(); e('s_barrier'); stamp('red')
    g.vm(f'buffer_store_dword v{vNON}, v{vZa}, {srd(SWS)}, 0 offen offset:{Z_OFF} sc1')
    RB=ACC
    ids={}
    for it in range(4):
        for w2 in range(4):
            ids[it,w2]=g.lg(f'ds_read_b128 {vr(RB+16*it+4*w2,4)}, v{rd[it&1]} offset:{w2*4096+it*1024}')
    for it in range(4):
        g.wait(lg=ids[it,3])
        b=RB+16*it
        for i in (0,2): e(f'v_pk_add_f32 {vr(b+i,2)}, {vr(b+i,2)}, {vr(SK+4*it+i,2)}')
        for i in (0,2): e(f'v_pk_add_f32 {vr(b+4+i,2)}, {vr(b+4+i,2)}, {vr(b+8+i,2)}')
        for i in (0,2): e(f'v_pk_add_f32 {vr(b+i,2)}, {vr(b+i,2)}, {vr(b+12+i,2)}')
        for i in (0,2): e(f'v_pk_add_f32 {vr(b+i,2)}, {vr(b+i,2)}, {vr(b+4+i,2)}')
        e(f's_mov_b32 s12, {(16*(it&1)+4*(it>>1))*2048}')
        g.vm(f'buffer_store_dwordx4 {vr(b,4)}, v{vOa}, {srd(SOUT)}, s12 offen {O("outfl","sc1")}')
    if O('stamps'):
        stamp('st_iss')
        e('s_waitcnt vmcnt(0)'); stamp('end',True)
        e('s_memrealtime s[94:95]'); e('s_waitcnt lgkmcnt(0)'); e('v_writelane_b32 v39, s94, 63')
        e(f's_lshl_b32 s11, s2, 10'); e(f's_add_u32 s11, s11, {WS_SIZE}'); e(f's_add_u32 s{SWS+2}, s{SWS+2}, 0x40000')
        e(f'v_lshlrev_b32 v{T}, 2, v0')
        e(f'buffer_store_dword v39, v{T}, {srd(SWS)}, s11 offen')
        if O('dbg'):
            sel=['start','setup','B0','B4','B8','B12','1b_end','ssm_fin','ffn_epi','w2_issued','fs_ok','k16','p2_end','end']
            e('s_mov_b32 s60, s46'); e('s_mov_b32 s61, s47'); e('s_mov_b32 s62, 256'); e('s_mov_b32 s63, 0x20000')
            e('v_readlane_b32 s12, v39, 62'); e('v_readlane_b32 s13, v39, 0'); e('s_not_b32 s12, s12')
            e(f'v_mov_b32 v{T+1}, s94'); e(f'v_mov_b32 v{T+2}, s12'); e(f'v_mov_b32 v{T+3}, 0'); e(f'v_mov_b32 v{T+4}, {OOB:#x}')
            e(f'v_cmp_eq_u32 vcc, 0, v0'); e(f'v_cndmask_b32 v{T+3}, v{T+4}, v{T+3}, vcc')
            e(f'buffer_atomic_umax v{T+1}, v{T+3}, s[60:63], 0 offen'); e(f'buffer_atomic_umax v{T+2}, v{T+3}, s[60:63], 0 offen offset:4')
            e('s_cmp_eq_u32 s2, 100'); e('s_cbranch_scc0 L_end')
            for i,nm in enumerate(sel):
                e(f'v_readlane_b32 s12, v39, {stamps.index(nm)}'); e('s_sub_u32 s12, s12, s13'); e(f'v_mov_b32 v{T+1}, s12')
                e(f'buffer_store_dword v{T+1}, v{T+3}, s[60:63], 0 offen offset:{8+4*i}')
    if O('diag'):
        e('s_waitcnt vmcnt(0)')
        if O('diag')==2:
            e(f'v_mov_b32 v{T+31}, 0'); e(f'global_load_dword v{T+30}, v{T+31}, s[46:47] sc1'); e('s_waitcnt vmcnt(0)')
            e(f'v_readfirstlane_b32 s94, v{T+30}'); e('s_nop 3'); e('s_not_b32 s94, s94')
        if O('dpt'):
            e('s_waitcnt lgkmcnt(0)'); e('s_sub_u32 s12, s92, s94'); e('s_lshl_b32 s12, s12, 1')
            e('s_memrealtime s[92:93]'); e('s_waitcnt lgkmcnt(0)')
        else:
            e('s_memrealtime s[92:93]'); e('s_waitcnt lgkmcnt(0)'); e('s_sub_u32 s12, s92, s94')
        e('s_min_u32 s12, s12, 20000'); e('s_add_u32 s12, s12, s92')
        e('L_dg:'); e('s_memrealtime s[92:93]'); e('s_waitcnt lgkmcnt(0)'); e('s_sub_u32 s13, s92, s12'); e('s_cmp_lt_i32 s13, 0'); e('s_cbranch_scc1 L_dg')
    e('L_end:')
    e('s_endpgm')
    hdr=open('gated_mix__ssm_conv_s5__glu_gated_swiglu__prompt.s.ref').read().split('; Override')[0]
    out=hdr+'; @launch grid=(256,1,1) block=(256,1,1) lds=163840\n'
    out+="""; One fused launch, 256 workgroups (one per CU) x 4 waves, written by a generator script (own code):
"""
    out+=f'.amdgcn_target "amdgcn-amd-amdhsa--gfx950"\n.text\n.globl {NAME}\n.p2align 8\n.type {NAME},@function\n{NAME}:\n'
    out+=g.text()
    out+=f'.fill (32768+256-(.-{NAME}))/4, 4, 0xbf810000\n'
    out+=f'''.section .rodata,"a"
.p2align 6
.amdhsa_kernel {NAME}
  .amdhsa_next_free_vgpr 512
  .amdhsa_next_free_sgpr 102
  .amdhsa_accum_offset 256
  .amdhsa_group_segment_fixed_size 0
  .amdhsa_kernarg_size 136
  .amdhsa_user_sgpr_count 2
  .amdhsa_user_sgpr_kernarg_segment_ptr 1
  .amdhsa_system_sgpr_workgroup_id_x 1
.end_amdhsa_kernel
'''
    return out,g
if __name__=='__main__':
    import json
    opt=json.loads(sys.argv[2]) if len(sys.argv)>2 else {}
    out,g=gen(opt)
    open(sys.argv[1],'w').write(out)
    if g.stamps: json.dump(g.stamps,open(sys.argv[1]+'.names','w'))
    from collections import Counter
    print(len(g.ins),Counter(i.cls for i in g.ins), 'nops',sum(1 for i in g.ins if i.mn=='s_nop'))
```

```python
import sys
from asmlib import *
NAME='gated_mix__ssm_conv_s5__glu_gated_swiglu__prompt_kernel'
ROW0=8192; RING=40960; SLOT=24576; NS=5
Z_OFF=0; FL_OFF=0x40000; HE_OFF=0x10000; A2_OFF=0x80000; WS_SIZE=A2_OFF+16*4*160*1024
OOB=0x80000000
GW_L=0; XCH_L=1024; HIN_L=2816; E_L=3072; G_L=5120; PQ_L=5632; TRB_L=155648
LOG2E=0x3fb8aa3b; NLOG2E=0xbfb8aa3b; INV2PI=0x3e22f983
SPIN=200000
sW,sRT,sCG,sCT,sRH,sROT,sNON=4,5,6,7,8,9,10
SX,SW0,SW1,SW3,SCRE,SCIM,SW2,SWS,SHE,SOUT=52,56,60,64,68,72,76,80,84,88
sXB,sW0B,sM0X,sM0W,sM0F,sSO,sSO2=96,97,98,99,100,101,3
sCB,sW2B,sA2S,sA2L0,sA2L1,sCNT,sT0,sT1=34,35,36,37,38,39,40,41
sM0R,sSO3,sFST,sNL2E,sROTF=50,51,22,24,23
srd=lambda b:f's[{b}:{b+3}]'
vr=lambda b,n:f'v[{b}:{b+n-1}]'
ar=lambda b,n:f'a[{b}:{b+n-1}]'
vL,vM,vHH16,vL16=1,2,3,4
vNat=[5,6,7,8]; vXo=[9,10,11,12]; vWF=[13,14,15]
vRA=[16,17,18,19]; vRAw=[20,21,22,23]; vTR=[24,25,26]
vLr,vLi,vL16r,vL16i,vL128r,vL128i,vL1kr,vL1ki,vC2r,vNC2i,vM8=27,28,29,30,31,32,33,34,35,36,37
vCinv=40
vW2o=[42,43,44,45]; vHEo=46; vFLo=47
URE=48; UIM=64; ACC=80; WR=176; T=208
ZA=T+44
vFS,vNON,vTW,vTRd=T+36,T+37,T+38,T+39; vEX=38; vT8=T+41
def gen(opt=None):
    opt=opt or {}
    O=opt.get
    g=Gen(); e=g.e
    FS=O('fs',8)
    SEQ=O('seq','AAAAAAAAFFFFFFFF'); assert SEQ.count('A')==8 and SEQ.count('F')==8 and SEQ[0]=='A'
    POS=[(c,SEQ[:i].count(c)) for i,c in enumerate(SEQ)]
    for i,(c,q) in enumerate(POS): assert c=='A' or SEQ[:i].count('A')>q
    stamps=[]
    def stamp(name,flush=False):
        if O('dpt')==name: e('s_memrealtime s[92:93]')
        if not O('stamps'): return
        k=len(stamps); stamps.append(name)
        if k>=2: e(f'v_writelane_b32 v39, s{92+2*(k%2)}, {k-2}')
        e(f's_memtime s[{92+2*(k%2)}:{93+2*(k%2)}]')
        if flush:
            e('s_waitcnt lgkmcnt(0)')
            e(f'v_writelane_b32 v39, s{92+2*((k-1)%2)}, {k-1}'); e(f'v_writelane_b32 v39, s{92+2*(k%2)}, {k}')
    g.stamps=stamps
    e('s_cmp_ge_u32 s2, 256'); e('s_cbranch_scc1 L_end')
    if O('stamps'):
        e('s_memrealtime s[94:95]'); e('v_mov_b32 v39, 0'); e('s_waitcnt lgkmcnt(0)'); e('v_writelane_b32 v39, s94, 62')
        stamp('start')
    if O('diag'): e('s_memrealtime s[94:95]')
    e('s_load_dwordx16 s[16:31], s[0:1], 0')
    e('s_load_dwordx16 s[32:47], s[0:1], 64')
    e('s_load_dwordx2 s[48:49], s[0:1], 128')
    e('s_getpc_b64 s[50:51]')
    e('s_lshr_b32 s13, s2, 3')
    e('s_and_b32 s14, s13, 7'); e('s_lshl_b32 s14, s14, 12')
    e(f'v_lshl_add_u32 v{T}, v0, 4, s14')
    g.vm(f'global_load_dwordx4 {vr(T+4,4)}, v{T}, s[50:51]')
    PF0=O('pf0',0)
    pX,pB,pW=T+40,T+41,T+42
    def pfA():
        g.vm(f'global_load_dword v{T+43}, v{pX}, s[16:17]'); g.vm(f'global_load_dword v{T+43}, v{pB}, s[22:23]'); g.vm(f'global_load_dword v{T+43}, v{pB}, s[24:25]')
    def pfF():
        g.vm(f'global_load_dword v{T+43}, v{pW}, s[36:37]'); g.vm(f'global_load_dword v{T+43}, v{pW}, s[38:39]')
    if PF0:
        e('s_lshl_b32 s12, s2, 6'); e(f'v_lshrrev_b32 v{pX}, 2, v0'); e(f'v_add_lshl_u32 v{pX}, v{pX}, s12, 7')
        e('s_lshl_b32 s12, s2, 4'); e(f'v_lshrrev_b32 v{pB}, 4, v0'); e(f'v_add_lshl_u32 v{pB}, v{pB}, s12, 7')
        e('s_mul_i32 s12, s2, 43'); e(f'v_mul_u32_u24 v{pW}, 43, v0'); e(f'v_lshrrev_b32 v{pW}, 8, v{pW}'); e(f'v_add_lshl_u32 v{pW}, v{pW}, s12, 7')
        e('s_waitcnt lgkmcnt(0)')
        if PF0&1: pfA()
        if PF0&2: pfF()
        e(f's_load_dword s{sNON}, s[48:49], {Z_OFF}'); g.smem=True
        stamp('pf')
    e(f'v_lshrrev_b32 v{T+1}, 6, v0')
    e(f'v_and_b32 v{vL}, 63, v0')
    e(f'v_readfirstlane_b32 s{sW}, v{T+1}')
    if O('map','B')=='A':
        e('s_and_b32 s12, s2, 7')
        e(f's_and_b32 s{sRH}, s12, 1'); e('s_lshr_b32 s14, s12, 1')
        e(f's_lshl_b32 s{sRT}, s14, 2'); e('s_lshr_b32 s15, s13, 3'); e(f's_add_u32 s{sRT}, s{sRT}, s15')
        e(f's_and_b32 s{sCT}, s13, 7')
        e(f's_lshl_b32 s{sCG}, s{sRH}, 3'); e(f's_add_u32 s{sCG}, s{sCG}, s{sCT}')
        e(f's_lshl_b32 s{sROT}, s14, 1'); e(f's_and_b32 s11, s{sCT}, {O("rotmask",4)}'); e(f's_add_u32 s{sROT}, s{sROT}, s11')
    else:
        e(f's_and_b32 s12, s2, 4'); e(f's_lshl_b32 s{sRT}, s12, 1'); e('s_lshr_b32 s15, s2, 5'); e(f's_add_u32 s{sRT}, s{sRT}, s15')
        e('s_and_b32 s14, s13, 3')
        e(f's_and_b32 s11, s2, 3'); e(f's_lshl_b32 s{sCG}, s11, 2'); e(f's_add_u32 s{sCG}, s{sCG}, s14')
        e(f's_and_b32 s{sRH}, s2, 1'); e(f's_and_b32 s{sCT}, s2, 2'); e(f's_lshl_b32 s{sCT}, s{sCT}, 1'); e(f's_add_u32 s{sCT}, s{sCT}, s14')
        if O('ctx',5): e(f's_xor_b32 s{sCT}, s{sCT}, {O("ctx",5)}')
        ra,rb,rc,rd_=O('rot',[2,1,0,0])
        e(f's_mul_i32 s{sROT}, s14, {ra}')
        if O('rtmask',7)!=7: e(f's_and_b32 s15, s15, {O("rtmask",7)}')
        if rb: e(f's_mul_i32 s15, s15, {rb}'); e(f's_add_u32 s{sROT}, s{sROT}, s15')
        if rc: e(f's_lshr_b32 s12, s12, 2'); e(f's_mul_i32 s12, s12, {rc}'); e(f's_add_u32 s{sROT}, s{sROT}, s12')
        if rd_: e(f's_mul_i32 s11, s11, {rd_}'); e(f's_add_u32 s{sROT}, s{sROT}, s11')
    l3,l7,l4,hh,sw0=T+8,T+9,T+10,T+11,T+12
    e(f'v_lshrrev_b32 v{l3}, 3, v{vL}'); e(f'v_and_b32 v{l7}, 7, v{vL}'); e(f'v_lshrrev_b32 v{l4}, 4, v{vL}'); e(f'v_lshrrev_b32 v{hh}, 5, v{vL}')
    e(f'v_xor_b32 v{sw0}, v{l7}, v{l4}'); e(f'v_lshlrev_b32 v{sw0}, 4, v{sw0}')
    e(f'v_lshl_add_u32 v{vNat[0]}, v{l3}, 10, v{sw0}')
    e(f'v_xor_b32 v{vNat[1]}, 64, v{vNat[0]}'); e(f'v_add_u32 v{vNat[1]}, 7168, v{vNat[1]}')
    e(f'v_and_b32 v{T+13}, 3, v{l3}'); e(f'v_lshl_add_u32 v{T+13}, v{hh}, 4, v{T+13}')
    e(f'v_lshl_add_u32 v{vXo[0]}, v{T+13}, 10, v{sw0}')
    e(f'v_xor_b32 v{vXo[1]}, 64, v{vXo[0]}'); e(f'v_add_u32 v{vXo[1]}, 3072, v{vXo[1]}')
    e(f'v_add_u32 v{vXo[2]}, 6144, v{vXo[0]}'); e(f'v_add_u32 v{vXo[3]}, 6144, v{vXo[1]}')
    e(f's_lshl_b32 s{sXB}, s{sRT}, 17'); e(f's_lshl_b32 s11, s{sW}, 15'); e(f's_add_u32 s{sXB}, s{sXB}, s11')
    e(f's_lshl_b32 s{sW0B}, s{sCG}, 15'); e(f's_and_b32 s11, s{sW}, 1'); e('s_lshl_b32 s11, s11, 14'); e(f's_add_u32 s{sW0B}, s{sW0B}, s11')
    e(f's_lshl_b32 s{sM0X}, s{sW}, 12'); e(f's_add_u32 s{sM0X}, s{sM0X}, {RING}')
    e(f's_lshl_b32 s{sM0W}, s{sW}, 11'); e(f's_add_u32 s{sM0W}, s{sM0W}, {RING+16384}')
    def mksrd(b,p): e(f's_mov_b32 s{b}, s{p}'); e(f's_mov_b32 s{b+1}, s{p+1}')
    def srdc(b,size): e(f's_mov_b32 s{b+2}, {size}'); e(f's_mov_b32 s{b+3}, 0x20000')
    srdc(SX,2048*1024); srdc(SW0,512*1024)
    e(f's_cmp_lt_u32 s{sW}, 2')
    if not PF0: e('s_waitcnt lgkmcnt(0)')
    stamp('karg')
    if O('stamps'): e(f's_cmp_lt_u32 s{sW}, 2')
    mksrd(SX,16)
    if O('diag')==2:
        e('s_not_b32 s92, s94'); e(f'v_mov_b32 v{T+30}, s92'); e(f'v_mov_b32 v{T+31}, 0')
        e('s_mov_b64 exec, 1'); g.vm(f'global_atomic_umax v{T+31}, v{T+30}, s[46:47]'); e('s_mov_b64 exec, -1')
        e(f's_cmp_lt_u32 s{sW}, 2')
    e(f's_cselect_b32 s{SW0}, s22, s24'); e(f's_cselect_b32 s{SW0+1}, s23, s25')
    blk_last={}
    st={'barr':-1,'free':[0,1],'pendC':[],'pendRel':[],'Frow':{},'Flast':{},'w2n':0,'m0':None,'w2on':False}
    D=O('D',3)
    cur_n=[0]
    def setm0(base,c):
        if st['m0']!=(base,c):
            e(f's_add_u32 m0, s{base}, {c}'); st['m0']=(base,c)
    R4=O('r4',1)
    slotof=lambda p: p%NS if (p<8 or not R4) else [3,4,1,2][(p-8)%4]
    def streamP():
        for p in range(16):
            while (p>=O('pre',2) and st['barr']<p-(2 if (R4 and p>=12) else D)) or (p>=O('hold',9) and not st.get('burst')): yield 'blocked'
            sl=slotof(p); ty,q=POS[p]
            if p==8 and O('dwarm',1): g.vm(f'global_load_ushort v{T+43}, v{T+15}, s[32:33]')
            if ty=='A':
                e(f's_add_u32 s11, s{sROT}, {q}'); e('s_and_b32 s11, s11, 7'); e('s_lshl_b32 s11, s11, 7')
                e(f's_add_u32 s{sSO}, s{sXB}, s11'); e(f's_add_u32 s{sSO2}, s{sW0B}, s11')
                for a in range(4):
                    setm0(sM0X,sl*SLOT)
                    g.vm(f'buffer_load_dwordx4 v{vXo[a]}, {srd(SX)}, s{sSO} offen offset:{1024*a} lds'); yield
                for a in range(2):
                    setm0(sM0W,sl*SLOT)
                    blk_last[p]=g.vm(f'buffer_load_dwordx4 v{vNat[a]}, {srd(SW0)}, s{sSO2} offen offset:{1024*a} lds'); yield
            else:
                if p==O('pfw2',8):
                    e('s_mul_i32 s11, s2, 43'); e(f'v_mul_u32_u24 v{vTR[2]}, 43, v0'); e(f'v_lshrrev_b32 v{vTR[2]}, 8, v{vTR[2]}'); e(f'v_add_lshl_u32 v{vTR[2]}, v{vTR[2]}, s11, 7')
                    g.vm(f'buffer_load_dword v{T+43}, v{vTR[2]}, {srd(SW2)}, 0 offen')
                if q==3 and O('pf15',1) and O('pfw2',8)<0:
                    e('\n'.join([f's_cmp_eq_u32 s{sCG}, 15','s_cbranch_scc0 L_no15b',
                      f's_mul_i32 s11, s{sRT}, {88*1024}', f's_add_u32 s{SW1}, s{SW2}, s11', f's_addc_u32 s{SW1+1}, s{SW2+1}, 0',
                      f's_add_u32 s{SW3}, s{SW1}, {44*1024}', f's_addc_u32 s{SW3+1}, s{SW1+1}, 0',
                      f's_mov_b32 s{SW1+2}, {44*1024}', f's_cmp_eq_u32 s{sRT}, 15', f's_cselect_b32 s{SW3+2}, {12*1024}, s{SW1+2}',
                      f's_mov_b32 s{sROTF}, 5', 'L_no15b:']))
                e(f's_add_u32 s11, s{sROTF}, {q}'); e('s_and_b32 s11, s11, 7'); e(f's_mul_i32 s{sSO}, s11, s{sFST}')
                for mt,S_ in enumerate((SW1,SW3)):
                    for a in range(3):
                        setm0(sM0F,sl*SLOT+mt*12288)
                        if mt: e(f'v_xor_b32 v{vTR[2]}, 32, v{vWF[a]}')
                        blk_last[p]=g.vm(f'buffer_load_dwordx4 v{vTR[2] if mt else vWF[a]}, {srd(S_)}, s{sSO} offen offset:{1024*a} lds'); yield
        while True: yield 'done'
    vTa=[vRA[0],vRA[1]]
    NMV=O('nmv',11); loc={}; st['space']=[]
    def moveC(gi,row,last):
        sp=st['space'].pop(0)
        g.wait(vm=last)
        if gi<8:
            mt,cb,db=gi>>2,(gi>>1)&1,gi&1
            for s in range(4):
                kap=4*(2*cb+(s>>1))+2*mt+(s&1)
                if row<4: ad=vRAw[s]; off=row*16384
                else:
                    ad=T+44+s; off=0
                    e(f'v_add_u32 v{ad}, {row*16384}, v{vRAw[s]}')
                loc[kap,db]=sp+4*s
                i=g.lg(f'ds_read_b128 {ar(sp+4*s,4)}, v{ad} offset:{off}')
        else:
            u=gi-8
            for db in range(2):
                if row<4: ad=vTa[db]; off=row*16384
                else:
                    ad=T+44+db; off=0
                    e(f'v_add_u32 v{ad}, {row*16384}, v{vTa[db]}')
                for ks in range(2):
                    loc[16+2*u+ks,db]=sp+8*ks+4*db
                    for rho in range(2):
                        i=g.lg(f'ds_read_b64_tr_b16 {ar(sp+8*ks+4*db+2*rho,2)}, v{ad} offset:{off+ks*2048+rho*1024}')
        st['pendRel'].append((row,i))
    def service(force=False):
        for it in list(st['pendRel']):
            if force: g.wait(lg=it[1])
            if g.lg_done>=it[1]: st['free'].append(it[0]); st['pendRel'].remove(it)
        if st['pendC'] and st['space'] and (force or cur_n[0]-st['pendC'][0][3]>=O('cagen',20) or g.vm_done>=st['pendC'][0][2]):
            moveC(*st['pendC'].pop(0)[:3])
    def gran(gi,row):
        st['Frow'][gi]=row
        if gi>=8:
            e(f's_add_u32 s{sSO3}, s{sW2B}, {32*1024*(gi-8)}'); S_,vo=SW2,vW2o
        else:
            c=gi; mt,cb,db=c>>2,(c>>1)&1,c&1
            e(f's_add_u32 s{sSO3}, s{sCB}, {db*32*1024+cb*128}'); S_,vo=(SCIM if mt else SCRE),vNat
        for a in range(4):
            setm0(sM0R,row*16384)
            st['Flast'][gi]=g.vm(f'buffer_load_dwordx4 v{vo[a]}, {srd(S_)}, s{sSO3} offen offset:{1024*a} lds'); st['w2n']+=1
            if a==3 and gi<NMV: st['pendC'].append((gi,row,st['Flast'][gi],cur_n[0]))
            yield
    def streamW():
        for gi in range(19):
            while not st['free'] or st.get('quiet') or (st.get('wantrow') and st.get('trow') is None): yield 'blocked'
            yield from gran(gi,st['free'].pop(0))
        while True: yield 'done'
    SP=streamP(); SWs=streamW()
    def pump(n=1):
        r=None
        for _ in range(n):
            r=next(SP)
            if r and st['w2on']:
                service(); r=next(SWs)
        return r
    def barrier(q):
        e('s_barrier'); st['barr']=q
        rel={13:[4],14:[5],15:[6,7],16:[8],17:[2,3]} if O('b16',1) else {13:[4],14:[5],15:[6,7],17:[8,2,3]}
        if R4: rel={8:[2],14:[7],15:[8],16:[3,4],17:[5,6]}
        st['free']+=rel.get(q,[])
        if q>=O('w2from',9): st['w2on']=True
    if O('a0first',1): pump(6)
    e(f's_cmp_eq_u32 s{sW}, 0'); e(f's_cselect_b32 s11, s{sROT}, 0'); e('s_cselect_b32 s12, s42, s18'); e('s_cselect_b32 s13, s43, s19'); e(f's_cselect_b32 s14, 0, {ROW0}')
    e(f'v_add_u32 v{T+14}, s11, v{l3}'); e(f'v_and_b32 v{T+14}, 7, v{T+14}'); e(f'v_lshlrev_b32 v{T+14}, 7, v{T+14}')
    e(f's_cmp_eq_u32 s{sW}, 2'); e('s_cselect_b32 s12, s20, s12'); e('s_cselect_b32 s13, s21, s13')
    e(f's_cmp_eq_u32 s{sW}, 3'); e('s_cselect_b32 s12, s30, s12'); e('s_cselect_b32 s13, s31, s13')
    e(f'v_lshl_add_u32 v{T+14}, v{l7}, 4, v{T+14}')
    e(f's_lshl_b32 s11, s{sW}, 10'); e('s_add_u32 m0, s14, s11'); st['m0']=None
    e(f'v_and_b32 v{vM}, 31, v{vL}')
    gwid=g.vm(f'global_load_lds_dwordx4 v{T+14}, s[12:13]')
    if O('a0first',1): blk_last[0]=gwid
    e(f's_lshl_b32 s11, s{sCG}, 6')
    e(f'v_lshl_add_u32 v{T+15}, v{vM}, 1, s11')
    if not PF0: e(f's_load_dword s{sNON}, s[48:49], {Z_OFF}'); g.smem=True
    if not O('a0first',1): pump(O('a0pre',6))
    if PF0&4: pfF()
    stamp('p0')
    e(f'v_mov_b32 v{T+2}, 0'); e(f'v_mov_b32 v{T+3}, 0'); e(f'v_lshlrev_b32 v{vT8}, 3, v0')
    g.lg(f'ds_write_b64 v{vT8}, {vr(T+2,2)} offset:{XCH_L}')
    e(f'v_lshlrev_b32 v{vHH16}, 4, v{hh}')
    e(f's_lshl_b32 s{sM0R}, s{sW}, 12'); e(f's_add_u32 s{sM0R}, s{sM0R}, {ROW0}')
    e(f'v_bfe_u32 v{T+20}, v{vM}, 1, 3'); e(f'v_xor_b32 v{T+20}, v{T+20}, v{hh}'); e(f'v_lshlrev_b32 v{T+20}, 4, v{T+20}')
    e(f'v_lshl_add_u32 v{vRA[0]}, v{vM}, 7, v{T+20}')
    for s in range(1,4): e(f'v_xor_b32 v{vRA[s]}, {32*s}, v{vRA[0]}')
    XA2=[T+24+s for s in range(4)]; WA=[vRA,[T+28+s for s in range(4)],[T+32+s for s in range(4)]]
    for s in range(4):
        e(f'v_add_u32 v{vRAw[s]}, s{sM0R}, v{vRA[s]}')
        e(f'v_add_u32 v{XA2[s]}, {RING-ROW0+2*SLOT}, v{vRAw[s]}')
        e(f'v_add_u32 v{WA[1][s]}, {RING+16384+2*SLOT}, v{vRA[s]}'); e(f'v_add_u32 v{WA[2][s]}, {RING+16384+4*SLOT}, v{vRA[s]}')
        e(f'v_add_u32 v{vRA[s]}, {RING+16384}, v{vRA[s]}')
    PX=[[WR+s for s in range(4)],[WR+4+s for s in range(4)]]
    for s in range(4): e(f'v_xor_b32 v{PX[0][s]}, 0x1000, v{vRAw[s]}'); e(f'v_xor_b32 v{PX[1][s]}, 0x1000, v{XA2[s]}')
    vGA=T+40
    e(f'v_xor_b32 v{T+20}, v{vL}, v{l4}'); e(f'v_and_b32 v{T+20}, 1, v{T+20}'); e(f'v_mul_u32_u24 v{T+20}, 1056, v{T+20}'); e(f'v_add_u32 v{vGA}, v{T+20}, v{vHH16}')
    def side_setup():
        L=[]; A=L.append
        def mk(b,p): A(f's_mov_b32 s{b}, s{p}'); A(f's_mov_b32 s{b+1}, s{p+1}')
        def sc(b,size): A(f's_mov_b32 s{b+2}, {size}'); A(f's_mov_b32 s{b+3}, 0x20000')
        for b,p,size in [(SW1,36,512*2752),(SW3,38,512*2752),(SCRE,26,512*1024),(SCIM,28,512*1024),(SW2,40,1376*1024),(SWS,48,WS_SIZE),(SOUT,44,2048*2048)]:
            mk(b,p); sc(b,size)
        sc(SHE,8192)
        A(f's_mul_i32 s{sM0F}, s{sW}, 3072'); A(f's_add_u32 s{sM0F}, s{sM0F}, {RING}')
        A(f's_mov_b32 s{sFST}, {64*2752}'); A(f's_mov_b32 s{sROTF}, s{sROT}')
        A(f'v_lshlrev_b32 v{vL16}, 4, v{vL}'); A(f'v_lshlrev_b32 v{vM8}, 3, v{vM}')
        A(f's_mul_i32 s15, s{sW}, {16*2752}'); A(f's_mul_i32 s12, s{sCG}, 192'); A('s_add_u32 s15, s15, s12')
        A(f's_mul_i32 s12, s{sCG}, 12'); A('s_movk_i32 s13, 2752'); A(f'v_mov_b32 v{T+23}, {OOB:#x}')
        for a in range(3):
            A(f'v_add_u32 v{T+20}, {64*a}, v{vL}')
            A(f'v_mul_u32_u24 v{T+21}, 43691, v{T+20}'); A(f'v_lshrrev_b32 v{T+21}, 19, v{T+21}')
            A(f'v_mul_u32_u24 v{T+22}, 12, v{T+21}'); A(f'v_sub_u32 v{T+22}, v{T+20}, v{T+22}')
            A(f'v_mul_u32_u24 v{T+21}, s13, v{T+21}')
            A(f'v_lshl_add_u32 v{T+21}, v{T+22}, 4, v{T+21}')
            A(f'v_add_u32 v{T+22}, s12, v{T+22}')
            A(f'v_cmp_gt_u32 vcc, 172, v{T+22}')
            A(f'v_add_u32 v{T+21}, s15, v{T+21}')
            if a: A(f'v_subrev_u32 v{T+21}, {1024*a}, v{T+21}')
            A(f'v_cndmask_b32 v{vWF[a]}, v{T+23}, v{T+21}, vcc')
        if O('pf15',1):
            A('\n'.join([f's_cmp_eq_u32 s{sCG}, 15','s_cbranch_scc0 L_no15',
              f's_lshl_b32 s12, s{sRT}, 15', f's_add_u32 s{SW1}, s26, s12', f's_addc_u32 s{SW1+1}, s27, 0',
              f's_add_u32 s{SW3}, s28, s12', f's_addc_u32 s{SW3+1}, s29, 0',
              f's_mov_b32 s{SW1+2}, 0x8000', f's_mov_b32 s{SW3+2}, 0x8000', f's_mov_b32 s{sROTF}, 0',
              f's_movk_i32 s{sFST}, 12288', f's_mul_i32 s12, s{sW}, 3072',
              f'v_lshl_add_u32 v{vWF[0]}, v{vL}, 4, s12', f'v_mov_b32 v{vWF[1]}, v{vWF[0]}', f'v_mov_b32 v{vWF[2]}, v{vWF[0]}',
              'L_no15:']))
        r_,c_,g1=T+20,T+21,T+22
        A(f'v_bfe_u32 v{r_}, v{vL}, 2, 2'); A(f'v_and_b32 v{c_}, 3, v{vL}'); A(f'v_and_b32 v{g1}, 1, v{l4}')
        A(f'v_lshl_add_u32 v{T+19}, v{hh}, 3, v{r_}'); A(f'v_mul_u32_u24 v{T+19}, 192, v{T+19}')
        A(f'v_lshl_add_u32 v{T+19}, v{c_}, 3, v{T+19}')
        A(f's_and_b32 s12, s{sW}, 1'); A('s_mul_i32 s13, s12, 96'); A(f's_add_u32 s13, s13, {RING}'); A(f'v_add_u32 v{T+19}, s13, v{T+19}')
        A('s_lshl_b32 s12, s12, 6'); A(f's_sub_u32 s13, {12288+32}, s12'); A(f's_add_u32 s12, s12, {12288-32}')
        A(f'v_mad_u32_u24 v{vTR[0]}, v{g1}, s13, v{T+19}'); A(f'v_mad_u32_u24 v{vTR[1]}, v{g1}, s12, v{T+19}')
        A(f's_lshl_b32 s12, s{sCG}, 13'); A(f's_add_u32 s12, s12, {HE_OFF}')
        A(f's_add_u32 s{SHE}, s48, s12\ns_addc_u32 s{SHE+1}, s49, 0')
        A(f's_lshl_b32 s{sCB}, s{sCT}, 16'); A(f's_lshl_b32 s12, s{sW}, 8'); A(f's_add_u32 s{sCB}, s{sCB}, s12')
        A(f's_mul_i32 s{sW2B}, s{sW}, {352*1024}'); A(f's_lshl_b32 s12, s{sCT}, 7'); A(f's_add_u32 s{sW2B}, s{sW2B}, s12')
        A(f's_lshl_b32 s13, s{sRT}, 2'); A(f's_add_u32 s12, s13, s{sW}'); A(f's_mul_i32 s{sA2S}, s12, {160*1024}'); A(f's_add_u32 s{sA2S}, s{sA2S}, {A2_OFF}')
        A(f's_lshl_b32 s12, s{sRH}, 1'); A('s_add_u32 s12, s12, s13'); A(f's_mul_i32 s{sA2L0}, s12, {160*1024}'); A(f's_add_u32 s{sA2L0}, s{sA2L0}, {A2_OFF}')
        A(f's_add_u32 s{sA2L1}, s{sA2L0}, {160*1024}')
        A(f's_mov_b32 s{sNL2E}, {NLOG2E:#x}')
        A(f'v_add_u32 v{vNat[2]}, {2*7168}, v{vNat[0]}'); A(f'v_add_u32 v{vNat[3]}, {2*7168}, v{vNat[1]}')
        A(f'v_and_b32 v{g1}, 1, v{l4}')
        A(f'v_lshlrev_b32 v{T+19}, 2, v{g1}'); A(f'v_xor_b32 v{T+19}, v{T+19}, v{l7}'); A(f'v_lshlrev_b32 v{T+19}, 4, v{T+19}')
        A(f'v_lshl_add_u32 v{vW2o[0]}, v{l3}, 10, v{T+19}')
        for a in range(1,4): A(f'v_add_u32 v{vW2o[a]}, {7168*a}, v{vW2o[0]}')
        A(f's_sub_u32 s12, 15, s{sRT}'); A('s_lshl_b32 s12, s12, 9')
        A(f'v_lshl_add_u32 v{T+20}, v{vM}, 4, s12')
        A(f'v_cmp_eq_u32 vcc, s{sW}, v{l3}')
        A(f'v_lshl_add_u32 v{vHEo}, v{vHH16}, 6, v{T+20}'); A(f's_lshl_b32 s12, s{sW}, 11'); A('s_add_u32 s12, s12, 512'); A(f'v_add_u32 v{vHEo}, s12, v{vHEo}')
        A(f'v_cndmask_b32 v{T+10}, v{T+23}, v{T+20}, vcc')
        A(f's_lshl_b32 s15, s{sRT}, 1'); A(f's_lshr_b32 s12, s{sW}, 1'); A('s_add_u32 s12, s12, s15'); A(f's_lshl_b32 s12, s12, {FS+5 if FS>2 else 8}')
        A(f's_and_b32 s13, s{sW}, 1'); A(f's_lshl_b32 s14, s{sCG}, 1'); A('s_add_u32 s13, s13, s14'); A(f's_lshl_b32 s13, s13, {FS}')
        A('s_add_u32 s12, s12, s13'); A(f's_add_u32 s12, s12, {FL_OFF}'); A(f'v_lshl_add_u32 v{T+20}, v{vL}, 2, s12')
        A(f'v_cmp_gt_u32 vcc, {32 if FS>2 else 1}, v{vL}'); A(f's_add_u32 s15, s15, s{sRH}')
        A(f's_lshl_b32 s15, s15, {FS+5 if FS>2 else 8}'); A(f's_add_u32 s15, s15, {FL_OFF}'); A(f'v_cndmask_b32 v{vFS}, v{T+23}, v{T+20}, vcc')
        A(f'v_lshl_add_u32 v{vFLo}, v{vM}, {FS}, s15')
        A(f'v_lshlrev_b32 v{vTW}, 6, v{vM}'); A(f'v_lshl_add_u32 v{vTW}, v{vHH16}, 1, v{vTW}'); A(f'v_bfe_u32 v{T+20}, v{vM}, 1, 2'); A(f'v_lshlrev_b32 v{T+20}, 4, v{T+20}'); A(f'v_xor_b32 v{vTW}, v{T+20}, v{vTW}'); A(f'v_add_u32 v{vTW}, s{sM0R}, v{vTW}')
        A(f'v_bfe_u32 v{vTRd}, v{vL}, 2, 2'); A(f'v_lshlrev_b32 v{vTRd}, 6, v{vTRd}')
        A(f'v_lshl_add_u32 v{vTRd}, v{vHH16}, 5, v{vTRd}'); A(f'v_and_b32 v{T+20}, 1, v{vL}')
        A(f'v_lshl_add_u32 v{vTRd}, v{T+20}, 5, v{vTRd}'); A(f'v_and_b32 v{T+20}, 16, v{vL}'); A(f'v_add_u32 v{vTRd}, v{T+20}, v{vTRd}')
        A(f'v_and_b32 v{T+20}, 2, v{vL}'); A(f'v_lshl_add_u32 v{vTRd}, v{T+20}, 2, v{vTRd}'); A(f'v_and_b32 v{T+20}, 8, v{vL}'); A(f'v_lshlrev_b32 v{T+20}, 1, v{T+20}'); A(f'v_xor_b32 v{vTRd}, v{T+20}, v{vTRd}'); A(f'v_add_u32 v{vTRd}, s{sM0R}, v{vTRd}')
        A(f's_lshl_b32 s12, s{sW}, 2'); A(f's_sub_u32 s12, s{sRT}, s12'); A(f'v_lshrrev_b32 v{vEX}, 3, v{vHH16}'); A(f'v_sub_u32 v{vEX}, s12, v{vEX}')
        A(f'v_max_i32 v{vEX}, 0, v{vEX}'); A(f'v_min_i32 v{vEX}, 2, v{vEX}'); A(f'v_lshlrev_b32 v{vEX}, 1, v{vEX}')
        A(f's_lshl_b32 s{sT0}, s{sCG}, 12'); A(f's_add_u32 s{sT0}, s{sT0}, s{sA2S}')
        A(f's_mul_i32 s{sT1}, s{sCG}, {6*1024}'); A(f's_add_u32 s{sT1}, s{sT1}, s{sA2S}')
        A(f's_and_b32 s12, s{sW}, 1'); A('s_mul_i32 s13, s12, 3072'); A(f's_add_u32 s16, s{sT1}, s13'); A(f's_add_u32 s16, s16, {64*1024}'); A(f's_mul_i32 s12, s12, {2*160*1024}'); A(f's_add_u32 s17, s16, {160*1024}'); A('s_sub_u32 s17, s17, s12')
        A(f's_lshl_b32 s12, s{sW}, 14'); A(f's_add_u32 s26, s{sA2L0}, s12'); A(f's_add_u32 s27, s{sA2L1}, s12')
        A(f's_mul_i32 s12, s{sW}, {22*1024}'); A(f's_add_u32 s12, s12, {64*1024}'); A(f's_add_u32 s28, s{sA2L0}, s12'); A(f's_add_u32 s29, s{sA2L1}, s12')
        A(f's_lshl_b32 s12, s{sW}, 7'); A(f'v_lshl_add_u32 v{T+42}, v{vM}, 2, s12')
        A(f's_mul_i32 s{sNON}, s{sNON}, 1664525'); A(f's_add_u32 s{sNON}, s{sNON}, 1013904223')
        A(f's_cmp_eq_u32 s{sNON}, 0\ns_cselect_b32 s{sNON}, 1013904223, s{sNON}')
        return L
    Ls=side_setup()
    npre=O('setup_pre',95)
    Ls.append(f'v_mov_b32 v{vNON}, s{sNON}')
    print('setup list',len(Ls))
    for i,t in enumerate(Ls[:npre]):
        e(t)
        if i==29 and O('touch',0):
            e(f'v_mov_b32 v{T+19}, 0')
            for S_ in (SW1,SW3,SCRE,SCIM,SW2,SWS): g.vm(f'buffer_load_dword v{T+43}, v{T+19}, {srd(S_)}, 0 offen')
            e(f's_mul_i32 s12, s{sRT}, {640*1024}'); e(f's_add_u32 s12, s12, {A2_OFF}'); e(f's_add_u32 s13, s12, {639*1024}'); e(f's_lshl_b32 s14, s{sRT}, 18')
            g.vm(f'buffer_load_dword v{T+43}, v{T+19}, {srd(SWS)}, s12 offen'); g.vm(f'buffer_load_dword v{T+43}, v{T+19}, {srd(SWS)}, s13 offen')
            g.vm(f'buffer_load_dword v{T+43}, v{T+19}, {srd(SOUT)}, s14 offen')
    g.wait_all_lg()
    stamp('setup')
    pump(6*O('pre',2)-O('a0pre',6))
    if PF0&8: pfF()
    stamp('p1')
    def side_params():
        for i,t in enumerate(Ls[npre:]):
            e(t)
            if i%4==3: yield
        pl=[g.lg(f'ds_read_u16 v{T+16+i}, v{T+15} offset:{ROW0+1024*(i+1)}') for i in range(3)]
        while g.lg_done<pl[2]: yield
        lre,lim,dt=T+16,T+17,T+18
        a_,b_,t0,t1=T,T+1,T+2,T+3
        L=[]; A=L.append
        for r in (lre,lim,dt): A(f'v_lshlrev_b32 v{r}, 16, v{r}')
        A(f'v_mul_f32 v{dt}, {LOG2E:#x}, v{dt}'); A(f'v_exp_f32 v{dt}, v{dt}')
        A(f'v_mul_f32 v{t0}, v{lre}, v{lre}')
        A(f'v_cvt_pk_bf16_f32 v{dt}, v{dt}, v{dt}'); A(f'v_lshlrev_b32 v{dt}, 16, v{dt}')
        A(f'v_mul_f32 v{a_}, v{dt}, v{lre}'); A(f'v_mul_f32 v{b_}, v{dt}, v{lim}')
        A(f'v_fma_f32 v{dt}, v{lim}, v{lim}, v{t0}'); A(f'v_rcp_f32 v{dt}, v{dt}')
        A(f'v_mul_f32 v{a_}, {LOG2E:#x}, v{a_}'); A(f'v_exp_f32 v{a_}, v{a_}')
        A(f'v_mul_f32 v{b_}, {INV2PI:#x}, v{b_}'); A(f'v_rndne_f32 v{t0}, v{b_}'); A(f'v_sub_f32 v{b_}, v{b_}, v{t0}')
        A(f'v_cos_f32 v{t0}, v{b_}'); A(f'v_sin_f32 v{t1}, v{b_}')
        A(f'v_add_f32 v{dt}, v{dt}, v{dt}')
        A(f'v_mul_f32 v{vLr}, v{a_}, v{t0}'); A(f'v_mul_f32 v{vLi}, v{a_}, v{t1}')
        A(f'v_add_f32 v{a_}, -1.0, v{vLr}')
        A(f'v_mul_f32 v{vNC2i}, v{vLi}, v{lre}'); A(f'v_mul_f32 v{vC2r}, v{a_}, v{lre}')
        A(f'v_fma_f32 v{vNC2i}, v{a_}, v{lim}, -v{vNC2i}'); A(f'v_fma_f32 v{vC2r}, v{vLi}, v{lim}, v{vC2r}')
        A(f'v_mul_f32 v{vNC2i}, v{vNC2i}, v{dt}'); A(f'v_mul_f32 v{vC2r}, v{vC2r}, v{dt}')
        def csq(dr,di,sr,si,n):
            for k in range(n):
                A(f'v_mul_f32 v{t0}, v{si}, v{si}'); A(f'v_mul_f32 v{t1}, v{sr}, v{si}')
                A(f'v_fma_f32 v{dr}, v{sr}, v{sr}, -v{t0}'); A(f'v_add_f32 v{di}, v{t1}, v{t1}')
                sr,si=dr,di
        csq(vL16r,vL16i,vLr,vLi,4); csq(vL128r,vL128i,vL16r,vL16i,3); csq(vL1kr,vL1ki,vL128r,vL128i,1)
        for i,t in enumerate(L):
            e(t)
            if i&1: yield
    NLi,NL16i,NL128i,NC2r=vXo
    def cfma_ip(ar_,ai_,lr,li,nli,sr,si):
        e(f'v_fmac_f32 v{ar_}, v{lr}, v{sr}'); e(f'v_fmac_f32 v{ai_}, v{lr}, v{si}')
        e(f'v_fmac_f32 v{ar_}, v{nli}, v{si}'); e(f'v_fmac_f32 v{ai_}, v{li}, v{sr}')
    def check(pid,reg,off,tag,lane,vP):
        e(f's_mov_b32 s{sCNT}, 0')
        g.wait(vm=pid)
        e(f'L_{tag}_chk:')
        e(f'v_cmp_ne_u32 vcc, s{sNON}, v{reg}')
        e('s_nop 1')
        e(f's_cbranch_vccz L_{tag}_ok')
        e(f's_add_u32 s{sCNT}, s{sCNT}, 1'); e(f's_cmp_gt_u32 s{sCNT}, {SPIN}'); e(f's_cbranch_scc1 L_{tag}_ok')
        e('s_sleep 1')
        e(f'buffer_load_dword v{reg}, v{vP}, {srd(SWS)}, 0 offen offset:{off} sc1')
        e('s_waitcnt vmcnt(0)'); e(f's_branch L_{tag}_chk')
        e(f'L_{tag}_ok:'); stamp(tag+'_ok')
        if O('stamps'): e(f'v_writelane_b32 v39, s{sCNT}, {lane}')
    vq=[]
    def cf(ar_,ai_,lr,li,nli,sr,si):
        e(f'v_fmac_f32 v{ar_}, v{lr}, v{sr}'); yield
        e(f'v_fmac_f32 v{ai_}, v{lr}, v{si}'); yield
        e(f'v_fmac_f32 v{ar_}, v{nli}, v{si}'); yield
        e(f'v_fmac_f32 v{ai_}, v{li}, v{sr}'); yield
    def seq(L):
        for t in L:
            e(t); yield
    def burst():
        for t in [f'v_xor_b32 v{NLi}, 0x80000000, v{vLi}',f'v_xor_b32 v{NL16i}, 0x80000000, v{vL16i}',f'v_mov_b32 v{T+13}, s{sNON}',f'v_mov_b32 v{T+15}, s{sNON}']: e(t)
        z=T+6; x0,x1=T+4,T+5
        fill=[f'v_and_b32 v{z+1}, 16, v{vL}',f'v_cmp_eq_u32 vcc, 0, v{z+1}',f'v_xor_b32 v{NL128i}, 0x80000000, v{vL1ki}',f'v_bfe_u32 v{x0}, v{vL}, 2, 2',
            f'v_cndmask_b32 v{z}, v{ZA+1}, v{ZA}, vcc',f'v_cvt_pk_bf16_f32 v{z}, v{z}, v{z}',f'v_lshlrev_b32 v{z}, 16, v{z}',
            f'v_mul_f32 v{z}, s{sNL2E}, v{z}',f'v_exp_f32 v{z}, v{z}',f'v_add_f32 v{z}, 1.0, v{z}',f'v_rcp_f32 v{z}, v{z}',
            f'v_cvt_pk_bf16_f32 v{z}, v{z}, v{z}',f'v_lshlrev_b32 v{z}, 16, v{z}',
            f'v_sub_f32 v{z+1}, 1.0, v{z}',f'v_cvt_pk_bf16_f32 v{z+1}, v{z+1}, v{z+1}',f'v_lshlrev_b32 v{z+1}, 16, v{z+1}',
            f'v_rcp_f32 v{vCinv}, v{z+1}',f'v_lshlrev_b32 v{x0}, 7, v{x0}',f'v_min_f32 v{vCinv}, 0x7e967699, v{vCinv}',f'v_xor_b32 v{T+8}, 128, v{T+42}',
            f'v_lshl_add_u32 v{x0}, v{vHH16}, 5, v{x0}',
            f'v_and_b32 v{x1}, 8, v{vL}',f'v_lshl_add_u32 v{x0}, v{x1}, 3, v{x0}',f'v_and_b32 v{x1}, 16, v{vL}',f'v_lshl_add_u32 v{x0}, v{x1}, 1, v{x0}',
            f'v_and_b32 v{x1}, 3, v{vL}',f'v_lshl_add_u32 v{x0}, v{x1}, 3, v{x0}',f'v_add_u32 v{vTa[0]}, s{sM0R}, v{x0}',f'v_xor_b32 v{vTa[1]}, 64, v{vTa[0]}',
            f'v_mov_b32 v{T}, v{vC2r}',f'v_mov_b32 v{T+1}, v{vNC2i}']
        for t in range(1,16):
            e(f'v_fmac_f32 v{URE+t}, v{vLr}, v{URE+t-1}'); e(f'v_fmac_f32 v{UIM+t}, v{vLr}, v{UIM+t-1}'); e(fill.pop(0))
            e(f'v_fmac_f32 v{URE+t}, v{NLi}, v{UIM+t-1}'); e(f'v_fmac_f32 v{UIM+t}, v{vLi}, v{URE+t-1}'); e(fill.pop(0))
        e(f'v_mov_b32 v{T+2}, v{URE+15}'); e(f'v_mov_b32 v{T+3}, v{UIM+15}')
        for t in fill: e(t)
        g.lg(f'ds_write_b64 v{vT8}, {vr(T+2,2)} offset:{E_L}'); lw=g.lg(f'ds_write_b32 v{T+42}, v{z} offset:{G_L}')
        st['tra']=True
        def coef(u):
            o=T+32+2*((u>>1)&1)
            return [f'v_pk_mul_f32 {vr(o,2)}, {vr(UIM+u,2)}, {vr(T,2)} op_sel:[0,1] op_sel_hi:[1,1]',
                    f'v_pk_mul_f32 {vr(UIM+u,2)}, {vr(UIM+u,2)}, {vr(T,2)} op_sel_hi:[1,0] neg_lo:[0,1] neg_hi:[0,1]',
                    f'v_pk_fma_f32 {vr(UIM+u,2)}, {vr(URE+u,2)}, {vr(T,2)}, {vr(UIM+u,2)} op_sel:[0,1,0] op_sel_hi:[1,1,1]',
                    f'v_pk_fma_f32 {vr(URE+u,2)}, {vr(URE+u,2)}, {vr(T,2)}, {vr(o,2)} op_sel_hi:[1,0,1]']
        def coef2(u):
            a,b=coef(u),coef(u+2)
            for i in range(4): e(a[i]); e(b[i])
        coef2(0)
        g.wait(lg=lw); e('s_barrier')
        ids=[g.lg(f'ds_read_b64 {vr(T+16+2*s,2)}, v{vM8} offset:{E_L+256*s}') for s in range(8)]
        e(f's_lshl_b32 s12, s{sW}, 7'); e(f'v_add_u32 v{x0}, s12, v{vHH16}')
        for j in range(4): gi_=g.lg(f'ds_read_b128 {vr(WR+4*j,4)}, v{x0} offset:{G_L+32*j}')
        gi_=g.lg(f'ds_read_b32 v{vCinv+1}, v{T+8} offset:{G_L}')
        coef2(4); coef2(8); coef2(12)
        g.wait(lg=gi_)
        c1=vCinv+1
        for t in [f'v_sub_f32 v{c1}, 1.0, v{c1}',f'v_cvt_pk_bf16_f32 v{c1}, v{c1}, v{c1}',f'v_lshlrev_b32 v{c1}, 16, v{c1}',f'v_rcp_f32 v{c1}, v{c1}',f'v_min_f32 v{c1}, 0x7e967699, v{c1}']: e(t)
        for u in range(0,16,2):
            e(f'v_pk_mul_f32 {vr(URE+u,2)}, {vr(URE+u,2)}, {vr(WR+u,2)}'); e(f'v_pk_mul_f32 {vr(UIM+u,2)}, {vr(UIM+u,2)}, {vr(WR+u,2)}')
        for s in range(1,8): cfma_ip(T+16+2*s,T+17+2*s,vL16r,vL16i,NL16i,T+14+2*s,T+15+2*s)
        e(f'v_mov_b32 v{T+12}, v{T+30}'); e(f'v_mov_b32 v{T+14}, v{T+31}')
        st['burst']=True
        pump(O('bpump',6))
        g.vm(f'buffer_store_dwordx4 {vr(T+12,4)}, v{T+10}, {srd(SHE)}, 0 offen sc1'); stamp('he_pub')
    def slot():
        if st.get('wantrow') and st.get('trow') is None:
            service()
            if st['free']: st['trow']=st['free'].pop(0)
        if vq:
            f=vq.pop(0)
            if f: f(); return None
        return pump(1)
    hel=lambda jj:f'buffer_load_dwordx4 {vr(T+16+4*jj,4)}, v{vHEo}, {srd(SHE)}, 0 offen offset:{512*jj} sc1'
    he={}
    def hecheck():
        cnt=T+8
        e(f's_mov_b32 s{sCNT}, 0')
        g.wait(vm=he[1])
        e('L_he_chk:')
        e(f'v_mov_b32 v{cnt}, 0')
        for jj in range(2):
            e(f'v_cmp_eq_u32 vcc, s{sNON}, v{T+16+4*jj+1}'); e(f'v_cmp_eq_u32 s[12:13], s{sNON}, v{T+16+4*jj+3}')
            e(f'v_addc_co_u32 v{cnt}, vcc, 0, v{cnt}, vcc'); e(f'v_addc_co_u32 v{cnt}, s[12:13], 0, v{cnt}, s[12:13]')
        e(f'v_cmp_ne_u32 vcc, v{cnt}, v{vEX}')
        e('s_nop 1')
        e('s_cbranch_vccz L_he_ok')
        e(f's_add_u32 s{sCNT}, s{sCNT}, 1'); e(f's_cmp_gt_u32 s{sCNT}, {SPIN}'); e('s_cbranch_scc1 L_he_ok')
        e('s_sleep 1')
        for jj in range(2): e(hel(jj))
        e('s_waitcnt vmcnt(0)'); e('s_branch L_he_chk')
        e('L_he_ok:'); stamp('he_ok')
        if O('stamps'): e(f'v_writelane_b32 v39, s{sCNT}, 60')
        for t in [f'v_fma_f32 v{T+8}, v{vL128r}, v{T+20}, v{T+16}',f'v_fma_f32 v{T+9}, v{vL128r}, v{T+22}, v{T+18}',
                  f'v_fma_f32 v{T+8}, -v{vL128i}, v{T+22}, v{T+8}',f'v_fmac_f32 v{T+9}, v{vL128i}, v{T+20}']: e(t)
        return g.lg(f'ds_write_b64 v{vT8}, {vr(T+8,2)} offset:{PQ_L}')
    GG=T+16; WRe,WIm,L2=T,T+4,T+8; vPF,vPS=vXo[3],vEX
    def side2():
        st['rate']=O('rate2',[6,6,3])
        while cur_n[0]<O('he_at',110): yield 'gap'
        for jj in range(2): vq.append(lambda jj=jj: he.__setitem__(jj,g.vm(hel(jj))))
        while cur_n[0]<O('he_chk',132): yield 'gap'
        st['elw']=hecheck(); b0=st['barr']; yield 'gap'
        y=T+32
        yield from seq([f's_mul_i32 s12, s{sW}, 11','s_mul_i32 s13, s12, 43691','s_lshr_b32 s13, s13, 17','s_lshl_b32 s13, s13, 1',
            's_add_u32 s12, s12, 10','s_mul_i32 s14, s12, 43691','s_lshr_b32 s14, s14, 17','s_lshl_b32 s14, s14, 1','s_add_u32 s14, s14, 1',
            f'v_max_u32 v{y}, s13, v{vM}',f'v_min_u32 v{y}, s14, v{y}',f'v_sub_u32 v{y}, v{y}, v{vM}',f'v_lshl_add_u32 v{vPF}, v{y}, {FS}, v{vFLo}',
            f's_lshl_b32 s13, s{sW}, 3',f'v_and_b32 v{y}, 7, v{vM}',f'v_add_u32 v{y}, s13, v{y}',f'v_sub_u32 v{y}, v{y}, v{vM}',f'v_lshl_add_u32 v{vPS}, v{y}, {FS}, v{vFLo}'])
        if O('xbar',0):
            g.wait(lg=st['elw']); e('s_barrier')
        else:
            while st['barr']==b0: yield 'gap'
        ids=[]
        for s in range(8):
            ids.append(g.lg(f'ds_read_b64 {vr(T+16+2*s,2)}, v{vM8} offset:{PQ_L+256*(7-s)}')); yield
        while g.lg_done<ids[7]: yield 'gap'
        for s in range(1,8): yield from cf(T+16+2*s,T+17+2*s,vL1kr,vL1ki,NL128i,T+14+2*s,T+15+2*s)
        g.lg(f'ds_write_b64 v{vM8}, {vr(T+30,2)} offset:{HIN_L}'); yield
        ids=[]
        for k in range(8):
            ids.append(g.lg(f'ds_read_b64 {vr(T+2*k,2)}, v{vT8} offset:{XCH_L+256*k}')); yield
        e(f's_lshl_b32 s12, s{sW}, 7'); e(f'v_add_u32 v{y}, s12, v{vHH16}'); yield
        for j in range(4):
            g.lg(f'ds_read_b128 {vr(GG+4*j,4)}, v{y} offset:{G_L+32*j}'); yield
        while g.lg_done<ids[7]: yield 'gap'
        for k in range(1,8): yield from cf(T+2*k,T+2*k+1,vL16r,vL16i,NL16i,T+2*k-2,T+2*k-1)
        P=[(T,T+1),(T+2,T+3)]
        st['rate']=O('rate3',[6,6,3])
        yield from seq([f'v_mul_f32 v{T+2}, v{vC2r}, v{T+14}',f'v_mul_f32 v{T+3}, v{vNC2i}, v{T+14}',
                        f'v_fmac_f32 v{T+2}, v{vNC2i}, v{T+15}',f'v_fma_f32 v{T+3}, -v{vC2r}, v{T+15}, v{T+3}'])
        for t in range(17):
            d,c=P[t&1],P[1-(t&1)]; L=[]
            if t<16: L+=[f'v_mul_f32 v{d[0]}, v{vLr}, v{c[0]}',f'v_mul_f32 v{d[1]}, v{vLr}, v{c[1]}']
            if t>0: L+=[f'v_fmac_f32 v{URE+t-1}, v{GG+t-1}, v{c[0]}',f'v_fmac_f32 v{UIM+t-1}, v{GG+t-1}, v{c[1]}']
            if t<16: L+=[f'v_fmac_f32 v{d[0]}, v{vLi}, v{c[1]}',f'v_fmac_f32 v{d[1]}, v{NLi}, v{c[0]}']
            if t>0 and t%2==0:
                u=t-2; L+=[f'v_cvt_pk_bf16_f32 v{URE+(u>>1)}, v{URE+u}, v{URE+u+1}',f'v_cvt_pk_bf16_f32 v{UIM+(u>>1)}, v{UIM+u}, v{UIM+u+1}']
            if t==11: st['wantrow']=True
            yield from seq(L)
        while st.get('trow') is None: yield 'gap'
        row=st['trow']
        if row>=4:
            e(f'v_add_u32 v{vTW}, {row*16384}, v{vTW}'); e(f'v_add_u32 v{vTRd}, {row*16384}, v{vTRd}'); ro=0
        else: ro=row*16384
        e(f'v_xor_b32 v{T+32}, 16, v{vTW}'); e(f'v_xor_b32 v{T+33}, 32, v{vTRd}')
        for mt,b in enumerate((URE,UIM)):
            g.lg(f'ds_write_b128 v{vTW}, {vr(b,4)} offset:{ro+2048*mt}'); yield 'gap'
            g.lg(f'ds_write_b128 v{T+32}, {vr(b+4,4)} offset:{ro+2048*mt}'); yield 'gap'
        for mt in range(2):
            for ks in range(2):
                for rho in range(2):
                    tl=g.lg(f'ds_read_b64_tr_b16 {vr(T+8*mt+4*ks+2*rho,2)}, v{T+33 if rho else vTRd} offset:{ro+2048*mt+ks*1024+rho*256}'); yield
        st['pendRel'].append((row,tl))
        if O('quiet',1): st['quiet']=True
        while g.lg_done<tl: yield 'gap'
        for i in range(4):
            sst=g.vm(f'buffer_store_dwordx4 {vr(T+4*i,4)}, v{vL16}, {srd(SWS)}, s{sT0} offen offset:{i*1024} sc1'); yield 'gap'
            for _ in range(O('sgap',1)): yield 'gap'
        stamp('sst'); n0=cur_n[0]; print('S stores gap',n0)
        while cur_n[0]<n0+O('slag',22) and cur_n[0]<286:
            if cur_n[0]>=n0+O('qlen',8): st['quiet']=False
            yield 'gap'
        g.wait(vm=sst); g.vm(f'buffer_store_dword v{vNON}, v{vFS}, {srd(SWS)}, 0 offen sc1'); stamp('sflag'); st['quiet']=False; print('S flag gap',cur_n[0])
        if O('poll_k',0)<0:
            while cur_n[0]<O('poll_gap',278): yield 'gap'
            st['pid']=g.vm(f'buffer_load_dword v{T+34}, v{vPS}, {srd(SWS)}, 0 offen sc1')
    assert SEQ=='AAAAAAAAFFFFFFFF'
    rdone={}
    def areads(n,part):
        if n>=32: return
        q,s=n>>2,n&3; sl=q%NS
        if s==0 and part==0:
            g.wait(vm=blk_last[q]); barrier(q); stamp(f'A{q}')
        b=ACC+12*(n%8)
        xa,xp,xo=(vRAw[s],PX[0][s],RING-ROW0+sl*SLOT) if sl<2 else (XA2[s],PX[1][s],(sl-2)*SLOT)
        wa=WA[sl>>1][s]; wo=(sl&1)*SLOT
        L=[f'ds_read_b128 {ar(32*q+16+4*s,4)}, v{xp} offset:{xo}',f'ds_read_b128 {ar(32*q+4*s,4)}, v{xa} offset:{xo}',f'ds_read_b128 {vr(b,4)}, v{wa} offset:{wo}',
           f'ds_read_b128 {vr(b+4,4)}, v{wa} offset:{wo+4096}',f'ds_read_b128 {vr(b+8,4)}, v{vGA} offset:{GW_L+q*128+s*32}']
        for t in (L[:2] if part==0 else L[2:]): rdone[n]=g.lg(t)
    LAA=O('laa',2)
    for n in range(LAA): areads(n,0); areads(n,1)
    side=side_params()
    for n in range(32):
        q,s=n>>2,n&3; b=ACC+12*(n%8); x=ar(32*q+4*s,4); z=(n==0)
        g.wait(lg=rdone[n])
        for j in range(3):
            cur_n[0]=3*n+j
            if j==0: e(f'v_mfma_f32_32x32x16_bf16 {vr(URE,16)}, {x}, {vr(b,4)}, {"0" if z else vr(URE,16)}')
            if j==1: e(f'v_mfma_f32_32x32x16_bf16 {vr(UIM,16)}, {x}, {vr(b+4,4)}, {"0" if z else vr(UIM,16)}')
            if j==2: e(f'v_mfma_f32_16x16x32_bf16 {vr(ZA,4)}, {vr(b+8,4)}, {x}, {"0" if z else vr(ZA,4)}')
            if j<2: areads(n+LAA,j)
            if j!=1: slot()
            next(side,None)
    for _ in side: pass
    stamp('A_end'); burst(); side=side2()
    trb=[RING]; rid={}
    def fread(n,h):
        if n>=96: return
        q,s,i=n//12,(n%12)//3,n%3; p=8+q
        if n%12==0 and h==0:
            g.wait(vm=blk_last[p],lg=st.get('elw')); barrier(p); stamp(f'F{q}')
            want=RING+slotof(p)*SLOT
            if not 0<=want-trb[0]<=49152:
                for k_ in range(2): e(f'v_add_u32 v{vTR[k_]}, {(want-trb[0])&0xffffffff:#x}, v{vTR[k_]}')
                trb[0]=want
        off=RING+slotof(p)*SLOT-trb[0]+s*3072+32*i+768*h
        rid[n]=g.lg(f'ds_read_b64_tr_b16 {vr(WR+4*(n%8)+2*h,2)}, v{vTR[i&1]} offset:{off}')
    LF=O('lf',4)
    for n in range(LF): fread(n,0); fread(n,1)
    for gp in range(192):
        cur_n[0]=96+gp
        n,rb=gp>>1,gp&1; q,s,i=n//12,(n%12)//3,n%3
        if rb==0: g.wait(lg=rid[n])
        acc=vr(ACC+16*(2*i+rb),16)
        e(f'v_mfma_f32_32x32x16_bf16 {acc}, {vr(WR+4*(n%8),4)}, {ar(32*q+16*rb+4*s,4)}, {"0" if n<3 else acc}')
        fread(n+LF,rb)
        if gp%24==23 and q<=O('qsp',5): st['space']+=[32*q,32*q+16]
        if gp==169 and O('b16',1): barrier(16)
        dma=(gp%O('dper',2)==O('dper',2)-1) if gp<O('dd',160) else (gp%3!=0)
        if dma: slot()
        elif st['w2on']: service()
        for _ in range(st.get('rate',[4,4,4])[2 if dma else 0]):
            if next(side,'gap')=='gap': break
    for _ in side: raise Exception('side left')
    g.wait_all_lg(); barrier(17); stamp('1b_end'); print('w2n at 1b_end',st['w2n'])
    x0,x1=URE+30,URE+31
    XS=URE+16; DS=URE+24; vXa=URE+26; vOa=URE+27; vGe=T+8; vZa=URE+28
    def addr2():
        e(f's_lshl_b32 s13, s{sRT}, 7'); e(f's_lshl_b32 s12, s{sRH}, 6'); e('s_add_u32 s13, s13, s12')
        e(f's_lshr_b32 s12, s{sW}, 1'); e('s_lshl_b32 s12, s12, 5'); e('s_add_u32 s13, s13, s12')
        e(f's_and_b32 s12, s{sW}, 1'); e('s_lshl_b32 s12, s12, 3'); e('s_add_u32 s13, s13, s12')
        e(f'v_lshrrev_b32 v{x0}, 4, v{vL}'); e(f'v_add_u32 v{x0}, s13, v{x0}')
        e(f'v_and_b32 v{x1}, 15, v{vL}'); e(f's_lshl_b32 s12, s{sCT}, 7'); e(f'v_lshl_add_u32 v{x1}, v{x1}, 3, s12')
        e(f'v_lshl_add_u32 v{vXa}, v{x0}, 10, v{x1}'); e(f'v_lshlrev_b32 v{vOa}, 1, v{vXa}')
        e(f's_lshl_b32 s13, s{sCG}, 2'); e(f's_add_u32 s13, s13, s{sW}'); e(f's_xor_b32 s12, s{sRT}, 15'); e('s_or_b32 s13, s13, s12')
        e(f'v_or_b32 v{vZa}, s13, v{vL}'); e(f'v_cmp_eq_u32 vcc, 0, v{vZa}'); e(f'v_mov_b32 v{vZa}, {OOB:#x}'); e(f'v_cndmask_b32 v{vZa}, v{vZa}, 0, vcc')
    def small_loads():
        g.vm(f'global_load_dwordx2 {vr(DS,2)}, v{x1}, s[32:33]')
        for it in range(4):
            e(f's_movk_i32 s14, {(16*(it&1)+4*(it>>1))*1024}')
            st['xl']=g.vm(f'buffer_load_dwordx2 {vr(XS+2*it,2)}, v{vXa}, {srd(SX)}, s14 offen')
    if O('small0',0): addr2(); small_loads()
    pump(O('t0pump',0))
    E0=WR
    vL16F=T+16
    pol=T+34
    aid={}
    def aload(k):
        base,kk=(26,k) if k<16 else (28,k-16)
        if kk%4==0: e(f's_add_u32 s20, s{base}, {kk*1024}'); e(f's_add_u32 s21, s{base+1}, {kk*1024}')
        for tb in range(2):
            aid[k]=g.vm(f'buffer_load_dwordx4 {ar(192+8*(k%8)+4*tb,4)}, v{vL16}, {srd(SWS)}, s{20+tb} offen offset:{(kk%4)*1024} sc1')
    ALA=O('ala',7); na=[0]
    fl={}
    e(f's_cmp_eq_u32 s{sCG}, 15'); e(f's_cselect_b32 s12, {OOB:#x}, 0'); e(f'v_or_b32 v{vL16F}, s12, v{vL16}')
    if O('poll_k',0)<0: pid=st['pid']
    if O('chk_k',3)<0:
        check(pid,pol,0,'fs',61,vPS)
        for _ in range(O('apre',4)): aload(na[0]); na[0]+=1
    for pr in range(3):
        for h in range(2):
            k=2*pr+h
            G=ACC+16*k; Uu=G+8
            R=range(0,8,2)
            for i in R: e(f'v_pk_mul_f32 {vr(E0+i%8,2)}, {vr(G+i,2)}, s[{sNL2E}:{sNL2E+1}] op_sel_hi:[1,0]')
            for i in range(8): e(f'v_exp_f32 v{E0+i}, v{E0+i}')
            for i in R: e(f'v_pk_mul_f32 {vr(G+i,2)}, {vr(G+i,2)}, {vr(Uu+i,2)}')
            for i in R: e(f'v_pk_fma_f32 {vr(E0+i%8,2)}, {vr(E0+i%8,2)}, {vr(vCinv,2)}, {vr(vCinv,2)} '+('op_sel:[0,1,1] op_sel_hi:[1,1,1]' if h else 'op_sel_hi:[1,0,0]'))
            for i in range(8): e(f'v_rcp_f32 v{E0+i}, v{E0+i}')
            for i in R: e(f'v_pk_mul_f32 {vr(G+i,2)}, {vr(G+i,2)}, {vr(E0+i%8,2)}')
            pk=E0+8+4*k
            for i in range(4): e(f'v_cvt_pk_bf16_f32 v{pk+i}, v{G+2*i}, v{G+2*i+1}')
            if k==O('poll_k',0): pid=g.vm(f'buffer_load_dword v{pol}, v{vPS}, {srd(SWS)}, 0 offen sc1')
            if k==O('chk_k',3):
                check(pid,pol,0,'fs',61,vPS)
                for _ in range(O('apre',4)): aload(na[0]); na[0]+=1
            if k>O('chk_k',3) and k<O('amid_stop',5):
                for _ in range(O('amid',0)): aload(na[0]); na[0]+=1
            fst=g.vm(f'buffer_store_dwordx4 {vr(pk,4)}, v{vL16F}, {srd(SWS)}, s{16+h} offen offset:{pr*1024} sc1')
    stamp('ffn_epi'); print('w2n at ffn_epi',st['w2n'])
    assert st['w2n']>=4*NMV
    while st['pendC']: service(force=True)
    if O('chk_k',3)>5: check(pid,pol,0,'fs',61,vPS)
    while na[0]<O('apre2',4): aload(na[0]); na[0]+=1
    def drain(n):
        for _ in range(n):
            r=pump(1)
            if r=='blocked' and (st['pendC'] or st['pendRel']):
                service(force=True); service(force=True); r=pump(1)
    vT0=[vTa[0],T+20,T+21]; vT1=[vTa[1],T+22,T+23]
    for k in (1,2):
        e(f'v_add_u32 v{vT0[k]}, {65536*k}, v{vT0[0]}'); e(f'v_add_u32 v{vT1[k]}, {65536*k}, v{vT1[0]}')
    if not O('small0',0): addr2()
    stamp('p2s')
    def fflag():
        g.wait(vm=fst); g.vm(f'buffer_store_dword v{vNON}, v{vFS}, {srd(SWS)}, 0 offen offset:128 sc1'); stamp('fflag')
    if O('fflag_k',2)<0: fflag()
    g.wait_all_lg()
    wid={}
    def wread(k):
        u,ks=(k-16)>>1,k&1; gi=8+u
        assert st['w2n']>=4*gi+4,(k,st['w2n'])
        g.wait(vm=st['Flast'][gi]); row=st['Frow'][gi]
        for db in range(2):
            b=WR+8*(k%4)+4*db
            ad=(vT0,vT1)[db][row>>2]
            for rho in range(2):
                wid[k]=g.lg(f'ds_read_b64_tr_b16 {vr(b+2*rho,2)}, v{ad} offset:{(row&3)*16384+ks*2048+rho*1024}')
    wj=[T+4,T+5,T+6,T+7]; rd=[T+40,T+41]; SK=URE; dsk=[T+42+i for i in range(4)]
    def side_fin():
        y0,y1=T+16,T+17
        e(f'v_lshrrev_b32 v{y0}, 4, v{vM}'); e(f'v_lshlrev_b32 v{y0}, 14, v{y0}'); e(f'v_and_b32 v{y1}, 15, v{vM}'); yield
        e(f'v_lshl_add_u32 v{y0}, v{y1}, 8, v{y0}'); e(f'v_and_b32 v{y1}, 7, v{vM}'); e(f'v_lshlrev_b32 v{y1}, 4, v{y1}'); yield
        e(f'v_xor_b32 v{y1}, v{y1}, v{vHH16}'); e(f'v_add3_u32 v{wj[0]}, v{y0}, v{y1}, s{sM0R}'); yield
        for j in range(1,4): e(f'v_xor_b32 v{wj[j]}, {32*j}, v{wj[0]}')
        yield
        e(f'v_lshrrev_b32 v{y0}, 4, v{vL}'); e(f'v_and_b32 v{y1}, 15, v{vL}'); e(f'v_xor_b32 v{y1}, v{y1}, v{y0}'); yield
        e(f'v_lshlrev_b32 v{y1}, 4, v{y1}'); e(f'v_lshl_add_u32 v{y1}, v{y0}, 8, v{y1}'); yield
        e(f's_lshl_b32 s12, s{sW}, 14'); e(f's_add_u32 s12, s12, {ROW0}'); e(f'v_add_u32 v{rd[0]}, s12, v{y1}'); e(f'v_xor_b32 v{rd[1]}, 64, v{rd[0]}'); yield
        e(f's_lshl_b32 s13, s{sRH}, 8'); e(f's_lshl_b32 s12, s{sW}, 6'); e('s_add_u32 s12, s12, s13'); e(f'v_lshl_add_u32 v{y0}, v{y0}, 2, s12'); yield
        for it in range(4): gl=g.lg(f'ds_read_b32 v{vGe+it}, v{y0} offset:{G_L+16*it}')
        yield
        while 'xl' not in st or g.nvm-st['xl']<12: yield
        g.wait(vm=st['xl'])
        e(f'v_lshlrev_b32 v{dsk[0]}, 16, v{DS}'); e(f'v_and_b32 v{dsk[1]}, 0xffff0000, v{DS}'); yield
        e(f'v_lshlrev_b32 v{dsk[2]}, 16, v{DS+1}'); e(f'v_and_b32 v{dsk[3]}, 0xffff0000, v{DS+1}'); yield
        g.wait(lg=gl)
        for it in range(4):
            for h in range(2):
                a,b=SK+4*it+2*h,SK+4*it+2*h+1
                e(f'v_lshlrev_b32 v{a}, 16, v{XS+2*it+h}'); e(f'v_and_b32 v{b}, 0xffff0000, v{XS+2*it+h}')
                e(f'v_mul_f32 v{a}, v{a}, v{dsk[2*h]}'); yield
                e(f'v_mul_f32 v{b}, v{b}, v{dsk[2*h+1]}')
                e(f'v_cvt_pk_bf16_f32 v{b}, v{a}, v{b}')
                e(f'v_lshlrev_b32 v{a}, 16, v{b}'); yield
                e(f'v_and_b32 v{b}, 0xffff0000, v{b}')
                e(f'v_mul_f32 v{a}, v{a}, v{vGe+it}'); e(f'v_mul_f32 v{b}, v{b}, v{vGe+it}'); yield
    side=side_fin()
    pid2=None
    FK=O('fchk_k',12)
    KT=34 if O('amaj',1) else 38
    for k in range(KT):
        if (16+2*(NMV-8))<=k+2<38: wread(k+2)
        g.wait(vm=aid[k])
        if k>=(16+2*(NMV-8)): g.wait(lg=wid[k])
        if k in (0,8,16,24,32): stamp(f'k{k}')
        for db in range(2):
            for tb in range(2):
                acc=vr(ACC+16*(2*db+tb),16)
                Wf=ar(loc[k,db],4) if k<(16+2*(NMV-8)) else vr(WR+8*(k%4)+4*db,4)
                e(f'v_mfma_f32_32x32x16_bf16 {acc}, {Wf}, {ar(192+8*(k%8)+4*tb,4)}, {"0" if k==0 else acc}')
                next(side,None)
            if db==0:
                if k==FK: check(pid2,pol+1,128,'ff',59,vPF)
                lim=min(38,k+ALA+1) if k>=FK else min(16,k+ALA+1)
                cnt_=0
                while na[0]<lim and cnt_<O('acatch',2): aload(na[0]); na[0]+=1; cnt_+=1
                if k==FK-O('poll2_lead',4): pid2=g.vm(f'buffer_load_dword v{pol+1}, v{vPF}, {srd(SWS)}, 0 offen offset:128 sc1')
        if k==O('fflag_k',2): fflag()
        cur_n[0]+=6
        if st['w2n']<76 and k>=O('mix0',4): drain(O('mix',3))
        if k==O('small_at',9) and not O('small0',0): small_loads()
        if KT==34 and k in (32,33): wread(k+4)
    for _ in side: raise Exception('side_fin left')
    wq=[]
    if KT==34:
        for db in range(2):
            for tb in range(2):
                acc=vr(ACC+16*(2*db+tb),16)
                for k in range(34,38):
                    g.wait(vm=aid[k],lg=wid[k])
                    e(f'v_mfma_f32_32x32x16_bf16 {acc}, {vr(WR+8*(k%4)+4*db,4)}, {ar(192+8*(k%8)+4*tb,4)}, {acc}')
                    if k>=36:
                        for _ in range(2):
                            if wq: g.lg(wq.pop(0))
                wq+=[f'ds_write_b128 v{wj[j]}, {vr(ACC+16*(2*db+tb)+4*j,4)} offset:{db*128+tb*32768}' for j in range(4)]
    else:
        wq=[f'ds_write_b128 v{wj[j]}, {vr(ACC+16*(2*db+tb)+4*j,4)} offset:{db*128+tb*32768}' for db in range(2) for tb in range(2) for j in range(4)]
    stamp('p2_end')
    for t in wq: g.lg(t)
    g.wait_all_lg(); e('s_barrier'); stamp('red')
    g.vm(f'buffer_store_dword v{vNON}, v{vZa}, {srd(SWS)}, 0 offen offset:{Z_OFF} sc1')
    RB=ACC
    ids={}
    for it in range(4):
        for w2 in range(4):
            ids[it,w2]=g.lg(f'ds_read_b128 {vr(RB+16*it+4*w2,4)}, v{rd[it&1]} offset:{w2*4096+it*1024}')
    for it in range(4):
        g.wait(lg=ids[it,3])
        b=RB+16*it
        for i in (0,2): e(f'v_pk_add_f32 {vr(b+i,2)}, {vr(b+i,2)}, {vr(SK+4*it+i,2)}')
        for i in (0,2): e(f'v_pk_add_f32 {vr(b+4+i,2)}, {vr(b+4+i,2)}, {vr(b+8+i,2)}')
        for i in (0,2): e(f'v_pk_add_f32 {vr(b+i,2)}, {vr(b+i,2)}, {vr(b+12+i,2)}')
        for i in (0,2): e(f'v_pk_add_f32 {vr(b+i,2)}, {vr(b+i,2)}, {vr(b+4+i,2)}')
        e(f's_mov_b32 s12, {(16*(it&1)+4*(it>>1))*2048}')
        g.vm(f'buffer_store_dwordx4 {vr(b,4)}, v{vOa}, {srd(SOUT)}, s12 offen {O("outfl","sc1")}')
    if O('stamps'):
        stamp('st_iss')
        e('s_waitcnt vmcnt(0)'); stamp('end',True)
        e('s_memrealtime s[94:95]'); e('s_waitcnt lgkmcnt(0)'); e('v_writelane_b32 v39, s94, 63')
        e(f's_lshl_b32 s11, s2, 10'); e(f's_add_u32 s11, s11, {WS_SIZE}'); e(f's_add_u32 s{SWS+2}, s{SWS+2}, 0x40000')
        e(f'v_lshlrev_b32 v{T}, 2, v0')
        e(f'buffer_store_dword v39, v{T}, {srd(SWS)}, s11 offen')
        if O('dbg'):
            sel=['start','setup','B0','B4','B8','B12','1b_end','ssm_fin','ffn_epi','w2_issued','fs_ok','k16','p2_end','end']
            e('s_mov_b32 s60, s46'); e('s_mov_b32 s61, s47'); e('s_mov_b32 s62, 256'); e('s_mov_b32 s63, 0x20000')
            e('v_readlane_b32 s12, v39, 62'); e('v_readlane_b32 s13, v39, 0'); e('s_not_b32 s12, s12')
            e(f'v_mov_b32 v{T+1}, s94'); e(f'v_mov_b32 v{T+2}, s12'); e(f'v_mov_b32 v{T+3}, 0'); e(f'v_mov_b32 v{T+4}, {OOB:#x}')
            e(f'v_cmp_eq_u32 vcc, 0, v0'); e(f'v_cndmask_b32 v{T+3}, v{T+4}, v{T+3}, vcc')
            e(f'buffer_atomic_umax v{T+1}, v{T+3}, s[60:63], 0 offen'); e(f'buffer_atomic_umax v{T+2}, v{T+3}, s[60:63], 0 offen offset:4')
            e('s_cmp_eq_u32 s2, 100'); e('s_cbranch_scc0 L_end')
            for i,nm in enumerate(sel):
                e(f'v_readlane_b32 s12, v39, {stamps.index(nm)}'); e('s_sub_u32 s12, s12, s13'); e(f'v_mov_b32 v{T+1}, s12')
                e(f'buffer_store_dword v{T+1}, v{T+3}, s[60:63], 0 offen offset:{8+4*i}')
    if O('diag'):
        e('s_waitcnt vmcnt(0)')
        if O('diag')==2:
            e(f'v_mov_b32 v{T+31}, 0'); e(f'global_load_dword v{T+30}, v{T+31}, s[46:47] sc1'); e('s_waitcnt vmcnt(0)')
            e(f'v_readfirstlane_b32 s94, v{T+30}'); e('s_nop 3'); e('s_not_b32 s94, s94')
        if O('dpt'):
            e('s_waitcnt lgkmcnt(0)'); e('s_sub_u32 s12, s92, s94'); e('s_lshl_b32 s12, s12, 1')
            e('s_memrealtime s[92:93]'); e('s_waitcnt lgkmcnt(0)')
        else:
            e('s_memrealtime s[92:93]'); e('s_waitcnt lgkmcnt(0)'); e('s_sub_u32 s12, s92, s94')
        e('s_min_u32 s12, s12, 20000'); e('s_add_u32 s12, s12, s92')
        e('L_dg:'); e('s_memrealtime s[92:93]'); e('s_waitcnt lgkmcnt(0)'); e('s_sub_u32 s13, s92, s12'); e('s_cmp_lt_i32 s13, 0'); e('s_cbranch_scc1 L_dg')
    e('L_end:')
    e('s_endpgm')
    hdr=open('gated_mix__ssm_conv_s5__glu_gated_swiglu__prompt.s.ref').read().split('; Override')[0]
    out=hdr+'; @launch grid=(256,1,1) block=(256,1,1) lds=163840\n'
    out+="""; One fused launch, 256 workgroups (one per CU) x 4 waves, written by a generator script (own code):
"""
    out+=f'.amdgcn_target "amdgcn-amd-amdhsa--gfx950"\n.text\n.globl {NAME}\n.p2align 8\n.type {NAME},@function\n{NAME}:\n'
    out+=g.text()
    out+=f'.fill (32768+256-(.-{NAME}))/4, 4, 0xbf810000\n'
    out+=f'''.section .rodata,"a"
.p2align 6
.amdhsa_kernel {NAME}
  .amdhsa_next_free_vgpr 512
  .amdhsa_next_free_sgpr 102
  .amdhsa_accum_offset 256
  .amdhsa_group_segment_fixed_size 0
  .amdhsa_kernarg_size 136
  .amdhsa_user_sgpr_count 2
  .amdhsa_user_sgpr_kernarg_segment_ptr 1
  .amdhsa_system_sgpr_workgroup_id_x 1
.end_amdhsa_kernel
'''
    return out,g
if __name__=='__main__':
    import json
    opt=json.loads(sys.argv[2]) if len(sys.argv)>2 else {}
    out,g=gen(opt)
    open(sys.argv[1],'w').write(out)
    if g.stamps: json.dump(g.stamps,open(sys.argv[1]+'.names','w'))
    from collections import Counter
    print(len(g.ins),Counter(i.cls for i in g.ins), 'nops',sum(1 for i in g.ins if i.mn=='s_nop'))
```

```python
import sys
from asmlib import *
NAME='gated_mix__ssm_conv_s5__glu_gated_swiglu__prompt_kernel'
ROW0=8192; RING=40960; SLOT=24576; NS=5
Z_OFF=0; FL_OFF=0x40000; HE_OFF=0x10000; A2_OFF=0x80000; WS_SIZE=A2_OFF+16*4*160*1024
OOB=0x80000000
GW_L=0; XCH_L=1024; HIN_L=2816; E_L=3072; G_L=5120; PQ_L=5632; TRB_L=155648
LOG2E=0x3fb8aa3b; NLOG2E=0xbfb8aa3b; INV2PI=0x3e22f983
SPIN=200000
sW,sRT,sCG,sCT,sRH,sROT,sNON=4,5,6,7,8,9,10
SX,SW0,SW1,SW3,SCRE,SCIM,SW2,SWS,SHE,SOUT=52,56,60,64,68,72,76,80,84,88
sXB,sW0B,sM0X,sM0W,sM0F,sSO,sSO2=96,97,98,99,100,101,3
sCB,sW2B,sA2S,sA2L0,sA2L1,sCNT,sT0,sT1=34,35,36,37,38,39,40,41
sM0R,sSO3,sFST,sNL2E,sROTF=50,51,22,24,23
srd=lambda b:f's[{b}:{b+3}]'
vr=lambda b,n:f'v[{b}:{b+n-1}]'
ar=lambda b,n:f'a[{b}:{b+n-1}]'
vL,vM,vHH16,vL16=1,2,3,4
vNat=[5,6,7,8]; vXo=[9,10,11,12]; vWF=[13,14,15]
vRA=[16,17,18,19]; vRAw=[20,21,22,23]; vTR=[24,25,26]
vLr,vLi,vL16r,vL16i,vL128r,vL128i,vL1kr,vL1ki,vC2r,vNC2i,vM8=27,28,29,30,31,32,33,34,35,36,37
vCinv=40
vW2o=[42,43,44,45]; vHEo=46; vFLo=47
URE=48; UIM=64; ACC=80; WR=176; T=208
ZA=T+44
vFS,vNON,vTW,vTRd=T+36,T+37,T+38,T+39; vEX=38; vT8=T+41
def gen(opt=None):
    opt=opt or {}
    O=opt.get
    g=Gen(); e=g.e
    FS=O('fs',8)
    SEQ=O('seq','AAAAAAAAFFFFFFFF'); assert SEQ.count('A')==8 and SEQ.count('F')==8 and SEQ[0]=='A'
    POS=[(c,SEQ[:i].count(c)) for i,c in enumerate(SEQ)]
    for i,(c,q) in enumerate(POS): assert c=='A' or SEQ[:i].count('A')>q
    stamps=[]
    def stamp(name,flush=False):
        if O('dpt')==name: e('s_memrealtime s[92:93]')
        if not O('stamps'): return
        k=len(stamps); stamps.append(name)
        if k>=2: e(f'v_writelane_b32 v39, s{92+2*(k%2)}, {k-2}')
        e(f's_memtime s[{92+2*(k%2)}:{93+2*(k%2)}]')
        if flush:
            e('s_waitcnt lgkmcnt(0)')
            e(f'v_writelane_b32 v39, s{92+2*((k-1)%2)}, {k-1}'); e(f'v_writelane_b32 v39, s{92+2*(k%2)}, {k}')
    g.stamps=stamps
    e('s_cmp_ge_u32 s2, 256'); e('s_cbranch_scc1 L_end')
    if O('stamps'):
        e('s_memrealtime s[94:95]'); e('v_mov_b32 v39, 0'); e('s_waitcnt lgkmcnt(0)'); e('v_writelane_b32 v39, s94, 62')
        stamp('start')
    if O('diag'): e('s_memrealtime s[94:95]')
    e('s_load_dwordx16 s[16:31], s[0:1], 0')
    e('s_load_dwordx16 s[32:47], s[0:1], 64')
    e('s_load_dwordx2 s[48:49], s[0:1], 128')
    e('s_getpc_b64 s[50:51]')
    e('s_lshr_b32 s13, s2, 3')
    e('s_and_b32 s14, s13, 7'); e('s_lshl_b32 s14, s14, 12')
    e(f'v_lshl_add_u32 v{T}, v0, 4, s14')
    g.vm(f'global_load_dwordx4 {vr(T+4,4)}, v{T}, s[50:51]')
    PF0=O('pf0',0)
    pX,pB,pW=T+40,T+41,T+42
    def pfA():
        g.vm(f'global_load_dword v{T+43}, v{pX}, s[16:17]'); g.vm(f'global_load_dword v{T+43}, v{pB}, s[22:23]'); g.vm(f'global_load_dword v{T+43}, v{pB}, s[24:25]')
    def pfF():
        g.vm(f'global_load_dword v{T+43}, v{pW}, s[36:37]'); g.vm(f'global_load_dword v{T+43}, v{pW}, s[38:39]')
    if PF0:
        e('s_lshl_b32 s12, s2, 6'); e(f'v_lshrrev_b32 v{pX}, 2, v0'); e(f'v_add_lshl_u32 v{pX}, v{pX}, s12, 7')
        e('s_lshl_b32 s12, s2, 4'); e(f'v_lshrrev_b32 v{pB}, 4, v0'); e(f'v_add_lshl_u32 v{pB}, v{pB}, s12, 7')
        e('s_mul_i32 s12, s2, 43'); e(f'v_mul_u32_u24 v{pW}, 43, v0'); e(f'v_lshrrev_b32 v{pW}, 8, v{pW}'); e(f'v_add_lshl_u32 v{pW}, v{pW}, s12, 7')
        e('s_waitcnt lgkmcnt(0)')
        if PF0&1: pfA()
        if PF0&2: pfF()
        e(f's_load_dword s{sNON}, s[48:49], {Z_OFF}'); g.smem=True
        stamp('pf')
    e(f'v_lshrrev_b32 v{T+1}, 6, v0')
    e(f'v_and_b32 v{vL}, 63, v0')
    e(f'v_readfirstlane_b32 s{sW}, v{T+1}')
    if O('map','B')=='A':
        e('s_and_b32 s12, s2, 7')
        e(f's_and_b32 s{sRH}, s12, 1'); e('s_lshr_b32 s14, s12, 1')
        e(f's_lshl_b32 s{sRT}, s14, 2'); e('s_lshr_b32 s15, s13, 3'); e(f's_add_u32 s{sRT}, s{sRT}, s15')
        e(f's_and_b32 s{sCT}, s13, 7')
        e(f's_lshl_b32 s{sCG}, s{sRH}, 3'); e(f's_add_u32 s{sCG}, s{sCG}, s{sCT}')
        e(f's_lshl_b32 s{sROT}, s14, 1'); e(f's_and_b32 s11, s{sCT}, {O("rotmask",4)}'); e(f's_add_u32 s{sROT}, s{sROT}, s11')
    else:
        e(f's_and_b32 s12, s2, 4'); e(f's_lshl_b32 s{sRT}, s12, 1'); e('s_lshr_b32 s15, s2, 5'); e(f's_add_u32 s{sRT}, s{sRT}, s15')
        e('s_and_b32 s14, s13, 3')
        e(f's_and_b32 s11, s2, 3'); e(f's_lshl_b32 s{sCG}, s11, 2'); e(f's_add_u32 s{sCG}, s{sCG}, s14')
        e(f's_and_b32 s{sRH}, s2, 1'); e(f's_and_b32 s{sCT}, s2, 2'); e(f's_lshl_b32 s{sCT}, s{sCT}, 1'); e(f's_add_u32 s{sCT}, s{sCT}, s14')
        if O('ctx',5): e(f's_xor_b32 s{sCT}, s{sCT}, {O("ctx",5)}')
        ra,rb,rc,rd_=O('rot',[2,1,0,0])
        e(f's_mul_i32 s{sROT}, s14, {ra}')
        if O('rtmask',7)!=7: e(f's_and_b32 s15, s15, {O("rtmask",7)}')
        if rb: e(f's_mul_i32 s15, s15, {rb}'); e(f's_add_u32 s{sROT}, s{sROT}, s15')
        if rc: e(f's_lshr_b32 s12, s12, 2'); e(f's_mul_i32 s12, s12, {rc}'); e(f's_add_u32 s{sROT}, s{sROT}, s12')
        if rd_: e(f's_mul_i32 s11, s11, {rd_}'); e(f's_add_u32 s{sROT}, s{sROT}, s11')
    l3,l7,l4,hh,sw0=T+8,T+9,T+10,T+11,T+12
    e(f'v_lshrrev_b32 v{l3}, 3, v{vL}'); e(f'v_and_b32 v{l7}, 7, v{vL}'); e(f'v_lshrrev_b32 v{l4}, 4, v{vL}'); e(f'v_lshrrev_b32 v{hh}, 5, v{vL}')
    e(f'v_xor_b32 v{sw0}, v{l7}, v{l4}'); e(f'v_lshlrev_b32 v{sw0}, 4, v{sw0}')
    e(f'v_lshl_add_u32 v{vNat[0]}, v{l3}, 10, v{sw0}')
    e(f'v_xor_b32 v{vNat[1]}, 64, v{vNat[0]}'); e(f'v_add_u32 v{vNat[1]}, 7168, v{vNat[1]}')
    e(f'v_and_b32 v{T+13}, 3, v{l3}'); e(f'v_lshl_add_u32 v{T+13}, v{hh}, 4, v{T+13}')
    e(f'v_lshl_add_u32 v{vXo[0]}, v{T+13}, 10, v{sw0}')
    e(f'v_xor_b32 v{vXo[1]}, 64, v{vXo[0]}'); e(f'v_add_u32 v{vXo[1]}, 3072, v{vXo[1]}')
    e(f'v_add_u32 v{vXo[2]}, 6144, v{vXo[0]}'); e(f'v_add_u32 v{vXo[3]}, 6144, v{vXo[1]}')
    e(f's_lshl_b32 s{sXB}, s{sRT}, 17'); e(f's_lshl_b32 s11, s{sW}, 15'); e(f's_add_u32 s{sXB}, s{sXB}, s11')
    e(f's_lshl_b32 s{sW0B}, s{sCG}, 15'); e(f's_and_b32 s11, s{sW}, 1'); e('s_lshl_b32 s11, s11, 14'); e(f's_add_u32 s{sW0B}, s{sW0B}, s11')
    e(f's_lshl_b32 s{sM0X}, s{sW}, 12'); e(f's_add_u32 s{sM0X}, s{sM0X}, {RING}')
    e(f's_lshl_b32 s{sM0W}, s{sW}, 11'); e(f's_add_u32 s{sM0W}, s{sM0W}, {RING+16384}')
    def mksrd(b,p): e(f's_mov_b32 s{b}, s{p}'); e(f's_mov_b32 s{b+1}, s{p+1}')
    def srdc(b,size): e(f's_mov_b32 s{b+2}, {size}'); e(f's_mov_b32 s{b+3}, 0x20000')
    srdc(SX,2048*1024); srdc(SW0,512*1024)
    e(f's_cmp_lt_u32 s{sW}, 2')
    if not PF0: e('s_waitcnt lgkmcnt(0)')
    stamp('karg')
    if O('stamps'): e(f's_cmp_lt_u32 s{sW}, 2')
    mksrd(SX,16)
    if O('diag')==2:
        e('s_not_b32 s92, s94'); e(f'v_mov_b32 v{T+30}, s92'); e(f'v_mov_b32 v{T+31}, 0')
        e('s_mov_b64 exec, 1'); g.vm(f'global_atomic_umax v{T+31}, v{T+30}, s[46:47]'); e('s_mov_b64 exec, -1')
        e(f's_cmp_lt_u32 s{sW}, 2')
    e(f's_cselect_b32 s{SW0}, s22, s24'); e(f's_cselect_b32 s{SW0+1}, s23, s25')
    blk_last={}
    st={'barr':-1,'free':[0,1],'pendC':[],'pendRel':[],'Frow':{},'Flast':{},'w2n':0,'m0':None,'w2on':False}
    D=O('D',3)
    cur_n=[0]
    def setm0(base,c):
        if st['m0']!=(base,c):
            e(f's_add_u32 m0, s{base}, {c}'); st['m0']=(base,c)
    R4=O('r4',1)
    slotof=lambda p: p%NS if (p<8 or not R4) else [3,4,1,2][(p-8)%4]
    def streamP():
        for p in range(16):
            while (p>=O('pre',2) and st['barr']<p-(2 if (R4 and p>=12) else D)) or (p>=O('hold',9) and not st.get('burst')): yield 'blocked'
            sl=slotof(p); ty,q=POS[p]
            if p==8 and O('dwarm',1): g.vm(f'global_load_ushort v{T+43}, v{T+15}, s[32:33]')
            if ty=='A':
                e(f's_add_u32 s11, s{sROT}, {q}'); e('s_and_b32 s11, s11, 7'); e('s_lshl_b32 s11, s11, 7')
                e(f's_add_u32 s{sSO}, s{sXB}, s11'); e(f's_add_u32 s{sSO2}, s{sW0B}, s11')
                for a in range(4):
                    setm0(sM0X,sl*SLOT)
                    g.vm(f'buffer_load_dwordx4 v{vXo[a]}, {srd(SX)}, s{sSO} offen offset:{1024*a} lds'); yield
                for a in range(2):
                    setm0(sM0W,sl*SLOT)
                    blk_last[p]=g.vm(f'buffer_load_dwordx4 v{vNat[a]}, {srd(SW0)}, s{sSO2} offen offset:{1024*a} lds'); yield
            else:
                if p==O('pfw2',8):
                    e('s_mul_i32 s11, s2, 43'); e(f'v_mul_u32_u24 v{vTR[2]}, 43, v0'); e(f'v_lshrrev_b32 v{vTR[2]}, 8, v{vTR[2]}'); e(f'v_add_lshl_u32 v{vTR[2]}, v{vTR[2]}, s11, 7')
                    g.vm(f'buffer_load_dword v{T+43}, v{vTR[2]}, {srd(SW2)}, 0 offen')
                if q==3 and O('pf15',1) and O('pfw2',8)<0:
                    e('\n'.join([f's_cmp_eq_u32 s{sCG}, 15','s_cbranch_scc0 L_no15b',
                      f's_mul_i32 s11, s{sRT}, {88*1024}', f's_add_u32 s{SW1}, s{SW2}, s11', f's_addc_u32 s{SW1+1}, s{SW2+1}, 0',
                      f's_add_u32 s{SW3}, s{SW1}, {44*1024}', f's_addc_u32 s{SW3+1}, s{SW1+1}, 0',
                      f's_mov_b32 s{SW1+2}, {44*1024}', f's_cmp_eq_u32 s{sRT}, 15', f's_cselect_b32 s{SW3+2}, {12*1024}, s{SW1+2}',
                      f's_mov_b32 s{sROTF}, 5', 'L_no15b:']))
                e(f's_add_u32 s11, s{sROTF}, {q}'); e('s_and_b32 s11, s11, 7'); e(f's_mul_i32 s{sSO}, s11, s{sFST}')
                for mt,S_ in enumerate((SW1,SW3)):
                    for a in range(3):
                        setm0(sM0F,sl*SLOT+mt*12288)
                        if mt: e(f'v_xor_b32 v{vTR[2]}, 32, v{vWF[a]}')
                        blk_last[p]=g.vm(f'buffer_load_dwordx4 v{vTR[2] if mt else vWF[a]}, {srd(S_)}, s{sSO} offen offset:{1024*a} lds'); yield
        while True: yield 'done'
    vTa=[vRA[0],vRA[1]]
    NMV=O('nmv',11); loc={}; st['space']=[]
    def moveC(gi,row,last):
        sp=st['space'].pop(0)
        g.wait(vm=last)
        if gi<8:
            mt,cb,db=gi>>2,(gi>>1)&1,gi&1
            for s in range(4):
                kap=4*(2*cb+(s>>1))+2*mt+(s&1)
                if row<4: ad=vRAw[s]; off=row*16384
                else:
                    ad=T+44+s; off=0
                    e(f'v_add_u32 v{ad}, {row*16384}, v{vRAw[s]}')
                loc[kap,db]=sp+4*s
                i=g.lg(f'ds_read_b128 {ar(sp+4*s,4)}, v{ad} offset:{off}')
        else:
            u=gi-8
            for db in range(2):
                if row<4: ad=vTa[db]; off=row*16384
                else:
                    ad=T+44+db; off=0
                    e(f'v_add_u32 v{ad}, {row*16384}, v{vTa[db]}')
                for ks in range(2):
                    loc[16+2*u+ks,db]=sp+8*ks+4*db
                    for rho in range(2):
                        i=g.lg(f'ds_read_b64_tr_b16 {ar(sp+8*ks+4*db+2*rho,2)}, v{ad} offset:{off+ks*2048+rho*1024}')
        st['pendRel'].append((row,i))
    def service(force=False):
        for it in list(st['pendRel']):
            if force: g.wait(lg=it[1])
            if g.lg_done>=it[1]: st['free'].append(it[0]); st['pendRel'].remove(it)
        if st['pendC'] and st['space'] and (force or cur_n[0]-st['pendC'][0][3]>=O('cagen',20) or g.vm_done>=st['pendC'][0][2]):
            moveC(*st['pendC'].pop(0)[:3])
    def gran(gi,row):
        st['Frow'][gi]=row
        if gi>=8:
            e(f's_add_u32 s{sSO3}, s{sW2B}, {32*1024*(gi-8)}'); S_,vo=SW2,vW2o
        else:
            c=gi; mt,cb,db=c>>2,(c>>1)&1,c&1
            e(f's_add_u32 s{sSO3}, s{sCB}, {db*32*1024+cb*128}'); S_,vo=(SCIM if mt else SCRE),vNat
        for a in range(4):
            setm0(sM0R,row*16384)
            st['Flast'][gi]=g.vm(f'buffer_load_dwordx4 v{vo[a]}, {srd(S_)}, s{sSO3} offen offset:{1024*a} lds'); st['w2n']+=1
            if a==3 and gi<NMV: st['pendC'].append((gi,row,st['Flast'][gi],cur_n[0]))
            yield
    def streamW():
        for gi in range(19):
            while not st['free'] or st.get('quiet') or (st.get('wantrow') and st.get('trow') is None): yield 'blocked'
            yield from gran(gi,st['free'].pop(0))
        while True: yield 'done'
    SP=streamP(); SWs=streamW()
    def pump(n=1):
        r=None
        for _ in range(n):
            r=next(SP)
            if r and st['w2on']:
                service(); r=next(SWs)
        return r
    def barrier(q):
        e('s_barrier'); st['barr']=q
        rel={13:[4],14:[5],15:[6,7],16:[8],17:[2,3]} if O('b16',1) else {13:[4],14:[5],15:[6,7],17:[8,2,3]}
        if R4: rel={8:[2],14:[7],15:[8],16:[3,4],17:[5,6]}
        st['free']+=rel.get(q,[])
        if q>=O('w2from',9): st['w2on']=True
    if O('a0first',1): pump(6)
    e(f's_cmp_eq_u32 s{sW}, 0'); e(f's_cselect_b32 s11, s{sROT}, 0'); e('s_cselect_b32 s12, s42, s18'); e('s_cselect_b32 s13, s43, s19'); e(f's_cselect_b32 s14, 0, {ROW0}')
    e(f'v_add_u32 v{T+14}, s11, v{l3}'); e(f'v_and_b32 v{T+14}, 7, v{T+14}'); e(f'v_lshlrev_b32 v{T+14}, 7, v{T+14}')
    e(f's_cmp_eq_u32 s{sW}, 2'); e('s_cselect_b32 s12, s20, s12'); e('s_cselect_b32 s13, s21, s13')
    e(f's_cmp_eq_u32 s{sW}, 3'); e('s_cselect_b32 s12, s30, s12'); e('s_cselect_b32 s13, s31, s13')
    e(f'v_lshl_add_u32 v{T+14}, v{l7}, 4, v{T+14}')
    e(f's_lshl_b32 s11, s{sW}, 10'); e('s_add_u32 m0, s14, s11'); st['m0']=None
    e(f'v_and_b32 v{vM}, 31, v{vL}')
    gwid=g.vm(f'global_load_lds_dwordx4 v{T+14}, s[12:13]')
    if O('a0first',1): blk_last[0]=gwid
    e(f's_lshl_b32 s11, s{sCG}, 6')
    e(f'v_lshl_add_u32 v{T+15}, v{vM}, 1, s11')
    if not PF0: e(f's_load_dword s{sNON}, s[48:49], {Z_OFF}'); g.smem=True
    if not O('a0first',1): pump(O('a0pre',6))
    if PF0&4: pfF()
    stamp('p0')
    e(f'v_mov_b32 v{T+2}, 0'); e(f'v_mov_b32 v{T+3}, 0'); e(f'v_lshlrev_b32 v{vT8}, 3, v0')
    g.lg(f'ds_write_b64 v{vT8}, {vr(T+2,2)} offset:{XCH_L}')
    e(f'v_lshlrev_b32 v{vHH16}, 4, v{hh}')
    e(f's_lshl_b32 s{sM0R}, s{sW}, 12'); e(f's_add_u32 s{sM0R}, s{sM0R}, {ROW0}')
    e(f'v_bfe_u32 v{T+20}, v{vM}, 1, 3'); e(f'v_xor_b32 v{T+20}, v{T+20}, v{hh}'); e(f'v_lshlrev_b32 v{T+20}, 4, v{T+20}')
    e(f'v_lshl_add_u32 v{vRA[0]}, v{vM}, 7, v{T+20}')
    for s in range(1,4): e(f'v_xor_b32 v{vRA[s]}, {32*s}, v{vRA[0]}')
    XA2=[T+24+s for s in range(4)]; WA=[vRA,[T+28+s for s in range(4)],[T+32+s for s in range(4)]]
    for s in range(4):
        e(f'v_add_u32 v{vRAw[s]}, s{sM0R}, v{vRA[s]}')
        e(f'v_add_u32 v{XA2[s]}, {RING-ROW0+2*SLOT}, v{vRAw[s]}')
        e(f'v_add_u32 v{WA[1][s]}, {RING+16384+2*SLOT}, v{vRA[s]}'); e(f'v_add_u32 v{WA[2][s]}, {RING+16384+4*SLOT}, v{vRA[s]}')
        e(f'v_add_u32 v{vRA[s]}, {RING+16384}, v{vRA[s]}')
    PX=[[WR+s for s in range(4)],[WR+4+s for s in range(4)]]
    for s in range(4): e(f'v_xor_b32 v{PX[0][s]}, 0x1000, v{vRAw[s]}'); e(f'v_xor_b32 v{PX[1][s]}, 0x1000, v{XA2[s]}')
    vGA=T+40
    e(f'v_xor_b32 v{T+20}, v{vL}, v{l4}'); e(f'v_and_b32 v{T+20}, 1, v{T+20}'); e(f'v_mul_u32_u24 v{T+20}, 1056, v{T+20}'); e(f'v_add_u32 v{vGA}, v{T+20}, v{vHH16}')
    def side_setup():
        L=[]; A=L.append
        def mk(b,p): A(f's_mov_b32 s{b}, s{p}'); A(f's_mov_b32 s{b+1}, s{p+1}')
        def sc(b,size): A(f's_mov_b32 s{b+2}, {size}'); A(f's_mov_b32 s{b+3}, 0x20000')
        for b,p,size in [(SW1,36,512*2752),(SW3,38,512*2752),(SCRE,26,512*1024),(SCIM,28,512*1024),(SW2,40,1376*1024),(SWS,48,WS_SIZE),(SOUT,44,2048*2048)]:
            mk(b,p); sc(b,size)
        sc(SHE,8192)
        A(f's_mul_i32 s{sM0F}, s{sW}, 3072'); A(f's_add_u32 s{sM0F}, s{sM0F}, {RING}')
        A(f's_mov_b32 s{sFST}, {64*2752}'); A(f's_mov_b32 s{sROTF}, s{sROT}')
        A(f'v_lshlrev_b32 v{vL16}, 4, v{vL}'); A(f'v_lshlrev_b32 v{vM8}, 3, v{vM}')
        A(f's_mul_i32 s15, s{sW}, {16*2752}'); A(f's_mul_i32 s12, s{sCG}, 192'); A('s_add_u32 s15, s15, s12')
        A(f's_mul_i32 s12, s{sCG}, 12'); A('s_movk_i32 s13, 2752'); A(f'v_mov_b32 v{T+23}, {OOB:#x}')
        for a in range(3):
            A(f'v_add_u32 v{T+20}, {64*a}, v{vL}')
            A(f'v_mul_u32_u24 v{T+21}, 43691, v{T+20}'); A(f'v_lshrrev_b32 v{T+21}, 19, v{T+21}')
            A(f'v_mul_u32_u24 v{T+22}, 12, v{T+21}'); A(f'v_sub_u32 v{T+22}, v{T+20}, v{T+22}')
            A(f'v_mul_u32_u24 v{T+21}, s13, v{T+21}')
            A(f'v_lshl_add_u32 v{T+21}, v{T+22}, 4, v{T+21}')
            A(f'v_add_u32 v{T+22}, s12, v{T+22}')
            A(f'v_cmp_gt_u32 vcc, 172, v{T+22}')
            A(f'v_add_u32 v{T+21}, s15, v{T+21}')
            if a: A(f'v_subrev_u32 v{T+21}, {1024*a}, v{T+21}')
            A(f'v_cndmask_b32 v{vWF[a]}, v{T+23}, v{T+21}, vcc')
        if O('pf15',1):
            A('\n'.join([f's_cmp_eq_u32 s{sCG}, 15','s_cbranch_scc0 L_no15',
              f's_lshl_b32 s12, s{sRT}, 15', f's_add_u32 s{SW1}, s26, s12', f's_addc_u32 s{SW1+1}, s27, 0',
              f's_add_u32 s{SW3}, s28, s12', f's_addc_u32 s{SW3+1}, s29, 0',
              f's_mov_b32 s{SW1+2}, 0x8000', f's_mov_b32 s{SW3+2}, 0x8000', f's_mov_b32 s{sROTF}, 0',
              f's_movk_i32 s{sFST}, 12288', f's_mul_i32 s12, s{sW}, 3072',
              f'v_lshl_add_u32 v{vWF[0]}, v{vL}, 4, s12', f'v_mov_b32 v{vWF[1]}, v{vWF[0]}', f'v_mov_b32 v{vWF[2]}, v{vWF[0]}',
              'L_no15:']))
        r_,c_,g1=T+20,T+21,T+22
        A(f'v_bfe_u32 v{r_}, v{vL}, 2, 2'); A(f'v_and_b32 v{c_}, 3, v{vL}'); A(f'v_and_b32 v{g1}, 1, v{l4}')
        A(f'v_lshl_add_u32 v{T+19}, v{hh}, 3, v{r_}'); A(f'v_mul_u32_u24 v{T+19}, 192, v{T+19}')
        A(f'v_lshl_add_u32 v{T+19}, v{c_}, 3, v{T+19}')
        A(f's_and_b32 s12, s{sW}, 1'); A('s_mul_i32 s13, s12, 96'); A(f's_add_u32 s13, s13, {RING}'); A(f'v_add_u32 v{T+19}, s13, v{T+19}')
        A('s_lshl_b32 s12, s12, 6'); A(f's_sub_u32 s13, {12288+32}, s12'); A(f's_add_u32 s12, s12, {12288-32}')
        A(f'v_mad_u32_u24 v{vTR[0]}, v{g1}, s13, v{T+19}'); A(f'v_mad_u32_u24 v{vTR[1]}, v{g1}, s12, v{T+19}')
        A(f's_lshl_b32 s12, s{sCG}, 13'); A(f's_add_u32 s12, s12, {HE_OFF}')
        A(f's_add_u32 s{SHE}, s48, s12\ns_addc_u32 s{SHE+1}, s49, 0')
        A(f's_lshl_b32 s{sCB}, s{sCT}, 16'); A(f's_lshl_b32 s12, s{sW}, 8'); A(f's_add_u32 s{sCB}, s{sCB}, s12')
        A(f's_mul_i32 s{sW2B}, s{sW}, {352*1024}'); A(f's_lshl_b32 s12, s{sCT}, 7'); A(f's_add_u32 s{sW2B}, s{sW2B}, s12')
        A(f's_lshl_b32 s13, s{sRT}, 2'); A(f's_add_u32 s12, s13, s{sW}'); A(f's_mul_i32 s{sA2S}, s12, {160*1024}'); A(f's_add_u32 s{sA2S}, s{sA2S}, {A2_OFF}')
        A(f's_lshl_b32 s12, s{sRH}, 1'); A('s_add_u32 s12, s12, s13'); A(f's_mul_i32 s{sA2L0}, s12, {160*1024}'); A(f's_add_u32 s{sA2L0}, s{sA2L0}, {A2_OFF}')
        A(f's_add_u32 s{sA2L1}, s{sA2L0}, {160*1024}')
        A(f's_mov_b32 s{sNL2E}, {NLOG2E:#x}')
        A(f'v_add_u32 v{vNat[2]}, {2*7168}, v{vNat[0]}'); A(f'v_add_u32 v{vNat[3]}, {2*7168}, v{vNat[1]}')
        A(f'v_and_b32 v{g1}, 1, v{l4}')
        A(f'v_lshlrev_b32 v{T+19}, 2, v{g1}'); A(f'v_xor_b32 v{T+19}, v{T+19}, v{l7}'); A(f'v_lshlrev_b32 v{T+19}, 4, v{T+19}')
        A(f'v_lshl_add_u32 v{vW2o[0]}, v{l3}, 10, v{T+19}')
        for a in range(1,4): A(f'v_add_u32 v{vW2o[a]}, {7168*a}, v{vW2o[0]}')
        A(f's_sub_u32 s12, 15, s{sRT}'); A('s_lshl_b32 s12, s12, 9')
        A(f'v_lshl_add_u32 v{T+20}, v{vM}, 4, s12')
        A(f'v_cmp_eq_u32 vcc, s{sW}, v{l3}')
        A(f'v_lshl_add_u32 v{vHEo}, v{vHH16}, 6, v{T+20}'); A(f's_lshl_b32 s12, s{sW}, 11'); A('s_add_u32 s12, s12, 512'); A(f'v_add_u32 v{vHEo}, s12, v{vHEo}')
        A(f'v_cndmask_b32 v{T+10}, v{T+23}, v{T+20}, vcc')
        A(f's_lshl_b32 s15, s{sRT}, 1'); A(f's_lshr_b32 s12, s{sW}, 1'); A('s_add_u32 s12, s12, s15'); A(f's_lshl_b32 s12, s12, {FS+5 if FS>2 else 8}')
        A(f's_and_b32 s13, s{sW}, 1'); A(f's_lshl_b32 s14, s{sCG}, 1'); A('s_add_u32 s13, s13, s14'); A(f's_lshl_b32 s13, s13, {FS}')
        A('s_add_u32 s12, s12, s13'); A(f's_add_u32 s12, s12, {FL_OFF}'); A(f'v_lshl_add_u32 v{T+20}, v{vL}, 2, s12')
        A(f'v_cmp_gt_u32 vcc, {32 if FS>2 else 1}, v{vL}'); A(f's_add_u32 s15, s15, s{sRH}')
        A(f's_lshl_b32 s15, s15, {FS+5 if FS>2 else 8}'); A(f's_add_u32 s15, s15, {FL_OFF}'); A(f'v_cndmask_b32 v{vFS}, v{T+23}, v{T+20}, vcc')
        A(f'v_lshl_add_u32 v{vFLo}, v{vM}, {FS}, s15')
        A(f'v_lshlrev_b32 v{vTW}, 6, v{vM}'); A(f'v_lshl_add_u32 v{vTW}, v{vHH16}, 1, v{vTW}'); A(f'v_bfe_u32 v{T+20}, v{vM}, 1, 2'); A(f'v_lshlrev_b32 v{T+20}, 4, v{T+20}'); A(f'v_xor_b32 v{vTW}, v{T+20}, v{vTW}'); A(f'v_add_u32 v{vTW}, s{sM0R}, v{vTW}')
        A(f'v_bfe_u32 v{vTRd}, v{vL}, 2, 2'); A(f'v_lshlrev_b32 v{vTRd}, 6, v{vTRd}')
        A(f'v_lshl_add_u32 v{vTRd}, v{vHH16}, 5, v{vTRd}'); A(f'v_and_b32 v{T+20}, 1, v{vL}')
        A(f'v_lshl_add_u32 v{vTRd}, v{T+20}, 5, v{vTRd}'); A(f'v_and_b32 v{T+20}, 16, v{vL}'); A(f'v_add_u32 v{vTRd}, v{T+20}, v{vTRd}')
        A(f'v_and_b32 v{T+20}, 2, v{vL}'); A(f'v_lshl_add_u32 v{vTRd}, v{T+20}, 2, v{vTRd}'); A(f'v_and_b32 v{T+20}, 8, v{vL}'); A(f'v_lshlrev_b32 v{T+20}, 1, v{T+20}'); A(f'v_xor_b32 v{vTRd}, v{T+20}, v{vTRd}'); A(f'v_add_u32 v{vTRd}, s{sM0R}, v{vTRd}')
        A(f's_lshl_b32 s12, s{sW}, 2'); A(f's_sub_u32 s12, s{sRT}, s12'); A(f'v_lshrrev_b32 v{vEX}, 3, v{vHH16}'); A(f'v_sub_u32 v{vEX}, s12, v{vEX}')
        A(f'v_max_i32 v{vEX}, 0, v{vEX}'); A(f'v_min_i32 v{vEX}, 2, v{vEX}'); A(f'v_lshlrev_b32 v{vEX}, 1, v{vEX}')
        A(f's_lshl_b32 s{sT0}, s{sCG}, 12'); A(f's_add_u32 s{sT0}, s{sT0}, s{sA2S}')
        A(f's_mul_i32 s{sT1}, s{sCG}, {6*1024}'); A(f's_add_u32 s{sT1}, s{sT1}, s{sA2S}')
        A(f's_and_b32 s12, s{sW}, 1'); A('s_mul_i32 s13, s12, 3072'); A(f's_add_u32 s16, s{sT1}, s13'); A(f's_add_u32 s16, s16, {64*1024}'); A(f's_mul_i32 s12, s12, {2*160*1024}'); A(f's_add_u32 s17, s16, {160*1024}'); A('s_sub_u32 s17, s17, s12')
        A(f's_lshl_b32 s12, s{sW}, 14'); A(f's_add_u32 s26, s{sA2L0}, s12'); A(f's_add_u32 s27, s{sA2L1}, s12')
        A(f's_mul_i32 s12, s{sW}, {22*1024}'); A(f's_add_u32 s12, s12, {64*1024}'); A(f's_add_u32 s28, s{sA2L0}, s12'); A(f's_add_u32 s29, s{sA2L1}, s12')
        A(f's_lshl_b32 s12, s{sW}, 7'); A(f'v_lshl_add_u32 v{T+42}, v{vM}, 2, s12')
        A(f's_mul_i32 s{sNON}, s{sNON}, 1664525'); A(f's_add_u32 s{sNON}, s{sNON}, 1013904223')
        A(f's_cmp_eq_u32 s{sNON}, 0\ns_cselect_b32 s{sNON}, 1013904223, s{sNON}')
        return L
    Ls=side_setup()
    npre=O('setup_pre',95)
    Ls.append(f'v_mov_b32 v{vNON}, s{sNON}')
    print('setup list',len(Ls))
    for i,t in enumerate(Ls[:npre]):
        e(t)
        if i==29 and O('touch',0):
            e(f'v_mov_b32 v{T+19}, 0')
            for S_ in (SW1,SW3,SCRE,SCIM,SW2,SWS): g.vm(f'buffer_load_dword v{T+43}, v{T+19}, {srd(S_)}, 0 offen')
            e(f's_mul_i32 s12, s{sRT}, {640*1024}'); e(f's_add_u32 s12, s12, {A2_OFF}'); e(f's_add_u32 s13, s12, {639*1024}'); e(f's_lshl_b32 s14, s{sRT}, 18')
            g.vm(f'buffer_load_dword v{T+43}, v{T+19}, {srd(SWS)}, s12 offen'); g.vm(f'buffer_load_dword v{T+43}, v{T+19}, {srd(SWS)}, s13 offen')
            g.vm(f'buffer_load_dword v{T+43}, v{T+19}, {srd(SOUT)}, s14 offen')
    g.wait_all_lg()
    stamp('setup')
    pump(6*O('pre',2)-O('a0pre',6))
    if PF0&8: pfF()
    stamp('p1')
    def side_params():
        for i,t in enumerate(Ls[npre:]):
            e(t)
            if i%4==3: yield
        pl=[g.lg(f'ds_read_u16 v{T+16+i}, v{T+15} offset:{ROW0+1024*(i+1)}') for i in range(3)]
        while g.lg_done<pl[2]: yield
        lre,lim,dt=T+16,T+17,T+18
        a_,b_,t0,t1=T,T+1,T+2,T+3
        L=[]; A=L.append
        for r in (lre,lim,dt): A(f'v_lshlrev_b32 v{r}, 16, v{r}')
        A(f'v_mul_f32 v{dt}, {LOG2E:#x}, v{dt}'); A(f'v_exp_f32 v{dt}, v{dt}')
        A(f'v_mul_f32 v{t0}, v{lre}, v{lre}')
        A(f'v_cvt_pk_bf16_f32 v{dt}, v{dt}, v{dt}'); A(f'v_lshlrev_b32 v{dt}, 16, v{dt}')
        A(f'v_mul_f32 v{a_}, v{dt}, v{lre}'); A(f'v_mul_f32 v{b_}, v{dt}, v{lim}')
        A(f'v_fma_f32 v{dt}, v{lim}, v{lim}, v{t0}'); A(f'v_rcp_f32 v{dt}, v{dt}')
        A(f'v_mul_f32 v{a_}, {LOG2E:#x}, v{a_}'); A(f'v_exp_f32 v{a_}, v{a_}')
        A(f'v_mul_f32 v{b_}, {INV2PI:#x}, v{b_}'); A(f'v_rndne_f32 v{t0}, v{b_}'); A(f'v_sub_f32 v{b_}, v{b_}, v{t0}')
        A(f'v_cos_f32 v{t0}, v{b_}'); A(f'v_sin_f32 v{t1}, v{b_}')
        A(f'v_add_f32 v{dt}, v{dt}, v{dt}')
        A(f'v_mul_f32 v{vLr}, v{a_}, v{t0}'); A(f'v_mul_f32 v{vLi}, v{a_}, v{t1}')
        A(f'v_add_f32 v{a_}, -1.0, v{vLr}')
        A(f'v_mul_f32 v{vNC2i}, v{vLi}, v{lre}'); A(f'v_mul_f32 v{vC2r}, v{a_}, v{lre}')
        A(f'v_fma_f32 v{vNC2i}, v{a_}, v{lim}, -v{vNC2i}'); A(f'v_fma_f32 v{vC2r}, v{vLi}, v{lim}, v{vC2r}')
        A(f'v_mul_f32 v{vNC2i}, v{vNC2i}, v{dt}'); A(f'v_mul_f32 v{vC2r}, v{vC2r}, v{dt}')
        def csq(dr,di,sr,si,n):
            for k in range(n):
                A(f'v_mul_f32 v{t0}, v{si}, v{si}'); A(f'v_mul_f32 v{t1}, v{sr}, v{si}')
                A(f'v_fma_f32 v{dr}, v{sr}, v{sr}, -v{t0}'); A(f'v_add_f32 v{di}, v{t1}, v{t1}')
                sr,si=dr,di
        csq(vL16r,vL16i,vLr,vLi,4); csq(vL128r,vL128i,vL16r,vL16i,3); csq(vL1kr,vL1ki,vL128r,vL128i,1)
        for i,t in enumerate(L):
            e(t)
            if i&1: yield
    NLi,NL16i,NL128i,NC2r=vXo
    def cfma_ip(ar_,ai_,lr,li,nli,sr,si):
        e(f'v_fmac_f32 v{ar_}, v{lr}, v{sr}'); e(f'v_fmac_f32 v{ai_}, v{lr}, v{si}')
        e(f'v_fmac_f32 v{ar_}, v{nli}, v{si}'); e(f'v_fmac_f32 v{ai_}, v{li}, v{sr}')
    def check(pid,reg,off,tag,lane,vP):
        e(f's_mov_b32 s{sCNT}, 0')
        g.wait(vm=pid)
        e(f'L_{tag}_chk:')
        e(f'v_cmp_ne_u32 vcc, s{sNON}, v{reg}')
        e('s_nop 1')
        e(f's_cbranch_vccz L_{tag}_ok')
        e(f's_add_u32 s{sCNT}, s{sCNT}, 1'); e(f's_cmp_gt_u32 s{sCNT}, {SPIN}'); e(f's_cbranch_scc1 L_{tag}_ok')
        e('s_sleep 1')
        e(f'buffer_load_dword v{reg}, v{vP}, {srd(SWS)}, 0 offen offset:{off} sc1')
        e('s_waitcnt vmcnt(0)'); e(f's_branch L_{tag}_chk')
        e(f'L_{tag}_ok:'); stamp(tag+'_ok')
        if O('stamps'): e(f'v_writelane_b32 v39, s{sCNT}, {lane}')
    vq=[]
    def cf(ar_,ai_,lr,li,nli,sr,si):
        e(f'v_fmac_f32 v{ar_}, v{lr}, v{sr}'); yield
        e(f'v_fmac_f32 v{ai_}, v{lr}, v{si}'); yield
        e(f'v_fmac_f32 v{ar_}, v{nli}, v{si}'); yield
        e(f'v_fmac_f32 v{ai_}, v{li}, v{sr}'); yield
    def seq(L):
        for t in L:
            e(t); yield
    def burst():
        for t in [f'v_xor_b32 v{NLi}, 0x80000000, v{vLi}',f'v_xor_b32 v{NL16i}, 0x80000000, v{vL16i}',f'v_mov_b32 v{T+13}, s{sNON}',f'v_mov_b32 v{T+15}, s{sNON}']: e(t)
        z=T+6; x0,x1=T+4,T+5
        fill=[f'v_and_b32 v{z+1}, 16, v{vL}',f'v_cmp_eq_u32 vcc, 0, v{z+1}',f'v_xor_b32 v{NL128i}, 0x80000000, v{vL1ki}',f'v_bfe_u32 v{x0}, v{vL}, 2, 2',
            f'v_cndmask_b32 v{z}, v{ZA+1}, v{ZA}, vcc',f'v_cvt_pk_bf16_f32 v{z}, v{z}, v{z}',f'v_lshlrev_b32 v{z}, 16, v{z}',
            f'v_mul_f32 v{z}, s{sNL2E}, v{z}',f'v_exp_f32 v{z}, v{z}',f'v_add_f32 v{z}, 1.0, v{z}',f'v_rcp_f32 v{z}, v{z}',
            f'v_cvt_pk_bf16_f32 v{z}, v{z}, v{z}',f'v_lshlrev_b32 v{z}, 16, v{z}',
            f'v_sub_f32 v{z+1}, 1.0, v{z}',f'v_cvt_pk_bf16_f32 v{z+1}, v{z+1}, v{z+1}',f'v_lshlrev_b32 v{z+1}, 16, v{z+1}',
            f'v_rcp_f32 v{vCinv}, v{z+1}',f'v_lshlrev_b32 v{x0}, 7, v{x0}',f'v_min_f32 v{vCinv}, 0x7e967699, v{vCinv}',f'v_xor_b32 v{T+8}, 128, v{T+42}',
            f'v_lshl_add_u32 v{x0}, v{vHH16}, 5, v{x0}',
            f'v_and_b32 v{x1}, 8, v{vL}',f'v_lshl_add_u32 v{x0}, v{x1}, 3, v{x0}',f'v_and_b32 v{x1}, 16, v{vL}',f'v_lshl_add_u32 v{x0}, v{x1}, 1, v{x0}',
            f'v_and_b32 v{x1}, 3, v{vL}',f'v_lshl_add_u32 v{x0}, v{x1}, 3, v{x0}',f'v_add_u32 v{vTa[0]}, s{sM0R}, v{x0}',f'v_xor_b32 v{vTa[1]}, 64, v{vTa[0]}',
            f'v_mov_b32 v{T}, v{vC2r}',f'v_mov_b32 v{T+1}, v{vNC2i}']
        for t in range(1,16):
            e(f'v_fmac_f32 v{URE+t}, v{vLr}, v{URE+t-1}'); e(f'v_fmac_f32 v{UIM+t}, v{vLr}, v{UIM+t-1}'); e(fill.pop(0))
            e(f'v_fmac_f32 v{URE+t}, v{NLi}, v{UIM+t-1}'); e(f'v_fmac_f32 v{UIM+t}, v{vLi}, v{URE+t-1}'); e(fill.pop(0))
        e(f'v_mov_b32 v{T+2}, v{URE+15}'); e(f'v_mov_b32 v{T+3}, v{UIM+15}')
        for t in fill: e(t)
        g.lg(f'ds_write_b64 v{vT8}, {vr(T+2,2)} offset:{E_L}'); lw=g.lg(f'ds_write_b32 v{T+42}, v{z} offset:{G_L}')
        st['tra']=True
        def coef(u):
            o=T+32+2*((u>>1)&1)
            return [f'v_pk_mul_f32 {vr(o,2)}, {vr(UIM+u,2)}, {vr(T,2)} op_sel:[0,1] op_sel_hi:[1,1]',
                    f'v_pk_mul_f32 {vr(UIM+u,2)}, {vr(UIM+u,2)}, {vr(T,2)} op_sel_hi:[1,0] neg_lo:[0,1] neg_hi:[0,1]',
                    f'v_pk_fma_f32 {vr(UIM+u,2)}, {vr(URE+u,2)}, {vr(T,2)}, {vr(UIM+u,2)} op_sel:[0,1,0] op_sel_hi:[1,1,1]',
                    f'v_pk_fma_f32 {vr(URE+u,2)}, {vr(URE+u,2)}, {vr(T,2)}, {vr(o,2)} op_sel_hi:[1,0,1]']
        def coef2(u):
            a,b=coef(u),coef(u+2)
            for i in range(4): e(a[i]); e(b[i])
        coef2(0)
        g.wait(lg=lw); e('s_barrier')
        ids=[g.lg(f'ds_read_b64 {vr(T+16+2*s,2)}, v{vM8} offset:{E_L+256*s}') for s in range(8)]
        e(f's_lshl_b32 s12, s{sW}, 7'); e(f'v_add_u32 v{x0}, s12, v{vHH16}')
        for j in range(4): gi_=g.lg(f'ds_read_b128 {vr(WR+4*j,4)}, v{x0} offset:{G_L+32*j}')
        gi_=g.lg(f'ds_read_b32 v{vCinv+1}, v{T+8} offset:{G_L}')
        coef2(4); coef2(8); coef2(12)
        g.wait(lg=gi_)
        c1=vCinv+1
        for t in [f'v_sub_f32 v{c1}, 1.0, v{c1}',f'v_cvt_pk_bf16_f32 v{c1}, v{c1}, v{c1}',f'v_lshlrev_b32 v{c1}, 16, v{c1}',f'v_rcp_f32 v{c1}, v{c1}',f'v_min_f32 v{c1}, 0x7e967699, v{c1}']: e(t)
        for u in range(0,16,2):
            e(f'v_pk_mul_f32 {vr(URE+u,2)}, {vr(URE+u,2)}, {vr(WR+u,2)}'); e(f'v_pk_mul_f32 {vr(UIM+u,2)}, {vr(UIM+u,2)}, {vr(WR+u,2)}')
        for s in range(1,8): cfma_ip(T+16+2*s,T+17+2*s,vL16r,vL16i,NL16i,T+14+2*s,T+15+2*s)
        e(f'v_mov_b32 v{T+12}, v{T+30}'); e(f'v_mov_b32 v{T+14}, v{T+31}')
        st['burst']=True
        pump(O('bpump',6))
        g.vm(f'buffer_store_dwordx4 {vr(T+12,4)}, v{T+10}, {srd(SHE)}, 0 offen sc1'); stamp('he_pub')
    def slot():
        if st.get('wantrow') and st.get('trow') is None:
            service()
            if st['free']: st['trow']=st['free'].pop(0)
        if vq:
            f=vq.pop(0)
            if f: f(); return None
        return pump(1)
    hel=lambda jj:f'buffer_load_dwordx4 {vr(T+16+4*jj,4)}, v{vHEo}, {srd(SHE)}, 0 offen offset:{512*jj} sc1'
    he={}
    def hecheck():
        cnt=T+8
        e(f's_mov_b32 s{sCNT}, 0')
        g.wait(vm=he[1])
        e('L_he_chk:')
        e(f'v_mov_b32 v{cnt}, 0')
        for jj in range(2):
            e(f'v_cmp_eq_u32 vcc, s{sNON}, v{T+16+4*jj+1}'); e(f'v_cmp_eq_u32 s[12:13], s{sNON}, v{T+16+4*jj+3}')
            e(f'v_addc_co_u32 v{cnt}, vcc, 0, v{cnt}, vcc'); e(f'v_addc_co_u32 v{cnt}, s[12:13], 0, v{cnt}, s[12:13]')
        e(f'v_cmp_ne_u32 vcc, v{cnt}, v{vEX}')
        e('s_nop 1')
        e('s_cbranch_vccz L_he_ok')
        e(f's_add_u32 s{sCNT}, s{sCNT}, 1'); e(f's_cmp_gt_u32 s{sCNT}, {SPIN}'); e('s_cbranch_scc1 L_he_ok')
        e('s_sleep 1')
        for jj in range(2): e(hel(jj))
        e('s_waitcnt vmcnt(0)'); e('s_branch L_he_chk')
        e('L_he_ok:'); stamp('he_ok')
        if O('stamps'): e(f'v_writelane_b32 v39, s{sCNT}, 60')
        for t in [f'v_fma_f32 v{T+8}, v{vL128r}, v{T+20}, v{T+16}',f'v_fma_f32 v{T+9}, v{vL128r}, v{T+22}, v{T+18}',
                  f'v_fma_f32 v{T+8}, -v{vL128i}, v{T+22}, v{T+8}',f'v_fmac_f32 v{T+9}, v{vL128i}, v{T+20}']: e(t)
        return g.lg(f'ds_write_b64 v{vT8}, {vr(T+8,2)} offset:{PQ_L}')
    GG=T+16; WRe,WIm,L2=T,T+4,T+8; vPF,vPS=vXo[3],vEX
    def side2():
        st['rate']=O('rate2',[6,6,3])
        while cur_n[0]<O('he_at',110): yield 'gap'
        for jj in range(2): vq.append(lambda jj=jj: he.__setitem__(jj,g.vm(hel(jj))))
        while cur_n[0]<O('he_chk',132): yield 'gap'
        st['elw']=hecheck(); b0=st['barr']; yield 'gap'
        y=T+32
        yield from seq([f's_mul_i32 s12, s{sW}, 11','s_mul_i32 s13, s12, 43691','s_lshr_b32 s13, s13, 17','s_lshl_b32 s13, s13, 1',
            's_add_u32 s12, s12, 10','s_mul_i32 s14, s12, 43691','s_lshr_b32 s14, s14, 17','s_lshl_b32 s14, s14, 1','s_add_u32 s14, s14, 1',
            f'v_max_u32 v{y}, s13, v{vM}',f'v_min_u32 v{y}, s14, v{y}',f'v_sub_u32 v{y}, v{y}, v{vM}',f'v_lshl_add_u32 v{vPF}, v{y}, {FS}, v{vFLo}',
            f's_lshl_b32 s13, s{sW}, 3',f'v_and_b32 v{y}, 7, v{vM}',f'v_add_u32 v{y}, s13, v{y}',f'v_sub_u32 v{y}, v{y}, v{vM}',f'v_lshl_add_u32 v{vPS}, v{y}, {FS}, v{vFLo}'])
        while st['barr']==b0: yield 'gap'
        ids=[]
        for s in range(8):
            ids.append(g.lg(f'ds_read_b64 {vr(T+16+2*s,2)}, v{vM8} offset:{PQ_L+256*(7-s)}')); yield
        while g.lg_done<ids[7]: yield 'gap'
        for s in range(1,8): yield from cf(T+16+2*s,T+17+2*s,vL1kr,vL1ki,NL128i,T+14+2*s,T+15+2*s)
        g.lg(f'ds_write_b64 v{vM8}, {vr(T+30,2)} offset:{HIN_L}'); yield
        ids=[]
        for k in range(8):
            ids.append(g.lg(f'ds_read_b64 {vr(T+2*k,2)}, v{vT8} offset:{XCH_L+256*k}')); yield
        e(f's_lshl_b32 s12, s{sW}, 7'); e(f'v_add_u32 v{y}, s12, v{vHH16}'); yield
        for j in range(4):
            g.lg(f'ds_read_b128 {vr(GG+4*j,4)}, v{y} offset:{G_L+32*j}'); yield
        while g.lg_done<ids[7]: yield 'gap'
        for k in range(1,8): yield from cf(T+2*k,T+2*k+1,vL16r,vL16i,NL16i,T+2*k-2,T+2*k-1)
        P=[(T,T+1),(T+2,T+3)]
        st['rate']=O('rate3',[6,6,3])
        yield from seq([f'v_mul_f32 v{T+2}, v{vC2r}, v{T+14}',f'v_mul_f32 v{T+3}, v{vNC2i}, v{T+14}',
                        f'v_fmac_f32 v{T+2}, v{vNC2i}, v{T+15}',f'v_fma_f32 v{T+3}, -v{vC2r}, v{T+15}, v{T+3}'])
        for t in range(17):
            d,c=P[t&1],P[1-(t&1)]; L=[]
            if t<16: L+=[f'v_mul_f32 v{d[0]}, v{vLr}, v{c[0]}',f'v_mul_f32 v{d[1]}, v{vLr}, v{c[1]}']
            if t>0: L+=[f'v_fmac_f32 v{URE+t-1}, v{GG+t-1}, v{c[0]}',f'v_fmac_f32 v{UIM+t-1}, v{GG+t-1}, v{c[1]}']
            if t<16: L+=[f'v_fmac_f32 v{d[0]}, v{vLi}, v{c[1]}',f'v_fmac_f32 v{d[1]}, v{NLi}, v{c[0]}']
            if t>0 and t%2==0:
                u=t-2; L+=[f'v_cvt_pk_bf16_f32 v{URE+(u>>1)}, v{URE+u}, v{URE+u+1}',f'v_cvt_pk_bf16_f32 v{UIM+(u>>1)}, v{UIM+u}, v{UIM+u+1}']
            if t==11: st['wantrow']=True
            yield from seq(L)
        while st.get('trow') is None: yield 'gap'
        row=st['trow']
        if row>=4:
            e(f'v_add_u32 v{vTW}, {row*16384}, v{vTW}'); e(f'v_add_u32 v{vTRd}, {row*16384}, v{vTRd}'); ro=0
        else: ro=row*16384
        e(f'v_xor_b32 v{T+32}, 16, v{vTW}'); e(f'v_xor_b32 v{T+33}, 32, v{vTRd}')
        for mt,b in enumerate((URE,UIM)):
            g.lg(f'ds_write_b128 v{vTW}, {vr(b,4)} offset:{ro+2048*mt}'); yield 'gap'
            g.lg(f'ds_write_b128 v{T+32}, {vr(b+4,4)} offset:{ro+2048*mt}'); yield 'gap'
        for mt in range(2):
            for ks in range(2):
                for rho in range(2):
                    tl=g.lg(f'ds_read_b64_tr_b16 {vr(T+8*mt+4*ks+2*rho,2)}, v{T+33 if rho else vTRd} offset:{ro+2048*mt+ks*1024+rho*256}'); yield
        st['pendRel'].append((row,tl))
        if O('quiet',1): st['quiet']=True
        while g.lg_done<tl: yield 'gap'
        for i in range(4):
            sst=g.vm(f'buffer_store_dwordx4 {vr(T+4*i,4)}, v{vL16}, {srd(SWS)}, s{sT0} offen offset:{i*1024} sc1'); yield 'gap'
            for _ in range(O('sgap',1)): yield 'gap'
        stamp('sst'); n0=cur_n[0]; print('S stores gap',n0)
        while cur_n[0]<n0+O('slag',22) and cur_n[0]<286:
            if cur_n[0]>=n0+O('qlen',8): st['quiet']=False
            yield 'gap'
        g.wait(vm=sst); g.vm(f'buffer_store_dword v{vNON}, v{vFS}, {srd(SWS)}, 0 offen sc1'); stamp('sflag'); st['quiet']=False; print('S flag gap',cur_n[0])
        if O('poll_k',0)<0:
            while cur_n[0]<O('poll_gap',278): yield 'gap'
            st['pid']=g.vm(f'buffer_load_dword v{T+34}, v{vPS}, {srd(SWS)}, 0 offen sc1')
    assert SEQ=='AAAAAAAAFFFFFFFF'
    rdone={}
    def areads(n,part):
        if n>=32: return
        q,s=n>>2,n&3; sl=q%NS
        if s==0 and part==0:
            g.wait(vm=blk_last[q]); barrier(q); stamp(f'A{q}')
        b=ACC+12*(n%8)
        xa,xp,xo=(vRAw[s],PX[0][s],RING-ROW0+sl*SLOT) if sl<2 else (XA2[s],PX[1][s],(sl-2)*SLOT)
        wa=WA[sl>>1][s]; wo=(sl&1)*SLOT
        L=[f'ds_read_b128 {ar(32*q+16+4*s,4)}, v{xp} offset:{xo}',f'ds_read_b128 {ar(32*q+4*s,4)}, v{xa} offset:{xo}',f'ds_read_b128 {vr(b,4)}, v{wa} offset:{wo}',
           f'ds_read_b128 {vr(b+4,4)}, v{wa} offset:{wo+4096}',f'ds_read_b128 {vr(b+8,4)}, v{vGA} offset:{GW_L+q*128+s*32}']
        for t in (L[:2] if part==0 else L[2:]): rdone[n]=g.lg(t)
    LAA=O('laa',2)
    for n in range(LAA): areads(n,0); areads(n,1)
    side=side_params()
    for n in range(32):
        q,s=n>>2,n&3; b=ACC+12*(n%8); x=ar(32*q+4*s,4); z=(n==0)
        g.wait(lg=rdone[n])
        for j in range(3):
            cur_n[0]=3*n+j
            if j==0: e(f'v_mfma_f32_32x32x16_bf16 {vr(URE,16)}, {x}, {vr(b,4)}, {"0" if z else vr(URE,16)}')
            if j==1: e(f'v_mfma_f32_32x32x16_bf16 {vr(UIM,16)}, {x}, {vr(b+4,4)}, {"0" if z else vr(UIM,16)}')
            if j==2: e(f'v_mfma_f32_16x16x32_bf16 {vr(ZA,4)}, {vr(b+8,4)}, {x}, {"0" if z else vr(ZA,4)}')
            if j<2: areads(n+LAA,j)
            if j!=1: slot()
            next(side,None)
    for _ in side: pass
    stamp('A_end'); burst(); side=side2()
    trb=[RING]; rid={}
    def fread(n,h):
        if n>=96: return
        q,s,i=n//12,(n%12)//3,n%3; p=8+q
        if n%12==0 and h==0:
            g.wait(vm=blk_last[p],lg=st.get('elw')); barrier(p); stamp(f'F{q}')
            want=RING+slotof(p)*SLOT
            if not 0<=want-trb[0]<=49152:
                for k_ in range(2): e(f'v_add_u32 v{vTR[k_]}, {(want-trb[0])&0xffffffff:#x}, v{vTR[k_]}')
                trb[0]=want
        off=RING+slotof(p)*SLOT-trb[0]+s*3072+32*i+768*h
        rid[n]=g.lg(f'ds_read_b64_tr_b16 {vr(WR+4*(n%8)+2*h,2)}, v{vTR[i&1]} offset:{off}')
    LF=O('lf',4)
    for n in range(LF): fread(n,0); fread(n,1)
    for gp in range(192):
        cur_n[0]=96+gp
        n,rb=gp>>1,gp&1; q,s,i=n//12,(n%12)//3,n%3
        if rb==0: g.wait(lg=rid[n])
        acc=vr(ACC+16*(2*i+rb),16)
        e(f'v_mfma_f32_32x32x16_bf16 {acc}, {vr(WR+4*(n%8),4)}, {ar(32*q+16*rb+4*s,4)}, {"0" if n<3 else acc}')
        fread(n+LF,rb)
        if gp%24==23 and q<=O('qsp',5): st['space']+=[32*q,32*q+16]
        if gp==169 and O('b16',1): barrier(16)
        dma=(gp%O('dper',2)==O('dper',2)-1) if gp<O('dd',160) else (gp%3!=0)
        if dma: slot()
        elif st['w2on']: service()
        for _ in range(st.get('rate',[4,4,4])[2 if dma else 0]):
            if next(side,'gap')=='gap': break
    for _ in side: raise Exception('side left')
    g.wait_all_lg(); barrier(17); stamp('1b_end'); print('w2n at 1b_end',st['w2n'])
    x0,x1=URE+30,URE+31
    XS=URE+16; DS=URE+24; vXa=URE+26; vOa=URE+27; vGe=T+8; vZa=URE+28
    def addr2():
        e(f's_lshl_b32 s13, s{sRT}, 7'); e(f's_lshl_b32 s12, s{sRH}, 6'); e('s_add_u32 s13, s13, s12')
        e(f's_lshr_b32 s12, s{sW}, 1'); e('s_lshl_b32 s12, s12, 5'); e('s_add_u32 s13, s13, s12')
        e(f's_and_b32 s12, s{sW}, 1'); e('s_lshl_b32 s12, s12, 3'); e('s_add_u32 s13, s13, s12')
        e(f'v_lshrrev_b32 v{x0}, 4, v{vL}'); e(f'v_add_u32 v{x0}, s13, v{x0}')
        e(f'v_and_b32 v{x1}, 15, v{vL}'); e(f's_lshl_b32 s12, s{sCT}, 7'); e(f'v_lshl_add_u32 v{x1}, v{x1}, 3, s12')
        e(f'v_lshl_add_u32 v{vXa}, v{x0}, 10, v{x1}'); e(f'v_lshlrev_b32 v{vOa}, 1, v{vXa}')
        e(f's_lshl_b32 s13, s{sCG}, 2'); e(f's_add_u32 s13, s13, s{sW}'); e(f's_xor_b32 s12, s{sRT}, 15'); e('s_or_b32 s13, s13, s12')
        e(f'v_or_b32 v{vZa}, s13, v{vL}'); e(f'v_cmp_eq_u32 vcc, 0, v{vZa}'); e(f'v_mov_b32 v{vZa}, {OOB:#x}'); e(f'v_cndmask_b32 v{vZa}, v{vZa}, 0, vcc')
    def small_loads():
        g.vm(f'global_load_dwordx2 {vr(DS,2)}, v{x1}, s[32:33]')
        for it in range(4):
            e(f's_movk_i32 s14, {(16*(it&1)+4*(it>>1))*1024}')
            st['xl']=g.vm(f'buffer_load_dwordx2 {vr(XS+2*it,2)}, v{vXa}, {srd(SX)}, s14 offen')
    if O('small0',0): addr2(); small_loads()
    pump(O('t0pump',0))
    E0=WR
    vL16F=T+16
    pol=T+34
    aid={}
    def aload(k):
        base,kk=(26,k) if k<16 else (28,k-16)
        if kk%4==0: e(f's_add_u32 s20, s{base}, {kk*1024}'); e(f's_add_u32 s21, s{base+1}, {kk*1024}')
        for tb in range(2):
            aid[k]=g.vm(f'buffer_load_dwordx4 {ar(192+8*(k%8)+4*tb,4)}, v{vL16}, {srd(SWS)}, s{20+tb} offen offset:{(kk%4)*1024} sc1')
    ALA=O('ala',7); na=[0]
    fl={}
    e(f's_cmp_eq_u32 s{sCG}, 15'); e(f's_cselect_b32 s12, {OOB:#x}, 0'); e(f'v_or_b32 v{vL16F}, s12, v{vL16}')
    if O('poll_k',0)<0: pid=st['pid']
    if O('chk_k',3)<0:
        check(pid,pol,0,'fs',61,vPS)
        for _ in range(O('apre',4)): aload(na[0]); na[0]+=1
    for pr in range(3):
        for h in range(2):
            k=2*pr+h
            G=ACC+16*k; Uu=G+8
            R=range(0,8,2)
            for i in R: e(f'v_pk_mul_f32 {vr(E0+i%8,2)}, {vr(G+i,2)}, s[{sNL2E}:{sNL2E+1}] op_sel_hi:[1,0]')
            for i in range(8): e(f'v_exp_f32 v{E0+i}, v{E0+i}')
            for i in R: e(f'v_pk_mul_f32 {vr(G+i,2)}, {vr(G+i,2)}, {vr(Uu+i,2)}')
            for i in R: e(f'v_pk_fma_f32 {vr(E0+i%8,2)}, {vr(E0+i%8,2)}, {vr(vCinv,2)}, {vr(vCinv,2)} '+('op_sel:[0,1,1] op_sel_hi:[1,1,1]' if h else 'op_sel_hi:[1,0,0]'))
            for i in range(8): e(f'v_rcp_f32 v{E0+i}, v{E0+i}')
            for i in R: e(f'v_pk_mul_f32 {vr(G+i,2)}, {vr(G+i,2)}, {vr(E0+i%8,2)}')
            pk=E0+8+4*k
            for i in range(4): e(f'v_cvt_pk_bf16_f32 v{pk+i}, v{G+2*i}, v{G+2*i+1}')
            if k==O('poll_k',0): pid=g.vm(f'buffer_load_dword v{pol}, v{vPS}, {srd(SWS)}, 0 offen sc1')
            if k==O('chk_k',3):
                check(pid,pol,0,'fs',61,vPS)
                for _ in range(O('apre',4)): aload(na[0]); na[0]+=1
            if k>O('chk_k',3) and k<O('amid_stop',5):
                for _ in range(O('amid',0)): aload(na[0]); na[0]+=1
            fst=g.vm(f'buffer_store_dwordx4 {vr(pk,4)}, v{vL16F}, {srd(SWS)}, s{16+h} offen offset:{pr*1024} sc1')
    stamp('ffn_epi'); print('w2n at ffn_epi',st['w2n'])
    assert st['w2n']>=4*NMV
    while st['pendC']: service(force=True)
    if O('chk_k',3)>5: check(pid,pol,0,'fs',61,vPS)
    while na[0]<O('apre2',4): aload(na[0]); na[0]+=1
    def drain(n):
        for _ in range(n):
            r=pump(1)
            if r=='blocked' and (st['pendC'] or st['pendRel']):
                service(force=True); service(force=True); r=pump(1)
    vT0=[vTa[0],T+20,T+21]; vT1=[vTa[1],T+22,T+23]
    for k in (1,2):
        e(f'v_add_u32 v{vT0[k]}, {65536*k}, v{vT0[0]}'); e(f'v_add_u32 v{vT1[k]}, {65536*k}, v{vT1[0]}')
    if not O('small0',0): addr2()
    stamp('p2s')
    def fflag():
        g.wait(vm=fst); g.vm(f'buffer_store_dword v{vNON}, v{vFS}, {srd(SWS)}, 0 offen offset:128 sc1'); stamp('fflag')
    if O('fflag_k',2)<0: fflag()
    g.wait_all_lg()
    wid={}
    def wread(k):
        u,ks=(k-16)>>1,k&1; gi=8+u
        assert st['w2n']>=4*gi+4,(k,st['w2n'])
        g.wait(vm=st['Flast'][gi]); row=st['Frow'][gi]
        for db in range(2):
            b=WR+8*(k%4)+4*db
            ad=(vT0,vT1)[db][row>>2]
            for rho in range(2):
                wid[k]=g.lg(f'ds_read_b64_tr_b16 {vr(b+2*rho,2)}, v{ad} offset:{(row&3)*16384+ks*2048+rho*1024}')
    wj=[T+4,T+5,T+6,T+7]; rd=[T+40,T+41]; SK=URE; dsk=[T+42+i for i in range(4)]
    def side_fin():
        y0,y1=T+16,T+17
        e(f'v_lshrrev_b32 v{y0}, 4, v{vM}'); e(f'v_lshlrev_b32 v{y0}, 14, v{y0}'); e(f'v_and_b32 v{y1}, 15, v{vM}'); yield
        e(f'v_lshl_add_u32 v{y0}, v{y1}, 8, v{y0}'); e(f'v_and_b32 v{y1}, 7, v{vM}'); e(f'v_lshlrev_b32 v{y1}, 4, v{y1}'); yield
        e(f'v_xor_b32 v{y1}, v{y1}, v{vHH16}'); e(f'v_add3_u32 v{wj[0]}, v{y0}, v{y1}, s{sM0R}'); yield
        for j in range(1,4): e(f'v_xor_b32 v{wj[j]}, {32*j}, v{wj[0]}')
        yield
        e(f'v_lshrrev_b32 v{y0}, 4, v{vL}'); e(f'v_and_b32 v{y1}, 15, v{vL}'); e(f'v_xor_b32 v{y1}, v{y1}, v{y0}'); yield
        e(f'v_lshlrev_b32 v{y1}, 4, v{y1}'); e(f'v_lshl_add_u32 v{y1}, v{y0}, 8, v{y1}'); yield
        e(f's_lshl_b32 s12, s{sW}, 14'); e(f's_add_u32 s12, s12, {ROW0}'); e(f'v_add_u32 v{rd[0]}, s12, v{y1}'); e(f'v_xor_b32 v{rd[1]}, 64, v{rd[0]}'); yield
        e(f's_lshl_b32 s13, s{sRH}, 8'); e(f's_lshl_b32 s12, s{sW}, 6'); e('s_add_u32 s12, s12, s13'); e(f'v_lshl_add_u32 v{y0}, v{y0}, 2, s12'); yield
        for it in range(4): gl=g.lg(f'ds_read_b32 v{vGe+it}, v{y0} offset:{G_L+16*it}')
        yield
        while 'xl' not in st or g.nvm-st['xl']<12: yield
        g.wait(vm=st['xl'])
        e(f'v_lshlrev_b32 v{dsk[0]}, 16, v{DS}'); e(f'v_and_b32 v{dsk[1]}, 0xffff0000, v{DS}'); yield
        e(f'v_lshlrev_b32 v{dsk[2]}, 16, v{DS+1}'); e(f'v_and_b32 v{dsk[3]}, 0xffff0000, v{DS+1}'); yield
        g.wait(lg=gl)
        for it in range(4):
            for h in range(2):
                a,b=SK+4*it+2*h,SK+4*it+2*h+1
                e(f'v_lshlrev_b32 v{a}, 16, v{XS+2*it+h}'); e(f'v_and_b32 v{b}, 0xffff0000, v{XS+2*it+h}')
                e(f'v_mul_f32 v{a}, v{a}, v{dsk[2*h]}'); yield
                e(f'v_mul_f32 v{b}, v{b}, v{dsk[2*h+1]}')
                e(f'v_cvt_pk_bf16_f32 v{b}, v{a}, v{b}')
                e(f'v_lshlrev_b32 v{a}, 16, v{b}'); yield
                e(f'v_and_b32 v{b}, 0xffff0000, v{b}')
                e(f'v_mul_f32 v{a}, v{a}, v{vGe+it}'); e(f'v_mul_f32 v{b}, v{b}, v{vGe+it}'); yield
    side=side_fin()
    pid2=None
    FK=O('fchk_k',12)
    KT=34 if O('amaj',1) else 38
    for k in range(KT):
        if (16+2*(NMV-8))<=k+2<38: wread(k+2)
        g.wait(vm=aid[k])
        if k>=(16+2*(NMV-8)): g.wait(lg=wid[k])
        if k in (0,8,16,24,32): stamp(f'k{k}')
        for db in range(2):
            for tb in range(2):
                acc=vr(ACC+16*(2*db+tb),16)
                Wf=ar(loc[k,db],4) if k<(16+2*(NMV-8)) else vr(WR+8*(k%4)+4*db,4)
                e(f'v_mfma_f32_32x32x16_bf16 {acc}, {Wf}, {ar(192+8*(k%8)+4*tb,4)}, {"0" if k==0 else acc}')
                next(side,None)
            if db==0:
                if k==FK: check(pid2,pol+1,128,'ff',59,vPF)
                lim=min(38,k+ALA+1) if k>=FK else min(16,k+ALA+1)
                cnt_=0
                while na[0]<lim and cnt_<O('acatch',2): aload(na[0]); na[0]+=1; cnt_+=1
                if k==FK-O('poll2_lead',4): pid2=g.vm(f'buffer_load_dword v{pol+1}, v{vPF}, {srd(SWS)}, 0 offen offset:128 sc1')
        if k==O('fflag_k',2): fflag()
        cur_n[0]+=6
        if st['w2n']<76 and k>=O('mix0',4): drain(O('mix',3))
        if k==O('small_at',9) and not O('small0',0): small_loads()
        if KT==34 and k in (32,33): wread(k+4)
    for _ in side: raise Exception('side_fin left')
    wq=[]
    if KT==34:
        for db in range(2):
            for tb in range(2):
                acc=vr(ACC+16*(2*db+tb),16)
                for k in range(34,38):
                    g.wait(vm=aid[k],lg=wid[k])
                    e(f'v_mfma_f32_32x32x16_bf16 {acc}, {vr(WR+8*(k%4)+4*db,4)}, {ar(192+8*(k%8)+4*tb,4)}, {acc}')
                    if k>=36:
                        for _ in range(2):
                            if wq: g.lg(wq.pop(0))
                wq+=[f'ds_write_b128 v{wj[j]}, {vr(ACC+16*(2*db+tb)+4*j,4)} offset:{db*128+tb*32768}' for j in range(4)]
    else:
        wq=[f'ds_write_b128 v{wj[j]}, {vr(ACC+16*(2*db+tb)+4*j,4)} offset:{db*128+tb*32768}' for db in range(2) for tb in range(2) for j in range(4)]
    stamp('p2_end')
    for t in wq: g.lg(t)
    g.wait_all_lg(); e('s_barrier'); stamp('red')
    g.vm(f'buffer_store_dword v{vNON}, v{vZa}, {srd(SWS)}, 0 offen offset:{Z_OFF} sc1')
    RB=ACC
    ids={}
    for it in range(4):
        for w2 in range(4):
            ids[it,w2]=g.lg(f'ds_read_b128 {vr(RB+16*it+4*w2,4)}, v{rd[it&1]} offset:{w2*4096+it*1024}')
    for it in range(4):
        g.wait(lg=ids[it,3])
        b=RB+16*it
        for i in (0,2): e(f'v_pk_add_f32 {vr(b+i,2)}, {vr(b+i,2)}, {vr(SK+4*it+i,2)}')
        for i in (0,2): e(f'v_pk_add_f32 {vr(b+4+i,2)}, {vr(b+4+i,2)}, {vr(b+8+i,2)}')
        for i in (0,2): e(f'v_pk_add_f32 {vr(b+i,2)}, {vr(b+i,2)}, {vr(b+12+i,2)}')
        for i in (0,2): e(f'v_pk_add_f32 {vr(b+i,2)}, {vr(b+i,2)}, {vr(b+4+i,2)}')
        e(f's_mov_b32 s12, {(16*(it&1)+4*(it>>1))*2048}')
        g.vm(f'buffer_store_dwordx4 {vr(b,4)}, v{vOa}, {srd(SOUT)}, s12 offen {O("outfl","sc1")}')
    if O('stamps'):
        stamp('st_iss')
        e('s_waitcnt vmcnt(0)'); stamp('end',True)
        e('s_memrealtime s[94:95]'); e('s_waitcnt lgkmcnt(0)'); e('v_writelane_b32 v39, s94, 63')
        e(f's_lshl_b32 s11, s2, 10'); e(f's_add_u32 s11, s11, {WS_SIZE}'); e(f's_add_u32 s{SWS+2}, s{SWS+2}, 0x40000')
        e(f'v_lshlrev_b32 v{T}, 2, v0')
        e(f'buffer_store_dword v39, v{T}, {srd(SWS)}, s11 offen')
        if O('dbg'):
            sel=['start','setup','B0','B4','B8','B12','1b_end','ssm_fin','ffn_epi','w2_issued','fs_ok','k16','p2_end','end']
            e('s_mov_b32 s60, s46'); e('s_mov_b32 s61, s47'); e('s_mov_b32 s62, 256'); e('s_mov_b32 s63, 0x20000')
            e('v_readlane_b32 s12, v39, 62'); e('v_readlane_b32 s13, v39, 0'); e('s_not_b32 s12, s12')
            e(f'v_mov_b32 v{T+1}, s94'); e(f'v_mov_b32 v{T+2}, s12'); e(f'v_mov_b32 v{T+3}, 0'); e(f'v_mov_b32 v{T+4}, {OOB:#x}')
            e(f'v_cmp_eq_u32 vcc, 0, v0'); e(f'v_cndmask_b32 v{T+3}, v{T+4}, v{T+3}, vcc')
            e(f'buffer_atomic_umax v{T+1}, v{T+3}, s[60:63], 0 offen'); e(f'buffer_atomic_umax v{T+2}, v{T+3}, s[60:63], 0 offen offset:4')
            e('s_cmp_eq_u32 s2, 100'); e('s_cbranch_scc0 L_end')
            for i,nm in enumerate(sel):
                e(f'v_readlane_b32 s12, v39, {stamps.index(nm)}'); e('s_sub_u32 s12, s12, s13'); e(f'v_mov_b32 v{T+1}, s12')
                e(f'buffer_store_dword v{T+1}, v{T+3}, s[60:63], 0 offen offset:{8+4*i}')
    if O('diag'):
        e('s_waitcnt vmcnt(0)')
        if O('diag')==2:
            e(f'v_mov_b32 v{T+31}, 0'); e(f'global_load_dword v{T+30}, v{T+31}, s[46:47] sc1'); e('s_waitcnt vmcnt(0)')
            e(f'v_readfirstlane_b32 s94, v{T+30}'); e('s_nop 3'); e('s_not_b32 s94, s94')
        if O('dpt'):
            e('s_waitcnt lgkmcnt(0)'); e('s_sub_u32 s12, s92, s94'); e('s_lshl_b32 s12, s12, 1')
            e('s_memrealtime s[92:93]'); e('s_waitcnt lgkmcnt(0)')
        else:
            e('s_memrealtime s[92:93]'); e('s_waitcnt lgkmcnt(0)'); e('s_sub_u32 s12, s92, s94')
        e('s_min_u32 s12, s12, 20000'); e('s_add_u32 s12, s12, s92')
        e('L_dg:'); e('s_memrealtime s[92:93]'); e('s_waitcnt lgkmcnt(0)'); e('s_sub_u32 s13, s92, s12'); e('s_cmp_lt_i32 s13, 0'); e('s_cbranch_scc1 L_dg')
    e('L_end:')
    e('s_endpgm')
    hdr=open('gated_mix__ssm_conv_s5__glu_gated_swiglu__prompt.s.ref').read().split('; Override')[0]
    out=hdr+'; @launch grid=(256,1,1) block=(256,1,1) lds=163840\n'
    out+="""; One fused launch, 256 workgroups (one per CU) x 4 waves, written by a generator script (own code):
"""
    out+=f'.amdgcn_target "amdgcn-amd-amdhsa--gfx950"\n.text\n.globl {NAME}\n.p2align 8\n.type {NAME},@function\n{NAME}:\n'
    out+=g.text()
    out+=f'.fill (32768+256-(.-{NAME}))/4, 4, 0xbf810000\n'
    out+=f'''.section .rodata,"a"
.p2align 6
.amdhsa_kernel {NAME}
  .amdhsa_next_free_vgpr 512
  .amdhsa_next_free_sgpr 102
  .amdhsa_accum_offset 256
  .amdhsa_group_segment_fixed_size 0
  .amdhsa_kernarg_size 136
  .amdhsa_user_sgpr_count 2
  .amdhsa_user_sgpr_kernarg_segment_ptr 1
  .amdhsa_system_sgpr_workgroup_id_x 1
.end_amdhsa_kernel
'''
    return out,g
if __name__=='__main__':
    import json
    opt=json.loads(sys.argv[2]) if len(sys.argv)>2 else {}
    out,g=gen(opt)
    open(sys.argv[1],'w').write(out)
    if g.stamps: json.dump(g.stamps,open(sys.argv[1]+'.names','w'))
    from collections import Counter
    print(len(g.ins),Counter(i.cls for i in g.ins), 'nops',sum(1 for i in g.ins if i.mn=='s_nop'))
```
